```python
import torch

def _softmax(x, axis=-1):
    return torch.softmax(x, dim=axis)
def _gelu(x):
    return torch.nn.functional.gelu(x, approximate="tanh")
def _silu(x):
    return torch.nn.functional.silu(x)
def _sigmoid(x):
    return torch.sigmoid(x)
def _layernorm(x, axis=-1, eps=1e-5):
    m = x.mean(dim=axis, keepdim=True)
    v = x.var(dim=axis, keepdim=True, unbiased=False)
    return (x - m) / torch.sqrt(v + eps)
def _scatter_add(tgt, idx, src, axis=0):
    return tgt.clone().index_add_(axis, idx, src)
def _segment_sum(src, seg, n):
    out = torch.zeros((n,) + src.shape[1:], dtype=src.dtype)
    return out.index_add_(0, seg, src)
def _pad(x, pw):
    flat = tuple(v for pair in reversed(pw) for v in pair)
    return torch.nn.functional.pad(x, flat)

kernel_name = 'sequential_preLN__spectral_gfnet__glu_gated_geglu__prompt'

def setup_inputs():

    _w = (lambda a: (lambda t: t.to(torch.bfloat16) if t.is_floating_point() else t)(torch.as_tensor(a)))
    def _A_setup():
        B, S, D = 1, 2048, 512
        Df = D // 2 + 1
        return {
            "x": _w((lambda *s: torch.randn(*s, dtype=torch.bfloat16) * 0.05)(B, S, D)),
            "w_r": _w((lambda *s: torch.randn(*s, dtype=torch.bfloat16) * 0.4)(S, Df) * 0.02),
            "w_i": _w((lambda *s: torch.randn(*s, dtype=torch.bfloat16) * 0.4)(S, Df) * 0.02),
        }
    _A_in = _A_setup()

    def _B_setup():
        B, S, Dm, Df = 1, 2048, 512, 1792
        return {
            "x": _w((lambda *s: torch.randn(*s, dtype=torch.bfloat16) * 0.05)(B, S, Dm)),
            "w_gate": _w((lambda *s: torch.randn(*s, dtype=torch.bfloat16) * 0.4)(Dm, Df) * (Dm ** -0.5)),
            "w_up": _w((lambda *s: torch.randn(*s, dtype=torch.bfloat16) * 0.4)(Dm, Df) * (Dm ** -0.5)),
            "w_down": _w((lambda *s: torch.randn(*s, dtype=torch.bfloat16) * 0.4)(Df, Dm) * (Df ** -0.5)),
        }
    _B_in = _B_setup()

    return {
        "A_x": _A_in["x"],
        "A_w_r": _A_in["w_r"],
        "A_w_i": _A_in["w_i"],
        "B_x": _B_in["x"],
        "B_w_gate": _B_in["w_gate"],
        "B_w_up": _B_in["w_up"],
        "B_w_down": _B_in["w_down"],
    }

def reference(A_x, A_w_r, A_w_i, B_x, B_w_gate, B_w_up, B_w_down):
    def _A_ref(x, w_r, w_i):
        B, S, D = x.shape
        X = (lambda x, axes=(-2,-1): torch.fft.rfft2(x.float(), dim=axes))(x, axes=(-2, -1))
        W = w_r + 1j * w_i
        X = X * W
        y = (lambda x, s, axes=(-2,-1): torch.fft.irfft2(x, s=s, dim=axes).to(torch.bfloat16))(X, (S, D), axes=(-2, -1))
        return y

    def _B_ref(x, w_gate, w_up, w_down):
        g = torch.einsum("bsd,df->bsf", x, w_gate)
        u = torch.einsum("bsd,df->bsf", x, w_up)
        h = _gelu(g) * u
        return torch.einsum("bsf,fd->bsd", h, w_down)

    x = A_x
    h = x + _A_ref(_layernorm(x, axis=-1), A_w_r, A_w_i)
    h2 = h + _B_ref(_layernorm(h, axis=-1), B_w_gate, B_w_up, B_w_down)
    return h2
```

```python
import re

REG = re.compile(r'^(-|abs\()?([vas])(?:(\d+)|\[(\d+):(\d+)\])\)?$')
def regs(tok):
    tok = tok.strip()
    if tok in ('vcc',): return {('s',106),('s',107)}
    if tok == 'vcc_lo': return {('s',106)}
    if tok == 'vcc_hi': return {('s',107)}
    if tok == 'exec': return {('s',126),('s',127)}
    if tok == 'm0': return {('s',124)}
    m = REG.match(tok)
    if not m: return set()
    f = m.group(2)
    if m.group(3) is not None: return {(f,int(m.group(3)))}
    return {(f,i) for i in range(int(m.group(4)), int(m.group(5))+1)}

TRANS = ('v_exp_f32','v_log_f32','v_rcp_f32','v_rsq_f32','v_sqrt_f32','v_sin_f32','v_cos_f32')
class Ins:
    def __init__(s, text):
        s.text = text
        t = text.split(';')[0].strip()
        p = t.split(None,1)
        s.op = p[0]
        rest = p[1] if len(p)>1 else ''
        ops = []; depth=0; cur=''
        for ch in rest:
            if ch=='[': depth+=1
            if ch==']': depth-=1
            if ch==',' and depth==0: ops.append(cur.strip()); cur=''
            else: cur+=ch
        if cur.strip(): ops.append(cur.strip())
        s.mods=''
        if ops:
            q = ops[-1].split(None,1)
            ops[-1]=q[0]; s.mods = q[1] if len(q)>1 else ''
        s.ops=ops
        op=s.op
        s.mfma = op.startswith('v_mfma')
        s.valu = op.startswith('v_') and not s.mfma
        s.salu = op.startswith('s_') and not op.startswith(('s_load','s_mem','s_waitcnt','s_nop','s_barrier','s_cbranch','s_branch','s_endpgm','s_sleep','s_setprio'))
        s.smem = op.startswith(('s_load','s_mem'))
        s.vmem = op.startswith(('buffer_','global_'))
        s.ds = op.startswith('ds_')
        s.dma = s.vmem and (' lds' in (' '+s.mods) or 'load_lds' in op)
        s.store = (s.vmem and ('store' in op or 'atomic' in op)) or (s.ds and ('write' in op))
        s.trans = op.replace('_e32','').replace('_e64','') in TRANS
        s.dpp = '_dpp' in op or 'row_' in s.mods or 'quad_perm' in s.mods
        s.dot = op.startswith('v_dot')
        s.perml = op.startswith('v_permlane')
        s.rdlane = op.startswith(('v_readlane','v_readfirstlane'))
        R=[regs(o) for o in ops]
        s.dst=set(); s.src=set()
        if op.startswith(('s_waitcnt','s_nop','s_barrier','s_branch','s_endpgm','s_sleep','s_setprio','buffer_wbl2','buffer_inv')): pass
        elif op.startswith('s_cbranch'):
            if 'vcc' in op: s.src=regs('vcc')
        elif op.startswith('s_cmp') or op.startswith('s_bitcmp'):
            for r in R: s.src|=r
        elif s.store or s.dma:
            for r in R: s.src|=r
            if s.dma: s.src|=regs('m0')
        elif s.perml and 'swap' in op:
            s.dst=R[0]|R[1]; s.src=R[0]|R[1]
        elif op.startswith(('v_add_co','v_addc_co','v_sub_co')):
            s.dst=R[0]|R[1]
            for r in R[2:]: s.src|=r
        else:
            if R: s.dst=R[0]
            for r in R[1:]: s.src|=r
            if op.startswith(('v_fmac','v_dot2c','v_writelane','s_addk','s_mulk')) or s.dpp or 'd16' in op: s.src|=R[0]
            if 'saveexec' in op: s.dst|=regs('exec')
            if op.startswith('v_cndmask') and len(ops)==3: s.src|=regs('vcc')
        if s.mfma:
            s.A,s.B,s.C=R[1],R[2],R[3]
            s.passes = 8 if '32x32' in op else 4
        s.wide = s.vmem and s.store and ('x4' in op or 'x3' in op)
        if s.wide: s.data = R[0]
        s.states = 1
        if op=='s_nop': s.states=int(ops[0])+1

def need(p, c):
    n=0
    vd = {r for r in p.dst if r[0] in 'va'}
    sd = {r for r in p.dst if r[0]=='s'}
    if p.valu:
        if c.mfma and vd & c.src: n=max(n,2)
        if p.trans and vd & c.src: n=max(n,1)
        if c.dpp and vd & c.src: n=max(n,2)
        if c.perml and vd & c.src: n=max(n,2)
        if c.rdlane and vd & c.src: n=max(n,1)
        if sd & c.src:
            if c.vmem: n=max(n,5)
            elif c.rdlane or c.op.startswith('v_writelane'): n=max(n,4)
            elif c.valu or c.mfma: n=max(n,2)
            else: n=max(n,1)
        if p.dot and vd & (c.src|c.dst):
            if not (c.op==p.op and c.op.startswith('v_dot2c') ): n=max(n,3)
        if ('op_sel' in p.mods and not p.op.startswith('v_pk')) and vd & (c.src|c.dst): n=max(n,1)
    if p.mfma:
        big = 12 if p.passes==8 else 8
        if c.mfma:
            if vd & (c.A|c.B): n=max(n,big)
            if vd & c.C:
                if not (c.C==vd and c.passes==p.passes and c.op==p.op): n=max(n,big-2)
            elif vd & c.dst and not (c.dst==vd and c.op==p.op): n=max(n,big-2)
        elif vd & (c.src|c.dst): n=max(n,big)
        if (c.valu) and p.C & c.dst: n=max(n, 7 if p.passes==8 else 3)
    if p.salu and ('s',124) in p.dst and c.dma: n=max(n,1)
    if p.wide and p.data & c.dst: n=max(n,2)
    if p.ds and p.store and ('b128' in p.op or 'b96' in p.op) and c.valu and p.src & c.dst: n=max(n,1)
    return n

class Asm:
    def __init__(s):
        s.out=[]; s.hist=[]; s.vm=[]; s.lg=[]; s.nid=0; s.nops=0; s.count=0; s.cyc=0
    def raw(s, text): s.out.append(text)
    def label(s, name): s.out.append(name+':')
    def _push(s, ins):
        s.out.append('    '+ins.text); s.hist.append(ins); s.count+=1
        s.cyc+= 16 if ins.mfma else 8 if ins.trans else 60 if ins.op=='s_barrier' else 40 if (ins.op=='s_waitcnt' and 'lgkmcnt(0)' in ins.text) else 4*ins.states
        if len(s.hist)>24: s.hist.pop(0)
    def _wait(s, vm=None, lg=None):
        t=[]
        if vm is not None:
            vm=min(vm,63); t.append(f'vmcnt({vm})')
            if len(s.vm)>vm: s.vm = s.vm[len(s.vm)-vm:] if vm else []
        if lg is not None:
            if any(e[2] for e in s.lg): lg=0
            lg=min(lg,15); t.append(f'lgkmcnt({lg})')
            if len(s.lg)>lg: s.lg = s.lg[len(s.lg)-lg:] if lg else []
        s._push(Ins('s_waitcnt '+' '.join(t)))
    def __call__(s, text):
        h=None
        for line in text.split('\n'):
            if line.split(';')[0].strip(): h=s.emit(line.strip())
        return h
    def emit(s, text):
        ins=Ins(text)
        if ins.op=='s_waitcnt':
            vm=re.search(r'vmcnt\((\d+)\)',text); lg=re.search(r'lgkmcnt\((\d+)\)',text)
            s._wait(int(vm.group(1)) if vm else None, int(lg.group(1)) if lg else None); return None
        touch = ins.src|ins.dst
        vm=lg=None
        for i,e in enumerate(s.vm):
            if e[1] & touch: vm=len(s.vm)-1-i
        for i,e in enumerate(s.lg):
            if e[1] & touch: lg=len(s.lg)-1-i
        if vm is not None or lg is not None: s._wait(vm,lg)
        dist=0; req=0
        for p in reversed(s.hist):
            n=need(p,ins)-dist
            req=max(req,n)
            dist+=p.states
        while req>0:
            k=min(req,16); s._push(Ins(f's_nop {k-1}')); s.nops+=k; req-=k
        s._push(ins)
        s.nid+=1
        if ins.vmem: s.vm.append((s.nid, ins.dst if not (ins.store or ins.dma) else set(), False))
        if ins.ds: s.lg.append((s.nid, ins.dst, False))
        if ins.smem:
            s.lg.append((s.nid, ins.dst, True))
        return s.nid
    def wait_vm(s, h):
        for i,e in enumerate(s.vm):
            if e[0]==h: s._wait(vm=len(s.vm)-1-i); return
    def wait_lg(s, h=None):
        if h is None:
            if s.lg: s._wait(lg=0)
            return
        for i,e in enumerate(s.lg):
            if e[0]==h: s._wait(lg=len(s.lg)-1-i); return
    def wait_regs(s, rs):
        touch=set()
        for r in rs: touch|=regs(r)
        vm=lg=None
        for i,e in enumerate(s.vm):
            if e[1] & touch: vm=len(s.vm)-1-i
        for i,e in enumerate(s.lg):
            if e[1] & touch: lg=len(s.lg)-1-i
        if vm is not None or lg is not None: s._wait(vm,lg)
    def barrier(s):
        s.wait_lg(); s.emit('s_barrier')
    def text(s): return '\n'.join(s.out)

def V(a,n=1): return f'v{a}' if n==1 else f'v[{a}:{a+n-1}]'
def A(a,n=1): return f'a{a}' if n==1 else f'a[{a}:{a+n-1}]'
def S(a,n=1): return f's{a}' if n==1 else f's[{a}:{a+n-1}]'

class Pool:
    def __init__(s, lo, hi): s.free=list(range(lo,hi)); s.hi=0
    def get(s, n=1, al=None):
        al = al or (2 if n>1 else 1)
        fs=set(s.free)
        for a in s.free:
            if a%al==0 and all(a+i in fs for i in range(n)):
                for i in range(n): s.free.remove(a+i)
                s.hi=max(s.hi,a+n)
                return a
        raise RuntimeError('out of regs')
    def put(s, a, n=1):
        for i in range(n):
            assert a+i not in s.free
            s.free.append(a+i)
        s.free.sort()
```

```python
import sys, struct
from asmlib import *

KN = "sequential_preLN__spectral_gfnet__glu_gated_geglu__prompt_kernel"
OPT = dict(stamps=0, ng=2, kmaj=16, stop=99)
for a in sys.argv[2:]:
    kk,vv = a.split('='); OPT[kk]=int(vv)
NB = OPT['ng']
def fb(x): return '0x%08x' % struct.unpack('<I', struct.pack('<f', x))[0]

X1=0x100000; X1S=16512
X2=0x600000; X2S=8320
X3=0x900000; X3S=8320
HB=0xC00000
HH=0x1000000
STAMP=0x1800000
WSZ=0x2000000
R0=131072; R1=R0+8704; R2=R1+8704
LDSZ=163840
SPIN=400000

CG = 0.1029432397**(1/3)
KQ = 2.302208198/CG

k=Asm(); tail=[]
vp=Pool(32,256); vl=Pool(1,32); sp=Pool(52,100)
sX,sWr,sWi,sW1,sWd,sOut,sWs = 24,28,32,36,40,44,48
stamp_regs=[]
stq=[22,100,4,6,8,10,12,14,16,18,20,24,26,28,30,32,34]
def stamp(name):
    if OPT['stamps']:
        r=stq.pop(0); stamp_regs.append((name,r)); k(f's_memrealtime {S(r,2)}')

k.raw(f'{KN}:')
k('s_cmp_lt_u32 s2, 256')
k('s_cbranch_scc1 Lgo')
k('s_endpgm')
k.label('Lgo')
k('s_load_dwordx16 s[4:19], s[0:1], 0')
k('s_load_dwordx2 s[20:21], s[0:1], 72')
stamp('start')
sWave=sp.get(); sS2=sp.get(); sT0=sp.get(); sT1=sp.get(); sT2=sp.get(); sCnt=sp.get()
sXc=sp.get(); sJ=sp.get(); sPos=sp.get()
vL=vl.get(); vL16=vl.get(); vL4=vl.get()
vLo=vp.get(); vG=vp.get(); t0=vp.get(); t1=vp.get(); t2=vp.get(); t3=vp.get()
k(f'''v_lshrrev_b32 v{t0}, 6, v0
v_and_b32 v{vL}, 63, v0
v_readfirstlane_b32 s{sWave}, v{t0}
v_lshlrev_b32 v{vL4}, 2, v{vL}
v_lshlrev_b32 v{vL16}, 4, v{vL}
v_and_b32 v{vLo}, 15, v0
v_lshrrev_b32 v{vG}, 4, v{vL}
s_and_b32 s{sXc}, s2, 7
s_lshr_b32 s{sJ}, s2, 3
s_lshl_b32 s{sPos}, s{sXc}, 5
s_add_u32 s{sPos}, s{sPos}, s{sJ}
s_mov_b32 s{sCnt}, 0''')
mA=((1<<NB)-1)<<5; mB=((1<<NB)-1)<<(5-NB)
if NB:
    k(f'''s_and_b32 s{sT0}, s{sPos}, {mA}
s_and_b32 s{sT1}, s{sPos}, {mB}
s_andn2_b32 s{sS2}, s{sPos}, {mA|mB}
s_lshr_b32 s{sT0}, s{sT0}, {NB}
s_lshl_b32 s{sT1}, s{sT1}, {NB}
s_or_b32 s{sS2}, s{sS2}, s{sT0}
s_or_b32 s{sS2}, s{sS2}, s{sT1}''')
else:
    k(f's_mov_b32 s{sS2}, s{sPos}')

fLo=vp.get(); fG=vp.get(); fP=vp.get()
k(f'''v_cvt_f32_u32 v{fLo}, v{vLo}
v_cvt_f32_u32 v{fG}, v{vG}
v_and_b32 v{t0}, 3, v{vLo}
v_lshrrev_b32 v{t1}, 2, v{vLo}
v_lshl_add_u32 v{t0}, v{t0}, 2, v{t1}
v_cvt_f32_u32 v{fP}, v{t0}''')

def angles(base, step):
    a=vp.get(4)
    k(f'v_mov_b32 v{a}, v{base}')
    for r in range(1,4): k(f'v_add_f32 v{a+r}, v{a+r-1}, v{step}')
    return a
def mk_matrix(base, step, neg=False):
    a=angles(base,step); c=vp.get(4); re=vp.get(4); im=vp.get(4)
    for r in range(4): k(f'v_cos_f32 v{c+r}, v{a+r}')
    for r in range(4): k(f'v_sin_f32 v{a+r}, v{a+r}')
    for r in range(4):
        k(f'v_cvt_pk_bf16_f32 v{re+r}, v{c+r}, v{a+r}')
        k(f'v_cvt_pk_bf16_f32 v{im+r}, -v{a+r}, v{c+r}')
    res=[re,im]
    if neg:
        nre=vp.get(4); nim=vp.get(4)
        for r in range(4):
            k(f'v_xor_b32 v{nre+r}, 0x80008000, v{re+r}')
            k(f'v_xor_b32 v{nim+r}, 0x80008000, v{im+r}')
        res+=[nre,nim]
    vp.put(a,4); vp.put(c,4)
    return res
def mk_tw(base, step):
    a=angles(base,step); c=vp.get(4)
    for r in range(4): k(f'v_cos_f32 v{c+r}, v{a+r}')
    for r in range(4): k(f'v_sin_f32 v{a+r}, v{a+r}')
    return (c,a)

k(f'''v_mul_f32 v{t0}, {fb(1/16)}, v{fLo}
v_mul_f32 v{t1}, 4.0, v{t0}
v_mul_f32 v{t0}, v{t0}, v{fG}''')
F16=mk_matrix(t0,t1)

def srd(s, p, size):
    k(f's_mov_b32 s{s}, s{p}\ns_mov_b32 s{s+1}, s{p+1}\ns_mov_b32 s{s+2}, {size}\ns_mov_b32 s{s+3}, 0x20000')
srd(sX,4,2097152)
sXo=sp.get(2)
k(f'''s_lshl_b32 s{sT0}, s{sWave}, 9
s_add_u32 s{sT0}, s{sT0}, s{sS2}
s_lshl_b32 s{sXo}, s{sT0}, 10
s_add_u32 s{sXo+1}, s{sXo}, 262144''')
xr=vp.get(8)
for rho in range(2):
    for i in range(4):
        k(f'buffer_load_dword v{xr+4*rho+i}, v{vL4}, {S(sX,4)}, s{sXo+rho} offen offset:{256*i}')
sp.put(sXo,2)
sTag=sp.get(); sTagF=sp.get()
k(f's_load_dword s{sTag}, s[20:21], 0')
srd(sWr,6,1052672); srd(sWi,8,1052672); srd(sWs,20,WSZ)
k(f'''v_mul_u32_u24 v{t0}, 4112, v0
s_mul_i32 s{sT0}, s{sXc}, 514
s_lshl_b32 s{sT1}, s{sJ}, 4
s_add_u32 s{sT0}, s{sT0}, s{sT1}
s_add_u32 s{sT0}, s{sT0}, 2
s_lshl_b32 s{sT1}, s{sWave}, 10
s_add_u32 m0, s{sT1}, {R2}''')
k(f'buffer_load_dwordx4 v{t0}, {S(sWr,4)}, s{sT0} offen lds')
k(f's_add_u32 m0, s{sT1}, {R2+4096}')
hW=k(f'buffer_load_dwordx4 v{t0}, {S(sWi,4)}, s{sT0} offen lds')
vSent=vp.get(4)
for i in range(4): k(f'v_mov_b32 v{vSent+i}, -1')
sX2o=sp.get(); sX3o=sp.get()
k(f'''s_mul_i32 s{sX2o}, s2, {X2S}
s_lshl_b32 s{sT1}, s{sWave}, 11
s_add_u32 s{sX2o}, s{sX2o}, s{sT1}
s_add_u32 s{sX2o}, s{sX2o}, {X2}
s_mul_i32 s{sX3o}, s{sS2}, {X3S}
s_add_u32 s{sX3o}, s{sX3o}, s{sT1}
s_add_u32 s{sX3o}, s{sX3o}, {X3}''')
k(f'buffer_store_dwordx4 {V(vSent,4)}, v{vL16}, {S(sWs,4)}, s{sX2o} offen sc1')
hS2=k(f'buffer_store_dwordx4 {V(vSent,4)}, v{vL16}, {S(sWs,4)}, s{sX2o} offen offset:1024 sc1')
k(f'''s_cmp_lt_u32 s{sWave}, 2
s_cselect_b32 s{sW1}, s12, s14
s_cselect_b32 s{sW1+1}, s13, s15
s_mov_b32 s{sW1+2}, {512*3584}
s_mov_b32 s{sW1+3}, 0x20000''')
srd(sWd,16,1792*1024); srd(sOut,18,2097152)

vWdS=vl.get(); vB1S=vl.get(); vWdR=vl.get(2)
sWdo=sp.get(); sB1o=sp.get(); sLq=sp.get(); sPar=sp.get(); sF0=sp.get()
k(f'''v_lshrrev_b32 v{t0}, 3, v{vL}
v_and_b32 v{t1}, 7, v{vL}
v_and_b32 v{t2}, 1, v{vG}
v_lshlrev_b32 v{t3}, 2, v{t2}
v_xor_b32 v{t3}, v{t3}, v{t1}
v_lshlrev_b32 v{t3}, 4, v{t3}
v_lshl_add_u32 v{vWdS}, v{t0}, 10, v{t3}
s_and_b32 s{sT0}, s{sJ}, 7
s_lshl_b32 s{sT0}, s{sT0}, 7
s_mul_i32 s{sWdo}, s{sWave}, {448*1024}
s_add_u32 s{sWdo}, s{sWdo}, s{sT0}
s_lshl_b32 s{sLq}, s{sWave}, 15''')
wd_h={}; b1_h={}
def wd_dma(n0,n1):
    for n in range(n0,n1):
        k(f's_add_u32 s{sT0}, s{sWdo}, {n*8192}')
        k(f's_add_u32 m0, s{sLq}, {(n%32)*1024}')
        wd_h[n]=k(f'buffer_load_dwordx4 v{vWdS}, {S(sWd,4)}, s{sT0} offen lds')
def wd_tr(n0,n1):
    k.wait_vm(wd_h[n1-1])
    for n in range(n0,n1):
        tau,i=n>>1,n&1
        for ct in range(2):
            k(f'ds_read_b64_tr_b16 {A((tau*2+ct)*4+2*i,2)}, v{vWdR+ct} offset:{(n%32)*1024}')
    k.wait_lg()
def b1_dma(m0,m1):
    for m in range(m0,m1):
        k(f's_add_u32 s{sT0}, s{sB1o}, {m*7168}')
        k(f's_add_u32 m0, s{sLq}, {m*1024}')
        b1_h[m]=k(f'buffer_load_dwordx4 v{vB1S}, {S(sW1,4)}, s{sT0} offen lds')

wd_dma(0,8)

k(f'''v_mul_f32 v{t1}, {fb(1/16)}, v{fP}
v_mul_f32 v{t0}, 4.0, v{fG}
v_mul_f32 v{t0}, v{t0}, v{t1}''')
G16=mk_matrix(t0,t1)
k(f'v_fma_f32 v{t0}, v{t1}, 0.5, v{t0}')
G32=mk_matrix(t0,t1)
k(f'''v_mul_f32 v{t1}, {fb(1/256)}, v{fLo}
v_mul_f32 v{t0}, 4.0, v{fG}
v_mul_f32 v{t0}, v{t0}, v{t1}''')
TW0=mk_tw(t0,t1)
k(f'v_fma_f32 v{t0}, v{t1}, 0.5, v{t0}')
TWA=mk_tw(t0,t1)
M3=vp.get(2); fS2=vp.get(); c4=vp.get(4)
k(f'''v_cvt_f32_u32 v{fS2}, s{sS2}
v_lshrrev_b32 v{t0}, 1, v{vLo}
v_and_b32 v{t1}, 1, v{vLo}
v_cvt_f32_u32 v{t0}, v{t0}
v_cvt_f32_u32 v{t1}, v{t1}
v_mul_f32 v{fS2}, {fb(1/2048)}, v{fS2}
v_mul_f32 v{t1}, {fb(0.25)}, v{t1}
v_mul_f32 v{t2}, {fb(0.25)}, v{fG}
v_add_f32 v{t2}, v{t2}, v{fS2}
v_fma_f32 v{t1}, v{t2}, v{t0}, v{t1}
v_mul_f32 v{t0}, {fb(0.125)}, v{t0}
v_add_f32 v{t0}, v{t0}, v{t1}
v_cos_f32 v{c4}, v{t1}
v_sin_f32 v{c4+1}, v{t1}
v_cos_f32 v{c4+2}, v{t0}
v_sin_f32 v{c4+3}, v{t0}
v_sub_f32 v{t0}, v{c4}, v{c4+3}
v_add_f32 v{t1}, v{c4+1}, v{c4+2}
v_add_f32 v{t2}, v{c4}, v{c4+3}
v_sub_f32 v{t3}, v{c4+2}, v{c4+1}
v_cvt_pk_bf16_f32 v{M3}, v{t0}, v{t1}
v_cvt_pk_bf16_f32 v{M3+1}, v{t2}, v{t3}''')
aZw=vp.get(); aP=vp.get(); aN=vp.get()
k(f'''s_mul_i32 s{sT0}, s{sWave}, {513*4}
s_add_u32 s{sT0}, s{sT0}, {R0}
v_add_u32 v{aZw}, s{sT0}, v{vL4}
v_mul_u32_u24 v{t0}, {513*4}, v{vG}
v_lshlrev_b32 v{t1}, 3, v{vLo}
s_lshl_b32 s{sT0}, s{sWave}, 8
s_add_u32 s{sT1}, s{sT0}, {R0+4}
s_sub_u32 s{sT0}, {R0+4*(511-33)}, s{sT0}
v_add3_u32 v{aP}, v{t0}, v{t1}, s{sT1}
v_sub_u32 v{t0}, v{t0}, v{t1}
v_add_u32 v{aN}, s{sT0}, v{t0}''')
sX1o=sp.get()
k(f'''s_mul_i32 s{sX1o}, s{sS2}, {X1S}
s_lshl_b32 s{sT1}, s{sWave}, 12
s_add_u32 s{sX1o}, s{sX1o}, s{sT1}
s_add_u32 s{sX1o}, s{sX1o}, {X1}
s_add_u32 s{sTag}, s{sTag}, 1
s_and_b32 s{sTag}, s{sTag}, 0x1fff
s_or_b32 s{sTag}, s{sTag}, 0x4000
s_lshl_b32 s{sTagF}, s{sTag}, 16''')

def pk(op, d, *src, mods=''):
    k(f'{op} {V(d,2)}, '+', '.join(V(x,2) if isinstance(x,int) else x for x in src)+(' '+mods if mods else ''))
sSt=sp.get(4,2)
def stats(xf, scale):
    a=vp.get(8)
    for rho in range(2):
        pk('v_pk_add_f32', a+4*rho, xf+8*rho, xf+8*rho+2)
        pk('v_pk_mul_f32', a+4*rho+2, xf+8*rho, xf+8*rho)
    for j in (2,4,6):
        for rho in range(2):
            if j>2: pk('v_pk_add_f32', a+4*rho, a+4*rho, xf+8*rho+j)
            pk('v_pk_fma_f32', a+4*rho+2, xf+8*rho+j, xf+8*rho+j, a+4*rho+2)
    for j in (0,4,2,6): k(f'v_add_f32 v{a+j}, v{a+j}, v{a+j+1}')
    k(f'v_permlane32_swap_b32 v{a}, v{a+4}')
    k(f'v_permlane32_swap_b32 v{a+2}, v{a+6}')
    k(f'v_add_f32 v{a}, v{a}, v{a+4}')
    k(f'v_add_f32 v{a+2}, v{a+2}, v{a+6}')
    for m in ('row_ror:8 row_mask:0xf','row_ror:4 row_mask:0xf','row_ror:2 row_mask:0xf','row_ror:1 row_mask:0xf','row_bcast:15 row_mask:0xa'):
        for j in (0,2): k(f'v_add_f32_dpp v{a+j}, v{a+j}, v{a+j} {m} bank_mask:0xf')
    k(f'''v_mul_f32 v{a}, {fb(1/512)}, v{a}
v_mul_f32 v{a+2}, {fb(1/512)}, v{a+2}
v_fma_f32 v{a+2}, -v{a}, v{a}, v{a+2}
v_max_f32 v{a+2}, 0, v{a+2}
v_add_f32 v{a+2}, {fb(1e-5)}, v{a+2}
v_rsq_f32 v{a+2}, v{a+2}''')
    if scale!=1: k(f'v_mul_f32 v{a+2}, {fb(scale)}, v{a+2}')
    k(f'''v_mul_f32 v{a}, -v{a}, v{a+2}
v_readlane_b32 s{sSt}, v{a+2}, 31
v_readlane_b32 s{sSt+2}, v{a+2}, 63
v_readlane_b32 s{sSt+1}, v{a}, 31
v_readlane_b32 s{sSt+3}, v{a}, 63''')
    vp.put(a,8)
def normalize(xf):
    n=vp.get(16)
    for rho in range(2):
        for j in range(0,8,2):
            pk('v_pk_fma_f32', n+8*rho+j, xf+8*rho+j, S(sSt+2*rho,2), S(sSt+2*rho,2), mods='op_sel:[0,0,1] op_sel_hi:[1,0,1]')
    return n
def mf32(d,a,b,c='0'): k(f'v_mfma_f32_16x16x32_bf16 {V(d,4)}, {V(a,4)}, {V(b,4)}, {c if c=="0" else V(c,4)}')
def mf16(d,a,b): k(f'v_mfma_f32_16x16x16_bf16 {V(d,4)}, {V(a,2)}, {V(b,2)}, 0')
def cmul_pack(dre,dim,tw,out,conj=True,swap=False):
    c,s_=tw; t=vp.get(8)
    for j in (0,2):
        pk('v_pk_mul_f32', t+j, dre+j, c+j)
        pk('v_pk_mul_f32', t+4+j, dim+j, c+j)
    ng='neg_lo:[1,0,0] neg_hi:[1,0,0]'
    for j in (0,2):
        pk('v_pk_fma_f32', t+j, dim+j, s_+j, t+j, mods='' if conj else ng)
        pk('v_pk_fma_f32', t+4+j, dre+j, s_+j, t+4+j, mods=ng if conj else '')
    for r in range(4):
        a,b=(t+4+r,t+r) if swap else (t+r,t+4+r)
        k(f'v_cvt_pk_bf16_f32 v{out+r}, v{a}, v{b}')
    vp.put(t,8)

xf=vp.get(16,4)
for rho in range(2):
    for i in range(4):
        k(f'v_lshlrev_b32 v{xf+8*rho+i}, 16, v{xr+4*rho+i}')
        k(f'v_and_b32 v{xf+8*rho+4+i}, 0xffff0000, v{xr+4*rho+i}')
vp.put(xr,8)
stamp('xload')
stats(xf,1)
n=normalize(xf)
op=vp.get(8); D=vp.get(16)
for e in range(2):
    for i in range(4): k(f'v_cvt_pk_bf16_f32 v{op+4*e+i}, v{n+4*e+i}, v{n+8+4*e+i}')
    mf32(D+8*e, op+4*e, F16[0]); mf32(D+8*e+4, op+4*e, F16[1])
vp.put(n,16)
D2=vp.get(16)
for e in range(2):
    cmul_pack(D+8*e, D+8*e+4, (TW0,TWA)[e], op+4*e)
    Gm=(G16,G32)[e]
    mf32(D2+8*e, Gm[0], op+4*e); mf32(D2+8*e+4, Gm[1], op+4*e)
for j in (0,2,4,6): pk('v_pk_add_f32', D+j, D2+j, D2+8+j)
for j in (0,2,4,6): pk('v_pk_add_f32', D+8+j, D2+j, D2+8+j, mods='neg_lo:[0,1] neg_hi:[0,1]')
for t in range(2):
    for r in range(4): k(f'v_cvt_pk_bf16_f32 v{op+4*t+r}, v{D+8*t+r}, v{D+8*t+4+r}')
    for nn in (2*t,2*t+1):
        k(f'ds_write2st64_b32 v{aZw}, v{op+2*nn}, v{op+2*nn+1} offset0:{2*nn} offset1:{2*nn+1}')
k.wait_vm(hS2)
k.barrier()
for T in range(2):
    for e in range(2):
        k(f'ds_read_b32 v{op+4*T+2*e}, v{aP} offset:{4*(32*T+e)}')
        k(f'ds_read_b32 v{op+4*T+2*e+1}, v{aN} offset:{4*(33-32*T-e)}')
for T in range(2):
    for e in range(2): mf16(D+8*T+4*e, M3, op+4*T+2*e)
for T in range(2):
    for b0 in range(2):
        o=D2+8*T+4*b0
        for e in range(2):
            for c in range(2): k(f'v_cvt_pk_bf16_f32 v{o+2*e+c}, s{sTagF}, v{D+8*T+4*e+2*b0+c}')
        hA=k(f'buffer_store_dwordx4 {V(o,4)}, v{vL16}, {S(sWs,4)}, s{sX1o} offen offset:{(2*T+b0)*1024} sc1')
stamp('Adone')
for r_,n_ in ((G32[0],4),(G32[1],4),(TWA[0],4),(TWA[1],4),(M3,2),(aZw,1),(aP,1),(aN,1)): vp.put(r_,n_)
sp.put(sX1o)

sHo=sp.get(7,1)
k(f'''s_and_b32 s{sPar}, s{sS2}, 1
s_bfe_u32 s{sT0}, s{sS2}, 0x40001
s_mul_i32 s{sF0}, s{sT0}, 7
s_mul_i32 s{sT0}, s{sPar}, 3
s_add_u32 s{sF0}, s{sF0}, s{sT0}''')
sRtA=sp.get(); sRtB=sp.get()
k(f'''s_lshr_b32 s{sT0}, s{sS2}, 5
s_lshl_b32 s{sT0}, s{sT0}, 3
s_lshl_b32 s{sT1}, s{sWave}, 1
s_add_u32 s{sT0}, s{sT0}, s{sT1}
s_add_u32 s{sRtA}, s{sT0}, s{sPar}
s_xor_b32 s{sRtB}, s{sRtA}, 1''')
for u in range(7):
    jj=u if u<4 else u-4
    k(f'''s_add_u32 s{sT0}, s{sPar}, {jj}
s_and_b32 s{sT0}, s{sT0}, 3
s_add_u32 s{sT0}, s{sT0}, s{sF0}
s_mul_i32 s{sT1}, s{sRtA if u<4 else sRtB}, 112
s_add_u32 s{sT0}, s{sT0}, s{sT1}
s_lshl_b32 s{sT0}, s{sT0}, 10
s_add_u32 s{sHo+u}, s{sT0}, {HH}''')
    k(f'buffer_store_dwordx4 {V(vSent,4)}, v{vL16}, {S(sWs,4)}, s{sHo+u} offen sc1')
k(f'buffer_store_dwordx4 {V(vSent,4)}, v{vL16}, {S(sWs,4)}, s{sX3o} offen sc1')
hS3=k(f'buffer_store_dwordx4 {V(vSent,4)}, v{vL16}, {S(sWs,4)}, s{sX3o} offen offset:1024 sc1')
Wf=vp.get(16); wraw=vp.get(8)
k(f's_lshl_b32 s{sT0}, s{sWave}, 2\ns_add_u32 s{sT0}, s{sT0}, {R2}\nv_add_u32 v{t0}, s{sT0}, v{vL16}')
for m in range(2):
    for r in range(4): k(f'ds_read_b32 v{wraw+4*m+r}, v{t0} offset:{4096*m+1024*r}')
aBin=vp.get(); aBw=vp.get(); aBr=vp.get(); sBo=sp.get(4,1)
k(f'''v_lshrrev_b32 v{t1}, 2, v{vL}
v_and_b32 v{t2}, 3, v{vL}
v_mul_u32_u24 v{aBin}, {X1S}, v{t1}
v_lshl_add_u32 v{aBin}, v{t2}, 4, v{aBin}
v_mul_u32_u24 v{aBw}, 1056, v{t2}
v_lshl_add_u32 v{aBw}, v{t1}, 4, v{aBw}
s_lshl_b32 s{sT0}, s{sWave}, 8
s_add_u32 s{sT0}, s{sT0}, {R1}
v_add_u32 v{aBw}, s{sT0}, v{aBw}
s_mul_i32 s{sT0}, s{sWave}, 1056
s_add_u32 s{sT0}, s{sT0}, {R1}
v_add_u32 v{aBr}, s{sT0}, v{vL16}
s_lshr_b32 s{sT0}, s{sJ}, 2
s_lshl_b32 s{sT0}, s{sT0}, 11
s_and_b32 s{sT1}, s{sXc}, 1
s_lshl_b32 s{sT1}, s{sT1}, 10
s_add_u32 s{sT0}, s{sT0}, s{sT1}
s_lshr_b32 s{sT1}, s{sXc}, 1
s_lshl_b32 s{sT1}, s{sT1}, 8
s_add_u32 s{sT0}, s{sT0}, s{sT1}
s_and_b32 s{sT1}, s{sJ}, 3
s_lshl_b32 s{sT1}, s{sT1}, 6
s_add_u32 s{sT0}, s{sT0}, s{sT1}
s_mul_i32 s{sT1}, s{sWave}, {16*X1S}
s_add_u32 s{sT0}, s{sT0}, s{sT1}''')
for i in range(4): k(f's_add_u32 s{sBo+i}, s{sT0}, {X1+64*i*X1S}')
for m in range(2):
    for r in range(4):
        k(f'v_lshlrev_b32 v{Wf+4*m+r}, 16, v{wraw+4*m+r}')
        k(f'v_and_b32 v{Wf+8+4*m+r}, 0xffff0000, v{wraw+4*m+r}')
vp.put(wraw,8)
wd_dma(8,16)
k.wait_vm(hA)

def retry_block(name, loads, check):
    kk=Asm()
    kk.label(f'R_{name}')
    kk('s_nop 7')
    for l in loads: kk(l)
    kk('s_waitcnt vmcnt(0)')
    for c in check: kk(c)
    kk(f's_add_u32 s{sCnt}, s{sCnt}, 1')
    kk(f's_cmp_gt_u32 s{sCnt}, {SPIN}')
    kk(f's_cbranch_scc1 C_{name}')
    kk(f's_cbranch_vccnz R_{name}')
    kk(f's_branch C_{name}')
    tail.append(kk.text())
def checked(name, loads, check):
    for c in check: k(c)
    k(f's_cbranch_vccnz R_{name}')
    k.label(f'C_{name}')
    retry_block(name, loads, check)

ld=vp.get(16); ck=vp.get(2)
loads=[f'buffer_load_dwordx4 {V(ld+4*i,4)}, v{aBin}, {S(sWs,4)}, s{sBo+i} offen sc1' for i in range(4)]
stamp('Bpoll')
for l in loads: k(l)
wd_dma(16,28)
sPerm=sp.get(); k(f's_mov_b32 s{sPerm}, 0x07060302')
chk=[f'v_xor_b32 v{ck}, s{sTag}, v{ld}', f'v_xor_b32 v{ck+1}, s{sTag}, v{ld+1}']
for j in range(2,16): chk.append(f'v_bitop3_b32 v{ck+(j&1)}, v{ck+(j&1)}, v{ld+j}, s{sTag} bitop3:0xf6')
chk+= [f'v_or_b32 v{ck}, v{ck}, v{ck+1}', f'v_cmp_ne_u16 vcc, 0, v{ck}']
checked('B', loads, chk)
stamp('Bgot')
for e in range(2):
    for i in range(4): k(f'v_perm_b32 v{op+4*e+i}, v{ld+4*i+2*e+1}, v{ld+4*i+2*e}, s{sPerm}')
    k(f'ds_write_b128 v{aBw}, {V(op+4*e,4)} offset:{4224*e}')
k.barrier()
for e in range(2): k(f'ds_read_b128 {V(op+4*e,4)}, v{aBr} offset:{4224*e}')
aOw=vp.get(4); aOr=vp.get()
for r in range(4):
    k(f'v_add_u32 v{t0}, {64*r}, v{vL}')
    if NB:
        k(f'''v_and_b32 v{t1}, {mA}, v{t0}
v_and_b32 v{t2}, {mB}, v{t0}
v_and_b32 v{t0}, {255&~(mA|mB)}, v{t0}
v_lshrrev_b32 v{t1}, {NB}, v{t1}
v_lshlrev_b32 v{t2}, {NB}, v{t2}
v_or3_b32 v{t0}, v{t0}, v{t1}, v{t2}''')
    if r==0: k(f's_lshl_b32 s{sT0}, s{sWave}, 3\ns_add_u32 s{sT0}, s{sT0}, {R0}')
    k(f'''v_and_b32 v{t1}, 4, v{t0}
v_lshlrev_b32 v{t1}, 2, v{t1}
v_lshl_add_u32 v{t0}, v{t0}, 5, s{sT0}
v_xor_b32 v{aOw+r}, v{t0}, v{t1}''')
for e in range(2):
    mf32(D+8*e, op+4*e, F16[0]); mf32(D+8*e+4, op+4*e, F16[1])
for e in range(2):
    cmul_pack(D+8*e, D+8*e+4, TW0, op+4*e)
    mf32(D2+8*e, G16[0], op+4*e); mf32(D2+8*e+4, G16[1], op+4*e)
for e in range(2):
    cmul_pack(D2+8*e, D2+8*e+4, (Wf+8*e, Wf+8*e+4), op+4*e, conj=False, swap=True)
    mf32(D+8*e, op+4*e, F16[0]); mf32(D+8*e+4, op+4*e, F16[1])
for e in range(2):
    cmul_pack(D+8*e, D+8*e+4, TW0, op+4*e)
    mf32(D2+8*e, G16[0], op+4*e); mf32(D2+8*e+4, G16[1], op+4*e)
k(f'''v_lshrrev_b32 v{t0}, 3, v{vL}
v_and_b32 v{t0}, 1, v{t0}
v_xor_b32 v{t0}, v{t0}, v{vL}
s_lshl_b32 s{sT0}, s{sWave}, 11
s_add_u32 s{sT0}, s{sT0}, {R0}
v_lshl_add_u32 v{aOr}, v{t0}, 4, s{sT0}''')
for r in range(4):
    for e in range(2): k(f'v_cvt_pk_bf16_f32 v{op+2*r+e}, v{D2+8*e+4+r}, v{D2+8*e+r}')
    k(f'ds_write_b64 v{aOw+r}, {V(op+2*r,2)}')
k.wait_vm(hS3)
k.barrier()
for i in range(2): k(f'ds_read_b128 {V(ld+4*i,4)}, v{aOr} offset:{1024*i}')
for i in range(2): hB=k(f'buffer_store_dwordx4 {V(ld+4*i,4)}, v{vL16}, {S(sWs,4)}, s{sX2o} offen offset:{1024*i} sc1')
stamp('Bdone')
k(f'''s_or_b32 s{sT0}, s2, s{sWave}
s_cmp_lg_u32 s{sT0}, 0
s_cbranch_scc1 Lnon
v_mov_b32 v{t0}, 0
v_mov_b32 v{t1}, s{sTag}''')
k.raw(f'    buffer_store_dword v{t1}, v{t0}, {S(sWs,4)}, 0 offen sc1')
k.label('Lnon')
for r_,n_ in ((Wf,16),(aBin,1),(aBw,1),(aBr,1),(aOw,4),(aOr,1),(vSent,4)): vp.put(r_,n_)
sp.put(sBo,4); sp.put(sX2o)

k(f'''v_lshrrev_b32 v{t0}, 5, v{vL}
v_bfe_u32 v{t1}, v{vL}, 2, 2
v_lshl_add_u32 v{t0}, v{t0}, 2, v{t1}
v_lshlrev_b32 v{t0}, 7, v{t0}
v_and_b32 v{t2}, 1, v{vG}
v_lshl_add_u32 v{t0}, v{t2}, 5, v{t0}
v_and_b32 v{t2}, 3, v{vL}
v_lshl_add_u32 v{t0}, v{t2}, 3, v{t0}
v_lshrrev_b32 v{t1}, 1, v{t1}
v_lshlrev_b32 v{t1}, 6, v{t1}
v_add3_u32 v{vWdR}, v{t0}, v{t1}, s{sLq}
v_xor_b32 v{vWdR+1}, 64, v{vWdR}''')
wd_tr(0,28)
wd_dma(28,44)
k(f'''v_fma_f32 v{t3}, v{fLo}, 2.0, 1.0
v_mul_f32 v{t0}, {fb(1/32)}, v{t3}
v_mul_f32 v{t1}, 4.0, v{t0}
v_mul_f32 v{t0}, v{t0}, v{fG}''')
H=mk_matrix(t0,t1,neg=True)
k(f'''v_mul_f32 v{t1}, {fb(1/512)}, v{t3}
v_mul_f32 v{t0}, 4.0, v{fG}
v_mul_f32 v{t0}, v{t0}, v{t1}''')
TWC=mk_tw(t0,t1)
M3i=vp.get(2); u0=vp.get(4)
k(f'''v_lshrrev_b32 v{t0}, 2, v{vLo}
v_cvt_f32_u32 v{t0}, v{t0}
v_fma_f32 v{u0}, v{t0}, {"0.5"}, 0
v_fma_f32 v{u0}, v{u0}, 0.5, v{fS2}
v_bfe_u32 v{t0}, v{vLo}, 1, 1
v_and_b32 v{t1}, 1, v{vLo}
v_cvt_f32_u32 v{t0}, v{t0}
v_cvt_f32_u32 v{t1}, v{t1}
v_fma_f32 v{t0}, v{t0}, 2.0, -1.0
v_mul_f32 v{t0}, {fb(0.25)}, v{t0}
v_mul_f32 v{u0+1}, v{t0}, v{t1}''')
SC=2.0**-21
for nn in range(2):
    k(f'''v_fma_f32 v{t1}, v{fG}, 2.0, {"1.0" if nn else "0"}
v_fma_f32 v{t2}, v{u0}, v{t1}, v{u0+1}
v_mul_f32 v{t1}, {fb(0.125)}, v{t1}
v_sub_f32 v{t1}, v{t1}, v{t0}
v_add_f32 v{t1}, v{t1}, v{t2}
v_cos_f32 v{c4}, v{t2}
v_sin_f32 v{c4+1}, v{t2}
v_cos_f32 v{c4+2}, v{t1}
v_sin_f32 v{c4+3}, v{t1}
v_add_f32 v{t1}, v{c4}, v{c4+2}
v_add_f32 v{t2}, v{c4+1}, v{c4+3}
v_mul_f32 v{t1}, {fb(SC)}, v{t1}
v_mul_f32 v{t2}, {fb(-SC)}, v{t2}
v_cvt_pk_bf16_f32 v{M3i+nn}, v{t1}, v{t2}''')
nyq=vp.get(2); aCin=vp.get(); aCp=vp.get(); aCn=vp.get(); aCr=vp.get(2); sCo=sp.get(2,1)
CB=R1+16; CS=2064
k(f'''v_and_b32 v{t0}, 0xcf, v0
v_cmp_eq_u32 vcc, 0xcf, v{t0}
v_mov_b32 v{t1}, 0.5
v_cndmask_b32 v{nyq}, 1.0, v{t1}, vcc
v_cndmask_b32 v{nyq+1}, 0, v{t1}, vcc
v_lshrrev_b32 v{t0}, 1, v{vLo}
v_lshlrev_b32 v{t0}, 2, v{t0}
v_add_u32 v{t0}, v{t0}, v{vG}
v_mul_u32_u24 v{t0}, {2*X2S}, v{t0}
v_and_b32 v{t1}, 1, v{vLo}
v_lshl_add_u32 v{aCin}, v{t1}, 4, v{t0}
s_mul_i32 s{sT0}, s{sWave}, {64*X2S}
s_lshl_b32 s{sT1}, s{sPos}, 5
s_add_u32 s{sT0}, s{sT0}, s{sT1}
s_add_u32 s{sCo}, s{sT0}, {X2}
s_add_u32 s{sCo+1}, s{sT0}, {X2+X2S}
v_mul_u32_u24 v{t0}, {CS}, v{vG}
v_lshlrev_b32 v{t1}, 4, v{vLo}
s_lshl_b32 s{sT0}, s{sWave}, 8
s_add_u32 s{sT1}, s{sT0}, {CB}
s_sub_u32 s{sT0}, {CB+1024+4*252}, s{sT0}
v_add3_u32 v{aCp}, v{t0}, v{t1}, s{sT1}
v_sub_u32 v{t0}, v{t0}, v{t1}
v_add_u32 v{aCn}, s{sT0}, v{t0}
s_mul_i32 s{sT0}, s{sWave}, {CS}
s_add_u32 s{sT0}, s{sT0}, {CB-4}
v_add_u32 v{aCr}, s{sT0}, v{vL4}
v_add_u32 v{aCr+1}, {1028}, v{aCr}
v_mov_b32 v{t0}, s{sT0}
v_mov_b32 v{t1}, 0
ds_write_b32 v{t0}, v{t1}''')
k.wait_vm(hB)

loads=[f'buffer_load_dwordx4 {V(ld+4*i,4)}, v{aCin}, {S(sWs,4)}, s{sCo+i} offen sc1' for i in range(2)]
stamp('Cpoll')
for l in loads: k(l)
wd_dma(44,56)
def maxchk(regs_, ckr):
    c=[f'v_max_u32 v{ckr}, v{regs_[0]}, v{regs_[1]}']
    for j in range(2,len(regs_),2): c.append(f'v_max3_u32 v{ckr}, v{ckr}, v{regs_[j]}, v{regs_[j+1]}')
    return c
checked('C', loads, maxchk(list(range(ld,ld+8)),ck)+[f'v_cmp_eq_u32 vcc, -1, v{ck}'])
stamp('Cgot')
for e in range(4):
    k(f'v_pk_mov_b32 {V(op+2*e,2)}, {V(ld+(e&2),2)}, {V(ld+4+(e&2),2)} op_sel:[{e&1},{e&1}]')
for e in (3,0,1,2): mf16(D+4*e, M3i, op+2*e)
pk('v_pk_mul_f32', D+14, D+14, nyq, mods='op_sel:[0,0] op_sel_hi:[1,0]')
pk('v_pk_fma_f32', D+14, D+12, nyq, D+14, mods='op_sel:[0,1,0] op_sel_hi:[1,1,1]')
for e in (3,0,1,2): k(f'v_cvt_pk_bf16_f32 v{ld+e}, v{D+4*e+1}, v{D+4*e}')
k(f'ds_write_b128 v{aCp}, {V(ld,4)}')
for e in (3,0,1,2): k(f'v_cvt_pk_bf16_f32 v{ld+4+3-e}, v{D+4*e+3}, v{D+4*e+2}')
k(f'ds_write_b128 v{aCn}, {V(ld+4,4)}')
k.barrier()
for t in range(2):
    for nn in range(2): k(f'ds_read2st64_b32 {V(op+4*t+2*nn,2)}, v{aCr+t} offset0:{2*nn} offset1:{2*nn+1}')
aLw=vp.get(2); aLr=vp.get(); aHw=vp.get(); aHr=vp.get(); sHb=sp.get()
k(f'''v_and_b32 v{t0}, 7, v{vL}
s_lshl_b32 s{sT0}, s{sWave}, 1
v_xor_b32 v{t0}, s{sT0}, v{t0}
v_lshlrev_b32 v{t0}, 4, v{t0}
v_lshl_add_u32 v{t0}, v{vL}, 7, v{t0}
v_add_u32 v{aLw}, {R0}, v{t0}
v_xor_b32 v{aLw+1}, 16, v{aLw}''')
for e in range(2):
    for c in range(2): mf32(D+8*e+4*c, op, (F16,H)[e][c])
for e in range(2):
    for c in range(2): mf32(D+8*e+4*c, op+4, (F16[c],H[2+c])[e], D+8*e+4*c)
k(f'''v_lshrrev_b32 v{t0}, 3, v{vL}
v_xor_b32 v{t0}, v{t0}, v{vL}
s_lshl_b32 s{sT0}, s{sWave}, 11
s_add_u32 s{sT1}, s{sT0}, {R0}
v_lshl_add_u32 v{aLr}, v{t0}, 4, s{sT1}
s_add_u32 s{sT1}, s{sT0}, {R2}
v_add_u32 v{aHw}, s{sT1}, v{vL4}
v_add_u32 v{aHr}, s{sT1}, v{vL16}
s_lshl_b32 s{sHb}, s{sS2}, 13
s_add_u32 s{sHb}, s{sHb}, s{sT0}
s_add_u32 s{sHb}, s{sHb}, {HB}''')
for e in range(2):
    cmul_pack(D+8*e, D+8*e+4, (TW0,TWC)[e], op+4*e)
    mf32(xf+4*e, G16[1], op+4*e, xf+4*e)
    mf32(xf+8+4*e, G16[0], op+4*e, xf+8+4*e)
stats(xf,CG)
n=normalize(xf)
for rho in range(2):
    for i in range(4): k(f'v_cvt_pk_bf16_f32 v{op+4*rho+i}, v{n+8*rho+i}, v{n+8*rho+4+i}')
    k(f'ds_write_b128 v{aLw+rho}, {V(op+4*rho,4)}')
k.barrier()
for i in range(2): k(f'ds_read_b128 {V(ld+4*i,4)}, v{aLr} offset:{1024*i}')
for rho in range(2):
    for i in range(4): k(f'v_cvt_pk_bf16_f32 v{D+4*rho+i}, v{xf+8*rho+i}, v{xf+8*rho+4+i}')
for i in range(2): k(f'buffer_store_dwordx4 {V(ld+4*i,4)}, v{vL16}, {S(sWs,4)}, s{sX3o} offen offset:{1024*i} sc1')
stamp('Cdone')
for rho in range(2):
    for nn in range(2): k(f'ds_write2st64_b32 v{aHw}, v{D+4*rho+2*nn}, v{D+4*rho+2*nn+1} offset0:{4*rho+2*nn} offset1:{4*rho+2*nn+1}')
k.wait_lg()
for i in range(2): k(f'ds_read_b128 {V(D2+4*i,4)}, v{aHr} offset:{1024*i}')
for i in range(2): k(f'buffer_store_dwordx4 {V(D2+4*i,4)}, v{vL16}, {S(sWs,4)}, s{sHb} offen offset:{1024*i} sc1')

k(f'''v_lshrrev_b32 v{t0}, 4, v{vL}
v_bfe_u32 v{t1}, v{vL}, 3, 1
v_lshl_add_u32 v{t1}, v{t0}, 7, v{t1}
v_mul_u32_u24 v{t1}, 3584, v{t1}
v_and_b32 v{t0}, 1, v{t0}
s_and_b32 s{sT0}, s{sWave}, 2
v_or_b32 v{t0}, s{sT0}, v{t0}
v_lshlrev_b32 v{t0}, 1, v{t0}
v_and_b32 v{t2}, 7, v{vL}
v_xor_b32 v{t0}, v{t0}, v{t2}
v_lshl_add_u32 v{vB1S}, v{t0}, 4, v{t1}
s_and_b32 s{sT0}, s{sWave}, 1
s_mul_i32 s{sB1o}, s{sT0}, {32*7168}
s_lshl_b32 s{sT0}, s{sF0}, 5
s_add_u32 s{sB1o}, s{sB1o}, s{sT0}''')
wd_tr(28,56)
b1_dma(0,32)
aB=vl.get(4,1); aA=vl.get(); aPr=vl.get(); vck=vl.get(); vck2=vl.get(); vpr=vl.get()
k(f'''v_and_b32 v{t0}, 1, v{vG}
v_bfe_u32 v{t1}, v{vL}, 3, 1
v_lshl_add_u32 v{t1}, v{t0}, 1, v{t1}
v_lshlrev_b32 v{t0}, 16, v{t0}
v_lshrrev_b32 v{t2}, 5, v{vL}
v_lshl_add_u32 v{t0}, v{t2}, 10, v{t0}
v_bfe_u32 v{t2}, v{vL}, 2, 2
v_lshl_add_u32 v{t0}, v{t2}, 7, v{t0}
v_and_b32 v{t2}, 3, v{vL}
v_lshl_add_u32 v{t0}, v{t2}, 3, v{t0}''')
for jj in range(4):
    k(f'''s_add_u32 s{sT0}, s{sPar}, {jj}
s_and_b32 s{sT0}, s{sT0}, 3
v_xor_b32 v{t2}, s{sT0}, v{t1}
v_lshl_add_u32 v{aB+jj}, v{t2}, 5, v{t0}''')
sAo=sp.get(4,1)
k(f'''v_bfe_u32 v{t0}, v{vL}, 3, 2
v_mul_u32_u24 v{t0}, {X3S}, v{t0}
v_lshrrev_b32 v{t1}, 5, v{vL}
v_and_b32 v{t2}, 7, v{vL}
v_lshl_add_u32 v{aA}, v{t1}, 7, v{t0}
v_lshl_add_u32 v{aA}, v{t2}, 4, v{aA}
v_lshl_add_u32 v{aPr}, v{t1}, 9, v{t0}
v_lshl_add_u32 v{aPr}, v{t2}, 10, v{aPr}
s_mul_i32 s{sT0}, s{sRtA}, {4*X3S}
s_add_u32 s{sAo}, s{sT0}, {X3}
s_add_u32 s{sAo+1}, s{sT0}, {X3+4096}
s_mul_i32 s{sT0}, s{sRtB}, {4*X3S}
s_add_u32 s{sAo+2}, s{sT0}, {X3}
s_add_u32 s{sAo+3}, s{sT0}, {X3+4096}''')
sp.put(sCo,2); sp.put(sHb); sp.put(sX3o); sp.put(sSt,4); sp.put(sPerm); sp.put(sTag); sp.put(sTagF)
sKq=sp.get(); sC2=sp.get(); sG2=sp.get(2,1); sRb=sp.get()
k(f'''s_mov_b32 s{sKq}, {fb(KQ)}
s_mov_b32 s{sC2}, {fb(CG*CG)}
s_lshl_b32 s{sRb}, s{sXc}, 2
s_lshr_b32 s{sT0}, s{sJ}, 3
s_add_u32 s{sRb}, s{sRb}, s{sT0}
s_mul_i32 s{sT0}, s{sRb}, 224
s_mul_i32 s{sT1}, s{sWave}, 28
s_add_u32 s{sT0}, s{sT0}, s{sT1}
s_lshl_b32 s{sT0}, s{sT0}, 10
s_add_u32 s{sG2}, s{sT0}, {HH}
s_add_u32 s{sG2+1}, s{sT0}, {HH+112*1024}''')
k('s_waitcnt vmcnt(0) lgkmcnt(0)')
k('s_barrier')

ACC=[32,48,64,80]
SLOT=[128+4*i for i in range(32)]+[96+4*i for i in range(8)]
ordA=[4*i for i in range(8)]+[t for t in range(32) if t%4]
def aload(slot, rt, t): return f'buffer_load_dwordx4 {V(SLOT[slot],4)}, v{aA}, {S(sWs,4)}, s{sAo+2*rt+(t>>4)} offen offset:{(t&15)*256} sc1'
k.label('G1')
stamp('G1poll')
loads=[aload(s_,0,ordA[s_]) for s_ in range(8)]+[f'buffer_load_dword v{vpr}, v{aPr}, {S(sWs,4)}, s{sAo+2} offen offset:508 sc1']
for l in loads: k(l)
KM=OPT['kmaj']
mf=[]
for s_ in range(KM):
    for jj in range(4): mf.append((jj,s_,jj,ordA[s_],s_==0))
for jj in range(4):
    for s_ in range(KM,32): mf.append((jj,s_,jj,ordA[s_],False))
slotB=list(range(32,40))+list(range(24))
for jj in range(3):
    for t in range(32): mf.append((jj,slotB[t],jj,t,t==0))
NM=len(mf)
FR=224; NF=8; PD=5
def bread(i):
    acc,s_,jj,t,f=mf[i]
    return [f'ds_read_b64_tr_b16 {A(FR+4*(i%NF)+2*x,2)}, v{aB+jj} offset:{t*2048+x*512}' for x in range(2)]
for i in range(PD):
    for l in bread(i): k(l)
chk=maxchk([SLOT[0]+j for j in range(32)],vck)+[f'v_max_u32 v{vck}, v{vck}, v{vpr}', f'v_cmp_eq_u32 vcc, -1, v{vck}']
checked('G1', loads, chk)
stamp('G1got')

side=[[] for _ in range(NM+200)]
def chk2(slot): r=SLOT[slot]; return [f'v_max3_u32 v{vck}, v{vck}, v{r}, v{r+1}', f'v_max3_u32 v{vck}, v{vck}, v{r+2}, v{r+3}']
lastuse={}; firstuse={}
for i,(acc,s_,jj,t,f) in enumerate(mf):
    ph=0 if i<128 else 1
    lastuse[(ph,s_)]=i; firstuse.setdefault((ph,s_),i)
for s_ in range(8,32):
    side[2*(s_-8)].append(aload(s_,0,ordA[s_]))
    side[firstuse[(0,s_)]-1]+=chk2(s_)
pos=48
for t in range(32):
    s_=slotB[t]
    p=max(pos, lastuse.get((0,s_),-1))
    side[p].append(aload(s_,1,t)); pos=p+2
    side[min(p+30, firstuse[(1,s_)]-1)]+=chk2(s_)
def verify(name):
    def f():
        k(f'v_cmp_eq_u32 vcc, -1, v{vck}')
        k(f's_cbranch_vccnz RESTART')
        k.label(f'V_{name}')
    return f
kk=Asm(); kk.label('RESTART')
kk(f'''s_waitcnt vmcnt(0) lgkmcnt(0)
s_nop 15
s_add_u32 s{sCnt}, s{sCnt}, 1000
s_cmp_gt_u32 s{sCnt}, {SPIN}
s_cbranch_scc0 G1
s_endpgm''')
tail.append(kk.text())
def gelu(acc, u):
    a=ACC[acc]; o=[]
    tmp=EPT
    for hlf in range(2):
        R=range(4*hlf,4*hlf+4)
        for r in R: o.append(f'v_fma_f32 v{tmp+(r&3)}, v{a+r}, v{a+r}, s{sKq}')
        for r in R: o.append(f'v_mul_f32 v{tmp+(r&3)}, -v{a+r}, v{tmp+(r&3)}')
        for r in R:
            o.append(f'v_exp_f32 v{tmp+(r&3)}, v{tmp+(r&3)}')
            o.append(f'v_mul_f32 v{a+r}, v{a+r}, v{a+8+r}')
        for r in R:
            o.append(f'v_fma_f32 v{tmp+(r&3)}, v{tmp+(r&3)}, s{sC2}, s{sC2}')
        for r in R: o.append(f'v_rcp_f32 v{tmp+(r&3)}, v{tmp+(r&3)}')
        for r in R: o.append(f'v_mul_f32 v{a+r}, v{a+r}, v{tmp+(r&3)}')
        for r in (4*hlf,4*hlf+2): o.append(f'v_cvt_pk_bf16_f32 v{EPO+r//2}, v{a+r}, v{a+r+1}')
    o.append(f'buffer_store_dwordx4 {V(EPO,4)}, v{vL16}, {S(sWs,4)}, s{sHo+u} offen sc1')
    return o
EPT=vl.get(4); EPO=vl.get(4)
done=[max(i for i in range(128) if mf[i][0]==jj) for jj in range(4)]+[128+32*jj+31 for jj in range(3)]
epi=[]
for u in range(7):
    g=gelu(u if u<4 else u-4,u)
    if u==0: g.insert(len(g)-1, verify('A'))
    if u==4: g.insert(len(g)-1, verify('B'))
    epi+= [(done[u]+2,x,u) for x in g]

def phi7(cls, rt):
    if cls<4: return cls if rt==0 else 3+((cls+1)&3)
    return 4+(cls-4) if rt==0 else cls-4
groups=[(0,0),(1,0),(0,1),(1,1),(2,0),(3,0),(4,0),(5,0),(2,1),(3,1),(6,0),(4,1),(5,1),(6,1)]
ACC2={(0,0):ACC[3],(0,1):ACC[0],(1,0):ACC[1],(1,1):ACC[2]}
freeq=[(s_,127) for s_ in range(24,32)]+[(slotB[t],192+t) for t in range(32)]
g2=[]; started=set(); gl={}
base=NM
LEAD=OPT.get('lead',36)
pos=0
for gi,(cls,rt) in enumerate(groups):
    lds_=[]; sl=[]
    for q in range(4):
        tau=7*q+phi7(cls,rt)
        s_,fr=freeq.pop(0)
        use=base+8*gi+2*q
        freeq.append((s_,use+1))
        l=[f's_add_u32 s{sT2}, s{sG2+rt}, {(tau>>2)*4096}', f'buffer_load_dwordx4 {V(SLOT[s_],4)}, v{vL16}, {S(sWs,4)}, s{sT2} offen offset:{(tau&3)*1024} sc1']
        p=max(pos, fr, base+8*gi-LEAD)
        side[p]+=l; pos=p+1
        lds_+=l; sl.append(s_)
        for ct in range(2):
            g2.append((ACC2[(rt,ct)], (tau*2+ct)*4, SLOT[s_], (rt,ct) not in started)); started.add((rt,ct))
    regs_=[SLOT[s_]+j for s_ in sl for j in range(4)]
    c=maxchk(regs_,vck2)+[f'v_cmp_eq_u32 vcc, -1, v{vck2}']
    def mk(gi=gi,lds_=lds_,c=c):
        def f():
            k(f's_cbranch_vccnz R_G2_{gi}'); k.label(f'C_G2_{gi}'); retry_block(f'G2_{gi}', lds_, c)
        return f
    gp=base+8*gi-3
    side[gp]+=c[:4]; side[gp+1]+=c[4:8]; side[gp+2]+=c[8:]+[mk()]

aRw=vl.get(); aRr=vl.get(2,1); aHo=vl.get(2,1); sEo=sp.get(2,1)
red_setup=f'''v_and_b32 v{vpr}, 31, v{vL}
v_lshrrev_b32 v{aRw}, 5, v{vL}
v_and_b32 v{aPr}, 7, v{vL}
v_xor_b32 v{aRw}, v{aRw}, v{aPr}
v_lshlrev_b32 v{aRw}, 4, v{aRw}
v_lshl_add_u32 v{aRw}, v{vpr}, 8, v{aRw}
s_lshl_b32 s{sT0}, s{sWave}, 13
v_add_u32 v{aRw}, s{sT0}, v{aRw}
v_lshrrev_b32 v{vpr}, 3, v{vL}
v_lshlrev_b32 v{aRr}, 1, v{aPr}
v_xor_b32 v{aRr}, v{aRr}, v{vpr}
v_lshlrev_b32 v{aRr}, 4, v{aRr}
v_lshl_add_u32 v{aRr}, v{vpr}, 8, v{aRr}
s_lshl_b32 s{sT0}, s{sWave}, 11
v_add_u32 v{aRr}, s{sT0}, v{aRr}
v_xor_b32 v{aRr+1}, 16, v{aRr}
v_lshlrev_b32 v{aPr}, 4, v{aPr}
v_lshl_add_u32 v{aHo}, v{vpr}, 10, v{aPr}
v_lshl_add_u32 v{aHo+1}, v{vpr}, 18, v{aPr}
s_and_b32 s{sT0}, s{sJ}, 7
s_lshl_b32 s{sT0}, s{sT0}, 7
s_lshl_b32 s{sT1}, s{sRb}, 3
s_add_u32 s{sT1}, s{sT1}, s{sWave}
s_lshl_b32 s{sEo}, s{sT1}, 13
s_add_u32 s{sEo}, s{sEo}, s{sT0}
s_add_u32 s{sEo}, s{sEo}, {HB}
s_lshl_b32 s{sEo+1}, s{sT1}, 10
s_add_u32 s{sEo+1}, s{sEo+1}, s{sT0}'''.split('\n')

def run_side(i, budget):
    cost=0
    for x in side[i]:
        if callable(x): x()
        else: k(x)
        cost+=4
    while epi and epi[0][0]<=i and cost<budget:
        x=epi.pop(0)[1]
        if callable(x): x(); cost+=8
        else: k(x); cost+= 8 if ('exp' in x or 'rcp' in x) else 4

EB=OPT.get('eb',14)
for i,(acc,s_,jj,t,f) in enumerate(mf):
    a=ACC[acc]
    if f and i>=128:
        while epi and epi[0][2]<=acc:
            x=epi.pop(0)[1]
            x() if callable(x) else k(x)
    if i%2==0: k.wait_regs([A(FR+4*(j%NF),4) for j in (i,i+1)])
    k(f'v_mfma_f32_32x32x16_bf16 {V(a,16)}, {A(FR+4*(i%NF),4)}, {V(SLOT[s_],4)}, {"0" if f else V(a,16)}')
    if i+PD<NM:
        for l in bread(i+PD): k(l)
    run_side(i,EB)
stamp('G1done')

PA=R0
def red_write(rt):
    o=[]
    for ct in range(2):
        for i in range(4):
            v=8*ct+2*i
            o.append((f'v_xor_b32 v{EPT+(i&1)}, {(v&7)*16}, v{aRw}', f'ds_write_b128 v{EPT+(i&1)}, {V(ACC2[(rt,ct)]+4*i,4)} offset:{(v>>3)*128}'))
    return o
need_free={ACC[3]:3, ACC[0]:4, ACC[1]:5, ACC[2]:6}
rt0_done=8*groups.index((6,0))+7
for x_i,x in enumerate(red_setup): side[base+24+x_i//3].append(x)
side[base+40].append(f'v_add_u32 v{aRw}, {PA}, v{aRw}')
for j,(x,y) in enumerate(red_write(0)): side[base+rt0_done+3+2*j]+=[x,y]
HR=128+4*24
for i,(a,wa,sl,f) in enumerate(g2):
    if f:
        while epi and epi[0][2]<=need_free[a]:
            x=epi.pop(0)[1]
            x() if callable(x) else k(x)
    k(f'v_mfma_f32_32x32x16_bf16 {V(a,16)}, {A(wa,4)}, {V(sl,4)}, {"0" if f else V(a,16)}')
    run_side(base+i,22)
assert not epi
stamp('G2done')
k.barrier()
P0=128; HV=96
for rt in range(2):
    k(f'buffer_load_dwordx4 {V(HV+4*rt,4)}, v{aHo}, {S(sWs,4)}, s{sEo} offen sc1')
    if rt==0: k(f's_add_u32 s{sEo}, s{sEo}, {32*1024}')
k(f'v_add_u32 v{aRw}, {-PA & 0xffffffff}, v{aRw}')
def red_read(rt):
    if rt==0:
        k(f'v_add_u32 v{EPO}, {PA}, v{aRr}\nv_add_u32 v{EPO+1}, {PA}, v{aRr+1}')
    ar=EPO if rt==0 else aRr
    for pw in range(4):
        for x in range(2): k(f'ds_read_b128 {V(P0+32*rt+8*pw+4*x,4)}, v{ar+x} offset:{8192*pw}')
def red_fin(rt):
    p=P0+32*rt; hq=P0+64
    for j in range(4):
        k(f'v_lshlrev_b32 v{hq+2*j}, 16, v{HV+4*rt+j}')
        k(f'v_and_b32 v{hq+2*j+1}, 0xffff0000, v{HV+4*rt+j}')
    for j in (0,2,4,6): pk('v_pk_add_f32', p+j, p+j, p+8+j)
    for j in (0,2,4,6): pk('v_pk_add_f32', p+16+j, p+16+j, p+24+j)
    for j in (0,2,4,6): pk('v_pk_add_f32', p+j, p+j, hq+j)
    for j in (0,2,4,6): pk('v_pk_add_f32', p+j, p+j, p+16+j)
    for j in range(4): k(f'v_cvt_pk_bf16_f32 v{p+8+j}, v{p+2*j}, v{p+2*j+1}')
    k(f'buffer_store_dwordx4 {V(p+8,4)}, v{aHo+1}, {S(sOut,4)}, s{sEo+1} offen')
for x,y in red_write(1): k(x); k(y)
red_read(0)
k.barrier()
red_read(1)
red_fin(0)
k(f's_add_u32 s{sEo+1}, s{sEo+1}, 4096')
red_fin(1)
stamp('end')
if OPT['stamps']:
    k('s_waitcnt vmcnt(0) lgkmcnt(0)')
    stamp('drained')
    k(f'''s_lshl_b32 s{sT0}, s2, 2
s_add_u32 s{sT0}, s{sT0}, s{sWave}
s_lshl_b32 s{sT0}, s{sT0}, 7
s_add_u32 s{sT0}, s{sT0}, {STAMP}
v_mov_b32 v{vpr}, 0''')
    for j,(nm,r) in enumerate(stamp_regs+[('cnt',sCnt)]):
        k(f'v_mov_b32 v{40+j}, s{r}')
        k(f'buffer_store_dword v{40+j}, v{vpr}, {S(sWs,4)}, s{sT0} offen offset:{4*j}')
k('s_endpgm')

hdr=f'''; Fused persistent kernel: LN -> 2-D FFT filter (MFMA DFT stages) -> LN -> GEGLU FFN, 256 workgroups.
; @launch grid=(256,1,1) block=(256,1,1) lds={LDSZ}
.amdgcn_target "amdgcn-amd-amdhsa--gfx950"
.text
.globl {KN}
.p2align 8
.type {KN},@function
'''
ftr=f'''
.section .rodata,"a"
.p2align 6
.amdhsa_kernel {KN}
  .amdhsa_next_free_vgpr 512
  .amdhsa_next_free_sgpr 102
  .amdhsa_accum_offset 256
  .amdhsa_group_segment_fixed_size 0
  .amdhsa_kernarg_size 80
  .amdhsa_user_sgpr_count 2
  .amdhsa_user_sgpr_kernarg_segment_ptr 1
  .amdhsa_system_sgpr_workgroup_id_x 1
.end_amdhsa_kernel
'''
open(sys.argv[1],'w').write(hdr+k.text()+'\n'+'\n'.join(tail)+ftr)
open(sys.argv[1]+'.stamps','w').write(' '.join(n for n,_ in stamp_regs)+' cnt')
print('instrs',k.count,'nops',k.nops,'vl hi',vl.hi,'sp hi',sp.hi, file=sys.stderr)
```

```python
import sys, struct
from asmlib import *

KN = "sequential_preLN__spectral_gfnet__glu_gated_geglu__prompt_kernel"
OPT = dict(stamps=0, ng=2, kmaj=16, stop=99)
for a in sys.argv[2:]:
    kk,vv = a.split('='); OPT[kk]=int(vv) if vv.lstrip('-').isdigit() else vv
NB = OPT['ng']
def fb(x): return '0x%08x' % struct.unpack('<I', struct.pack('<f', x))[0]

X1=0x100000; X1S=16512
X2=0x600000; X2S=8320
X3=0x900000; X3S=8320
HB=0xC00000
HH=0x1000000
STAMP=0x1800000
WSZ=0x2000000
R0=131072; R1=R0+8704; R2=R1+8704
LDSZ=163840
SPIN=400000

CG = 0.1029432397**(1/3)
KQ = 2.302208198/CG

k=Asm(); tail=[]
vp=Pool(32,256); vl=Pool(1,32); sp=Pool(52,100)
sX,sWr,sWi,sW1,sWd,sOut,sWs = 24,28,32,36,40,44,48
stamp_regs=[]
stq=[22,100,4,6,8,10,12,14,16,18,20,24,26,28,30,32,34]
def stamp(name):
    if OPT['stamps'] or name in OPT.get('amp','').split(','):
        r=stq.pop(0); stamp_regs.append((name,r)); k(f's_memrealtime {S(r,2)}')

k.raw(f'{KN}:')
k('s_cmp_lt_u32 s2, 256')
k('s_cbranch_scc1 Lgo')
k('s_endpgm')
k.label('Lgo')
k('s_load_dwordx16 s[4:19], s[0:1], 0')
k('s_load_dwordx2 s[20:21], s[0:1], 72')
stamp('start')
sWave=sp.get(); sS2=sp.get(); sT0=sp.get(); sT1=sp.get(); sT2=sp.get(); sCnt=sp.get()
sXc=sp.get(); sJ=sp.get(); sPos=sp.get()
vL=vl.get(); vL16=vl.get(); vL4=vl.get()
vLo=vp.get(); vG=vp.get(); t0=vp.get(); t1=vp.get(); t2=vp.get(); t3=vp.get()
k(f'''v_lshrrev_b32 v{t0}, 6, v0
v_and_b32 v{vL}, 63, v0
v_readfirstlane_b32 s{sWave}, v{t0}
v_lshlrev_b32 v{vL4}, 2, v{vL}
v_lshlrev_b32 v{vL16}, 4, v{vL}
v_and_b32 v{vLo}, 15, v0
v_lshrrev_b32 v{vG}, 4, v{vL}
s_and_b32 s{sXc}, s2, 7
s_lshr_b32 s{sJ}, s2, 3
s_lshl_b32 s{sPos}, s{sXc}, 5
s_add_u32 s{sPos}, s{sPos}, s{sJ}
s_mov_b32 s{sCnt}, 0''')
mA=((1<<NB)-1)<<5; mB=((1<<NB)-1)<<(5-NB)
if NB:
    k(f'''s_and_b32 s{sT0}, s{sPos}, {mA}
s_and_b32 s{sT1}, s{sPos}, {mB}
s_andn2_b32 s{sS2}, s{sPos}, {mA|mB}
s_lshr_b32 s{sT0}, s{sT0}, {NB}
s_lshl_b32 s{sT1}, s{sT1}, {NB}
s_or_b32 s{sS2}, s{sS2}, s{sT0}
s_or_b32 s{sS2}, s{sS2}, s{sT1}''')
else:
    k(f's_mov_b32 s{sS2}, s{sPos}')

fLo=vp.get(); fG=vp.get(); fP=vp.get()
k(f'''v_cvt_f32_u32 v{fLo}, v{vLo}
v_cvt_f32_u32 v{fG}, v{vG}
v_and_b32 v{t0}, 3, v{vLo}
v_lshrrev_b32 v{t1}, 2, v{vLo}
v_lshl_add_u32 v{t0}, v{t0}, 2, v{t1}
v_cvt_f32_u32 v{fP}, v{t0}''')

def angles(base, step):
    a=vp.get(4)
    k(f'v_mov_b32 v{a}, v{base}')
    for r in range(1,4): k(f'v_add_f32 v{a+r}, v{a+r-1}, v{step}')
    return a
def mk_matrix(base, step, neg=False):
    a=angles(base,step); c=vp.get(4); re=vp.get(4); im=vp.get(4)
    for r in range(4): k(f'v_cos_f32 v{c+r}, v{a+r}')
    for r in range(4): k(f'v_sin_f32 v{a+r}, v{a+r}')
    for r in range(4):
        k(f'v_cvt_pk_bf16_f32 v{re+r}, v{c+r}, v{a+r}')
        k(f'v_cvt_pk_bf16_f32 v{im+r}, -v{a+r}, v{c+r}')
    res=[re,im]
    if neg:
        nre=vp.get(4); nim=vp.get(4)
        for r in range(4):
            k(f'v_xor_b32 v{nre+r}, 0x80008000, v{re+r}')
            k(f'v_xor_b32 v{nim+r}, 0x80008000, v{im+r}')
        res+=[nre,nim]
    vp.put(a,4); vp.put(c,4)
    return res
def mk_tw(base, step):
    a=angles(base,step); c=vp.get(4)
    for r in range(4): k(f'v_cos_f32 v{c+r}, v{a+r}')
    for r in range(4): k(f'v_sin_f32 v{a+r}, v{a+r}')
    return (c,a)

k(f'''v_mul_f32 v{t0}, {fb(1/16)}, v{fLo}
v_mul_f32 v{t1}, 4.0, v{t0}
v_mul_f32 v{t0}, v{t0}, v{fG}''')
F16=mk_matrix(t0,t1)

def srd(s, p, size):
    k(f's_mov_b32 s{s}, s{p}\ns_mov_b32 s{s+1}, s{p+1}\ns_mov_b32 s{s+2}, {size}\ns_mov_b32 s{s+3}, 0x20000')
srd(sX,4,2097152)
sXo=sp.get(2)
k(f'''s_lshl_b32 s{sT0}, s{sWave}, 9
s_add_u32 s{sT0}, s{sT0}, s{sS2}
s_lshl_b32 s{sXo}, s{sT0}, 10
s_add_u32 s{sXo+1}, s{sXo}, 262144''')
xr=vp.get(8)
for rho in range(2):
    for i in range(4):
        k(f'buffer_load_dword v{xr+4*rho+i}, v{vL4}, {S(sX,4)}, s{sXo+rho} offen offset:{256*i}')
sp.put(sXo,2)
sTag=sp.get(); sTagF=sp.get()
k(f's_load_dword s{sTag}, s[20:21], 0')
srd(sWr,6,1052672); srd(sWi,8,1052672); srd(sWs,20,WSZ)
k(f'''v_mul_u32_u24 v{t0}, 4112, v0
s_mul_i32 s{sT0}, s{sXc}, 514
s_lshl_b32 s{sT1}, s{sJ}, 4
s_add_u32 s{sT0}, s{sT0}, s{sT1}
s_add_u32 s{sT0}, s{sT0}, 2
s_lshl_b32 s{sT1}, s{sWave}, 10
s_add_u32 m0, s{sT1}, {R2}''')
k(f'buffer_load_dwordx4 v{t0}, {S(sWr,4)}, s{sT0} offen lds')
k(f's_add_u32 m0, s{sT1}, {R2+4096}')
hW=k(f'buffer_load_dwordx4 v{t0}, {S(sWi,4)}, s{sT0} offen lds')
vSent=vp.get(4)
for i in range(4): k(f'v_mov_b32 v{vSent+i}, -1')
sX2o=sp.get(); sX3o=sp.get()
k(f'''s_mul_i32 s{sX2o}, s2, {X2S}
s_lshl_b32 s{sT1}, s{sWave}, 11
s_add_u32 s{sX2o}, s{sX2o}, s{sT1}
s_add_u32 s{sX2o}, s{sX2o}, {X2}
s_mul_i32 s{sX3o}, s{sS2}, {X3S}
s_add_u32 s{sX3o}, s{sX3o}, s{sT1}
s_add_u32 s{sX3o}, s{sX3o}, {X3}''')
k(f'buffer_store_dwordx4 {V(vSent,4)}, v{vL16}, {S(sWs,4)}, s{sX2o} offen sc1')
hS2=k(f'buffer_store_dwordx4 {V(vSent,4)}, v{vL16}, {S(sWs,4)}, s{sX2o} offen offset:1024 sc1')
k(f'''s_cmp_lt_u32 s{sWave}, 2
s_cselect_b32 s{sW1}, s12, s14
s_cselect_b32 s{sW1+1}, s13, s15
s_mov_b32 s{sW1+2}, {512*3584}
s_mov_b32 s{sW1+3}, 0x20000''')
srd(sWd,16,1792*1024); srd(sOut,18,2097152)

vWdS=vl.get(); vB1S=vl.get(); vWdR=vl.get(2)
sWdo=sp.get(); sB1o=sp.get(); sLq=sp.get(); sPar=sp.get(); sF0=sp.get()
k(f'''v_lshrrev_b32 v{t0}, 3, v{vL}
v_and_b32 v{t1}, 7, v{vL}
v_and_b32 v{t2}, 1, v{vG}
v_lshlrev_b32 v{t3}, 2, v{t2}
v_xor_b32 v{t3}, v{t3}, v{t1}
v_lshlrev_b32 v{t3}, 4, v{t3}
v_lshl_add_u32 v{vWdS}, v{t0}, 10, v{t3}
s_and_b32 s{sT0}, s{sJ}, 7
s_lshl_b32 s{sT0}, s{sT0}, 7
s_mul_i32 s{sWdo}, s{sWave}, {448*1024}
s_add_u32 s{sWdo}, s{sWdo}, s{sT0}
s_lshl_b32 s{sLq}, s{sWave}, 15''')
wd_h={}; b1_h={}
def wd_dma(n0,n1):
    for n in range(n0,n1):
        k(f's_add_u32 s{sT0}, s{sWdo}, {n*8192}')
        k(f's_add_u32 m0, s{sLq}, {(n%32)*1024}')
        wd_h[n]=k(f'buffer_load_dwordx4 v{vWdS}, {S(sWd,4)}, s{sT0} offen lds')
def wd_tr(n0,n1):
    k.wait_vm(wd_h[n1-1])
    for n in range(n0,n1):
        tau,i=n>>1,n&1
        for ct in range(2):
            k(f'ds_read_b64_tr_b16 {A((tau*2+ct)*4+2*i,2)}, v{vWdR+ct} offset:{(n%32)*1024}')
    k.wait_lg()
def b1_dma(m0,m1):
    for m in range(m0,m1):
        k(f's_add_u32 s{sT0}, s{sB1o}, {m*7168}')
        k(f's_add_u32 m0, s{sLq}, {m*1024}')
        b1_h[m]=k(f'buffer_load_dwordx4 v{vB1S}, {S(sW1,4)}, s{sT0} offen lds')

wd_dma(0,8)

k(f'''v_mul_f32 v{t1}, {fb(1/16)}, v{fP}
v_mul_f32 v{t0}, 4.0, v{fG}
v_mul_f32 v{t0}, v{t0}, v{t1}''')
G16=mk_matrix(t0,t1)
k(f'v_fma_f32 v{t0}, v{t1}, 0.5, v{t0}')
G32=mk_matrix(t0,t1)
k(f'''v_mul_f32 v{t1}, {fb(1/256)}, v{fLo}
v_mul_f32 v{t0}, 4.0, v{fG}
v_mul_f32 v{t0}, v{t0}, v{t1}''')
TW0=mk_tw(t0,t1)
k(f'v_fma_f32 v{t0}, v{t1}, 0.5, v{t0}')
TWA=mk_tw(t0,t1)
M3=vp.get(2); fS2=vp.get(); c4=vp.get(4)
k(f'''v_cvt_f32_u32 v{fS2}, s{sS2}
v_lshrrev_b32 v{t0}, 1, v{vLo}
v_and_b32 v{t1}, 1, v{vLo}
v_cvt_f32_u32 v{t0}, v{t0}
v_cvt_f32_u32 v{t1}, v{t1}
v_mul_f32 v{fS2}, {fb(1/2048)}, v{fS2}
v_mul_f32 v{t1}, {fb(0.25)}, v{t1}
v_mul_f32 v{t2}, {fb(0.25)}, v{fG}
v_add_f32 v{t2}, v{t2}, v{fS2}
v_fma_f32 v{t1}, v{t2}, v{t0}, v{t1}
v_mul_f32 v{t0}, {fb(0.125)}, v{t0}
v_add_f32 v{t0}, v{t0}, v{t1}
v_cos_f32 v{c4}, v{t1}
v_sin_f32 v{c4+1}, v{t1}
v_cos_f32 v{c4+2}, v{t0}
v_sin_f32 v{c4+3}, v{t0}
v_sub_f32 v{t0}, v{c4}, v{c4+3}
v_add_f32 v{t1}, v{c4+1}, v{c4+2}
v_add_f32 v{t2}, v{c4}, v{c4+3}
v_sub_f32 v{t3}, v{c4+2}, v{c4+1}
v_cvt_pk_bf16_f32 v{M3}, v{t0}, v{t1}
v_cvt_pk_bf16_f32 v{M3+1}, v{t2}, v{t3}''')
aZw=vp.get(); aP=vp.get(); aN=vp.get()
k(f'''s_mul_i32 s{sT0}, s{sWave}, {513*4}
s_add_u32 s{sT0}, s{sT0}, {R0}
v_add_u32 v{aZw}, s{sT0}, v{vL4}
v_mul_u32_u24 v{t0}, {513*4}, v{vG}
v_lshlrev_b32 v{t1}, 3, v{vLo}
s_lshl_b32 s{sT0}, s{sWave}, 8
s_add_u32 s{sT1}, s{sT0}, {R0+4}
s_sub_u32 s{sT0}, {R0+4*(511-33)}, s{sT0}
v_add3_u32 v{aP}, v{t0}, v{t1}, s{sT1}
v_sub_u32 v{t0}, v{t0}, v{t1}
v_add_u32 v{aN}, s{sT0}, v{t0}''')
sX1o=sp.get()
k(f'''s_mul_i32 s{sX1o}, s{sS2}, {X1S}
s_lshl_b32 s{sT1}, s{sWave}, 12
s_add_u32 s{sX1o}, s{sX1o}, s{sT1}
s_add_u32 s{sX1o}, s{sX1o}, {X1}
s_add_u32 s{sTag}, s{sTag}, 1
s_and_b32 s{sTag}, s{sTag}, 0x1fff
s_or_b32 s{sTag}, s{sTag}, 0x4000
s_lshl_b32 s{sTagF}, s{sTag}, 16''')

def pk(op, d, *src, mods=''):
    k(f'{op} {V(d,2)}, '+', '.join(V(x,2) if isinstance(x,int) else x for x in src)+(' '+mods if mods else ''))
sSt=sp.get(4,2)
def stats(xf, scale):
    a=vp.get(8)
    for rho in range(2):
        pk('v_pk_add_f32', a+4*rho, xf+8*rho, xf+8*rho+2)
        pk('v_pk_mul_f32', a+4*rho+2, xf+8*rho, xf+8*rho)
    for j in (2,4,6):
        for rho in range(2):
            if j>2: pk('v_pk_add_f32', a+4*rho, a+4*rho, xf+8*rho+j)
            pk('v_pk_fma_f32', a+4*rho+2, xf+8*rho+j, xf+8*rho+j, a+4*rho+2)
    for j in (0,4,2,6): k(f'v_add_f32 v{a+j}, v{a+j}, v{a+j+1}')
    k(f'v_permlane32_swap_b32 v{a}, v{a+4}')
    k(f'v_permlane32_swap_b32 v{a+2}, v{a+6}')
    k(f'v_add_f32 v{a}, v{a}, v{a+4}')
    k(f'v_add_f32 v{a+2}, v{a+2}, v{a+6}')
    for m in ('row_ror:8 row_mask:0xf','row_ror:4 row_mask:0xf','row_ror:2 row_mask:0xf','row_ror:1 row_mask:0xf','row_bcast:15 row_mask:0xa'):
        for j in (0,2): k(f'v_add_f32_dpp v{a+j}, v{a+j}, v{a+j} {m} bank_mask:0xf')
    k(f'''v_mul_f32 v{a}, {fb(1/512)}, v{a}
v_mul_f32 v{a+2}, {fb(1/512)}, v{a+2}
v_fma_f32 v{a+2}, -v{a}, v{a}, v{a+2}
v_max_f32 v{a+2}, 0, v{a+2}
v_add_f32 v{a+2}, {fb(1e-5)}, v{a+2}
v_rsq_f32 v{a+2}, v{a+2}''')
    if scale!=1: k(f'v_mul_f32 v{a+2}, {fb(scale)}, v{a+2}')
    k(f'''v_mul_f32 v{a}, -v{a}, v{a+2}
v_readlane_b32 s{sSt}, v{a+2}, 31
v_readlane_b32 s{sSt+2}, v{a+2}, 63
v_readlane_b32 s{sSt+1}, v{a}, 31
v_readlane_b32 s{sSt+3}, v{a}, 63''')
    vp.put(a,8)
def normalize(xf):
    n=vp.get(16)
    for rho in range(2):
        for j in range(0,8,2):
            pk('v_pk_fma_f32', n+8*rho+j, xf+8*rho+j, S(sSt+2*rho,2), S(sSt+2*rho,2), mods='op_sel:[0,0,1] op_sel_hi:[1,0,1]')
    return n
def mf32(d,a,b,c='0'): k(f'v_mfma_f32_16x16x32_bf16 {V(d,4)}, {V(a,4)}, {V(b,4)}, {c if c=="0" else V(c,4)}')
def mf16(d,a,b): k(f'v_mfma_f32_16x16x16_bf16 {V(d,4)}, {V(a,2)}, {V(b,2)}, 0')
def cmul_pack(dre,dim,tw,out,conj=True,swap=False):
    c,s_=tw; t=vp.get(8)
    for j in (0,2):
        pk('v_pk_mul_f32', t+j, dre+j, c+j)
        pk('v_pk_mul_f32', t+4+j, dim+j, c+j)
    ng='neg_lo:[1,0,0] neg_hi:[1,0,0]'
    for j in (0,2):
        pk('v_pk_fma_f32', t+j, dim+j, s_+j, t+j, mods='' if conj else ng)
        pk('v_pk_fma_f32', t+4+j, dre+j, s_+j, t+4+j, mods=ng if conj else '')
    for r in range(4):
        a,b=(t+4+r,t+r) if swap else (t+r,t+4+r)
        k(f'v_cvt_pk_bf16_f32 v{out+r}, v{a}, v{b}')
    vp.put(t,8)

xf=vp.get(16,4)
for rho in range(2):
    for i in range(4):
        k(f'v_lshlrev_b32 v{xf+8*rho+i}, 16, v{xr+4*rho+i}')
        k(f'v_and_b32 v{xf+8*rho+4+i}, 0xffff0000, v{xr+4*rho+i}')
vp.put(xr,8)
stamp('xload')
stats(xf,1)
n=normalize(xf)
op=vp.get(8); D=vp.get(16)
for e in range(2):
    for i in range(4): k(f'v_cvt_pk_bf16_f32 v{op+4*e+i}, v{n+4*e+i}, v{n+8+4*e+i}')
    mf32(D+8*e, op+4*e, F16[0]); mf32(D+8*e+4, op+4*e, F16[1])
vp.put(n,16)
D2=vp.get(16)
for e in range(2):
    cmul_pack(D+8*e, D+8*e+4, (TW0,TWA)[e], op+4*e)
    Gm=(G16,G32)[e]
    mf32(D2+8*e, Gm[0], op+4*e); mf32(D2+8*e+4, Gm[1], op+4*e)
for j in (0,2,4,6): pk('v_pk_add_f32', D+j, D2+j, D2+8+j)
for j in (0,2,4,6): pk('v_pk_add_f32', D+8+j, D2+j, D2+8+j, mods='neg_lo:[0,1] neg_hi:[0,1]')
for t in range(2):
    for r in range(4): k(f'v_cvt_pk_bf16_f32 v{op+4*t+r}, v{D+8*t+r}, v{D+8*t+4+r}')
    for nn in (2*t,2*t+1):
        k(f'ds_write2st64_b32 v{aZw}, v{op+2*nn}, v{op+2*nn+1} offset0:{2*nn} offset1:{2*nn+1}')
k.wait_vm(hS2)
k.barrier()
for T in range(2):
    for e in range(2):
        k(f'ds_read_b32 v{op+4*T+2*e}, v{aP} offset:{4*(32*T+e)}')
        k(f'ds_read_b32 v{op+4*T+2*e+1}, v{aN} offset:{4*(33-32*T-e)}')
for T in range(2):
    for e in range(2): mf16(D+8*T+4*e, M3, op+4*T+2*e)
for T in range(2):
    for b0 in range(2):
        o=D2+8*T+4*b0
        for e in range(2):
            for c in range(2): k(f'v_cvt_pk_bf16_f32 v{o+2*e+c}, s{sTagF}, v{D+8*T+4*e+2*b0+c}')
        hA=k(f'buffer_store_dwordx4 {V(o,4)}, v{vL16}, {S(sWs,4)}, s{sX1o} offen offset:{(2*T+b0)*1024} sc1')
stamp('Adone')
for r_,n_ in ((G32[0],4),(G32[1],4),(TWA[0],4),(TWA[1],4),(M3,2),(aZw,1),(aP,1),(aN,1)): vp.put(r_,n_)
sp.put(sX1o)

sHo=sp.get(7,1)
k(f'''s_and_b32 s{sPar}, s{sS2}, 1
s_bfe_u32 s{sT0}, s{sS2}, 0x40001
s_mul_i32 s{sF0}, s{sT0}, 7
s_mul_i32 s{sT0}, s{sPar}, 3
s_add_u32 s{sF0}, s{sF0}, s{sT0}''')
sRtA=sp.get(); sRtB=sp.get()
k(f'''s_lshr_b32 s{sT0}, s{sS2}, 5
s_lshl_b32 s{sT0}, s{sT0}, 3
s_lshl_b32 s{sT1}, s{sWave}, 1
s_add_u32 s{sT0}, s{sT0}, s{sT1}
s_add_u32 s{sRtA}, s{sT0}, s{sPar}
s_xor_b32 s{sRtB}, s{sRtA}, 1''')
for u in range(7):
    jj=u if u<4 else u-4
    k(f'''s_add_u32 s{sT0}, s{sPar}, {jj}
s_and_b32 s{sT0}, s{sT0}, 3
s_add_u32 s{sT0}, s{sT0}, s{sF0}
s_mul_i32 s{sT1}, s{sRtA if u<4 else sRtB}, 112
s_add_u32 s{sT0}, s{sT0}, s{sT1}
s_lshl_b32 s{sT0}, s{sT0}, 10
s_add_u32 s{sHo+u}, s{sT0}, {HH}''')
    k(f'buffer_store_dwordx4 {V(vSent,4)}, v{vL16}, {S(sWs,4)}, s{sHo+u} offen sc1')
k(f'buffer_store_dwordx4 {V(vSent,4)}, v{vL16}, {S(sWs,4)}, s{sX3o} offen sc1')
hS3=k(f'buffer_store_dwordx4 {V(vSent,4)}, v{vL16}, {S(sWs,4)}, s{sX3o} offen offset:1024 sc1')
Wf=vp.get(16); wraw=vp.get(8)
k(f's_lshl_b32 s{sT0}, s{sWave}, 2\ns_add_u32 s{sT0}, s{sT0}, {R2}\nv_add_u32 v{t0}, s{sT0}, v{vL16}')
for m in range(2):
    for r in range(4): k(f'ds_read_b32 v{wraw+4*m+r}, v{t0} offset:{4096*m+1024*r}')
aBin=vp.get(); aBw=vp.get(); aBr=vp.get(); sBo=sp.get(4,1)
k(f'''v_lshrrev_b32 v{t1}, 2, v{vL}
v_and_b32 v{t2}, 3, v{vL}
v_mul_u32_u24 v{aBin}, {X1S}, v{t1}
v_lshl_add_u32 v{aBin}, v{t2}, 4, v{aBin}
v_mul_u32_u24 v{aBw}, 1056, v{t2}
v_lshl_add_u32 v{aBw}, v{t1}, 4, v{aBw}
s_lshl_b32 s{sT0}, s{sWave}, 8
s_add_u32 s{sT0}, s{sT0}, {R1}
v_add_u32 v{aBw}, s{sT0}, v{aBw}
s_mul_i32 s{sT0}, s{sWave}, 1056
s_add_u32 s{sT0}, s{sT0}, {R1}
v_add_u32 v{aBr}, s{sT0}, v{vL16}
s_lshr_b32 s{sT0}, s{sJ}, 2
s_lshl_b32 s{sT0}, s{sT0}, 11
s_and_b32 s{sT1}, s{sXc}, 1
s_lshl_b32 s{sT1}, s{sT1}, 10
s_add_u32 s{sT0}, s{sT0}, s{sT1}
s_lshr_b32 s{sT1}, s{sXc}, 1
s_lshl_b32 s{sT1}, s{sT1}, 8
s_add_u32 s{sT0}, s{sT0}, s{sT1}
s_and_b32 s{sT1}, s{sJ}, 3
s_lshl_b32 s{sT1}, s{sT1}, 6
s_add_u32 s{sT0}, s{sT0}, s{sT1}
s_mul_i32 s{sT1}, s{sWave}, {16*X1S}
s_add_u32 s{sT0}, s{sT0}, s{sT1}''')
for i in range(4): k(f's_add_u32 s{sBo+i}, s{sT0}, {X1+64*i*X1S}')
for m in range(2):
    for r in range(4):
        k(f'v_lshlrev_b32 v{Wf+4*m+r}, 16, v{wraw+4*m+r}')
        k(f'v_and_b32 v{Wf+8+4*m+r}, 0xffff0000, v{wraw+4*m+r}')
vp.put(wraw,8)
wd_dma(8,16)
k.wait_vm(hA)

def retry_block(name, loads, check):
    kk=Asm()
    kk.label(f'R_{name}')
    kk('s_nop 7')
    for l in loads: kk(l)
    kk('s_waitcnt vmcnt(0)')
    for c in check: kk(c)
    kk(f's_add_u32 s{sCnt}, s{sCnt}, 1')
    kk(f's_cmp_gt_u32 s{sCnt}, {SPIN}')
    kk(f's_cbranch_scc1 C_{name}')
    kk(f's_cbranch_vccnz R_{name}')
    kk(f's_branch C_{name}')
    tail.append(kk.text())
def checked(name, loads, check):
    for c in check: k(c)
    k(f's_cbranch_vccnz R_{name}')
    k.label(f'C_{name}')
    retry_block(name, loads, check)

ld=vp.get(16); ck=vp.get(2)
loads=[f'buffer_load_dwordx4 {V(ld+4*i,4)}, v{aBin}, {S(sWs,4)}, s{sBo+i} offen sc1' for i in range(4)]
stamp('Bpoll')
for l in loads: k(l)
wd_dma(16,28)
sPerm=sp.get(); k(f's_mov_b32 s{sPerm}, 0x07060302')
chk=[f'v_xor_b32 v{ck}, s{sTag}, v{ld}', f'v_xor_b32 v{ck+1}, s{sTag}, v{ld+1}']
for j in range(2,16): chk.append(f'v_bitop3_b32 v{ck+(j&1)}, v{ck+(j&1)}, v{ld+j}, s{sTag} bitop3:0xf6')
chk+= [f'v_or_b32 v{ck}, v{ck}, v{ck+1}', f'v_cmp_ne_u16 vcc, 0, v{ck}']
checked('B', loads, chk)
stamp('Bgot')
for e in range(2):
    for i in range(4): k(f'v_perm_b32 v{op+4*e+i}, v{ld+4*i+2*e+1}, v{ld+4*i+2*e}, s{sPerm}')
    k(f'ds_write_b128 v{aBw}, {V(op+4*e,4)} offset:{4224*e}')
k.barrier()
for e in range(2): k(f'ds_read_b128 {V(op+4*e,4)}, v{aBr} offset:{4224*e}')
aOw=vp.get(4); aOr=vp.get()
for r in range(4):
    k(f'v_add_u32 v{t0}, {64*r}, v{vL}')
    if NB:
        k(f'''v_and_b32 v{t1}, {mA}, v{t0}
v_and_b32 v{t2}, {mB}, v{t0}
v_and_b32 v{t0}, {255&~(mA|mB)}, v{t0}
v_lshrrev_b32 v{t1}, {NB}, v{t1}
v_lshlrev_b32 v{t2}, {NB}, v{t2}
v_or3_b32 v{t0}, v{t0}, v{t1}, v{t2}''')
    if r==0: k(f's_lshl_b32 s{sT0}, s{sWave}, 3\ns_add_u32 s{sT0}, s{sT0}, {R0}')
    k(f'''v_and_b32 v{t1}, 4, v{t0}
v_lshlrev_b32 v{t1}, 2, v{t1}
v_lshl_add_u32 v{t0}, v{t0}, 5, s{sT0}
v_xor_b32 v{aOw+r}, v{t0}, v{t1}''')
for e in range(2):
    mf32(D+8*e, op+4*e, F16[0]); mf32(D+8*e+4, op+4*e, F16[1])
for e in range(2):
    cmul_pack(D+8*e, D+8*e+4, TW0, op+4*e)
    mf32(D2+8*e, G16[0], op+4*e); mf32(D2+8*e+4, G16[1], op+4*e)
for e in range(2):
    cmul_pack(D2+8*e, D2+8*e+4, (Wf+8*e, Wf+8*e+4), op+4*e, conj=False, swap=True)
    mf32(D+8*e, op+4*e, F16[0]); mf32(D+8*e+4, op+4*e, F16[1])
for e in range(2):
    cmul_pack(D+8*e, D+8*e+4, TW0, op+4*e)
    mf32(D2+8*e, G16[0], op+4*e); mf32(D2+8*e+4, G16[1], op+4*e)
k(f'''v_lshrrev_b32 v{t0}, 3, v{vL}
v_and_b32 v{t0}, 1, v{t0}
v_xor_b32 v{t0}, v{t0}, v{vL}
s_lshl_b32 s{sT0}, s{sWave}, 11
s_add_u32 s{sT0}, s{sT0}, {R0}
v_lshl_add_u32 v{aOr}, v{t0}, 4, s{sT0}''')
for r in range(4):
    for e in range(2): k(f'v_cvt_pk_bf16_f32 v{op+2*r+e}, v{D2+8*e+4+r}, v{D2+8*e+r}')
    k(f'ds_write_b64 v{aOw+r}, {V(op+2*r,2)}')
k.wait_vm(hS3)
k.barrier()
for i in range(2): k(f'ds_read_b128 {V(ld+4*i,4)}, v{aOr} offset:{1024*i}')
for i in range(2): hB=k(f'buffer_store_dwordx4 {V(ld+4*i,4)}, v{vL16}, {S(sWs,4)}, s{sX2o} offen offset:{1024*i} sc1')
stamp('Bdone')
k(f'''s_or_b32 s{sT0}, s2, s{sWave}
s_cmp_lg_u32 s{sT0}, 0
s_cbranch_scc1 Lnon
v_mov_b32 v{t0}, 0
v_mov_b32 v{t1}, s{sTag}''')
k.raw(f'    buffer_store_dword v{t1}, v{t0}, {S(sWs,4)}, 0 offen sc1')
k.label('Lnon')
for r_,n_ in ((Wf,16),(aBin,1),(aBw,1),(aBr,1),(aOw,4),(aOr,1),(vSent,4)): vp.put(r_,n_)
sp.put(sBo,4); sp.put(sX2o)

k(f'''v_lshrrev_b32 v{t0}, 5, v{vL}
v_bfe_u32 v{t1}, v{vL}, 2, 2
v_lshl_add_u32 v{t0}, v{t0}, 2, v{t1}
v_lshlrev_b32 v{t0}, 7, v{t0}
v_and_b32 v{t2}, 1, v{vG}
v_lshl_add_u32 v{t0}, v{t2}, 5, v{t0}
v_and_b32 v{t2}, 3, v{vL}
v_lshl_add_u32 v{t0}, v{t2}, 3, v{t0}
v_lshrrev_b32 v{t1}, 1, v{t1}
v_lshlrev_b32 v{t1}, 6, v{t1}
v_add3_u32 v{vWdR}, v{t0}, v{t1}, s{sLq}
v_xor_b32 v{vWdR+1}, 64, v{vWdR}''')
wd_tr(0,28)
wd_dma(28,44)
k(f'''v_fma_f32 v{t3}, v{fLo}, 2.0, 1.0
v_mul_f32 v{t0}, {fb(1/32)}, v{t3}
v_mul_f32 v{t1}, 4.0, v{t0}
v_mul_f32 v{t0}, v{t0}, v{fG}''')
H=mk_matrix(t0,t1,neg=True)
k(f'''v_mul_f32 v{t1}, {fb(1/512)}, v{t3}
v_mul_f32 v{t0}, 4.0, v{fG}
v_mul_f32 v{t0}, v{t0}, v{t1}''')
TWC=mk_tw(t0,t1)
M3i=vp.get(2); u0=vp.get(4)
k(f'''v_lshrrev_b32 v{t0}, 2, v{vLo}
v_cvt_f32_u32 v{t0}, v{t0}
v_fma_f32 v{u0}, v{t0}, {"0.5"}, 0
v_fma_f32 v{u0}, v{u0}, 0.5, v{fS2}
v_bfe_u32 v{t0}, v{vLo}, 1, 1
v_and_b32 v{t1}, 1, v{vLo}
v_cvt_f32_u32 v{t0}, v{t0}
v_cvt_f32_u32 v{t1}, v{t1}
v_fma_f32 v{t0}, v{t0}, 2.0, -1.0
v_mul_f32 v{t0}, {fb(0.25)}, v{t0}
v_mul_f32 v{u0+1}, v{t0}, v{t1}''')
SC=2.0**-21
for nn in range(2):
    k(f'''v_fma_f32 v{t1}, v{fG}, 2.0, {"1.0" if nn else "0"}
v_fma_f32 v{t2}, v{u0}, v{t1}, v{u0+1}
v_mul_f32 v{t1}, {fb(0.125)}, v{t1}
v_sub_f32 v{t1}, v{t1}, v{t0}
v_add_f32 v{t1}, v{t1}, v{t2}
v_cos_f32 v{c4}, v{t2}
v_sin_f32 v{c4+1}, v{t2}
v_cos_f32 v{c4+2}, v{t1}
v_sin_f32 v{c4+3}, v{t1}
v_add_f32 v{t1}, v{c4}, v{c4+2}
v_add_f32 v{t2}, v{c4+1}, v{c4+3}
v_mul_f32 v{t1}, {fb(SC)}, v{t1}
v_mul_f32 v{t2}, {fb(-SC)}, v{t2}
v_cvt_pk_bf16_f32 v{M3i+nn}, v{t1}, v{t2}''')
nyq=vp.get(2); aCin=vp.get(); aCp=vp.get(); aCn=vp.get(); aCr=vp.get(2); sCo=sp.get(2,1)
CB=R1+16; CS=2064
k(f'''v_and_b32 v{t0}, 0xcf, v0
v_cmp_eq_u32 vcc, 0xcf, v{t0}
v_mov_b32 v{t1}, 0.5
v_cndmask_b32 v{nyq}, 1.0, v{t1}, vcc
v_cndmask_b32 v{nyq+1}, 0, v{t1}, vcc
v_lshrrev_b32 v{t0}, 1, v{vLo}
v_lshlrev_b32 v{t0}, 2, v{t0}
v_add_u32 v{t0}, v{t0}, v{vG}
v_mul_u32_u24 v{t0}, {2*X2S}, v{t0}
v_and_b32 v{t1}, 1, v{vLo}
v_lshl_add_u32 v{aCin}, v{t1}, 4, v{t0}
s_mul_i32 s{sT0}, s{sWave}, {64*X2S}
s_lshl_b32 s{sT1}, s{sPos}, 5
s_add_u32 s{sT0}, s{sT0}, s{sT1}
s_add_u32 s{sCo}, s{sT0}, {X2}
s_add_u32 s{sCo+1}, s{sT0}, {X2+X2S}
v_mul_u32_u24 v{t0}, {CS}, v{vG}
v_lshlrev_b32 v{t1}, 4, v{vLo}
s_lshl_b32 s{sT0}, s{sWave}, 8
s_add_u32 s{sT1}, s{sT0}, {CB}
s_sub_u32 s{sT0}, {CB+1024+4*252}, s{sT0}
v_add3_u32 v{aCp}, v{t0}, v{t1}, s{sT1}
v_sub_u32 v{t0}, v{t0}, v{t1}
v_add_u32 v{aCn}, s{sT0}, v{t0}
s_mul_i32 s{sT0}, s{sWave}, {CS}
s_add_u32 s{sT0}, s{sT0}, {CB-4}
v_add_u32 v{aCr}, s{sT0}, v{vL4}
v_add_u32 v{aCr+1}, {1028}, v{aCr}
v_mov_b32 v{t0}, s{sT0}
v_mov_b32 v{t1}, 0
ds_write_b32 v{t0}, v{t1}''')
k.wait_vm(hB)

loads=[f'buffer_load_dwordx4 {V(ld+4*i,4)}, v{aCin}, {S(sWs,4)}, s{sCo+i} offen sc1' for i in range(2)]
stamp('Cpoll')
for l in loads: k(l)
wd_dma(44,56)
def maxchk(regs_, ckr):
    c=[f'v_max_u32 v{ckr}, v{regs_[0]}, v{regs_[1]}']
    for j in range(2,len(regs_),2): c.append(f'v_max3_u32 v{ckr}, v{ckr}, v{regs_[j]}, v{regs_[j+1]}')
    return c
checked('C', loads, maxchk(list(range(ld,ld+8)),ck)+[f'v_cmp_eq_u32 vcc, -1, v{ck}'])
stamp('Cgot')
for e in range(4):
    k(f'v_pk_mov_b32 {V(op+2*e,2)}, {V(ld+(e&2),2)}, {V(ld+4+(e&2),2)} op_sel:[{e&1},{e&1}]')
for e in (3,0,1,2): mf16(D+4*e, M3i, op+2*e)
pk('v_pk_mul_f32', D+14, D+14, nyq, mods='op_sel:[0,0] op_sel_hi:[1,0]')
pk('v_pk_fma_f32', D+14, D+12, nyq, D+14, mods='op_sel:[0,1,0] op_sel_hi:[1,1,1]')
for e in (3,0,1,2): k(f'v_cvt_pk_bf16_f32 v{ld+e}, v{D+4*e+1}, v{D+4*e}')
k(f'ds_write_b128 v{aCp}, {V(ld,4)}')
for e in (3,0,1,2): k(f'v_cvt_pk_bf16_f32 v{ld+4+3-e}, v{D+4*e+3}, v{D+4*e+2}')
k(f'ds_write_b128 v{aCn}, {V(ld+4,4)}')
k.barrier()
for t in range(2):
    for nn in range(2): k(f'ds_read2st64_b32 {V(op+4*t+2*nn,2)}, v{aCr+t} offset0:{2*nn} offset1:{2*nn+1}')
aLw=vp.get(2); aLr=vp.get(); aHw=vp.get(); aHr=vp.get(); sHb=sp.get()
k(f'''v_and_b32 v{t0}, 7, v{vL}
s_lshl_b32 s{sT0}, s{sWave}, 1
v_xor_b32 v{t0}, s{sT0}, v{t0}
v_lshlrev_b32 v{t0}, 4, v{t0}
v_lshl_add_u32 v{t0}, v{vL}, 7, v{t0}
v_add_u32 v{aLw}, {R0}, v{t0}
v_xor_b32 v{aLw+1}, 16, v{aLw}''')
for e in range(2):
    for c in range(2): mf32(D+8*e+4*c, op, (F16,H)[e][c])
for e in range(2):
    for c in range(2): mf32(D+8*e+4*c, op+4, (F16[c],H[2+c])[e], D+8*e+4*c)
k(f'''v_lshrrev_b32 v{t0}, 3, v{vL}
v_xor_b32 v{t0}, v{t0}, v{vL}
s_lshl_b32 s{sT0}, s{sWave}, 11
s_add_u32 s{sT1}, s{sT0}, {R0}
v_lshl_add_u32 v{aLr}, v{t0}, 4, s{sT1}
s_add_u32 s{sT1}, s{sT0}, {R2}
v_add_u32 v{aHw}, s{sT1}, v{vL4}
v_add_u32 v{aHr}, s{sT1}, v{vL16}
s_lshl_b32 s{sHb}, s{sS2}, 13
s_add_u32 s{sHb}, s{sHb}, s{sT0}
s_add_u32 s{sHb}, s{sHb}, {HB}''')
for e in range(2):
    cmul_pack(D+8*e, D+8*e+4, (TW0,TWC)[e], op+4*e)
    mf32(xf+4*e, G16[1], op+4*e, xf+4*e)
    mf32(xf+8+4*e, G16[0], op+4*e, xf+8+4*e)
stats(xf,CG)
n=normalize(xf)
for rho in range(2):
    for i in range(4): k(f'v_cvt_pk_bf16_f32 v{op+4*rho+i}, v{n+8*rho+i}, v{n+8*rho+4+i}')
    k(f'ds_write_b128 v{aLw+rho}, {V(op+4*rho,4)}')
k.barrier()
for i in range(2): k(f'ds_read_b128 {V(ld+4*i,4)}, v{aLr} offset:{1024*i}')
for rho in range(2):
    for i in range(4): k(f'v_cvt_pk_bf16_f32 v{D+4*rho+i}, v{xf+8*rho+i}, v{xf+8*rho+4+i}')
for i in range(2): k(f'buffer_store_dwordx4 {V(ld+4*i,4)}, v{vL16}, {S(sWs,4)}, s{sX3o} offen offset:{1024*i} sc1')
stamp('Cdone')
for rho in range(2):
    for nn in range(2): k(f'ds_write2st64_b32 v{aHw}, v{D+4*rho+2*nn}, v{D+4*rho+2*nn+1} offset0:{4*rho+2*nn} offset1:{4*rho+2*nn+1}')
k.wait_lg()
for i in range(2): k(f'ds_read_b128 {V(D2+4*i,4)}, v{aHr} offset:{1024*i}')
for i in range(2): k(f'buffer_store_dwordx4 {V(D2+4*i,4)}, v{vL16}, {S(sWs,4)}, s{sHb} offen offset:{1024*i} sc1')

k(f'''v_lshrrev_b32 v{t0}, 4, v{vL}
v_bfe_u32 v{t1}, v{vL}, 3, 1
v_lshl_add_u32 v{t1}, v{t0}, 7, v{t1}
v_mul_u32_u24 v{t1}, 3584, v{t1}
v_and_b32 v{t0}, 1, v{t0}
s_and_b32 s{sT0}, s{sWave}, 2
v_or_b32 v{t0}, s{sT0}, v{t0}
v_lshlrev_b32 v{t0}, 1, v{t0}
v_and_b32 v{t2}, 7, v{vL}
v_xor_b32 v{t0}, v{t0}, v{t2}
v_lshl_add_u32 v{vB1S}, v{t0}, 4, v{t1}
s_and_b32 s{sT0}, s{sWave}, 1
s_mul_i32 s{sB1o}, s{sT0}, {32*7168}
s_lshl_b32 s{sT0}, s{sF0}, 5
s_add_u32 s{sB1o}, s{sB1o}, s{sT0}''')
wd_tr(28,56)
b1_dma(0,32)
aB=vl.get(4,1); aA=vl.get(); aPr=vl.get(); vck=vl.get(); vck2=vl.get(); vpr=vl.get()
k(f'''v_and_b32 v{t0}, 1, v{vG}
v_bfe_u32 v{t1}, v{vL}, 3, 1
v_lshl_add_u32 v{t1}, v{t0}, 1, v{t1}
v_lshlrev_b32 v{t0}, 16, v{t0}
v_lshrrev_b32 v{t2}, 5, v{vL}
v_lshl_add_u32 v{t0}, v{t2}, 10, v{t0}
v_bfe_u32 v{t2}, v{vL}, 2, 2
v_lshl_add_u32 v{t0}, v{t2}, 7, v{t0}
v_and_b32 v{t2}, 3, v{vL}
v_lshl_add_u32 v{t0}, v{t2}, 3, v{t0}''')
for jj in range(4):
    k(f'''s_add_u32 s{sT0}, s{sPar}, {jj}
s_and_b32 s{sT0}, s{sT0}, 3
v_xor_b32 v{t2}, s{sT0}, v{t1}
v_lshl_add_u32 v{aB+jj}, v{t2}, 5, v{t0}''')
sAo=sp.get(4,1)
k(f'''v_bfe_u32 v{t0}, v{vL}, 3, 2
v_mul_u32_u24 v{t0}, {X3S}, v{t0}
v_lshrrev_b32 v{t1}, 5, v{vL}
v_and_b32 v{t2}, 7, v{vL}
v_lshl_add_u32 v{aA}, v{t1}, 7, v{t0}
v_lshl_add_u32 v{aA}, v{t2}, 4, v{aA}
v_lshl_add_u32 v{aPr}, v{t1}, 9, v{t0}
v_lshl_add_u32 v{aPr}, v{t2}, 10, v{aPr}
s_mul_i32 s{sT0}, s{sRtA}, {4*X3S}
s_add_u32 s{sAo}, s{sT0}, {X3}
s_add_u32 s{sAo+1}, s{sT0}, {X3+4096}
s_mul_i32 s{sT0}, s{sRtB}, {4*X3S}
s_add_u32 s{sAo+2}, s{sT0}, {X3}
s_add_u32 s{sAo+3}, s{sT0}, {X3+4096}''')
sp.put(sCo,2); sp.put(sHb); sp.put(sX3o); sp.put(sSt,4); sp.put(sPerm); sp.put(sTag); sp.put(sTagF)
sKq=sp.get(); sC2=sp.get(); sG2=sp.get(2,1); sRb=sp.get()
k(f'''s_mov_b32 s{sKq}, {fb(KQ)}
s_mov_b32 s{sC2}, {fb(CG*CG)}
s_lshl_b32 s{sRb}, s{sXc}, 2
s_lshr_b32 s{sT0}, s{sJ}, 3
s_add_u32 s{sRb}, s{sRb}, s{sT0}
s_mul_i32 s{sT0}, s{sRb}, 224
s_mul_i32 s{sT1}, s{sWave}, 28
s_add_u32 s{sT0}, s{sT0}, s{sT1}
s_lshl_b32 s{sT0}, s{sT0}, 10
s_add_u32 s{sG2}, s{sT0}, {HH}
s_add_u32 s{sG2+1}, s{sT0}, {HH+112*1024}''')
k('s_waitcnt vmcnt(0) lgkmcnt(0)')
k('s_barrier')

ACC=[32,48,64,80]
SLOT=[128+4*i for i in range(32)]+[96+4*i for i in range(8)]
ordA=[4*i for i in range(8)]+[t for t in range(32) if t%4]
def aload(slot, rt, t): return f'buffer_load_dwordx4 {V(SLOT[slot],4)}, v{aA}, {S(sWs,4)}, s{sAo+2*rt+(t>>4)} offen offset:{(t&15)*256} sc1'
k.label('G1')
stamp('G1poll')
loads=[aload(s_,0,ordA[s_]) for s_ in range(8)]+[f'buffer_load_dword v{vpr}, v{aPr}, {S(sWs,4)}, s{sAo+2} offen offset:508 sc1']
for l in loads: k(l)
KM=OPT['kmaj']
mf=[]
for s_ in range(KM):
    for jj in range(4): mf.append((jj,s_,jj,ordA[s_],s_==0))
for jj in range(4):
    for s_ in range(KM,32): mf.append((jj,s_,jj,ordA[s_],False))
slotB=list(range(32,40))+list(range(24))
for jj in range(3):
    for t in range(32): mf.append((jj,slotB[t],jj,t,t==0))
NM=len(mf)
FR=224; NF=8; PD=5
def bread(i):
    acc,s_,jj,t,f=mf[i]
    return [f'ds_read_b64_tr_b16 {A(FR+4*(i%NF)+2*x,2)}, v{aB+jj} offset:{t*2048+x*512}' for x in range(2)]
for i in range(PD):
    for l in bread(i): k(l)
chk=maxchk([SLOT[0]+j for j in range(32)],vck)+[f'v_max_u32 v{vck}, v{vck}, v{vpr}', f'v_cmp_eq_u32 vcc, -1, v{vck}']
checked('G1', loads, chk)
stamp('G1got')

side=[[] for _ in range(NM+200)]
def chk2(slot): r=SLOT[slot]; return [f'v_max3_u32 v{vck}, v{vck}, v{r}, v{r+1}', f'v_max3_u32 v{vck}, v{vck}, v{r+2}, v{r+3}']
lastuse={}; firstuse={}
for i,(acc,s_,jj,t,f) in enumerate(mf):
    ph=0 if i<128 else 1
    lastuse[(ph,s_)]=i; firstuse.setdefault((ph,s_),i)
for s_ in range(8,32):
    side[2*(s_-8)].append(aload(s_,0,ordA[s_]))
    side[firstuse[(0,s_)]-1]+=chk2(s_)
pos=48
for t in range(32):
    s_=slotB[t]
    p=max(pos, lastuse.get((0,s_),-1))
    side[p].append(aload(s_,1,t)); pos=p+2
    side[min(p+30, firstuse[(1,s_)]-1)]+=chk2(s_)
def verify(name):
    def f():
        k(f'v_cmp_eq_u32 vcc, -1, v{vck}')
        k(f's_cbranch_vccnz RESTART')
        k.label(f'V_{name}')
    return f
kk=Asm(); kk.label('RESTART')
kk(f'''s_waitcnt vmcnt(0) lgkmcnt(0)
s_nop 15
s_add_u32 s{sCnt}, s{sCnt}, 1000
s_cmp_gt_u32 s{sCnt}, {SPIN}
s_cbranch_scc0 G1
s_endpgm''')
tail.append(kk.text())
def gelu(acc, u):
    a=ACC[acc]; o=[]
    tmp=EPT
    for hlf in range(2):
        R=range(4*hlf,4*hlf+4)
        for r in R: o.append(f'v_fma_f32 v{tmp+(r&3)}, v{a+r}, v{a+r}, s{sKq}')
        for r in R: o.append(f'v_mul_f32 v{tmp+(r&3)}, -v{a+r}, v{tmp+(r&3)}')
        for r in R:
            o.append(f'v_exp_f32 v{tmp+(r&3)}, v{tmp+(r&3)}')
            o.append(f'v_mul_f32 v{a+r}, v{a+r}, v{a+8+r}')
        for r in R:
            o.append(f'v_fma_f32 v{tmp+(r&3)}, v{tmp+(r&3)}, s{sC2}, s{sC2}')
        for r in R: o.append(f'v_rcp_f32 v{tmp+(r&3)}, v{tmp+(r&3)}')
        for r in R: o.append(f'v_mul_f32 v{a+r}, v{a+r}, v{tmp+(r&3)}')
        for r in (4*hlf,4*hlf+2): o.append(f'v_cvt_pk_bf16_f32 v{EPO+r//2}, v{a+r}, v{a+r+1}')
    o.append(f'buffer_store_dwordx4 {V(EPO,4)}, v{vL16}, {S(sWs,4)}, s{sHo+u} offen sc1')
    return o
EPT=vl.get(4); EPO=vl.get(4)
done=[max(i for i in range(128) if mf[i][0]==jj) for jj in range(4)]+[128+32*jj+31 for jj in range(3)]
epi=[]
for u in range(7):
    g=gelu(u if u<4 else u-4,u)
    if u==0: g.insert(len(g)-1, verify('A'))
    if u==4: g.insert(len(g)-1, verify('B'))
    epi+= [(done[u]+2,x,u) for x in g]

def phi7(cls, rt):
    if cls<4: return cls if rt==0 else 3+((cls+1)&3)
    return 4+(cls-4) if rt==0 else cls-4
groups=[(0,0),(1,0),(0,1),(1,1),(2,0),(3,0),(4,0),(5,0),(2,1),(3,1),(6,0),(4,1),(5,1),(6,1)]
ACC2={(0,0):ACC[3],(0,1):ACC[0],(1,0):ACC[1],(1,1):ACC[2]}
freeq=[(s_,127) for s_ in range(24,32)]+[(slotB[t],192+t) for t in range(32)]
g2=[]; started=set(); gl={}
base=NM
LEAD=OPT.get('lead',36)
pos=0
for gi,(cls,rt) in enumerate(groups):
    lds_=[]; sl=[]
    for q in range(4):
        tau=7*q+phi7(cls,rt)
        s_,fr=freeq.pop(0)
        use=base+8*gi+2*q
        freeq.append((s_,use+1))
        l=[f's_add_u32 s{sT2}, s{sG2+rt}, {(tau>>2)*4096}', f'buffer_load_dwordx4 {V(SLOT[s_],4)}, v{vL16}, {S(sWs,4)}, s{sT2} offen offset:{(tau&3)*1024} sc1']
        p=max(pos, fr, base+8*gi-LEAD)
        side[p]+=l; pos=p+1
        lds_+=l; sl.append(s_)
        for ct in range(2):
            g2.append((ACC2[(rt,ct)], (tau*2+ct)*4, SLOT[s_], (rt,ct) not in started)); started.add((rt,ct))
    regs_=[SLOT[s_]+j for s_ in sl for j in range(4)]
    c=maxchk(regs_,vck2)+[f'v_cmp_eq_u32 vcc, -1, v{vck2}']
    def mk(gi=gi,lds_=lds_,c=c):
        def f():
            k(f's_cbranch_vccnz R_G2_{gi}'); k.label(f'C_G2_{gi}'); retry_block(f'G2_{gi}', lds_, c)
        return f
    gp=base+8*gi-3
    side[gp]+=c[:4]; side[gp+1]+=c[4:8]; side[gp+2]+=c[8:]+[mk()]

aRw=vl.get(); aRr=vl.get(2,1); aHo=vl.get(2,1); sEo=sp.get(2,1)
red_setup=f'''v_and_b32 v{vpr}, 31, v{vL}
v_lshrrev_b32 v{aRw}, 5, v{vL}
v_and_b32 v{aPr}, 7, v{vL}
v_xor_b32 v{aRw}, v{aRw}, v{aPr}
v_lshlrev_b32 v{aRw}, 4, v{aRw}
v_lshl_add_u32 v{aRw}, v{vpr}, 8, v{aRw}
s_lshl_b32 s{sT0}, s{sWave}, 13
v_add_u32 v{aRw}, s{sT0}, v{aRw}
v_lshrrev_b32 v{vpr}, 3, v{vL}
v_lshlrev_b32 v{aRr}, 1, v{aPr}
v_xor_b32 v{aRr}, v{aRr}, v{vpr}
v_lshlrev_b32 v{aRr}, 4, v{aRr}
v_lshl_add_u32 v{aRr}, v{vpr}, 8, v{aRr}
s_lshl_b32 s{sT0}, s{sWave}, 11
v_add_u32 v{aRr}, s{sT0}, v{aRr}
v_xor_b32 v{aRr+1}, 16, v{aRr}
v_lshlrev_b32 v{aPr}, 4, v{aPr}
v_lshl_add_u32 v{aHo}, v{vpr}, 10, v{aPr}
v_lshl_add_u32 v{aHo+1}, v{vpr}, 18, v{aPr}
s_and_b32 s{sT0}, s{sJ}, 7
s_lshl_b32 s{sT0}, s{sT0}, 7
s_lshl_b32 s{sT1}, s{sRb}, 3
s_add_u32 s{sT1}, s{sT1}, s{sWave}
s_lshl_b32 s{sEo}, s{sT1}, 13
s_add_u32 s{sEo}, s{sEo}, s{sT0}
s_add_u32 s{sEo}, s{sEo}, {HB}
s_lshl_b32 s{sEo+1}, s{sT1}, 10
s_add_u32 s{sEo+1}, s{sEo+1}, s{sT0}'''.split('\n')

def run_side(i, budget):
    cost=0
    for x in side[i]:
        if callable(x): x()
        else: k(x)
        cost+=4
    while epi and epi[0][0]<=i and cost<budget:
        x=epi.pop(0)[1]
        if callable(x): x(); cost+=8
        else: k(x); cost+= 8 if ('exp' in x or 'rcp' in x) else 4

EB=OPT.get('eb',14)
for i,(acc,s_,jj,t,f) in enumerate(mf):
    a=ACC[acc]
    if f and i>=128:
        while epi and epi[0][2]<=acc:
            x=epi.pop(0)[1]
            x() if callable(x) else k(x)
    if i%2==0: k.wait_regs([A(FR+4*(j%NF),4) for j in (i,i+1)])
    k(f'v_mfma_f32_32x32x16_bf16 {V(a,16)}, {A(FR+4*(i%NF),4)}, {V(SLOT[s_],4)}, {"0" if f else V(a,16)}')
    if i+PD<NM:
        for l in bread(i+PD): k(l)
    run_side(i,EB)
stamp('G1done')

PA=R0
def red_write(rt):
    o=[]
    for ct in range(2):
        for i in range(4):
            v=8*ct+2*i
            o.append((f'v_xor_b32 v{EPT+(i&1)}, {(v&7)*16}, v{aRw}', f'ds_write_b128 v{EPT+(i&1)}, {V(ACC2[(rt,ct)]+4*i,4)} offset:{(v>>3)*128}'))
    return o
need_free={ACC[3]:3, ACC[0]:4, ACC[1]:5, ACC[2]:6}
rt0_done=8*groups.index((6,0))+7
for x_i,x in enumerate(red_setup): side[base+24+x_i//3].append(x)
side[base+40].append(f'v_add_u32 v{aRw}, {PA}, v{aRw}')
for j,(x,y) in enumerate(red_write(0)): side[base+rt0_done+3+2*j]+=[x,y]
HR=128+4*24
for i,(a,wa,sl,f) in enumerate(g2):
    if f:
        while epi and epi[0][2]<=need_free[a]:
            x=epi.pop(0)[1]
            x() if callable(x) else k(x)
    k(f'v_mfma_f32_32x32x16_bf16 {V(a,16)}, {A(wa,4)}, {V(sl,4)}, {"0" if f else V(a,16)}')
    run_side(base+i,22)
assert not epi
stamp('G2done')
k.barrier()
P0=128; HV=96
for rt in range(2):
    k(f'buffer_load_dwordx4 {V(HV+4*rt,4)}, v{aHo}, {S(sWs,4)}, s{sEo} offen sc1')
    if rt==0: k(f's_add_u32 s{sEo}, s{sEo}, {32*1024}')
k(f'v_add_u32 v{aRw}, {-PA & 0xffffffff}, v{aRw}')
def red_read(rt):
    if rt==0:
        k(f'v_add_u32 v{EPO}, {PA}, v{aRr}\nv_add_u32 v{EPO+1}, {PA}, v{aRr+1}')
    ar=EPO if rt==0 else aRr
    for pw in range(4):
        for x in range(2): k(f'ds_read_b128 {V(P0+32*rt+8*pw+4*x,4)}, v{ar+x} offset:{8192*pw}')
def red_fin(rt):
    p=P0+32*rt; hq=P0+64
    for j in range(4):
        k(f'v_lshlrev_b32 v{hq+2*j}, 16, v{HV+4*rt+j}')
        k(f'v_and_b32 v{hq+2*j+1}, 0xffff0000, v{HV+4*rt+j}')
    for j in (0,2,4,6): pk('v_pk_add_f32', p+j, p+j, p+8+j)
    for j in (0,2,4,6): pk('v_pk_add_f32', p+16+j, p+16+j, p+24+j)
    for j in (0,2,4,6): pk('v_pk_add_f32', p+j, p+j, hq+j)
    for j in (0,2,4,6): pk('v_pk_add_f32', p+j, p+j, p+16+j)
    for j in range(4): k(f'v_cvt_pk_bf16_f32 v{p+8+j}, v{p+2*j}, v{p+2*j+1}')
    k(f'buffer_store_dwordx4 {V(p+8,4)}, v{aHo+1}, {S(sOut,4)}, s{sEo+1} offen')
for x,y in red_write(1): k(x); k(y)
red_read(0)
k.barrier()
red_read(1)
red_fin(0)
k(f's_add_u32 s{sEo+1}, s{sEo+1}, 4096')
red_fin(1)
stamp('end')
if 'amp' in OPT:
    ra,rb=[r for n,r in stamp_regs]
    k(f'''s_memrealtime s[4:5]
s_waitcnt lgkmcnt(0)
s_sub_u32 s{sT0}, s{rb}, s{ra}
s_mul_i32 s{sT0}, s{sT0}, {OPT.get('ampk',2)}
s_min_u32 s{sT0}, s{sT0}, 100000''')
    k.label('Lamp')
    k(f'''s_memrealtime s[6:7]
s_waitcnt lgkmcnt(0)
s_sub_u32 s{sT1}, s6, s4
s_cmp_lt_u32 s{sT1}, s{sT0}
s_cbranch_scc1 Lamp''')
if OPT['stamps']:
    k('s_waitcnt vmcnt(0) lgkmcnt(0)')
    stamp('drained')
    k(f'''s_lshl_b32 s{sT0}, s2, 2
s_add_u32 s{sT0}, s{sT0}, s{sWave}
s_lshl_b32 s{sT0}, s{sT0}, 7
s_add_u32 s{sT0}, s{sT0}, {STAMP}
v_mov_b32 v{vpr}, 0''')
    for j,(nm,r) in enumerate(stamp_regs+[('cnt',sCnt)]):
        k(f'v_mov_b32 v{40+j}, s{r}')
        k(f'buffer_store_dword v{40+j}, v{vpr}, {S(sWs,4)}, s{sT0} offen offset:{4*j}')
k('s_endpgm')

hdr=f'''; Fused persistent kernel: LN -> 2-D FFT filter (MFMA DFT stages) -> LN -> GEGLU FFN, 256 workgroups.
; @launch grid=(256,1,1) block=(256,1,1) lds={LDSZ}
.amdgcn_target "amdgcn-amd-amdhsa--gfx950"
.text
.globl {KN}
.p2align 8
.type {KN},@function
'''
ftr=f'''
.section .rodata,"a"
.p2align 6
.amdhsa_kernel {KN}
  .amdhsa_next_free_vgpr 512
  .amdhsa_next_free_sgpr 102
  .amdhsa_accum_offset 256
  .amdhsa_group_segment_fixed_size 0
  .amdhsa_kernarg_size 80
  .amdhsa_user_sgpr_count 2
  .amdhsa_user_sgpr_kernarg_segment_ptr 1
  .amdhsa_system_sgpr_workgroup_id_x 1
.end_amdhsa_kernel
'''
open(sys.argv[1],'w').write(hdr+k.text()+'\n'+'\n'.join(tail)+ftr)
open(sys.argv[1]+'.stamps','w').write(' '.join(n for n,_ in stamp_regs)+' cnt')
print('instrs',k.count,'nops',k.nops,'vl hi',vl.hi,'sp hi',sp.hi, file=sys.stderr)
```

```python
import sys, struct
from asmlib import *

KN = "sequential_preLN__spectral_gfnet__glu_gated_geglu__prompt_kernel"
OPT = dict(stamps=0, ng=2, kmaj=16, eb=14, pre=1, nobg=0, rot=1, early=5,
           p0=0, pa=0, s1=16, s2=12, pb=8, s3=12, s4=8, pc=8, lead=24)
for a in sys.argv[2:]:
    kk,vv = a.split('='); OPT[kk]=int(vv) if vv.lstrip('-').isdigit() else vv
NB = OPT['ng']
def fb(x): return '0x%08x' % struct.unpack('<I', struct.pack('<f', x))[0]

FL=0x40000
X1=0x100000; X1S=16512
X2=0x600000; X2S=8320
X3=0x900000; X3S=8320
HB=0xC00000
HH=0x1000000
STAMP=0x1800000
WSZ=0x2000000
R0=131072; R1=R0+8704; R2=R1+8704
LDSZ=163840
SPIN=400000
NSENT=2

CG = 0.1029432397**(1/3)
KQ = 2.302208198/CG

k=Asm(); tail=[]
vp=Pool(32,256); vl=Pool(1,32); sp=Pool(52,100)
sX,sWr,sWi,sW1,sWd,sOut,sWs = 24,28,32,36,40,44,48
stamp_regs=[]
stq=[22,100,4,6,8,10,12,14,16,18,20,24,26,28,30,32,34]
def stamp(name):
    st=OPT['stamps']
    on = (st==1 and name[0] not in 'mfp') or (st==2 and (name[0]=='m' or name in ('G1poll','G1got','G1done','G2done','end'))) \
         or (st==4 and (name[0]=='p' or name in ('start','fkarg','fconst','xload','fAbar','Adone'))) \
         or (st==3 and (name[0]=='f' or name in ('start','xload','Adone','Bpoll','Bgot','Bdone','Cpoll','Cgot','Cdone','G1poll','G1got')))
    if on or name in OPT.get('amp','').split(','):
        r=stq.pop(0); stamp_regs.append((name,r)); k(f'{"s_memtime" if OPT.get("cyc") else "s_memrealtime"} {S(r,2)}')

k.raw(f'{KN}:')
k('s_cmp_lt_u32 s2, 256')
k('s_cbranch_scc1 Lgo')
k('s_endpgm')
k.label('Lgo')
k('s_load_dwordx16 s[4:19], s[0:1], 0')
k('s_load_dwordx2 s[20:21], s[0:1], 72')
stamp('start')
sWave=sp.get(); sS2=sp.get(); sT0=sp.get(); sT1=sp.get(); sT2=sp.get(); sCnt=sp.get()
sXc=sp.get(); sJ=sp.get(); sPos=sp.get()
vL=vl.get(); vL16=vl.get(); vL4=vl.get()
vLo=vp.get(); vG=vp.get(); t0=vp.get(); t1=vp.get(); t2=vp.get(); t3=vp.get(); vdum=vp.get(4)
if OPT.get('cpre',1):
    pc=sp.get(2); va=vp.get(2)
    k(f'''s_getpc_b64 {S(pc,2)}
v_lshlrev_b32 v{va}, 7, v0
v_min_u32 v{va}, CODE_END-Lgo-64, v{va}
v_mov_b32 v{va+1}, s{pc+1}
v_add_co_u32 v{va}, vcc, s{pc}, v{va}
v_addc_co_u32 v{va+1}, vcc, 0, v{va+1}, vcc
global_load_dword v{vdum}, {V(va,2)}, off''')
    sp.put(pc,2); vp.put(va,2)
k(f'''v_lshrrev_b32 v{t0}, 6, v0
v_and_b32 v{vL}, 63, v0
v_readfirstlane_b32 s{sWave}, v{t0}
v_lshlrev_b32 v{vL4}, 2, v{vL}
v_lshlrev_b32 v{vL16}, 4, v{vL}
v_and_b32 v{vLo}, 15, v0
v_lshrrev_b32 v{vG}, 4, v{vL}
s_and_b32 s{sXc}, s2, 7
s_lshr_b32 s{sJ}, s2, 3
s_lshl_b32 s{sPos}, s{sXc}, 5
s_add_u32 s{sPos}, s{sPos}, s{sJ}
s_mov_b32 s{sCnt}, 0''')
mA=((1<<NB)-1)<<5; mB=((1<<NB)-1)<<(5-NB)
def swapbits(p): return (p&~(mA|mB))|((p&mA)>>NB)|((p&mB)<<NB)
if NB:
    k(f'''s_and_b32 s{sT0}, s{sPos}, {mA}
s_and_b32 s{sT1}, s{sPos}, {mB}
s_andn2_b32 s{sS2}, s{sPos}, {mA|mB}
s_lshr_b32 s{sT0}, s{sT0}, {NB}
s_lshl_b32 s{sT1}, s{sT1}, {NB}
s_or_b32 s{sS2}, s{sS2}, s{sT0}
s_or_b32 s{sS2}, s{sS2}, s{sT1}''')
else:
    k(f's_mov_b32 s{sS2}, s{sPos}')
sXo=sp.get(2)
k(f'''s_lshl_b32 s{sT0}, s{sWave}, 9
s_add_u32 s{sT0}, s{sT0}, s{sS2}
s_lshl_b32 s{sXo}, s{sT0}, 10
s_add_u32 s{sXo+1}, s{sXo}, 262144''')
for s_,sz in ((sX,2097152),(sWr,1052672),(sWi,1052672),(sW1,512*3584),(sWd,1792*1024),(sOut,2097152),(sWs,WSZ)):
    k(f's_mov_b32 s{s_+2}, {sz}\ns_mov_b32 s{s_+3}, 0x20000')

fLo=vp.get(); fG=vp.get(); fP=vp.get()
k(f'''v_cvt_f32_u32 v{fLo}, v{vLo}
v_cvt_f32_u32 v{fG}, v{vG}
v_and_b32 v{t0}, 3, v{vLo}
v_lshrrev_b32 v{t1}, 2, v{vLo}
v_lshl_add_u32 v{t0}, v{t0}, 2, v{t1}
v_cvt_f32_u32 v{fP}, v{t0}''')

def angles(base, step):
    a=vp.get(4)
    k(f'v_add_f32 v{a+1}, v{base}, v{step}\nv_fma_f32 v{a+2}, v{step}, 2.0, v{base}\nv_fma_f32 v{a+3}, v{step}, 2.0, v{a+1}')
    return a
def cs(base, step):
    a=angles(base,step); c=vp.get(4)
    for r in range(4): k(f'v_cos_f32 v{c+r}, v{a+r if r else base}')
    for r in range(4): k(f'v_sin_f32 v{a+r}, v{a+r if r else base}')
    return (c,a)
def mk_matrix(base, step, neg=False):
    c,a=cs(base,step); re=vp.get(4); im=vp.get(4)
    for r in range(4):
        k(f'v_cvt_pk_bf16_f32 v{re+r}, v{c+r}, v{a+r}')
        k(f'v_cvt_pk_bf16_f32 v{im+r}, -v{a+r}, v{c+r}')
    res=[re,im]
    if neg:
        nre=vp.get(4); nim=vp.get(4)
        for r in range(4):
            k(f'v_xor_b32 v{nre+r}, 0x80008000, v{re+r}')
            k(f'v_xor_b32 v{nim+r}, 0x80008000, v{im+r}')
        res+=[nre,nim]
    vp.put(a,4); vp.put(c,4)
    return res

C={}
def c_F16():
    k(f'v_mul_f32 v{t0}, {fb(1/16)}, v{fLo}\nv_mul_f32 v{t1}, 4.0, v{t0}\nv_mul_f32 v{t0}, v{t0}, v{fG}')
    C['F16']=mk_matrix(t0,t1)
def c_G():
    k(f'v_mul_f32 v{t1}, {fb(1/16)}, v{fP}\nv_mul_f32 v{t0}, 4.0, v{fG}\nv_mul_f32 v{t0}, v{t0}, v{t1}')
    C['G16']=mk_matrix(t0,t1)
    k(f'v_fma_f32 v{t0}, v{t1}, 0.5, v{t0}')
    C['G32']=mk_matrix(t0,t1)
def c_TW():
    k(f'v_mul_f32 v{t1}, {fb(1/256)}, v{fLo}\nv_mul_f32 v{t0}, 4.0, v{fG}\nv_mul_f32 v{t0}, v{t0}, v{t1}')
    C['TW0']=cs(t0,t1)
    k(f'v_fma_f32 v{t0}, v{t1}, 0.5, v{t0}')
    C['TWA']=cs(t0,t1)
M3=vp.get(2); fS2=vp.get(); c4=vp.get(4)
def c_M3():
    k(f'''v_cvt_f32_u32 v{fS2}, s{sS2}
v_lshrrev_b32 v{t0}, 1, v{vLo}
v_and_b32 v{t1}, 1, v{vLo}
v_cvt_f32_u32 v{t0}, v{t0}
v_cvt_f32_u32 v{t1}, v{t1}
v_mul_f32 v{fS2}, {fb(1/2048)}, v{fS2}
v_mul_f32 v{t1}, {fb(0.25)}, v{t1}
v_mul_f32 v{t2}, {fb(0.25)}, v{fG}
v_add_f32 v{t2}, v{t2}, v{fS2}
v_fma_f32 v{t1}, v{t2}, v{t0}, v{t1}
v_mul_f32 v{t0}, {fb(0.125)}, v{t0}
v_add_f32 v{t0}, v{t0}, v{t1}
v_cos_f32 v{c4}, v{t1}
v_sin_f32 v{c4+1}, v{t1}
v_sin_f32 v{c4+3}, v{t0}
v_cos_f32 v{c4+2}, v{t0}
v_sub_f32 v{t0}, v{c4}, v{c4+3}
v_add_f32 v{t2}, v{c4}, v{c4+3}
v_add_f32 v{t1}, v{c4+1}, v{c4+2}
v_sub_f32 v{t3}, v{c4+2}, v{c4+1}
v_cvt_pk_bf16_f32 v{M3}, v{t0}, v{t1}
v_cvt_pk_bf16_f32 v{M3+1}, v{t2}, v{t3}''')
aZw=vp.get(); aP=vp.get(); aN=vp.get(); sX1o=sp.get()
def c_addrA():
    k(f'''s_mul_i32 s{sT0}, s{sWave}, {513*4}
s_add_u32 s{sT0}, s{sT0}, {R0}
v_add_u32 v{aZw}, s{sT0}, v{vL4}
v_mul_u32_u24 v{t0}, {513*4}, v{vG}
v_lshlrev_b32 v{t1}, 3, v{vLo}
s_lshl_b32 s{sT0}, s{sWave}, 8
s_add_u32 s{sT1}, s{sT0}, {R0+4}
s_sub_u32 s{sT0}, {R0+4*(511-33)}, s{sT0}
v_add3_u32 v{aP}, v{t0}, v{t1}, s{sT1}
v_sub_u32 v{t0}, v{t0}, v{t1}
v_add_u32 v{aN}, s{sT0}, v{t0}
s_mul_i32 s{sX1o}, s{sS2}, {X1S}
s_lshl_b32 s{sT1}, s{sWave}, 12
s_add_u32 s{sX1o}, s{sX1o}, s{sT1}
s_add_u32 s{sX1o}, s{sX1o}, {X1}''')
cA=[c_F16,c_TW,c_G,c_M3,c_addrA]
for f in cA[:OPT['early']]: f()

k(f's_mov_b32 s{sX}, s4\ns_mov_b32 s{sX+1}, s5')
stamp('fkarg')
xr=vp.get(8)
for rho in range(2):
    for i in range(4):
        k(f'buffer_load_dword v{xr+4*rho+i}, v{vL4}, {S(sX,4)}, s{sXo+rho} offen offset:{256*i}')
sp.put(sXo,2)
sNon=sp.get(); sTag=sp.get(); sTagF=sp.get()
k(f's_load_dword s{sNon}, s[20:21], 0')
k(f'''s_mov_b64 {S(sWr,2)}, s[6:7]
s_mov_b64 {S(sWi,2)}, s[8:9]
s_mov_b64 {S(sWs,2)}, s[20:21]
s_mov_b64 {S(sWd,2)}, s[16:17]
s_mov_b64 {S(sOut,2)}, s[18:19]
s_cmp_lt_u32 s{sWave}, 2
s_cselect_b64 {S(sW1,2)}, s[12:13], s[14:15]''')

sPar=sp.get(); sF0=sp.get(); sRtA=sp.get(); sRtB=sp.get(); sHo=sp.get(7,1); sX2o=sp.get(); sX3o=sp.get()
def hh_off(u):
    jj=u if u<4 else u-4
    k(f'''s_add_u32 s{sT0}, s{sPar}, {jj}
s_and_b32 s{sT0}, s{sT0}, 3
s_add_u32 s{sT0}, s{sT0}, s{sF0}
s_mul_i32 s{sT1}, s{sRtA if u<4 else sRtB}, 112
s_add_u32 s{sT0}, s{sT0}, s{sT1}
s_lshl_b32 s{sT0}, s{sT0}, 10
s_add_u32 s{sHo+u}, s{sT0}, {HH}''')
vSent=vp.get(4); H_={}
def m_pre():
    if not OPT['pre'] or OPT['nobg']: return
    k(f'''v_lshlrev_b32 v{t0}, 6, v{vL}
s_mul_i32 s{sT0}, s2, {56*128}
s_and_b32 s{sT1}, s{sWave}, 1
s_mul_i32 s{sT1}, s{sT1}, {28*128}
s_add_u32 s{sT1}, s{sT1}, s{sT0}
buffer_load_dword v{vdum+1}, v{t0}, {S(sW1,4)}, s{sT1} offen
v_min_u32 v{t0}, {27*64}, v{t0}
s_mul_i32 s{sT1}, s{sWave}, {14*128}
s_add_u32 s{sT1}, s{sT1}, s{sT0}
buffer_load_dword v{vdum+2}, v{t0}, {S(sWd,4)}, s{sT1} offen''')
def m_filt(m):
    k(f'''v_mul_u32_u24 v{t0}, 4112, v0
s_mul_i32 s{sT0}, s{sXc}, 514
s_lshl_b32 s{sT1}, s{sJ}, 4
s_add_u32 s{sT0}, s{sT0}, s{sT1}
s_lshl_b32 s{sT1}, s{sWave}, 10
s_add_u32 m0, s{sT1}, {R2+4096*m}
s_add_u32 s{sT0}, s{sT0}, 2''')
    H_['W']=k(f'buffer_load_dwordx4 v{t0}, {S((sWr,sWi)[m],4)}, s{sT0} offen lds')
def m_sent2():
    for i in range(4): k(f'v_mov_b32 v{vSent+i}, -1')
    k(f'''s_mul_i32 s{sX2o}, s2, {X2S}
s_lshl_b32 s{sT1}, s{sWave}, 11
s_add_u32 s{sX2o}, s{sX2o}, s{sT1}
s_add_u32 s{sX2o}, s{sX2o}, {X2}
s_mul_i32 s{sX3o}, s{sS2}, {X3S}
s_add_u32 s{sX3o}, s{sX3o}, s{sT1}
s_add_u32 s{sX3o}, s{sX3o}, {X3}''')
    for i in range(2): H_['S2']=k(f'buffer_store_dwordx4 {V(vSent,4)}, v{vL16}, {S(sWs,4)}, s{sX2o} offen offset:{1024*i} sc1')
def m_roles():
    k(f'''s_and_b32 s{sPar}, s{sS2}, 1
s_bfe_u32 s{sT0}, s{sS2}, 0x40001
s_mul_i32 s{sF0}, s{sT0}, 7
s_mul_i32 s{sT0}, s{sPar}, 3
s_add_u32 s{sF0}, s{sF0}, s{sT0}
s_lshr_b32 s{sT0}, s{sS2}, 5
s_lshl_b32 s{sT0}, s{sT0}, 3
s_lshl_b32 s{sT1}, s{sWave}, 1
s_add_u32 s{sT0}, s{sT0}, s{sT1}
s_add_u32 s{sRtA}, s{sT0}, s{sPar}
s_xor_b32 s{sRtB}, s{sRtA}, 1''')
def m_sent3():
    for i in range(2): k(f'buffer_store_dwordx4 {V(vSent,4)}, v{vL16}, {S(sWs,4)}, s{sX3o} offen offset:{1024*i} sc1')
    for u in range(7-NSENT,7):
        hh_off(u)
        H_['S3']=k(f'buffer_store_dwordx4 {V(vSent,4)}, v{vL16}, {S(sWs,4)}, s{sHo+u} offen sc1')

vWdS=vl.get(); vB1S=vl.get(); vWdR=vl.get(2)
sLq=sp.get(); sRo=sp.get(4,1); sB0=sp.get(); sB1=sp.get()
def m_wdaddr():
    k(f'''v_lshrrev_b32 v{t0}, 3, v{vL}
v_and_b32 v{t1}, 7, v{vL}
v_and_b32 v{t2}, 1, v{vG}
v_lshlrev_b32 v{t3}, 2, v{t2}
v_xor_b32 v{t3}, v{t3}, v{t1}
v_lshlrev_b32 v{t3}, 4, v{t3}
v_lshl_add_u32 v{vWdS}, v{t0}, 10, v{t3}
s_and_b32 s{sT0}, s{sJ}, 7
s_lshl_b32 s{sT0}, s{sT0}, 7
s_mul_i32 s{sT1}, s{sWave}, {448*1024}
s_add_u32 s{sT0}, s{sT0}, s{sT1}
v_add_u32 v{vWdS}, s{sT0}, v{vWdS}
s_lshl_b32 s{sLq}, s{sWave}, 15''')
    if OPT['rot']:
        k(f'''s_lshr_b32 s{sT0}, s{sJ}, 3
s_lshl_b32 s{sT0}, s{sT0}, 1
s_and_b32 s{sT1}, s{sXc}, 1
s_or_b32 s{sT0}, s{sT0}, s{sT1}
s_lshr_b32 s{sRo+2}, s{sS2}, 5''')
        if NB==1: k(f's_lshl_b32 s{sT1}, s{sRo+2}, 2\ns_lshr_b32 s{sRo+2}, s{sRo+2}, 1\ns_or_b32 s{sRo+2}, s{sRo+2}, s{sT1}\ns_and_b32 s{sRo+2}, s{sRo+2}, 7')
        if NB==2: k(f's_lshl_b32 s{sT1}, s{sRo+2}, 1\ns_lshr_b32 s{sRo+2}, s{sRo+2}, 2\ns_or_b32 s{sRo+2}, s{sRo+2}, s{sT1}\ns_and_b32 s{sRo+2}, s{sRo+2}, 7')
    else:
        k(f's_mov_b32 s{sT0}, 0\ns_mov_b32 s{sRo+2}, 0')
    k(f'''s_lshl_b32 s{sRo}, s{sT0}, 13
s_lshl_b32 s{sT0}, s{sT0}, 10
s_or_b32 s{sRo+1}, s{sT0}, s{sLq}
s_lshl_b32 s{sT0}, s{sRo+2}, 10
s_or_b32 s{sRo+3}, s{sT0}, s{sLq}''')
def m_wdraddr():
    k(f'''v_lshrrev_b32 v{t0}, 5, v{vL}
v_bfe_u32 v{t1}, v{vL}, 2, 2
v_lshl_add_u32 v{t0}, v{t0}, 2, v{t1}
v_lshlrev_b32 v{t0}, 7, v{t0}
v_and_b32 v{t2}, 1, v{vG}
v_lshl_add_u32 v{t0}, v{t2}, 5, v{t0}
v_and_b32 v{t2}, 3, v{vL}
v_lshl_add_u32 v{t0}, v{t2}, 3, v{t0}
v_lshrrev_b32 v{t1}, 1, v{t1}
v_lshlrev_b32 v{t1}, 6, v{t1}
v_add3_u32 v{vWdR}, v{t0}, v{t1}, s{sLq}
v_xor_b32 v{vWdR+1}, 64, v{vWdR}''')
def m_b1addr():
    k(f'''v_bfe_u32 v{t1}, v{vL}, 3, 1
v_lshl_add_u32 v{t1}, v{vG}, 7, v{t1}
v_mul_u32_u24 v{t1}, 3584, v{t1}
v_and_b32 v{t0}, 1, v{vG}
s_and_b32 s{sT0}, s{sWave}, 2
v_or_b32 v{t0}, s{sT0}, v{t0}
v_lshlrev_b32 v{t0}, 1, v{t0}
v_and_b32 v{t2}, 7, v{vL}
v_xor_b32 v{t0}, v{t0}, v{t2}
v_lshl_add_u32 v{vB1S}, v{t0}, 4, v{t1}
s_and_b32 s{sT0}, s{sWave}, 1
s_mul_i32 s{sT1}, s{sT0}, {32*7168}
s_lshl_b32 s{sT0}, s{sF0}, 5
s_add_u32 s{sT0}, s{sT0}, s{sT1}
v_add_u32 v{vB1S}, s{sT0}, v{vB1S}''')
dma_seq=[('w',n) for n in range(56)]+[('b',m) for m in list(range(24,32))+list(range(24))]
dst={'n':0,'tr':0,'trh':None,'trsync':0}; dh={}
def tr_batch(b):
    k.wait_vm(dh[8*b+7])
    for n in range(8*b,8*b+8):
        tau,i=n>>1,n&1
        for ct in range(2):
            dst['trh']=k(f'ds_read_b64_tr_b16 {A((tau*2+ct)*4+2*i,2)}, v{vWdR+ct} offset:{(n%32)*1024}')
    dst['tr']=b+1
def tr_ready():
    if OPT['nobg']: return
    live={e[0] for e in k.vm}
    while dst['tr']<7 and 8*dst['tr']+7<dst['n'] and dh[8*dst['tr']+7] not in live: tr_batch(dst['tr'])
def dma(cnt, force=False):
    if OPT['nobg'] and not force: return
    for _ in range(cnt):
        q=dst['n']
        if q>=len(dma_seq): return
        b=q//8
        if b>=4:
            if dst['tr']<b-3:
                if not force: return
                tr_batch(b-4)
            if dst['trsync']<b-3:
                k.wait_lg(dst['trh']); dst['trsync']=dst['tr']
        ty,n=dma_seq[q]
        if ty=='w':
            k(f's_xor_b32 m0, s{sRo+1}, {(n%32)*1024}\ns_xor_b32 s{sB0}, s{sRo}, {n*8192}')
            dh[q]=k(f'buffer_load_dwordx4 v{vWdS}, {S(sWd,4)}, s{sB0} offen lds')
        else:
            k(f's_xor_b32 m0, s{sRo+3}, {n*1024}\ns_xor_b32 s{sB0}, s{sRo+2}, {n}\ns_mul_i32 s{sB0}, s{sB0}, 7168')
            dh[q]=k(f'buffer_load_dwordx4 v{vB1S}, {S(sW1,4)}, s{sB0} offen lds')
        dst['n']+=1
class Sprinkle:
    def __init__(s,cnt,gap): s.cnt=cnt; s.gap=gap
    def __enter__(s):
        s.old=k.emit; s.c=0; s.busy=False
        def emit(text):
            h=s.old(text)
            if not s.busy and text.startswith('v_') and not text.startswith(('v_cmp','v_readlane')):
                s.c+=1
                if s.c>=s.gap and s.cnt>0:
                    s.busy=True; dma(1); s.busy=False; s.c=0; s.cnt-=1
            return h
        k.emit=emit
    def __exit__(s,*a): k.emit=s.old

order=OPT.get('ord','2,3,f0,f1').split(',')
mm={'p':m_pre,'f0':lambda:m_filt(0),'f1':lambda:m_filt(1),'2':m_sent2,'3':lambda:(m_roles(),m_sent3())}
stamp('px')
for o_ in order: mm[o_](); stamp('pm'+o_)
for f in cA[OPT['early']:]: f()
m_wdaddr()
k(f'''s_add_u32 s{sNon}, s{sNon}, 9
s_and_b32 s{sTag}, s{sNon}, 0x1fff
s_or_b32 s{sTag}, s{sTag}, 0x4000
s_lshl_b32 s{sTagF}, s{sTag}, 16''')
dma(OPT['p0'])
stamp('fconst')
F16,G16,G32,TW0,TWA=C['F16'],C['G16'],C['G32'],C['TW0'],C['TWA']

def pk(op, d, *src, mods=''):
    k(f'{op} {V(d,2)}, '+', '.join(V(x,2) if isinstance(x,int) else x for x in src)+(' '+mods if mods else ''))
sSt=sp.get(4,2)
def stats(xf, scale):
    a=vp.get(8)
    for rho in range(2):
        pk('v_pk_add_f32', a+4*rho, xf+8*rho, xf+8*rho+2)
        pk('v_pk_mul_f32', a+4*rho+2, xf+8*rho, xf+8*rho)
    for j in (2,4,6):
        for rho in range(2):
            if j>2: pk('v_pk_add_f32', a+4*rho, a+4*rho, xf+8*rho+j)
            pk('v_pk_fma_f32', a+4*rho+2, xf+8*rho+j, xf+8*rho+j, a+4*rho+2)
    for j in (0,4,2,6): k(f'v_add_f32 v{a+j}, v{a+j}, v{a+j+1}')
    k(f'v_permlane32_swap_b32 v{a}, v{a+4}')
    k(f'v_permlane32_swap_b32 v{a+2}, v{a+6}')
    k(f'v_add_f32 v{a}, v{a}, v{a+4}')
    k(f'v_add_f32 v{a+2}, v{a+2}, v{a+6}')
    for m in ('row_ror:8 row_mask:0xf','row_ror:4 row_mask:0xf','row_ror:2 row_mask:0xf','row_ror:1 row_mask:0xf','row_bcast:15 row_mask:0xa'):
        for j in (0,2): k(f'v_add_f32_dpp v{a+j}, v{a+j}, v{a+j} {m} bank_mask:0xf')
    k(f'''v_mul_f32 v{a}, {fb(1/512)}, v{a}
v_mul_f32 v{a+2}, {fb(1/512)}, v{a+2}
v_fma_f32 v{a+2}, -v{a}, v{a}, v{a+2}
v_max_f32 v{a+2}, 0, v{a+2}
v_add_f32 v{a+2}, {fb(1e-5)}, v{a+2}
v_rsq_f32 v{a+2}, v{a+2}''')
    if scale!=1: k(f'v_mul_f32 v{a+2}, {fb(scale)}, v{a+2}')
    k(f'''v_mul_f32 v{a}, -v{a}, v{a+2}
v_readlane_b32 s{sSt}, v{a+2}, 31
v_readlane_b32 s{sSt+1}, v{a}, 31
v_readlane_b32 s{sSt+2}, v{a+2}, 63
v_readlane_b32 s{sSt+3}, v{a}, 63''')
    vp.put(a,8)
def normalize(xf):
    n=vp.get(16)
    for rho in range(2):
        for j in range(0,8,2):
            pk('v_pk_fma_f32', n+8*rho+j, xf+8*rho+j, S(sSt+2*rho,2), S(sSt+2*rho,2), mods='op_sel:[0,0,1] op_sel_hi:[1,0,1]')
    return n
def mf32(d,a,b,c='0'): k(f'v_mfma_f32_16x16x32_bf16 {V(d,4)}, {V(a,4)}, {V(b,4)}, {c if c=="0" else V(c,4)}')
def mf16(d,a,b): k(f'v_mfma_f32_16x16x16_bf16 {V(d,4)}, {V(a,2)}, {V(b,2)}, 0')
def cmul_pack(dre,dim,tw,out,conj=True,swap=False):
    c,s_=tw; t=vp.get(8)
    for j in (0,2): pk('v_pk_mul_f32', t+j, dre+j, c+j)
    ng='neg_lo:[1,0] neg_hi:[1,0]'; ng3='neg_lo:[1,0,0] neg_hi:[1,0,0]'
    for j in (0,2): pk('v_pk_mul_f32', t+4+j, dre+j, s_+j, mods=ng if conj else '')
    for j in (0,2):
        pk('v_pk_fma_f32', t+j, dim+j, s_+j, t+j, mods='' if conj else ng3)
        pk('v_pk_fma_f32', t+4+j, dim+j, c+j, t+4+j)
    for r in range(4):
        a,b=(t+4+r,t+r) if swap else (t+r,t+4+r)
        k(f'v_cvt_pk_bf16_f32 v{out+r}, v{a}, v{b}')
    vp.put(t,8)

xf=vp.get(16,4)
op=vp.get(8); D=vp.get(16); D2=vp.get(16)
with Sprinkle(OPT['pa'],14):
    for rho in range(2):
        for i in range(4):
            k(f'v_lshlrev_b32 v{xf+8*rho+i}, 16, v{xr+4*rho+i}')
            k(f'v_and_b32 v{xf+8*rho+4+i}, 0xffff0000, v{xr+4*rho+i}')
    stamp('xload')
    stats(xf,1)
    n=normalize(xf)
    for e in range(2):
        for i in range(4): k(f'v_cvt_pk_bf16_f32 v{op+4*e+i}, v{n+4*e+i}, v{n+8+4*e+i}')
    for e in range(2):
        mf32(D+8*e, op+4*e, F16[0]); mf32(D+8*e+4, op+4*e, F16[1])
    vp.put(n,16)
    for e in range(2):
        cmul_pack(D+8*e, D+8*e+4, (TW0,TWA)[e], op+4*e)
        Gm=(G16,G32)[e]
        mf32(D2+8*e, Gm[0], op+4*e); mf32(D2+8*e+4, Gm[1], op+4*e)
    for t in range(2):
        for j in (0,2,4,6): pk('v_pk_add_f32', D+8*t+j, D2+j, D2+8+j, mods='neg_lo:[0,1] neg_hi:[0,1]' if t else '')
        for r in range(4): k(f'v_cvt_pk_bf16_f32 v{op+4*t+r}, v{D+8*t+r}, v{D+8*t+4+r}')
        for nn in (2*t,2*t+1):
            k(f'ds_write2st64_b32 v{aZw}, v{op+2*nn}, v{op+2*nn+1} offset0:{2*nn} offset1:{2*nn+1}')
vp.put(xr,8)
k.wait_vm(max(H_['S2'],H_['W']))
k.barrier()
stamp('fAbar')
for T in range(2):
    for e in range(2):
        k(f'ds_read_b32 v{op+4*T+2*e}, v{aP} offset:{4*(32*T+e)}')
        k(f'ds_read_b32 v{op+4*T+2*e+1}, v{aN} offset:{4*(33-32*T-e)}')
for T in range(2):
    for e in range(2): mf16(D+8*T+4*e, M3, op+4*T+2*e)
for T in range(2):
    for b0 in range(2):
        o=D2+8*T+4*b0
        for e in range(2):
            for c in range(2): k(f'v_cvt_pk_bf16_f32 v{o+2*e+c}, s{sTagF}, v{D+8*T+4*e+2*b0+c}')
        hA=k(f'buffer_store_dwordx4 {V(o,4)}, v{vL16}, {S(sWs,4)}, s{sX1o} offen offset:{(2*T+b0)*1024} sc1')
stamp('Adone')
for r_,n_ in ((G32[0],4),(G32[1],4),(TWA[0],4),(TWA[1],4),(M3,2),(aZw,1),(aP,1),(aN,1)): vp.put(r_,n_)
sp.put(sX1o)

Wf=vp.get(16); wraw=vp.get(8)
aBin=vp.get(); aBw=vp.get(); aBr=vp.get(); sBo=sp.get(4,1); aOw=vp.get(4); aOr=vp.get(); sPerm=sp.get()
with Sprinkle(OPT['s1'],4):
    k(f's_lshl_b32 s{sT0}, s{sWave}, 2\ns_add_u32 s{sT0}, s{sT0}, {R2}\nv_add_u32 v{t0}, s{sT0}, v{vL16}')
    for m in range(2):
        for r in range(4): k(f'ds_read_b32 v{wraw+4*m+r}, v{t0} offset:{4096*m+1024*r}')
    k(f'''v_lshrrev_b32 v{t1}, 2, v{vL}
v_and_b32 v{t2}, 3, v{vL}
v_mul_u32_u24 v{aBin}, {X1S}, v{t1}
v_lshl_add_u32 v{aBin}, v{t2}, 4, v{aBin}
v_mul_u32_u24 v{aBw}, 1056, v{t2}
v_lshl_add_u32 v{aBw}, v{t1}, 4, v{aBw}
s_lshl_b32 s{sT0}, s{sWave}, 8
s_add_u32 s{sT0}, s{sT0}, {R1}
v_add_u32 v{aBw}, s{sT0}, v{aBw}
s_mul_i32 s{sT0}, s{sWave}, 1056
s_add_u32 s{sT0}, s{sT0}, {R1}
v_add_u32 v{aBr}, s{sT0}, v{vL16}
s_lshr_b32 s{sT0}, s{sJ}, 2
s_lshl_b32 s{sT0}, s{sT0}, 11
s_and_b32 s{sT1}, s{sXc}, 1
s_lshl_b32 s{sT1}, s{sT1}, 10
s_add_u32 s{sT0}, s{sT0}, s{sT1}
s_lshr_b32 s{sT1}, s{sXc}, 1
s_lshl_b32 s{sT1}, s{sT1}, 8
s_add_u32 s{sT0}, s{sT0}, s{sT1}
s_and_b32 s{sT1}, s{sJ}, 3
s_lshl_b32 s{sT1}, s{sT1}, 6
s_add_u32 s{sT0}, s{sT0}, s{sT1}
s_mul_i32 s{sT1}, s{sWave}, {16*X1S}
s_add_u32 s{sT0}, s{sT0}, s{sT1}''')
    for i in range(4): k(f's_add_u32 s{sBo+i}, s{sT0}, {X1+64*i*X1S}')
    if NB:
        k(f'''v_and_b32 v{t1}, {mA}, v{vL}
v_and_b32 v{t2}, {mB}, v{vL}
v_and_b32 v{t0}, {255&~(mA|mB)}, v{vL}
v_lshrrev_b32 v{t1}, {NB}, v{t1}
v_lshlrev_b32 v{t2}, {NB}, v{t2}
v_or3_b32 v{t0}, v{t0}, v{t1}, v{t2}''')
    else: k(f'v_mov_b32 v{t0}, v{vL}')
    k(f'''s_lshl_b32 s{sT0}, s{sWave}, 3
s_add_u32 s{sT0}, s{sT0}, {R0}
v_and_b32 v{t1}, 4, v{t0}
v_lshlrev_b32 v{t1}, 2, v{t1}
v_lshl_add_u32 v{t0}, v{t0}, 5, s{sT0}
v_xor_b32 v{aOw}, v{t0}, v{t1}''')
    for r in range(1,4):
        p=swapbits(64*r); k(f'v_xor_b32 v{aOw+r}, {(p<<5)^((p&4)<<2)}, v{aOw}')
    k(f'''v_bfe_u32 v{t0}, v{vL}, 3, 1
v_xor_b32 v{t0}, v{t0}, v{vL}
s_lshl_b32 s{sT0}, s{sWave}, 11
s_add_u32 s{sT0}, s{sT0}, {R0}
v_lshl_add_u32 v{aOr}, v{t0}, 4, s{sT0}
s_mov_b32 s{sPerm}, 0x07060302''')
    for m in range(2):
        for r in range(4):
            k(f'v_lshlrev_b32 v{Wf+4*m+r}, 16, v{wraw+4*m+r}')
            k(f'v_and_b32 v{Wf+8+4*m+r}, 0xffff0000, v{wraw+4*m+r}')
    m_wdraddr(); m_b1addr()
vp.put(wraw,8)
stamp('fS1')
k.wait_vm(hA)

def retry_block(name, loads, check):
    kk=Asm()
    kk.label(f'R_{name}')
    kk('s_nop 3')
    for l in loads: kk(l)
    kk('s_waitcnt vmcnt(0)')
    for c in check: kk(c)
    kk(f's_add_u32 s{sCnt}, s{sCnt}, 1')
    kk(f's_cmp_gt_u32 s{sCnt}, {SPIN}')
    kk(f's_cbranch_scc1 C_{name}')
    kk(f's_cbranch_vccnz R_{name}')
    kk(f's_branch C_{name}')
    tail.append(kk.text())
def checked(name, loads, check):
    for c in check: k(c)
    k(f's_cbranch_vccnz R_{name}')
    k.label(f'C_{name}')
    retry_block(name, loads, check)

ld=vp.get(16); ck=vp.get(2)
loads=[f'buffer_load_dwordx4 {V(ld+4*i,4)}, v{aBin}, {S(sWs,4)}, s{sBo+i} offen sc1' for i in range(4)]
stamp('Bpoll')
for l in loads: k(l)
tr_ready(); dma(OPT['s2'])
chk=[f'v_xor_b32 v{ck}, s{sTag}, v{ld}', f'v_xor_b32 v{ck+1}, s{sTag}, v{ld+1}']
for j in range(2,16): chk.append(f'v_bitop3_b32 v{ck+(j&1)}, v{ck+(j&1)}, v{ld+j}, s{sTag} bitop3:0xf6')
chk+= [f'v_or_b32 v{ck}, v{ck}, v{ck+1}', f'v_cmp_ne_u16 vcc, 0, v{ck}']
checked('B', loads, chk)
stamp('Bgot')
for e in range(2):
    for i in range(4): k(f'v_perm_b32 v{op+4*e+i}, v{ld+4*i+2*e+1}, v{ld+4*i+2*e}, s{sPerm}')
    k(f'ds_write_b128 v{aBw}, {V(op+4*e,4)} offset:{4224*e}')
k.barrier()
for e in range(2): k(f'ds_read_b128 {V(op+4*e,4)}, v{aBr} offset:{4224*e}')
for e in range(2):
    mf32(D+8*e, op+4*e, F16[0]); mf32(D+8*e+4, op+4*e, F16[1])
with Sprinkle(OPT['pb'],12):
    for e in range(2):
        cmul_pack(D+8*e, D+8*e+4, TW0, op+4*e)
        mf32(D2+8*e, G16[0], op+4*e); mf32(D2+8*e+4, G16[1], op+4*e)
    for e in range(2):
        cmul_pack(D2+8*e, D2+8*e+4, (Wf+8*e, Wf+8*e+4), op+4*e, conj=False, swap=True)
        mf32(D+8*e, op+4*e, F16[0]); mf32(D+8*e+4, op+4*e, F16[1])
    for e in range(2):
        cmul_pack(D+8*e, D+8*e+4, TW0, op+4*e)
        mf32(D2+8*e, G16[0], op+4*e); mf32(D2+8*e+4, G16[1], op+4*e)
for r in range(4): k(f'v_cvt_pk_bf16_f32 v{ld+2*r}, v{D2+4+r}, v{D2+r}')
for r in range(4):
    k(f'v_cvt_pk_bf16_f32 v{ld+2*r+1}, v{D2+12+r}, v{D2+8+r}')
    k(f'ds_write_b64 v{aOw+r}, {V(ld+2*r,2)}')
k.wait_vm(H_['S3'])
k.barrier()
for i in range(2): k(f'ds_read_b128 {V(ld+8+4*i,4)}, v{aOr} offset:{1024*i}')
for i in range(2): hB=k(f'buffer_store_dwordx4 {V(ld+8+4*i,4)}, v{vL16}, {S(sWs,4)}, s{sX2o} offen offset:{1024*i} sc1')
stamp('Bdone')
for r_,n_ in ((Wf,16),(aBin,1),(aBw,1),(aBr,1),(aOw,4),(aOr,1),(vSent,4)): vp.put(r_,n_)
sp.put(sBo,4); sp.put(sX2o); sp.put(sPerm); sp.put(sTag); sp.put(sTagF)
k(f'''s_or_b32 s{sT0}, s2, s{sWave}
s_cmp_lg_u32 s{sT0}, 0
s_cbranch_scc1 Lnon
v_mov_b32 v{t1}, s{sNon}''')
k.raw(f'    buffer_store_dword v{t1}, off, {S(sWs,4)}, 0 sc1')
k.label('Lnon')

tr_ready()
M3i=vp.get(2); u0=vp.get(4)
nyq=vp.get(2); aCin=vp.get(); aCp=vp.get(); aCn=vp.get(); aCr=vp.get(2); sCo=sp.get(2,1)
aLw=vp.get(2); aLr=vp.get(); aHw=vp.get(); aHr=vp.get(); sHb=sp.get()
CB=R1+16; CS=2064; SC=2.0**-21
with Sprinkle(OPT['s3'],10):
    k(f'''v_lshrrev_b32 v{t0}, 2, v{vLo}
v_cvt_f32_u32 v{t0}, v{t0}
v_mul_f32 v{u0}, {fb(0.25)}, v{t0}
v_add_f32 v{u0}, v{u0}, v{fS2}
v_bfe_u32 v{t0}, v{vLo}, 1, 1
v_and_b32 v{t1}, 1, v{vLo}
v_cvt_f32_u32 v{t0}, v{t0}
v_cvt_f32_u32 v{t1}, v{t1}
v_fma_f32 v{t0}, v{t0}, 2.0, -1.0
v_mul_f32 v{t0}, {fb(0.25)}, v{t0}
v_mul_f32 v{u0+1}, v{t0}, v{t1}''')
    for nn in range(2):
        k(f'''v_fma_f32 v{t1}, v{fG}, 2.0, {"1.0" if nn else "0"}
v_fma_f32 v{t2}, v{u0}, v{t1}, v{u0+1}
v_mul_f32 v{t1}, {fb(0.125)}, v{t1}
v_sub_f32 v{t1}, v{t1}, v{t0}
v_add_f32 v{t1}, v{t1}, v{t2}
v_cos_f32 v{c4}, v{t2}
v_sin_f32 v{c4+1}, v{t2}
v_cos_f32 v{c4+2}, v{t1}
v_sin_f32 v{c4+3}, v{t1}
v_add_f32 v{t1}, v{c4}, v{c4+2}
v_add_f32 v{t2}, v{c4+1}, v{c4+3}
v_mul_f32 v{t1}, {fb(SC)}, v{t1}
v_mul_f32 v{t2}, {fb(-SC)}, v{t2}
v_cvt_pk_bf16_f32 v{M3i+nn}, v{t1}, v{t2}''')
    k(f'''v_and_b32 v{t0}, 0xcf, v0
v_mov_b32 v{t1}, 0.5
v_cmp_eq_u32 vcc, 0xcf, v{t0}
v_lshrrev_b32 v{t0}, 1, v{vLo}
v_lshlrev_b32 v{t0}, 2, v{t0}
v_cndmask_b32 v{nyq}, 1.0, v{t1}, vcc
v_cndmask_b32 v{nyq+1}, 0, v{t1}, vcc
v_add_u32 v{t0}, v{t0}, v{vG}
v_mul_u32_u24 v{t0}, {2*X2S}, v{t0}
v_and_b32 v{t1}, 1, v{vLo}
v_lshl_add_u32 v{aCin}, v{t1}, 4, v{t0}
s_mul_i32 s{sT0}, s{sWave}, {64*X2S}
s_lshl_b32 s{sT1}, s{sPos}, 5
s_add_u32 s{sT0}, s{sT0}, s{sT1}
s_add_u32 s{sCo}, s{sT0}, {X2}
s_add_u32 s{sCo+1}, s{sT0}, {X2+X2S}
v_mul_u32_u24 v{t0}, {CS}, v{vG}
v_lshlrev_b32 v{t1}, 4, v{vLo}
s_lshl_b32 s{sT0}, s{sWave}, 8
s_add_u32 s{sT1}, s{sT0}, {CB}
s_sub_u32 s{sT0}, {CB+1024+4*252}, s{sT0}
v_add3_u32 v{aCp}, v{t0}, v{t1}, s{sT1}
v_sub_u32 v{t0}, v{t0}, v{t1}
v_add_u32 v{aCn}, s{sT0}, v{t0}
s_mul_i32 s{sT0}, s{sWave}, {CS}
s_add_u32 s{sT0}, s{sT0}, {CB-4}
v_add_u32 v{aCr}, s{sT0}, v{vL4}
v_add_u32 v{aCr+1}, {1028}, v{aCr}
v_mov_b32 v{t0}, s{sT0}
v_mov_b32 v{t1}, 0
ds_write_b32 v{t0}, v{t1}''')
    k(f'''v_fma_f32 v{t3}, v{fLo}, 2.0, 1.0
v_mul_f32 v{t0}, {fb(1/32)}, v{t3}
v_mul_f32 v{t1}, 4.0, v{t0}
v_mul_f32 v{t0}, v{t0}, v{fG}''')
    H=mk_matrix(t0,t1,neg=True)
stamp('fS3')
k.wait_vm(hB)

loads=[f'buffer_load_dwordx4 {V(ld+4*i,4)}, v{aCin}, {S(sWs,4)}, s{sCo+i} offen sc1' for i in range(2)]
stamp('Cpoll')
for l in loads: k(l)
tr_ready()
with Sprinkle(OPT['s4'],4):
    k(f'v_mul_f32 v{t1}, {fb(1/512)}, v{t3}\nv_mul_f32 v{t0}, 4.0, v{fG}\nv_mul_f32 v{t0}, v{t0}, v{t1}')
    TWC=cs(t0,t1)
    k(f'''v_and_b32 v{t0}, 7, v{vL}
s_lshl_b32 s{sT0}, s{sWave}, 1
v_xor_b32 v{t0}, s{sT0}, v{t0}
v_lshlrev_b32 v{t0}, 4, v{t0}
v_lshl_add_u32 v{t0}, v{vL}, 7, v{t0}
v_add_u32 v{aLw}, {R0}, v{t0}
v_xor_b32 v{aLw+1}, 16, v{aLw}
v_lshrrev_b32 v{t0}, 3, v{vL}
v_xor_b32 v{t0}, v{t0}, v{vL}
s_lshl_b32 s{sT0}, s{sWave}, 11
s_add_u32 s{sT1}, s{sT0}, {R0}
v_lshl_add_u32 v{aLr}, v{t0}, 4, s{sT1}
s_add_u32 s{sT1}, s{sT0}, {R2}
v_add_u32 v{aHw}, s{sT1}, v{vL4}
v_add_u32 v{aHr}, s{sT1}, v{vL16}
s_lshl_b32 s{sHb}, s{sS2}, 13
s_add_u32 s{sHb}, s{sHb}, s{sT0}
s_add_u32 s{sHb}, s{sHb}, {HB}''')
def maxchk(regs_, ckr):
    c=[f'v_max_u32 v{ckr}, v{regs_[0]}, v{regs_[1]}']
    for j in range(2,len(regs_),2): c.append(f'v_max3_u32 v{ckr}, v{ckr}, v{regs_[j]}, v{regs_[j+1]}')
    return c
checked('C', loads, maxchk(list(range(ld,ld+8)),ck)+[f'v_cmp_eq_u32 vcc, -1, v{ck}'])
stamp('Cgot')
for e in (3,0,1,2):
    k(f'v_pk_mov_b32 {V(op+2*e,2)}, {V(ld+(e&2),2)}, {V(ld+4+(e&2),2)} op_sel:[{e&1},{e&1}]')
for e in (3,0,1,2): mf16(D+4*e, M3i, op+2*e)
pk('v_pk_mul_f32', D+14, D+14, nyq, mods='op_sel:[0,0] op_sel_hi:[1,0]')
pk('v_pk_fma_f32', D+14, D+12, nyq, D+14, mods='op_sel:[0,1,0] op_sel_hi:[1,1,1]')
for e in (3,0,1,2): k(f'v_cvt_pk_bf16_f32 v{ld+e}, v{D+4*e+1}, v{D+4*e}')
k(f'ds_write_b128 v{aCp}, {V(ld,4)}')
for e in (3,0,1,2): k(f'v_cvt_pk_bf16_f32 v{ld+4+3-e}, v{D+4*e+3}, v{D+4*e+2}')
k(f'ds_write_b128 v{aCn}, {V(ld+4,4)}')
k.barrier()
for t in range(2):
    for nn in range(2): k(f'ds_read2st64_b32 {V(op+4*t+2*nn,2)}, v{aCr+t} offset0:{2*nn} offset1:{2*nn+1}')
for e in range(2):
    for c in range(2): mf32(D+8*e+4*c, op, (F16,H)[e][c])
    for c in range(2): mf32(D+8*e+4*c, op+4, (F16[c],H[2+c])[e], D+8*e+4*c)
with Sprinkle(OPT['pc'],12):
    for e in range(2):
        cmul_pack(D+8*e, D+8*e+4, (TW0,TWC)[e], ld+4*e)
        mf32(xf+4*e, G16[1], ld+4*e, xf+4*e)
        mf32(xf+8+4*e, G16[0], ld+4*e, xf+8+4*e)
    stats(xf,CG)
    n=normalize(xf)
for rho in range(2):
    for i in range(4): k(f'v_cvt_pk_bf16_f32 v{op+4*rho+i}, v{n+8*rho+i}, v{n+8*rho+4+i}')
    k(f'ds_write_b128 v{aLw+rho}, {V(op+4*rho,4)}')
k.barrier()
for i in range(2): k(f'ds_read_b128 {V(ld+4*i,4)}, v{aLr} offset:{1024*i}')
for rho in range(2):
    for i in range(4): k(f'v_cvt_pk_bf16_f32 v{D+4*rho+i}, v{xf+8*rho+i}, v{xf+8*rho+4+i}')
for i in range(2): k(f'buffer_store_dwordx4 {V(ld+4*i,4)}, v{vL16}, {S(sWs,4)}, s{sX3o} offen offset:{1024*i} sc1')
stamp('Cdone')
for rho in range(2):
    for nn in range(2): k(f'ds_write2st64_b32 v{aHw}, v{D+4*rho+2*nn}, v{D+4*rho+2*nn+1} offset0:{4*rho+2*nn} offset1:{4*rho+2*nn+1}')
k.wait_lg()
for i in range(2): k(f'ds_read_b128 {V(D2+4*i,4)}, v{aHr} offset:{1024*i}')
for i in range(2): k(f'buffer_store_dwordx4 {V(D2+4*i,4)}, v{vL16}, {S(sWs,4)}, s{sHb} offen offset:{1024*i} sc1')

print('dma issued before S5:',dst['n'],'tr',dst['tr'],file=sys.stderr)
if OPT['nobg']<2: dma(99,force=True)
for u in range(7-NSENT): hh_off(u)
aB=vl.get(4,1); aA=vl.get(); aPr=vl.get(); vck=vl.get(); vck2=vl.get(); vpr=vl.get(); aFl=vl.get()
k(f'''v_and_b32 v{t0}, 1, v{vG}
v_bfe_u32 v{t1}, v{vL}, 3, 1
v_lshl_add_u32 v{t1}, v{t0}, 1, v{t1}
v_lshlrev_b32 v{t0}, 16, v{t0}
v_lshrrev_b32 v{t2}, 5, v{vL}
v_lshl_add_u32 v{t0}, v{t2}, 10, v{t0}
v_bfe_u32 v{t2}, v{vL}, 2, 2
v_lshl_add_u32 v{t0}, v{t2}, 7, v{t0}
v_and_b32 v{t2}, 3, v{vL}
v_lshl_add_u32 v{t0}, v{t2}, 3, v{t0}''')
for jj in range(4):
    k(f'''s_add_u32 s{sT0}, s{sPar}, {jj}
s_and_b32 s{sT0}, s{sT0}, 3
v_xor_b32 v{t2}, s{sT0}, v{t1}
v_lshl_add_u32 v{aB+jj}, v{t2}, 5, v{t0}''')
sp.put(sCo,2); sp.put(sHb); sp.put(sX3o); sp.put(sSt,4); sp.put(sRo,4); sp.put(sLq)
sAo=sp.get(4,1)
k(f'''v_bfe_u32 v{t0}, v{vL}, 3, 2
v_mul_u32_u24 v{t0}, {X3S}, v{t0}
v_lshrrev_b32 v{t1}, 5, v{vL}
v_and_b32 v{t2}, 7, v{vL}
v_lshl_add_u32 v{aA}, v{t1}, 7, v{t0}
v_lshl_add_u32 v{aA}, v{t2}, 4, v{aA}
v_lshl_add_u32 v{aPr}, v{t1}, 9, v{t0}
v_lshl_add_u32 v{aPr}, v{t2}, 10, v{aPr}
s_mul_i32 s{sT0}, s{sRtA}, {4*X3S}
s_add_u32 s{sAo}, s{sT0}, {X3}
s_add_u32 s{sAo+1}, s{sT0}, {X3+4096}
s_mul_i32 s{sT0}, s{sRtB}, {4*X3S}
s_add_u32 s{sAo+2}, s{sT0}, {X3}
s_add_u32 s{sAo+3}, s{sT0}, {X3+4096}''')
sKq=sp.get(); sC2=sp.get(); sG2=sp.get(2,1); sRb=sp.get(); sFo=sp.get(); sFi=sp.get()
k(f'''s_mov_b32 s{sKq}, {fb(KQ)}
s_mov_b32 s{sC2}, {fb(CG*CG)}
s_lshl_b32 s{sRb}, s{sXc}, 2
s_lshr_b32 s{sT2}, s{sJ}, 3
s_add_u32 s{sRb}, s{sRb}, s{sT2}
s_mul_i32 s{sT0}, s{sRb}, 224
s_mul_i32 s{sT1}, s{sWave}, 28
s_add_u32 s{sT0}, s{sT0}, s{sT1}
s_lshl_b32 s{sT0}, s{sT0}, 10
s_add_u32 s{sG2}, s{sT0}, {HH}
s_add_u32 s{sG2+1}, s{sT0}, {HH+112*1024}
s_lshl_b32 s{sFo}, s{sS2}, 2
s_add_u32 s{sFo}, s{sFo}, s{sWave}
s_lshl_b32 s{sFo}, s{sFo}, 7
s_add_u32 s{sFo}, s{sFo}, {FL}
s_lshl_b32 s{sFi}, s{sXc}, 7
s_add_u32 s{sFi}, s{sFi}, s{sT2}
s_lshl_b32 s{sFi}, s{sFi}, 7
s_add_u32 s{sFi}, s{sFi}, {FL}
v_and_b32 v{t0}, 8, v{vL}
v_mov_b32 v{t1}, s{sWave}
v_mov_b32 v{t3}, s{sT2}
v_cmp_eq_u32 vcc, 0, v{t0}
v_cndmask_b32 v{t1}, v{t3}, v{t1}, vcc
v_lshl_add_u32 v{t1}, v{t1}, 3, v{t2}
v_lshlrev_b32 v{aFl}, 9, v{t1}''')
k('s_waitcnt vmcnt(0) lgkmcnt(0)')
k('s_barrier')

ACC=[32,48,64,80]
SLOT=[128+4*i for i in range(32)]+[96+4*i for i in range(8)]
ordA=[4*i for i in range(8)]+[t for t in range(32) if t%4]
def aload(slot, rt, t): return f'buffer_load_dwordx4 {V(SLOT[slot],4)}, v{aA}, {S(sWs,4)}, s{sAo+2*rt+(t>>4)} offen offset:{(t&15)*256} sc1'
k.label('G1')
stamp('G1poll')
loads=[aload(s_,0,ordA[s_]) for s_ in range(8)]+[f'buffer_load_dword v{vpr}, v{aPr}, {S(sWs,4)}, s{sAo+2} offen offset:508 sc1']
for l in loads: k(l)
KM=OPT['kmaj']
mf=[]
for s_ in range(KM):
    for jj in range(4): mf.append((jj,s_,jj,ordA[s_],s_==0))
for jj in range(4):
    for s_ in range(KM,32): mf.append((jj,s_,jj,ordA[s_],False))
slotB=list(range(32,40))+list(range(24))
for jj in range(3):
    for t in range(32): mf.append((jj,slotB[t],jj,t,t==0))
NM=len(mf)
FR=224; NF=8; PD=OPT.get('pd',5); WE=OPT.get('we',2)
def bread(i):
    acc,s_,jj,t,f=mf[i]
    return [f'ds_read_b64_tr_b16 {A(FR+4*(i%NF)+2*x,2)}, v{aB+jj} offset:{t*2048+x*512}' for x in range(2)]
for i in range(PD):
    for l in bread(i): k(l)
chk=maxchk([SLOT[j]+3 for j in range(8)],vck)+[f'v_max_u32 v{vck}, v{vck}, v{vpr}', f'v_cmp_eq_u32 vcc, -1, v{vck}']
checked('G1', loads, chk)
stamp('G1got')

side=[[] for _ in range(NM+200)]
def chk2(s0,s1): return f'v_max3_u32 v{vck}, v{vck}, v{SLOT[s0]+3}, v{SLOT[s1]+3}'
lastuse={}; firstuse={}
for i,(acc,s_,jj,t,f) in enumerate(mf):
    ph=0 if i<128 else 1
    lastuse[(ph,s_)]=i; firstuse.setdefault((ph,s_),i)
for s_ in range(8,32):
    side[2*(s_-8)].append(aload(s_,0,ordA[s_]))
    if s_&1: side[firstuse[(0,s_-1)]-1].append(chk2(s_-1,s_))
pos=48
for t in range(32):
    s_=slotB[t]
    p=max(pos, lastuse.get((0,s_),-1))
    side[p].append(aload(s_,1,t)); pos=p+2
    if t&1: side[firstuse[(1,slotB[t-1])]-1].append(chk2(slotB[t-1],s_))
def verify(name):
    def f():
        k(f'v_cmp_eq_u32 vcc, -1, v{vck}')
        k(f's_cbranch_vccnz RESTART')
    return f
kk=Asm(); kk.label('RESTART')
kk(f'''s_waitcnt vmcnt(0) lgkmcnt(0)
s_nop 15
s_add_u32 s{sCnt}, s{sCnt}, 1000
s_cmp_gt_u32 s{sCnt}, {SPIN}
s_cbranch_scc0 G1
s_endpgm''')
tail.append(kk.text())
EPT=vl.get(4); EPO=vl.get(4)
cur={'i':0}
FLAGS={1:2,3:4,4:5}
FD=OPT.get('fd',24)
def hh_store(u):
    def f():
        h=k(f'buffer_store_dwordx4 {V(EPO,4)}, v{vL16}, {S(sWs,4)}, s{sHo+u} offen sc1')
        print('hh store',u,'at',cur['i'],file=sys.stderr)
        if u in FLAGS:
            def g():
                k(f's_add_u32 s{sT0}, s{sNon}, {FLAGS[u]}\nv_mov_b32 v{vck2}, s{sT0}')
                k.wait_vm(h)
                k(f'buffer_store_dword v{vck2}, off, {S(sWs,4)}, s{sFo} sc1')
            side[cur['i']+FD].append(g)
    return f
def gelu(acc, u):
    a=ACC[acc]; o=[]; tmp=EPT
    for hlf in range(2):
        R=range(4*hlf,4*hlf+4)
        for r in R: o.append(f'v_fma_f32 v{tmp+(r&3)}, v{a+r}, v{a+r}, s{sKq}')
        for r in R: o.append(f'v_mul_f32 v{tmp+(r&3)}, -v{a+r}, v{tmp+(r&3)}')
        for r in R:
            o.append(f'v_exp_f32 v{tmp+(r&3)}, v{tmp+(r&3)}')
            o.append(f'v_mul_f32 v{a+r}, v{a+r}, v{a+8+r}')
        for r in R:
            o.append(f'v_fma_f32 v{tmp+(r&3)}, v{tmp+(r&3)}, s{sC2}, s{sC2}')
            if r&3: o.append(f'v_rcp_f32 v{tmp+(r&3)-1}, v{tmp+(r&3)-1}')
        o.append(f'v_rcp_f32 v{tmp+3}, v{tmp+3}')
        for r in R: o.append(f'v_mul_f32 v{a+r}, v{a+r}, v{tmp+(r&3)}')
        for r in (4*hlf,4*hlf+2): o.append(f'v_cvt_pk_bf16_f32 v{EPO+r//2}, v{a+r}, v{a+r+1}')
    o.append(hh_store(u))
    return o
done=[max(i for i in range(128) if mf[i][0]==jj) for jj in range(4)]+[128+32*jj+31 for jj in range(3)]
epi=[]
for u in range(7):
    g=gelu(u if u<4 else u-4,u)
    if u==0: g.insert(len(g)-1, verify('A'))
    if u==4: g.insert(len(g)-1, verify('B'))
    epi+= [(done[u]+2,x,u) for x in g]

def phi7(cls, rt):
    if cls<4: return cls if rt==0 else 3+((cls+1)&3)
    return 4+(cls-4) if rt==0 else cls-4
groups=[(0,0),(1,0),(0,1),(1,1),(2,0),(3,0),(2,1),(4,0),(5,0),(6,0),(3,1),(4,1),(5,1),(6,1)]
ACC2={(0,0):ACC[3],(0,1):ACC[0],(1,0):ACC[1],(1,1):ACC[2]}
HV=SLOT[22]; P0=96
freeq=[(s_,127) for s_ in range(24,32)]+[(slotB[t],192+t) for t in range(8,30)]
g2=[]; started=set()
base=NM; LEAD=OPT['lead']; PL=OPT.get('pl',18)
pos=0; have=0
fload=f'buffer_load_dword v{vpr}, v{aFl}, {S(sWs,4)}, s{sFi} offen sc1'
for gi,(cls,rt) in enumerate(groups):
    p0=max(pos,base+8*gi-LEAD)
    if cls<7-NSENT and cls+1>have:
        have=min(n_ for n_ in FLAGS.values() if n_>=cls+1)
        c=[f's_add_u32 s{sT1}, s{sNon}, {have}', f'v_subrev_u32 v{vpr}, s{sT1}, v{vpr}', f'v_cmp_lt_u32 vcc, 7, v{vpr}']
        side[p0-PL].append(fload)
        def mkf(have=have,c=c):
            def f(): checked(f'F{have}', [fload], c)
            return f
        side[p0].append(mkf())
        print('poll n>=',have,'issue',p0-PL,'check',p0,file=sys.stderr)
    lds_=[]; sl=[]
    for q in range(4):
        tau=7*q+phi7(cls,rt)
        s_,fr=freeq.pop(0)
        use=base+8*gi+2*q
        freeq.append((s_,use+1))
        l=[f's_add_u32 s{sT2}, s{sG2+rt}, {(tau>>2)*4096}', f'buffer_load_dwordx4 {V(SLOT[s_],4)}, v{vL16}, {S(sWs,4)}, s{sT2} offen offset:{(tau&3)*1024} sc1']
        p=max(pos, fr, p0)
        side[p]+=l; pos=p+2
        lds_+=l; sl.append(s_)
        for ct in range(2):
            g2.append((ACC2[(rt,ct)], (tau*2+ct)*4, SLOT[s_], (rt,ct) not in started)); started.add((rt,ct))
    if cls>=7-NSENT:
        c=maxchk([SLOT[s_]+3 for s_ in sl],vck)+[f'v_cmp_eq_u32 vcc, -1, v{vck}']
        def mk(gi=gi,lds_=lds_,c=c):
            def f(): checked(f'G2_{gi}', lds_, c)
            return f
        side[base+8*gi-1].append(mk())

aRw=vl.get(); aRr=vl.get(2,1); aHo=vl.get(2,1); sEo=sp.get(2,1)
PA=R0
tq=aA
red_setup=f'''v_and_b32 v{tq}, 31, v{vL}
v_lshrrev_b32 v{aRw}, 5, v{vL}
v_and_b32 v{aPr}, 7, v{vL}
v_xor_b32 v{aRw}, v{aRw}, v{aPr}
v_lshlrev_b32 v{aRw}, 4, v{aRw}
v_lshl_add_u32 v{aRw}, v{tq}, 8, v{aRw}
s_lshl_b32 s{sT0}, s{sWave}, 13
s_add_u32 s{sT0}, s{sT0}, {PA}
v_add_u32 v{aRw}, s{sT0}, v{aRw}
v_lshrrev_b32 v{tq}, 3, v{vL}
v_lshlrev_b32 v{aRr}, 1, v{aPr}
v_xor_b32 v{aRr}, v{aRr}, v{tq}
v_lshlrev_b32 v{aRr}, 4, v{aRr}
v_lshl_add_u32 v{aRr}, v{tq}, 8, v{aRr}
s_lshl_b32 s{sT0}, s{sWave}, 11
s_add_u32 s{sT0}, s{sT0}, {PA}
v_add_u32 v{aRr}, s{sT0}, v{aRr}
v_xor_b32 v{aRr+1}, 16, v{aRr}
v_lshlrev_b32 v{aPr}, 4, v{aPr}
v_lshl_add_u32 v{aHo}, v{tq}, 10, v{aPr}
v_lshl_add_u32 v{aHo+1}, v{tq}, 18, v{aPr}
s_and_b32 s{sB0}, s{sJ}, 7
s_lshl_b32 s{sB0}, s{sB0}, 7
s_lshl_b32 s{sB1}, s{sRb}, 3
s_add_u32 s{sB1}, s{sB1}, s{sWave}
s_lshl_b32 s{sEo}, s{sB1}, 13
s_add_u32 s{sEo}, s{sEo}, s{sB0}
s_add_u32 s{sEo}, s{sEo}, {HB}
s_lshl_b32 s{sEo+1}, s{sB1}, 10
s_add_u32 s{sEo+1}, s{sEo+1}, s{sB0}
buffer_load_dwordx4 {V(HV,4)}, v{aHo}, {S(sWs,4)}, s{sEo} offen sc1
s_add_u32 s{sEo}, s{sEo}, {32*1024}
buffer_load_dwordx4 {V(HV+4,4)}, v{aHo}, {S(sWs,4)}, s{sEo} offen sc1'''.split('\n')
red_setup+= [f'v_xor_b32 v{aB+i}, {32*i}, v{aRw}' for i in range(4)]

def run_side(i, budget):
    cost=0; cur['i']=i
    for x in side[i]:
        if callable(x): x()
        else: k(x)
        cost+=4
    while epi and epi[0][0]<=i and cost<budget:
        x=epi.pop(0)[1]
        if callable(x): x(); cost+=4
        else: k(x); cost+= 8 if ('exp' in x or 'rcp' in x) else 4
def flush(u):
    while epi and epi[0][2]<=u:
        x=epi.pop(0)[1]
        x() if callable(x) else k(x)

EB=OPT['eb']
for i,(acc,s_,jj,t,f) in enumerate(mf):
    a=ACC[acc]
    if f and i>=128: flush(acc)
    if i%WE==0: k.wait_regs([A(FR+4*(j%NF),4) for j in range(i,i+WE)])
    k(f'v_mfma_f32_32x32x16_bf16 {V(a,16)}, {A(FR+4*(i%NF),4)}, {V(SLOT[s_],4)}, {"0" if f else V(a,16)}')
    if i+PD<NM:
        for l in bread(i+PD): k(l)
    run_side(i,EB-(4 if (i+1)%WE==0 else 0)+2)
    if i%32==31 and i<NM-1: stamp(f'm{i+1}')
stamp('G1done')

def red_write(rt):
    return [f'ds_write_b128 v{aB+i}, {V(ACC2[(rt,ct)]+4*i,4)} offset:{128*ct}' for ct in range(2) for i in range(4)]
def red_read(): return [f'ds_read_b128 {V(P0+8*pw+4*x,4)}, v{aRr+x} offset:{8192*pw}' for pw in range(4) for x in range(2)]
def red_fin(rt, packed):
    o=[]; p=P0; hq=ACC2[(0,0)]
    for j in range(4):
        o.append(f'v_lshlrev_b32 v{hq+2*j}, 16, v{HV+4*rt+j}')
        o.append(f'v_and_b32 v{hq+2*j+1}, 0xffff0000, v{HV+4*rt+j}')
    def add(d,a,b):
        if packed: o.extend(f'v_pk_add_f32 {V(d+j,2)}, {V(a+j,2)}, {V(b+j,2)}' for j in (0,2,4,6))
        else: o.extend(f'v_add_f32 v{d+j}, v{a+j}, v{b+j}' for j in range(8))
    add(hq,hq,p); add(hq,hq,p+8); add(hq,hq,p+16); add(hq,hq,p+24)
    for j in range(4): o.append(f'v_cvt_pk_bf16_f32 v{hq+8+j}, v{hq+2*j}, v{hq+2*j+1}')
    o.append(f'buffer_store_dwordx4 {V(hq+8,4)}, v{aHo+1}, {S(sOut,4)}, s{sEo+1} offen')
    return o
need_free={ACC[3]:3, ACC[0]:4, ACC[1]:5, ACC[2]:6}
rt0_done=base+8*groups.index((6,0))+7
for x_i,x in enumerate(red_setup): side[base+20+x_i//3].append(x)
for j,x in enumerate(red_write(0)): side[rt0_done+3+j].append(x)
side[rt0_done+15].append(k.barrier)
for j,x in enumerate(red_read()): side[rt0_done+15+j//2].append(x)
fin0=red_fin(0,False)+[f's_add_u32 s{sEo+1}, s{sEo+1}, 4096']+[f'v_xor_b32 v{r}, {PA}, v{r}' for r in (aB,aB+1,aB+2,aB+3,aRr,aRr+1)]
for j,x in enumerate(fin0): side[min(rt0_done+20+j//5, base+111)].append(x)
for i,(a,wa,sl,f) in enumerate(g2):
    if f: flush(need_free[a])
    k(f'v_mfma_f32_32x32x16_bf16 {V(a,16)}, {A(wa,4)}, {V(sl,4)}, {"0" if f else V(a,16)}')
    run_side(base+i,22)
    if i%32==31: stamp(f'mm{i+1}')
assert not epi and not any(side[base+112:])
stamp('G2done')
fin1=red_fin(1,True)
for x in fin1[:8]: k(x)
for x in red_write(1): k(x)
k.barrier()
for x in red_read(): k(x)
for x in fin1[8:]: k(x)
stamp('end')
if 'amp' in OPT:
    ra,rb=[r for n,r in stamp_regs]
    k(f'''s_memrealtime s[4:5]
s_waitcnt lgkmcnt(0)
s_sub_u32 s{sT0}, s{rb}, s{ra}
s_mul_i32 s{sT0}, s{sT0}, {OPT.get('ampk',2)}
s_min_u32 s{sT0}, s{sT0}, 100000''')
    k.label('Lamp')
    k(f'''s_memrealtime s[6:7]
s_waitcnt lgkmcnt(0)
s_sub_u32 s{sT1}, s6, s4
s_cmp_lt_u32 s{sT1}, s{sT0}
s_cbranch_scc1 Lamp''')
if OPT['stamps']:
    k('s_waitcnt vmcnt(0) lgkmcnt(0)')
    stamp('drained')
    k(f'''s_lshl_b32 s{sT0}, s2, 2
s_add_u32 s{sT0}, s{sT0}, s{sWave}
s_lshl_b32 s{sT0}, s{sT0}, 7
s_add_u32 s{sT0}, s{sT0}, {STAMP}''')
    for j,(nm,r) in enumerate(stamp_regs+[('cnt',sCnt)]):
        k(f'v_mov_b32 v{140+j}, s{r}')
        k(f'buffer_store_dword v{140+j}, off, {S(sWs,4)}, s{sT0} offset:{4*j}')
k('s_endpgm')

hdr=f'''; Fused persistent kernel: LN -> 2-D FFT filter (MFMA DFT stages) -> LN -> GEGLU FFN, 256 workgroups.
; @launch grid=(256,1,1) block=(256,1,1) lds={LDSZ}
.amdgcn_target "amdgcn-amd-amdhsa--gfx950"
.text
.globl {KN}
.p2align 8
.type {KN},@function
'''
ftr=f'''
CODE_END:
.section .rodata,"a"
.p2align 6
.amdhsa_kernel {KN}
  .amdhsa_next_free_vgpr 512
  .amdhsa_next_free_sgpr 102
  .amdhsa_accum_offset 256
  .amdhsa_group_segment_fixed_size 0
  .amdhsa_kernarg_size 80
  .amdhsa_user_sgpr_count 2
  .amdhsa_user_sgpr_kernarg_segment_ptr 1
  .amdhsa_system_sgpr_workgroup_id_x 1
.end_amdhsa_kernel
'''
open(sys.argv[1],'w').write(hdr+k.text()+'\n'+'\n'.join(tail)+ftr)
open(sys.argv[1]+'.stamps','w').write(' '.join(n for n,_ in stamp_regs)+' cnt')
print('instrs',k.count,'nops',k.nops,'vl hi',vl.hi,'sp hi',sp.hi, file=sys.stderr)
```

```python
import sys, struct
from asmlib import *

KN = "sequential_preLN__spectral_gfnet__glu_gated_geglu__prompt_kernel"
OPT = dict(stamps=0, ng=2, kmaj=16, eb=14, pre=1, nobg=0, rot=1, early=5,
           p0=0, pa=0, s1=16, s2=12, pb=8, s3=12, s4=8, pc=8, lead=24)
for a in sys.argv[2:]:
    kk,vv = a.split('='); OPT[kk]=int(vv) if vv.lstrip('-').isdigit() else vv
NB = OPT['ng']
def fb(x): return '0x%08x' % struct.unpack('<I', struct.pack('<f', x))[0]

FL=0x40000
X1=0x100000; X1S=16512
X2=0x600000; X2S=8320
X3=0x900000; X3S=8320
HB=0xC00000
HH=0x1000000
STAMP=0x1800000
WSZ=0x2000000
R0=131072; R1=R0+8704; R2=R1+8704
LDSZ=163840
SPIN=400000
NSENT=2

CG = 0.1029432397**(1/3)
KQ = 2.302208198/CG

k=Asm(); tail=[]
vp=Pool(32,256); vl=Pool(1,32); sp=Pool(52,100)
sX,sWr,sWi,sW1,sWd,sOut,sWs = 24,28,32,36,40,44,48
stamp_regs=[]
stq=[22,100,4,6,8,10,12,14,16,18,20,24,26,28,30,32,34]
def stamp(name):
    st=OPT['stamps']
    on = (st==1 and name[0] not in 'mfp') or (st==2 and (name[0]=='m' or name in ('G1poll','G1got','G1done','G2done','end'))) \
         or (st==4 and (name[0]=='p' or name in ('start','fkarg','fconst','xload','fAbar','Adone'))) \
         or (st==3 and (name[0]=='f' or name in ('start','xload','Adone','Bpoll','Bgot','Bdone','Cpoll','Cgot','Cdone','G1poll','G1got')))
    if on or name in OPT.get('amp','').split(','):
        r=stq.pop(0); stamp_regs.append((name,r)); k(f'{"s_memtime" if OPT.get("cyc") else "s_memrealtime"} {S(r,2)}')

k.raw(f'{KN}:')
k('s_cmp_lt_u32 s2, 256')
k('s_cbranch_scc1 Lgo')
k('s_endpgm')
k.label('Lgo')
k('s_load_dwordx16 s[4:19], s[0:1], 0')
k('s_load_dwordx2 s[20:21], s[0:1], 72')
stamp('start')
sWave=sp.get(); sS2=sp.get(); sT0=sp.get(); sT1=sp.get(); sT2=sp.get(); sCnt=sp.get()
sXc=sp.get(); sJ=sp.get(); sPos=sp.get()
vL=vl.get(); vL16=vl.get(); vL4=vl.get()
vLo=vp.get(); vG=vp.get(); t0=vp.get(); t1=vp.get(); t2=vp.get(); t3=vp.get(); vdum=vp.get(4)
if OPT.get('cpre',1):
    pc=sp.get(2); va=vp.get(2)
    k(f'''s_getpc_b64 {S(pc,2)}
v_lshlrev_b32 v{va}, 7, v0
v_min_u32 v{va}, CODE_END-Lgo-64, v{va}
v_mov_b32 v{va+1}, s{pc+1}
v_add_co_u32 v{va}, vcc, s{pc}, v{va}
v_addc_co_u32 v{va+1}, vcc, 0, v{va+1}, vcc
global_load_dword v{vdum}, {V(va,2)}, off''')
    sp.put(pc,2); vp.put(va,2)
k(f'''v_lshrrev_b32 v{t0}, 6, v0
v_and_b32 v{vL}, 63, v0
v_readfirstlane_b32 s{sWave}, v{t0}
v_lshlrev_b32 v{vL4}, 2, v{vL}
v_lshlrev_b32 v{vL16}, 4, v{vL}
v_and_b32 v{vLo}, 15, v0
v_lshrrev_b32 v{vG}, 4, v{vL}
s_and_b32 s{sXc}, s2, 7
s_lshr_b32 s{sJ}, s2, 3
s_lshl_b32 s{sPos}, s{sXc}, 5
s_add_u32 s{sPos}, s{sPos}, s{sJ}
s_mov_b32 s{sCnt}, 0''')
mA=((1<<NB)-1)<<5; mB=((1<<NB)-1)<<(5-NB)
def swapbits(p): return (p&~(mA|mB))|((p&mA)>>NB)|((p&mB)<<NB)
if NB:
    k(f'''s_and_b32 s{sT0}, s{sPos}, {mA}
s_and_b32 s{sT1}, s{sPos}, {mB}
s_andn2_b32 s{sS2}, s{sPos}, {mA|mB}
s_lshr_b32 s{sT0}, s{sT0}, {NB}
s_lshl_b32 s{sT1}, s{sT1}, {NB}
s_or_b32 s{sS2}, s{sS2}, s{sT0}
s_or_b32 s{sS2}, s{sS2}, s{sT1}''')
else:
    k(f's_mov_b32 s{sS2}, s{sPos}')
sXo=sp.get(2)
k(f'''s_lshl_b32 s{sT0}, s{sWave}, 9
s_add_u32 s{sT0}, s{sT0}, s{sS2}
s_lshl_b32 s{sXo}, s{sT0}, 10
s_add_u32 s{sXo+1}, s{sXo}, 262144''')
for s_,sz in ((sX,2097152),(sWr,1052672),(sWi,1052672),(sW1,512*3584),(sWd,1792*1024),(sOut,2097152),(sWs,WSZ)):
    k(f's_mov_b32 s{s_+2}, {sz}\ns_mov_b32 s{s_+3}, 0x20000')

fLo=vp.get(); fG=vp.get(); fP=vp.get()
k(f'''v_cvt_f32_u32 v{fLo}, v{vLo}
v_cvt_f32_u32 v{fG}, v{vG}
v_and_b32 v{t0}, 3, v{vLo}
v_lshrrev_b32 v{t1}, 2, v{vLo}
v_lshl_add_u32 v{t0}, v{t0}, 2, v{t1}
v_cvt_f32_u32 v{fP}, v{t0}''')

def angles(base, step):
    a=vp.get(4)
    k(f'v_add_f32 v{a+1}, v{base}, v{step}\nv_fma_f32 v{a+2}, v{step}, 2.0, v{base}\nv_fma_f32 v{a+3}, v{step}, 2.0, v{a+1}')
    return a
def cs(base, step):
    a=angles(base,step); c=vp.get(4)
    for r in range(4): k(f'v_cos_f32 v{c+r}, v{a+r if r else base}')
    for r in range(4): k(f'v_sin_f32 v{a+r}, v{a+r if r else base}')
    return (c,a)
def mk_matrix(base, step, neg=False):
    c,a=cs(base,step); re=vp.get(4); im=vp.get(4)
    for r in range(4):
        k(f'v_cvt_pk_bf16_f32 v{re+r}, v{c+r}, v{a+r}')
        k(f'v_cvt_pk_bf16_f32 v{im+r}, -v{a+r}, v{c+r}')
    res=[re,im]
    if neg:
        nre=vp.get(4); nim=vp.get(4)
        for r in range(4):
            k(f'v_xor_b32 v{nre+r}, 0x80008000, v{re+r}')
            k(f'v_xor_b32 v{nim+r}, 0x80008000, v{im+r}')
        res+=[nre,nim]
    vp.put(a,4); vp.put(c,4)
    return res

C={}
def c_F16():
    k(f'v_mul_f32 v{t0}, {fb(1/16)}, v{fLo}\nv_mul_f32 v{t1}, 4.0, v{t0}\nv_mul_f32 v{t0}, v{t0}, v{fG}')
    C['F16']=mk_matrix(t0,t1)
def c_G():
    k(f'v_mul_f32 v{t1}, {fb(1/16)}, v{fP}\nv_mul_f32 v{t0}, 4.0, v{fG}\nv_mul_f32 v{t0}, v{t0}, v{t1}')
    C['G16']=mk_matrix(t0,t1)
    k(f'v_fma_f32 v{t0}, v{t1}, 0.5, v{t0}')
    C['G32']=mk_matrix(t0,t1)
def c_TW():
    k(f'v_mul_f32 v{t1}, {fb(1/256)}, v{fLo}\nv_mul_f32 v{t0}, 4.0, v{fG}\nv_mul_f32 v{t0}, v{t0}, v{t1}')
    C['TW0']=cs(t0,t1)
    k(f'v_fma_f32 v{t0}, v{t1}, 0.5, v{t0}')
    C['TWA']=cs(t0,t1)
M3=vp.get(2); fS2=vp.get(); c4=vp.get(4)
def c_M3():
    k(f'''v_cvt_f32_u32 v{fS2}, s{sS2}
v_lshrrev_b32 v{t0}, 1, v{vLo}
v_and_b32 v{t1}, 1, v{vLo}
v_cvt_f32_u32 v{t0}, v{t0}
v_cvt_f32_u32 v{t1}, v{t1}
v_mul_f32 v{fS2}, {fb(1/2048)}, v{fS2}
v_mul_f32 v{t1}, {fb(0.25)}, v{t1}
v_mul_f32 v{t2}, {fb(0.25)}, v{fG}
v_add_f32 v{t2}, v{t2}, v{fS2}
v_fma_f32 v{t1}, v{t2}, v{t0}, v{t1}
v_mul_f32 v{t0}, {fb(0.125)}, v{t0}
v_add_f32 v{t0}, v{t0}, v{t1}
v_cos_f32 v{c4}, v{t1}
v_sin_f32 v{c4+1}, v{t1}
v_sin_f32 v{c4+3}, v{t0}
v_cos_f32 v{c4+2}, v{t0}
v_sub_f32 v{t0}, v{c4}, v{c4+3}
v_add_f32 v{t2}, v{c4}, v{c4+3}
v_add_f32 v{t1}, v{c4+1}, v{c4+2}
v_sub_f32 v{t3}, v{c4+2}, v{c4+1}
v_cvt_pk_bf16_f32 v{M3}, v{t0}, v{t1}
v_cvt_pk_bf16_f32 v{M3+1}, v{t2}, v{t3}''')
aZw=vp.get(); aP=vp.get(); aN=vp.get(); sX1o=sp.get()
def c_addrA():
    k(f'''s_mul_i32 s{sT0}, s{sWave}, {513*4}
s_add_u32 s{sT0}, s{sT0}, {R0}
v_add_u32 v{aZw}, s{sT0}, v{vL4}
v_mul_u32_u24 v{t0}, {513*4}, v{vG}
v_lshlrev_b32 v{t1}, 3, v{vLo}
s_lshl_b32 s{sT0}, s{sWave}, 8
s_add_u32 s{sT1}, s{sT0}, {R0+4}
s_sub_u32 s{sT0}, {R0+4*(511-33)}, s{sT0}
v_add3_u32 v{aP}, v{t0}, v{t1}, s{sT1}
v_sub_u32 v{t0}, v{t0}, v{t1}
v_add_u32 v{aN}, s{sT0}, v{t0}
s_mul_i32 s{sX1o}, s{sS2}, {X1S}
s_lshl_b32 s{sT1}, s{sWave}, 12
s_add_u32 s{sX1o}, s{sX1o}, s{sT1}
s_add_u32 s{sX1o}, s{sX1o}, {X1}''')
cA=[c_F16,c_TW,c_G,c_M3,c_addrA]
for f in cA[:OPT['early']]: f()

k(f's_mov_b32 s{sX}, s4\ns_mov_b32 s{sX+1}, s5')
stamp('fkarg')
xr=vp.get(8)
for rho in range(2):
    for i in range(4):
        k(f'buffer_load_dword v{xr+4*rho+i}, v{vL4}, {S(sX,4)}, s{sXo+rho} offen offset:{256*i}')
sp.put(sXo,2)
sNon=sp.get(); sTag=sp.get(); sTagF=sp.get()
k(f's_load_dword s{sNon}, s[20:21], 0')
k(f'''s_mov_b64 {S(sWr,2)}, s[6:7]
s_mov_b64 {S(sWi,2)}, s[8:9]
s_mov_b64 {S(sWs,2)}, s[20:21]
s_mov_b64 {S(sWd,2)}, s[16:17]
s_mov_b64 {S(sOut,2)}, s[18:19]
s_cmp_lt_u32 s{sWave}, 2
s_cselect_b64 {S(sW1,2)}, s[12:13], s[14:15]''')

sPar=sp.get(); sF0=sp.get(); sRtA=sp.get(); sRtB=sp.get(); sHo=sp.get(7,1); sX2o=sp.get(); sX3o=sp.get()
def hh_off(u):
    jj=u if u<4 else u-4
    k(f'''s_add_u32 s{sT0}, s{sPar}, {jj}
s_and_b32 s{sT0}, s{sT0}, 3
s_add_u32 s{sT0}, s{sT0}, s{sF0}
s_mul_i32 s{sT1}, s{sRtA if u<4 else sRtB}, 112
s_add_u32 s{sT0}, s{sT0}, s{sT1}
s_lshl_b32 s{sT0}, s{sT0}, 10
s_add_u32 s{sHo+u}, s{sT0}, {HH}''')
vSent=vp.get(4); H_={}
def m_pre():
    if not OPT['pre'] or OPT['nobg']: return
    k(f'''v_lshlrev_b32 v{t0}, 6, v{vL}
s_mul_i32 s{sT0}, s2, {56*128}
s_and_b32 s{sT1}, s{sWave}, 1
s_mul_i32 s{sT1}, s{sT1}, {28*128}
s_add_u32 s{sT1}, s{sT1}, s{sT0}
buffer_load_dword v{vdum+1}, v{t0}, {S(sW1,4)}, s{sT1} offen
v_min_u32 v{t0}, {27*64}, v{t0}
s_mul_i32 s{sT1}, s{sWave}, {14*128}
s_add_u32 s{sT1}, s{sT1}, s{sT0}
buffer_load_dword v{vdum+2}, v{t0}, {S(sWd,4)}, s{sT1} offen''')
def m_filt(m):
    k(f'''v_mul_u32_u24 v{t0}, 4112, v0
s_mul_i32 s{sT0}, s{sXc}, 514
s_lshl_b32 s{sT1}, s{sJ}, 4
s_add_u32 s{sT0}, s{sT0}, s{sT1}
s_lshl_b32 s{sT1}, s{sWave}, 10
s_add_u32 m0, s{sT1}, {R2+4096*m}
s_add_u32 s{sT0}, s{sT0}, 2''')
    H_['W']=k(f'buffer_load_dwordx4 v{t0}, {S((sWr,sWi)[m],4)}, s{sT0} offen lds')
def m_sent2():
    for i in range(4): k(f'v_mov_b32 v{vSent+i}, -1')
    k(f'''s_mul_i32 s{sX2o}, s2, {X2S}
s_lshl_b32 s{sT1}, s{sWave}, 11
s_add_u32 s{sX2o}, s{sX2o}, s{sT1}
s_add_u32 s{sX2o}, s{sX2o}, {X2}
s_mul_i32 s{sX3o}, s{sS2}, {X3S}
s_add_u32 s{sX3o}, s{sX3o}, s{sT1}
s_add_u32 s{sX3o}, s{sX3o}, {X3}''')
    for i in range(2): H_['S2']=k(f'buffer_store_dwordx4 {V(vSent,4)}, v{vL16}, {S(sWs,4)}, s{sX2o} offen offset:{1024*i} sc1')
def m_roles():
    k(f'''s_and_b32 s{sPar}, s{sS2}, 1
s_bfe_u32 s{sT0}, s{sS2}, 0x40001
s_mul_i32 s{sF0}, s{sT0}, 7
s_mul_i32 s{sT0}, s{sPar}, 3
s_add_u32 s{sF0}, s{sF0}, s{sT0}
s_lshr_b32 s{sT0}, s{sS2}, 5
s_lshl_b32 s{sT0}, s{sT0}, 3
s_lshl_b32 s{sT1}, s{sWave}, 1
s_add_u32 s{sT0}, s{sT0}, s{sT1}
s_add_u32 s{sRtA}, s{sT0}, s{sPar}
s_xor_b32 s{sRtB}, s{sRtA}, 1''')
def m_sent3():
    for i in range(2): k(f'buffer_store_dwordx4 {V(vSent,4)}, v{vL16}, {S(sWs,4)}, s{sX3o} offen offset:{1024*i} sc1')
    for u in range(7-NSENT,7):
        hh_off(u)
        H_['S3']=k(f'buffer_store_dwordx4 {V(vSent,4)}, v{vL16}, {S(sWs,4)}, s{sHo+u} offen sc1')

vWdS=vl.get(); vB1S=vl.get(); vWdR=vl.get(2)
sLq=sp.get(); sRo=sp.get(4,1); sB0=sp.get(); sB1=sp.get()
def m_wdaddr():
    k(f'''v_lshrrev_b32 v{t0}, 3, v{vL}
v_and_b32 v{t1}, 7, v{vL}
v_and_b32 v{t2}, 1, v{vG}
v_lshlrev_b32 v{t3}, 2, v{t2}
v_xor_b32 v{t3}, v{t3}, v{t1}
v_lshlrev_b32 v{t3}, 4, v{t3}
v_lshl_add_u32 v{vWdS}, v{t0}, 10, v{t3}
s_and_b32 s{sT0}, s{sJ}, 7
s_lshl_b32 s{sT0}, s{sT0}, 7
s_mul_i32 s{sT1}, s{sWave}, {448*1024}
s_add_u32 s{sT0}, s{sT0}, s{sT1}
v_add_u32 v{vWdS}, s{sT0}, v{vWdS}
s_lshl_b32 s{sLq}, s{sWave}, 15''')
    if OPT['rot']:
        k(f'''s_lshr_b32 s{sT0}, s{sJ}, 3
s_lshl_b32 s{sT0}, s{sT0}, 1
s_and_b32 s{sT1}, s{sXc}, 1
s_or_b32 s{sT0}, s{sT0}, s{sT1}
s_lshr_b32 s{sRo+2}, s{sS2}, 5''')
        if NB==1: k(f's_lshl_b32 s{sT1}, s{sRo+2}, 2\ns_lshr_b32 s{sRo+2}, s{sRo+2}, 1\ns_or_b32 s{sRo+2}, s{sRo+2}, s{sT1}\ns_and_b32 s{sRo+2}, s{sRo+2}, 7')
        if NB==2: k(f's_lshl_b32 s{sT1}, s{sRo+2}, 1\ns_lshr_b32 s{sRo+2}, s{sRo+2}, 2\ns_or_b32 s{sRo+2}, s{sRo+2}, s{sT1}\ns_and_b32 s{sRo+2}, s{sRo+2}, 7')
    else:
        k(f's_mov_b32 s{sT0}, 0\ns_mov_b32 s{sRo+2}, 0')
    k(f'''s_lshl_b32 s{sRo}, s{sT0}, 13
s_lshl_b32 s{sT0}, s{sT0}, 10
s_or_b32 s{sRo+1}, s{sT0}, s{sLq}
s_lshl_b32 s{sT0}, s{sRo+2}, 10
s_or_b32 s{sRo+3}, s{sT0}, s{sLq}''')
def m_wdraddr():
    k(f'''v_lshrrev_b32 v{t0}, 5, v{vL}
v_bfe_u32 v{t1}, v{vL}, 2, 2
v_lshl_add_u32 v{t0}, v{t0}, 2, v{t1}
v_lshlrev_b32 v{t0}, 7, v{t0}
v_and_b32 v{t2}, 1, v{vG}
v_lshl_add_u32 v{t0}, v{t2}, 5, v{t0}
v_and_b32 v{t2}, 3, v{vL}
v_lshl_add_u32 v{t0}, v{t2}, 3, v{t0}
v_lshrrev_b32 v{t1}, 1, v{t1}
v_lshlrev_b32 v{t1}, 6, v{t1}
v_add3_u32 v{vWdR}, v{t0}, v{t1}, s{sLq}
v_xor_b32 v{vWdR+1}, 64, v{vWdR}''')
def m_b1addr():
    k(f'''v_bfe_u32 v{t1}, v{vL}, 3, 1
v_lshl_add_u32 v{t1}, v{vG}, 7, v{t1}
v_mul_u32_u24 v{t1}, 3584, v{t1}
v_and_b32 v{t0}, 1, v{vG}
s_and_b32 s{sT0}, s{sWave}, 2
v_or_b32 v{t0}, s{sT0}, v{t0}
v_lshlrev_b32 v{t0}, 1, v{t0}
v_and_b32 v{t2}, 7, v{vL}
v_xor_b32 v{t0}, v{t0}, v{t2}
v_lshl_add_u32 v{vB1S}, v{t0}, 4, v{t1}
s_and_b32 s{sT0}, s{sWave}, 1
s_mul_i32 s{sT1}, s{sT0}, {32*7168}
s_lshl_b32 s{sT0}, s{sF0}, 5
s_add_u32 s{sT0}, s{sT0}, s{sT1}
v_add_u32 v{vB1S}, s{sT0}, v{vB1S}''')
dma_seq=[('w',n) for n in range(56)]+[('b',m) for m in list(range(24,32))+list(range(24))]
dst={'n':0,'tr':0,'trh':None,'trsync':0}; dh={}
def tr_batch(b):
    k.wait_vm(dh[8*b+7])
    for n in range(8*b,8*b+8):
        tau,i=n>>1,n&1
        for ct in range(2):
            dst['trh']=k(f'ds_read_b64_tr_b16 {A((tau*2+ct)*4+2*i,2)}, v{vWdR+ct} offset:{(n%32)*1024}')
    dst['tr']=b+1
def tr_ready():
    if OPT['nobg']: return
    live={e[0] for e in k.vm}
    while dst['tr']<7 and 8*dst['tr']+7<dst['n'] and dh[8*dst['tr']+7] not in live: tr_batch(dst['tr'])
def dma(cnt, force=False):
    if OPT['nobg'] and not force: return
    for _ in range(cnt):
        q=dst['n']
        if q>=len(dma_seq): return
        b=q//8
        if b>=4:
            if dst['tr']<b-3:
                if not force: return
                tr_batch(b-4)
            if dst['trsync']<b-3:
                k.wait_lg(dst['trh']); dst['trsync']=dst['tr']
        ty,n=dma_seq[q]
        if ty=='w':
            k(f's_xor_b32 m0, s{sRo+1}, {(n%32)*1024}\ns_xor_b32 s{sB0}, s{sRo}, {n*8192}')
            dh[q]=k(f'buffer_load_dwordx4 v{vWdS}, {S(sWd,4)}, s{sB0} offen lds')
        else:
            k(f's_xor_b32 m0, s{sRo+3}, {n*1024}\ns_xor_b32 s{sB0}, s{sRo+2}, {n}\ns_mul_i32 s{sB0}, s{sB0}, 7168')
            dh[q]=k(f'buffer_load_dwordx4 v{vB1S}, {S(sW1,4)}, s{sB0} offen lds')
        dst['n']+=1
class Sprinkle:
    def __init__(s,cnt,gap): s.cnt=cnt; s.gap=gap
    def __enter__(s):
        s.old=k.emit; s.c=0; s.busy=False
        def emit(text):
            h=s.old(text)
            if not s.busy and text.startswith('v_') and not text.startswith(('v_cmp','v_readlane')):
                s.c+=1
                if s.c>=s.gap and s.cnt>0:
                    s.busy=True; dma(1); s.busy=False; s.c=0; s.cnt-=1
            return h
        k.emit=emit
    def __exit__(s,*a): k.emit=s.old

order=OPT.get('ord','2_3_f0_f1').split('_')
mm={'p':m_pre,'f0':lambda:m_filt(0),'f1':lambda:m_filt(1),'2':m_sent2,'3':lambda:(m_roles(),m_sent3())}
stamp('px')
for o_ in order: mm[o_](); stamp('pm'+o_)
for f in cA[OPT['early']:]: f()
m_wdaddr()
k(f'''s_add_u32 s{sNon}, s{sNon}, 9
s_and_b32 s{sTag}, s{sNon}, 0x1fff
s_or_b32 s{sTag}, s{sTag}, 0x4000
s_lshl_b32 s{sTagF}, s{sTag}, 16''')
dma(OPT['p0'])
stamp('fconst')
F16,G16,G32,TW0,TWA=C['F16'],C['G16'],C['G32'],C['TW0'],C['TWA']

def pk(op, d, *src, mods=''):
    k(f'{op} {V(d,2)}, '+', '.join(V(x,2) if isinstance(x,int) else x for x in src)+(' '+mods if mods else ''))
sSt=sp.get(4,2)
def stats(xf, scale):
    a=vp.get(8)
    for rho in range(2):
        pk('v_pk_add_f32', a+4*rho, xf+8*rho, xf+8*rho+2)
        pk('v_pk_mul_f32', a+4*rho+2, xf+8*rho, xf+8*rho)
    for j in (2,4,6):
        for rho in range(2):
            if j>2: pk('v_pk_add_f32', a+4*rho, a+4*rho, xf+8*rho+j)
            pk('v_pk_fma_f32', a+4*rho+2, xf+8*rho+j, xf+8*rho+j, a+4*rho+2)
    for j in (0,4,2,6): k(f'v_add_f32 v{a+j}, v{a+j}, v{a+j+1}')
    k(f'v_permlane32_swap_b32 v{a}, v{a+4}')
    k(f'v_permlane32_swap_b32 v{a+2}, v{a+6}')
    k(f'v_add_f32 v{a}, v{a}, v{a+4}')
    k(f'v_add_f32 v{a+2}, v{a+2}, v{a+6}')
    for m in ('row_ror:8 row_mask:0xf','row_ror:4 row_mask:0xf','row_ror:2 row_mask:0xf','row_ror:1 row_mask:0xf','row_bcast:15 row_mask:0xa'):
        for j in (0,2): k(f'v_add_f32_dpp v{a+j}, v{a+j}, v{a+j} {m} bank_mask:0xf')
    k(f'''v_mul_f32 v{a}, {fb(1/512)}, v{a}
v_mul_f32 v{a+2}, {fb(1/512)}, v{a+2}
v_fma_f32 v{a+2}, -v{a}, v{a}, v{a+2}
v_max_f32 v{a+2}, 0, v{a+2}
v_add_f32 v{a+2}, {fb(1e-5)}, v{a+2}
v_rsq_f32 v{a+2}, v{a+2}''')
    if scale!=1: k(f'v_mul_f32 v{a+2}, {fb(scale)}, v{a+2}')
    k(f'''v_mul_f32 v{a}, -v{a}, v{a+2}
v_readlane_b32 s{sSt}, v{a+2}, 31
v_readlane_b32 s{sSt+1}, v{a}, 31
v_readlane_b32 s{sSt+2}, v{a+2}, 63
v_readlane_b32 s{sSt+3}, v{a}, 63''')
    vp.put(a,8)
def normalize(xf):
    n=vp.get(16)
    for rho in range(2):
        for j in range(0,8,2):
            pk('v_pk_fma_f32', n+8*rho+j, xf+8*rho+j, S(sSt+2*rho,2), S(sSt+2*rho,2), mods='op_sel:[0,0,1] op_sel_hi:[1,0,1]')
    return n
def mf32(d,a,b,c='0'): k(f'v_mfma_f32_16x16x32_bf16 {V(d,4)}, {V(a,4)}, {V(b,4)}, {c if c=="0" else V(c,4)}')
def mf16(d,a,b): k(f'v_mfma_f32_16x16x16_bf16 {V(d,4)}, {V(a,2)}, {V(b,2)}, 0')
def cmul_pack(dre,dim,tw,out,conj=True,swap=False):
    c,s_=tw; t=vp.get(8)
    for j in (0,2): pk('v_pk_mul_f32', t+j, dre+j, c+j)
    ng='neg_lo:[1,0] neg_hi:[1,0]'; ng3='neg_lo:[1,0,0] neg_hi:[1,0,0]'
    for j in (0,2): pk('v_pk_mul_f32', t+4+j, dre+j, s_+j, mods=ng if conj else '')
    for j in (0,2):
        pk('v_pk_fma_f32', t+j, dim+j, s_+j, t+j, mods='' if conj else ng3)
        pk('v_pk_fma_f32', t+4+j, dim+j, c+j, t+4+j)
    for r in range(4):
        a,b=(t+4+r,t+r) if swap else (t+r,t+4+r)
        k(f'v_cvt_pk_bf16_f32 v{out+r}, v{a}, v{b}')
    vp.put(t,8)

xf=vp.get(16,4)
op=vp.get(8); D=vp.get(16); D2=vp.get(16)
with Sprinkle(OPT['pa'],14):
    for rho in range(2):
        for i in range(4):
            k(f'v_lshlrev_b32 v{xf+8*rho+i}, 16, v{xr+4*rho+i}')
            k(f'v_and_b32 v{xf+8*rho+4+i}, 0xffff0000, v{xr+4*rho+i}')
    stamp('xload')
    stats(xf,1)
    n=normalize(xf)
    for e in range(2):
        for i in range(4): k(f'v_cvt_pk_bf16_f32 v{op+4*e+i}, v{n+4*e+i}, v{n+8+4*e+i}')
    for e in range(2):
        mf32(D+8*e, op+4*e, F16[0]); mf32(D+8*e+4, op+4*e, F16[1])
    vp.put(n,16)
    for e in range(2):
        cmul_pack(D+8*e, D+8*e+4, (TW0,TWA)[e], op+4*e)
        Gm=(G16,G32)[e]
        mf32(D2+8*e, Gm[0], op+4*e); mf32(D2+8*e+4, Gm[1], op+4*e)
    for t in range(2):
        for j in (0,2,4,6): pk('v_pk_add_f32', D+8*t+j, D2+j, D2+8+j, mods='neg_lo:[0,1] neg_hi:[0,1]' if t else '')
        for r in range(4): k(f'v_cvt_pk_bf16_f32 v{op+4*t+r}, v{D+8*t+r}, v{D+8*t+4+r}')
        for nn in (2*t,2*t+1):
            k(f'ds_write2st64_b32 v{aZw}, v{op+2*nn}, v{op+2*nn+1} offset0:{2*nn} offset1:{2*nn+1}')
vp.put(xr,8)
stamp('pA')
if OPT['stamps']==4 or 'pw' in OPT.get('amp',''):
    for nm,h in sorted(H_.items(), key=lambda x:x[1]): k.wait_vm(h); stamp('pw'+nm)
k.wait_vm(max(H_['S2'],H_['W']))
k.barrier()
stamp('fAbar')
for T in range(2):
    for e in range(2):
        k(f'ds_read_b32 v{op+4*T+2*e}, v{aP} offset:{4*(32*T+e)}')
        k(f'ds_read_b32 v{op+4*T+2*e+1}, v{aN} offset:{4*(33-32*T-e)}')
for T in range(2):
    for e in range(2): mf16(D+8*T+4*e, M3, op+4*T+2*e)
for T in range(2):
    for b0 in range(2):
        o=D2+8*T+4*b0
        for e in range(2):
            for c in range(2): k(f'v_cvt_pk_bf16_f32 v{o+2*e+c}, s{sTagF}, v{D+8*T+4*e+2*b0+c}')
        hA=k(f'buffer_store_dwordx4 {V(o,4)}, v{vL16}, {S(sWs,4)}, s{sX1o} offen offset:{(2*T+b0)*1024} sc1')
stamp('Adone')
for r_,n_ in ((G32[0],4),(G32[1],4),(TWA[0],4),(TWA[1],4),(M3,2),(aZw,1),(aP,1),(aN,1)): vp.put(r_,n_)
sp.put(sX1o)

Wf=vp.get(16); wraw=vp.get(8)
aBin=vp.get(); aBw=vp.get(); aBr=vp.get(); sBo=sp.get(4,1); aOw=vp.get(4); aOr=vp.get(); sPerm=sp.get()
with Sprinkle(OPT['s1'],4):
    k(f's_lshl_b32 s{sT0}, s{sWave}, 2\ns_add_u32 s{sT0}, s{sT0}, {R2}\nv_add_u32 v{t0}, s{sT0}, v{vL16}')
    for m in range(2):
        for r in range(4): k(f'ds_read_b32 v{wraw+4*m+r}, v{t0} offset:{4096*m+1024*r}')
    k(f'''v_lshrrev_b32 v{t1}, 2, v{vL}
v_and_b32 v{t2}, 3, v{vL}
v_mul_u32_u24 v{aBin}, {X1S}, v{t1}
v_lshl_add_u32 v{aBin}, v{t2}, 4, v{aBin}
v_mul_u32_u24 v{aBw}, 1056, v{t2}
v_lshl_add_u32 v{aBw}, v{t1}, 4, v{aBw}
s_lshl_b32 s{sT0}, s{sWave}, 8
s_add_u32 s{sT0}, s{sT0}, {R1}
v_add_u32 v{aBw}, s{sT0}, v{aBw}
s_mul_i32 s{sT0}, s{sWave}, 1056
s_add_u32 s{sT0}, s{sT0}, {R1}
v_add_u32 v{aBr}, s{sT0}, v{vL16}
s_lshr_b32 s{sT0}, s{sJ}, 2
s_lshl_b32 s{sT0}, s{sT0}, 11
s_and_b32 s{sT1}, s{sXc}, 1
s_lshl_b32 s{sT1}, s{sT1}, 10
s_add_u32 s{sT0}, s{sT0}, s{sT1}
s_lshr_b32 s{sT1}, s{sXc}, 1
s_lshl_b32 s{sT1}, s{sT1}, 8
s_add_u32 s{sT0}, s{sT0}, s{sT1}
s_and_b32 s{sT1}, s{sJ}, 3
s_lshl_b32 s{sT1}, s{sT1}, 6
s_add_u32 s{sT0}, s{sT0}, s{sT1}
s_mul_i32 s{sT1}, s{sWave}, {16*X1S}
s_add_u32 s{sT0}, s{sT0}, s{sT1}''')
    for i in range(4): k(f's_add_u32 s{sBo+i}, s{sT0}, {X1+64*i*X1S}')
    if NB:
        k(f'''v_and_b32 v{t1}, {mA}, v{vL}
v_and_b32 v{t2}, {mB}, v{vL}
v_and_b32 v{t0}, {255&~(mA|mB)}, v{vL}
v_lshrrev_b32 v{t1}, {NB}, v{t1}
v_lshlrev_b32 v{t2}, {NB}, v{t2}
v_or3_b32 v{t0}, v{t0}, v{t1}, v{t2}''')
    else: k(f'v_mov_b32 v{t0}, v{vL}')
    k(f'''s_lshl_b32 s{sT0}, s{sWave}, 3
s_add_u32 s{sT0}, s{sT0}, {R0}
v_and_b32 v{t1}, 4, v{t0}
v_lshlrev_b32 v{t1}, 2, v{t1}
v_lshl_add_u32 v{t0}, v{t0}, 5, s{sT0}
v_xor_b32 v{aOw}, v{t0}, v{t1}''')
    for r in range(1,4):
        p=swapbits(64*r); k(f'v_xor_b32 v{aOw+r}, {(p<<5)^((p&4)<<2)}, v{aOw}')
    k(f'''v_bfe_u32 v{t0}, v{vL}, 3, 1
v_xor_b32 v{t0}, v{t0}, v{vL}
s_lshl_b32 s{sT0}, s{sWave}, 11
s_add_u32 s{sT0}, s{sT0}, {R0}
v_lshl_add_u32 v{aOr}, v{t0}, 4, s{sT0}
s_mov_b32 s{sPerm}, 0x07060302''')
    for m in range(2):
        for r in range(4):
            k(f'v_lshlrev_b32 v{Wf+4*m+r}, 16, v{wraw+4*m+r}')
            k(f'v_and_b32 v{Wf+8+4*m+r}, 0xffff0000, v{wraw+4*m+r}')
    m_wdraddr(); m_b1addr()
vp.put(wraw,8)
stamp('fS1')
k.wait_vm(hA)

def retry_block(name, loads, check):
    kk=Asm()
    kk.label(f'R_{name}')
    kk('s_nop 3')
    for l in loads: kk(l)
    kk('s_waitcnt vmcnt(0)')
    for c in check: kk(c)
    kk(f's_add_u32 s{sCnt}, s{sCnt}, 1')
    kk(f's_cmp_gt_u32 s{sCnt}, {SPIN}')
    kk(f's_cbranch_scc1 C_{name}')
    kk(f's_cbranch_vccnz R_{name}')
    kk(f's_branch C_{name}')
    tail.append(kk.text())
def checked(name, loads, check):
    for c in check: k(c)
    k(f's_cbranch_vccnz R_{name}')
    k.label(f'C_{name}')
    retry_block(name, loads, check)

ld=vp.get(16); ck=vp.get(2)
loads=[f'buffer_load_dwordx4 {V(ld+4*i,4)}, v{aBin}, {S(sWs,4)}, s{sBo+i} offen sc1' for i in range(4)]
stamp('Bpoll')
for l in loads: k(l)
tr_ready(); dma(OPT['s2'])
chk=[f'v_xor_b32 v{ck}, s{sTag}, v{ld}', f'v_xor_b32 v{ck+1}, s{sTag}, v{ld+1}']
for j in range(2,16): chk.append(f'v_bitop3_b32 v{ck+(j&1)}, v{ck+(j&1)}, v{ld+j}, s{sTag} bitop3:0xf6')
chk+= [f'v_or_b32 v{ck}, v{ck}, v{ck+1}', f'v_cmp_ne_u16 vcc, 0, v{ck}']
checked('B', loads, chk)
stamp('Bgot')
for e in range(2):
    for i in range(4): k(f'v_perm_b32 v{op+4*e+i}, v{ld+4*i+2*e+1}, v{ld+4*i+2*e}, s{sPerm}')
    k(f'ds_write_b128 v{aBw}, {V(op+4*e,4)} offset:{4224*e}')
k.barrier()
for e in range(2): k(f'ds_read_b128 {V(op+4*e,4)}, v{aBr} offset:{4224*e}')
for e in range(2):
    mf32(D+8*e, op+4*e, F16[0]); mf32(D+8*e+4, op+4*e, F16[1])
with Sprinkle(OPT['pb'],12):
    for e in range(2):
        cmul_pack(D+8*e, D+8*e+4, TW0, op+4*e)
        mf32(D2+8*e, G16[0], op+4*e); mf32(D2+8*e+4, G16[1], op+4*e)
    for e in range(2):
        cmul_pack(D2+8*e, D2+8*e+4, (Wf+8*e, Wf+8*e+4), op+4*e, conj=False, swap=True)
        mf32(D+8*e, op+4*e, F16[0]); mf32(D+8*e+4, op+4*e, F16[1])
    for e in range(2):
        cmul_pack(D+8*e, D+8*e+4, TW0, op+4*e)
        mf32(D2+8*e, G16[0], op+4*e); mf32(D2+8*e+4, G16[1], op+4*e)
for r in range(4): k(f'v_cvt_pk_bf16_f32 v{ld+2*r}, v{D2+4+r}, v{D2+r}')
for r in range(4):
    k(f'v_cvt_pk_bf16_f32 v{ld+2*r+1}, v{D2+12+r}, v{D2+8+r}')
    k(f'ds_write_b64 v{aOw+r}, {V(ld+2*r,2)}')
k.wait_vm(H_['S3'])
k.barrier()
for i in range(2): k(f'ds_read_b128 {V(ld+8+4*i,4)}, v{aOr} offset:{1024*i}')
for i in range(2): hB=k(f'buffer_store_dwordx4 {V(ld+8+4*i,4)}, v{vL16}, {S(sWs,4)}, s{sX2o} offen offset:{1024*i} sc1')
stamp('Bdone')
for r_,n_ in ((Wf,16),(aBin,1),(aBw,1),(aBr,1),(aOw,4),(aOr,1),(vSent,4)): vp.put(r_,n_)
sp.put(sBo,4); sp.put(sX2o); sp.put(sPerm); sp.put(sTag); sp.put(sTagF)
k(f'''s_or_b32 s{sT0}, s2, s{sWave}
s_cmp_lg_u32 s{sT0}, 0
s_cbranch_scc1 Lnon
v_mov_b32 v{t1}, s{sNon}''')
k.raw(f'    buffer_store_dword v{t1}, off, {S(sWs,4)}, 0 sc1')
k.label('Lnon')

tr_ready()
M3i=vp.get(2); u0=vp.get(4)
nyq=vp.get(2); aCin=vp.get(); aCp=vp.get(); aCn=vp.get(); aCr=vp.get(2); sCo=sp.get(2,1)
aLw=vp.get(2); aLr=vp.get(); aHw=vp.get(); aHr=vp.get(); sHb=sp.get()
CB=R1+16; CS=2064; SC=2.0**-21
with Sprinkle(OPT['s3'],10):
    k(f'''v_lshrrev_b32 v{t0}, 2, v{vLo}
v_cvt_f32_u32 v{t0}, v{t0}
v_mul_f32 v{u0}, {fb(0.25)}, v{t0}
v_add_f32 v{u0}, v{u0}, v{fS2}
v_bfe_u32 v{t0}, v{vLo}, 1, 1
v_and_b32 v{t1}, 1, v{vLo}
v_cvt_f32_u32 v{t0}, v{t0}
v_cvt_f32_u32 v{t1}, v{t1}
v_fma_f32 v{t0}, v{t0}, 2.0, -1.0
v_mul_f32 v{t0}, {fb(0.25)}, v{t0}
v_mul_f32 v{u0+1}, v{t0}, v{t1}''')
    for nn in range(2):
        k(f'''v_fma_f32 v{t1}, v{fG}, 2.0, {"1.0" if nn else "0"}
v_fma_f32 v{t2}, v{u0}, v{t1}, v{u0+1}
v_mul_f32 v{t1}, {fb(0.125)}, v{t1}
v_sub_f32 v{t1}, v{t1}, v{t0}
v_add_f32 v{t1}, v{t1}, v{t2}
v_cos_f32 v{c4}, v{t2}
v_sin_f32 v{c4+1}, v{t2}
v_cos_f32 v{c4+2}, v{t1}
v_sin_f32 v{c4+3}, v{t1}
v_add_f32 v{t1}, v{c4}, v{c4+2}
v_add_f32 v{t2}, v{c4+1}, v{c4+3}
v_mul_f32 v{t1}, {fb(SC)}, v{t1}
v_mul_f32 v{t2}, {fb(-SC)}, v{t2}
v_cvt_pk_bf16_f32 v{M3i+nn}, v{t1}, v{t2}''')
    k(f'''v_and_b32 v{t0}, 0xcf, v0
v_mov_b32 v{t1}, 0.5
v_cmp_eq_u32 vcc, 0xcf, v{t0}
v_lshrrev_b32 v{t0}, 1, v{vLo}
v_lshlrev_b32 v{t0}, 2, v{t0}
v_cndmask_b32 v{nyq}, 1.0, v{t1}, vcc
v_cndmask_b32 v{nyq+1}, 0, v{t1}, vcc
v_add_u32 v{t0}, v{t0}, v{vG}
v_mul_u32_u24 v{t0}, {2*X2S}, v{t0}
v_and_b32 v{t1}, 1, v{vLo}
v_lshl_add_u32 v{aCin}, v{t1}, 4, v{t0}
s_mul_i32 s{sT0}, s{sWave}, {64*X2S}
s_lshl_b32 s{sT1}, s{sPos}, 5
s_add_u32 s{sT0}, s{sT0}, s{sT1}
s_add_u32 s{sCo}, s{sT0}, {X2}
s_add_u32 s{sCo+1}, s{sT0}, {X2+X2S}
v_mul_u32_u24 v{t0}, {CS}, v{vG}
v_lshlrev_b32 v{t1}, 4, v{vLo}
s_lshl_b32 s{sT0}, s{sWave}, 8
s_add_u32 s{sT1}, s{sT0}, {CB}
s_sub_u32 s{sT0}, {CB+1024+4*252}, s{sT0}
v_add3_u32 v{aCp}, v{t0}, v{t1}, s{sT1}
v_sub_u32 v{t0}, v{t0}, v{t1}
v_add_u32 v{aCn}, s{sT0}, v{t0}
s_mul_i32 s{sT0}, s{sWave}, {CS}
s_add_u32 s{sT0}, s{sT0}, {CB-4}
v_add_u32 v{aCr}, s{sT0}, v{vL4}
v_add_u32 v{aCr+1}, {1028}, v{aCr}
v_mov_b32 v{t0}, s{sT0}
v_mov_b32 v{t1}, 0
ds_write_b32 v{t0}, v{t1}''')
    k(f'''v_fma_f32 v{t3}, v{fLo}, 2.0, 1.0
v_mul_f32 v{t0}, {fb(1/32)}, v{t3}
v_mul_f32 v{t1}, 4.0, v{t0}
v_mul_f32 v{t0}, v{t0}, v{fG}''')
    H=mk_matrix(t0,t1,neg=True)
stamp('fS3')
k.wait_vm(hB)

loads=[f'buffer_load_dwordx4 {V(ld+4*i,4)}, v{aCin}, {S(sWs,4)}, s{sCo+i} offen sc1' for i in range(2)]
stamp('Cpoll')
for l in loads: k(l)
tr_ready()
with Sprinkle(OPT['s4'],4):
    k(f'v_mul_f32 v{t1}, {fb(1/512)}, v{t3}\nv_mul_f32 v{t0}, 4.0, v{fG}\nv_mul_f32 v{t0}, v{t0}, v{t1}')
    TWC=cs(t0,t1)
    k(f'''v_and_b32 v{t0}, 7, v{vL}
s_lshl_b32 s{sT0}, s{sWave}, 1
v_xor_b32 v{t0}, s{sT0}, v{t0}
v_lshlrev_b32 v{t0}, 4, v{t0}
v_lshl_add_u32 v{t0}, v{vL}, 7, v{t0}
v_add_u32 v{aLw}, {R0}, v{t0}
v_xor_b32 v{aLw+1}, 16, v{aLw}
v_lshrrev_b32 v{t0}, 3, v{vL}
v_xor_b32 v{t0}, v{t0}, v{vL}
s_lshl_b32 s{sT0}, s{sWave}, 11
s_add_u32 s{sT1}, s{sT0}, {R0}
v_lshl_add_u32 v{aLr}, v{t0}, 4, s{sT1}
s_add_u32 s{sT1}, s{sT0}, {R2}
v_add_u32 v{aHw}, s{sT1}, v{vL4}
v_add_u32 v{aHr}, s{sT1}, v{vL16}
s_lshl_b32 s{sHb}, s{sS2}, 13
s_add_u32 s{sHb}, s{sHb}, s{sT0}
s_add_u32 s{sHb}, s{sHb}, {HB}''')
def maxchk(regs_, ckr):
    c=[f'v_max_u32 v{ckr}, v{regs_[0]}, v{regs_[1]}']
    for j in range(2,len(regs_),2): c.append(f'v_max3_u32 v{ckr}, v{ckr}, v{regs_[j]}, v{regs_[j+1]}')
    return c
checked('C', loads, maxchk(list(range(ld,ld+8)),ck)+[f'v_cmp_eq_u32 vcc, -1, v{ck}'])
stamp('Cgot')
for e in (3,0,1,2):
    k(f'v_pk_mov_b32 {V(op+2*e,2)}, {V(ld+(e&2),2)}, {V(ld+4+(e&2),2)} op_sel:[{e&1},{e&1}]')
for e in (3,0,1,2): mf16(D+4*e, M3i, op+2*e)
pk('v_pk_mul_f32', D+14, D+14, nyq, mods='op_sel:[0,0] op_sel_hi:[1,0]')
pk('v_pk_fma_f32', D+14, D+12, nyq, D+14, mods='op_sel:[0,1,0] op_sel_hi:[1,1,1]')
for e in (3,0,1,2): k(f'v_cvt_pk_bf16_f32 v{ld+e}, v{D+4*e+1}, v{D+4*e}')
k(f'ds_write_b128 v{aCp}, {V(ld,4)}')
for e in (3,0,1,2): k(f'v_cvt_pk_bf16_f32 v{ld+4+3-e}, v{D+4*e+3}, v{D+4*e+2}')
k(f'ds_write_b128 v{aCn}, {V(ld+4,4)}')
k.barrier()
for t in range(2):
    for nn in range(2): k(f'ds_read2st64_b32 {V(op+4*t+2*nn,2)}, v{aCr+t} offset0:{2*nn} offset1:{2*nn+1}')
for e in range(2):
    for c in range(2): mf32(D+8*e+4*c, op, (F16,H)[e][c])
    for c in range(2): mf32(D+8*e+4*c, op+4, (F16[c],H[2+c])[e], D+8*e+4*c)
with Sprinkle(OPT['pc'],12):
    for e in range(2):
        cmul_pack(D+8*e, D+8*e+4, (TW0,TWC)[e], ld+4*e)
        mf32(xf+4*e, G16[1], ld+4*e, xf+4*e)
        mf32(xf+8+4*e, G16[0], ld+4*e, xf+8+4*e)
    stats(xf,CG)
    n=normalize(xf)
for rho in range(2):
    for i in range(4): k(f'v_cvt_pk_bf16_f32 v{op+4*rho+i}, v{n+8*rho+i}, v{n+8*rho+4+i}')
    k(f'ds_write_b128 v{aLw+rho}, {V(op+4*rho,4)}')
k.barrier()
for i in range(2): k(f'ds_read_b128 {V(ld+4*i,4)}, v{aLr} offset:{1024*i}')
for rho in range(2):
    for i in range(4): k(f'v_cvt_pk_bf16_f32 v{D+4*rho+i}, v{xf+8*rho+i}, v{xf+8*rho+4+i}')
for i in range(2): k(f'buffer_store_dwordx4 {V(ld+4*i,4)}, v{vL16}, {S(sWs,4)}, s{sX3o} offen offset:{1024*i} sc1')
stamp('Cdone')
for rho in range(2):
    for nn in range(2): k(f'ds_write2st64_b32 v{aHw}, v{D+4*rho+2*nn}, v{D+4*rho+2*nn+1} offset0:{4*rho+2*nn} offset1:{4*rho+2*nn+1}')
k.wait_lg()
for i in range(2): k(f'ds_read_b128 {V(D2+4*i,4)}, v{aHr} offset:{1024*i}')
for i in range(2): k(f'buffer_store_dwordx4 {V(D2+4*i,4)}, v{vL16}, {S(sWs,4)}, s{sHb} offen offset:{1024*i} sc1')

print('dma issued before S5:',dst['n'],'tr',dst['tr'],file=sys.stderr)
if OPT['nobg']<2: dma(99,force=True)
for u in range(7-NSENT): hh_off(u)
aB=vl.get(4,1); aA=vl.get(); aPr=vl.get(); vck=vl.get(); vck2=vl.get(); vpr=vl.get(); aFl=vl.get()
k(f'''v_and_b32 v{t0}, 1, v{vG}
v_bfe_u32 v{t1}, v{vL}, 3, 1
v_lshl_add_u32 v{t1}, v{t0}, 1, v{t1}
v_lshlrev_b32 v{t0}, 16, v{t0}
v_lshrrev_b32 v{t2}, 5, v{vL}
v_lshl_add_u32 v{t0}, v{t2}, 10, v{t0}
v_bfe_u32 v{t2}, v{vL}, 2, 2
v_lshl_add_u32 v{t0}, v{t2}, 7, v{t0}
v_and_b32 v{t2}, 3, v{vL}
v_lshl_add_u32 v{t0}, v{t2}, 3, v{t0}''')
for jj in range(4):
    k(f'''s_add_u32 s{sT0}, s{sPar}, {jj}
s_and_b32 s{sT0}, s{sT0}, 3
v_xor_b32 v{t2}, s{sT0}, v{t1}
v_lshl_add_u32 v{aB+jj}, v{t2}, 5, v{t0}''')
sp.put(sCo,2); sp.put(sHb); sp.put(sX3o); sp.put(sSt,4); sp.put(sRo,4); sp.put(sLq)
sAo=sp.get(4,1)
k(f'''v_bfe_u32 v{t0}, v{vL}, 3, 2
v_mul_u32_u24 v{t0}, {X3S}, v{t0}
v_lshrrev_b32 v{t1}, 5, v{vL}
v_and_b32 v{t2}, 7, v{vL}
v_lshl_add_u32 v{aA}, v{t1}, 7, v{t0}
v_lshl_add_u32 v{aA}, v{t2}, 4, v{aA}
v_lshl_add_u32 v{aPr}, v{t1}, 9, v{t0}
v_lshl_add_u32 v{aPr}, v{t2}, 10, v{aPr}
s_mul_i32 s{sT0}, s{sRtA}, {4*X3S}
s_add_u32 s{sAo}, s{sT0}, {X3}
s_add_u32 s{sAo+1}, s{sT0}, {X3+4096}
s_mul_i32 s{sT0}, s{sRtB}, {4*X3S}
s_add_u32 s{sAo+2}, s{sT0}, {X3}
s_add_u32 s{sAo+3}, s{sT0}, {X3+4096}''')
sKq=sp.get(); sC2=sp.get(); sG2=sp.get(2,1); sRb=sp.get(); sFo=sp.get(); sFi=sp.get()
k(f'''s_mov_b32 s{sKq}, {fb(KQ)}
s_mov_b32 s{sC2}, {fb(CG*CG)}
s_lshl_b32 s{sRb}, s{sXc}, 2
s_lshr_b32 s{sT2}, s{sJ}, 3
s_add_u32 s{sRb}, s{sRb}, s{sT2}
s_mul_i32 s{sT0}, s{sRb}, 224
s_mul_i32 s{sT1}, s{sWave}, 28
s_add_u32 s{sT0}, s{sT0}, s{sT1}
s_lshl_b32 s{sT0}, s{sT0}, 10
s_add_u32 s{sG2}, s{sT0}, {HH}
s_add_u32 s{sG2+1}, s{sT0}, {HH+112*1024}
s_lshl_b32 s{sFo}, s{sS2}, 2
s_add_u32 s{sFo}, s{sFo}, s{sWave}
s_lshl_b32 s{sFo}, s{sFo}, 7
s_add_u32 s{sFo}, s{sFo}, {FL}
s_lshl_b32 s{sFi}, s{sXc}, 7
s_add_u32 s{sFi}, s{sFi}, s{sT2}
s_lshl_b32 s{sFi}, s{sFi}, 7
s_add_u32 s{sFi}, s{sFi}, {FL}
v_and_b32 v{t0}, 8, v{vL}
v_mov_b32 v{t1}, s{sWave}
v_mov_b32 v{t3}, s{sT2}
v_cmp_eq_u32 vcc, 0, v{t0}
v_cndmask_b32 v{t1}, v{t3}, v{t1}, vcc
v_lshl_add_u32 v{t1}, v{t1}, 3, v{t2}
v_lshlrev_b32 v{aFl}, 9, v{t1}''')
k('s_waitcnt vmcnt(0) lgkmcnt(0)')
k('s_barrier')

ACC=[32,48,64,80]
SLOT=[128+4*i for i in range(32)]+[96+4*i for i in range(8)]
ordA=[4*i for i in range(8)]+[t for t in range(32) if t%4]
def aload(slot, rt, t): return f'buffer_load_dwordx4 {V(SLOT[slot],4)}, v{aA}, {S(sWs,4)}, s{sAo+2*rt+(t>>4)} offen offset:{(t&15)*256} sc1'
k.label('G1')
stamp('G1poll')
loads=[aload(s_,0,ordA[s_]) for s_ in range(8)]+[f'buffer_load_dword v{vpr}, v{aPr}, {S(sWs,4)}, s{sAo+2} offen offset:508 sc1']
for l in loads: k(l)
KM=OPT['kmaj']
mf=[]
for s_ in range(KM):
    for jj in range(4): mf.append((jj,s_,jj,ordA[s_],s_==0))
for jj in range(4):
    for s_ in range(KM,32): mf.append((jj,s_,jj,ordA[s_],False))
slotB=list(range(32,40))+list(range(24))
for jj in range(3):
    for t in range(32): mf.append((jj,slotB[t],jj,t,t==0))
NM=len(mf)
FR=224; NF=8; PD=OPT.get('pd',5); WE=OPT.get('we',2)
def bread(i):
    acc,s_,jj,t,f=mf[i]
    return [f'ds_read_b64_tr_b16 {A(FR+4*(i%NF)+2*x,2)}, v{aB+jj} offset:{t*2048+x*512}' for x in range(2)]
for i in range(PD):
    for l in bread(i): k(l)
chk=maxchk([SLOT[j]+3 for j in range(8)],vck)+[f'v_max_u32 v{vck}, v{vck}, v{vpr}', f'v_cmp_eq_u32 vcc, -1, v{vck}']
checked('G1', loads, chk)
stamp('G1got')

side=[[] for _ in range(NM+200)]
def chk2(s0,s1): return f'v_max3_u32 v{vck}, v{vck}, v{SLOT[s0]+3}, v{SLOT[s1]+3}'
lastuse={}; firstuse={}
for i,(acc,s_,jj,t,f) in enumerate(mf):
    ph=0 if i<128 else 1
    lastuse[(ph,s_)]=i; firstuse.setdefault((ph,s_),i)
for s_ in range(8,32):
    side[2*(s_-8)].append(aload(s_,0,ordA[s_]))
    if s_&1: side[firstuse[(0,s_-1)]-1].append(chk2(s_-1,s_))
pos=48
for t in range(32):
    s_=slotB[t]
    p=max(pos, lastuse.get((0,s_),-1))
    side[p].append(aload(s_,1,t)); pos=p+2
    if t&1: side[firstuse[(1,slotB[t-1])]-1].append(chk2(slotB[t-1],s_))
def verify(name):
    def f():
        k(f'v_cmp_eq_u32 vcc, -1, v{vck}')
        k(f's_cbranch_vccnz RESTART')
    return f
kk=Asm(); kk.label('RESTART')
kk(f'''s_waitcnt vmcnt(0) lgkmcnt(0)
s_nop 15
s_add_u32 s{sCnt}, s{sCnt}, 1000
s_cmp_gt_u32 s{sCnt}, {SPIN}
s_cbranch_scc0 G1
s_endpgm''')
tail.append(kk.text())
EPT=vl.get(4); EPO=vl.get(4)
cur={'i':0}
FLAGS={1:2,3:4,4:5}
FD=OPT.get('fd',24)
def hh_store(u):
    def f():
        h=k(f'buffer_store_dwordx4 {V(EPO,4)}, v{vL16}, {S(sWs,4)}, s{sHo+u} offen sc1')
        print('hh store',u,'at',cur['i'],file=sys.stderr)
        if u in FLAGS:
            def g():
                k(f's_add_u32 s{sT0}, s{sNon}, {FLAGS[u]}\nv_mov_b32 v{vck2}, s{sT0}')
                k.wait_vm(h)
                k(f'buffer_store_dword v{vck2}, off, {S(sWs,4)}, s{sFo} sc1')
            side[cur['i']+FD].append(g)
    return f
def gelu(acc, u):
    a=ACC[acc]; o=[]; tmp=EPT
    for hlf in range(2):
        R=range(4*hlf,4*hlf+4)
        for r in R: o.append(f'v_fma_f32 v{tmp+(r&3)}, v{a+r}, v{a+r}, s{sKq}')
        for r in R: o.append(f'v_mul_f32 v{tmp+(r&3)}, -v{a+r}, v{tmp+(r&3)}')
        for r in R:
            o.append(f'v_exp_f32 v{tmp+(r&3)}, v{tmp+(r&3)}')
            o.append(f'v_mul_f32 v{a+r}, v{a+r}, v{a+8+r}')
        for r in R:
            o.append(f'v_fma_f32 v{tmp+(r&3)}, v{tmp+(r&3)}, s{sC2}, s{sC2}')
            if r&3: o.append(f'v_rcp_f32 v{tmp+(r&3)-1}, v{tmp+(r&3)-1}')
        o.append(f'v_rcp_f32 v{tmp+3}, v{tmp+3}')
        for r in R: o.append(f'v_mul_f32 v{a+r}, v{a+r}, v{tmp+(r&3)}')
        for r in (4*hlf,4*hlf+2): o.append(f'v_cvt_pk_bf16_f32 v{EPO+r//2}, v{a+r}, v{a+r+1}')
    o.append(hh_store(u))
    return o
done=[max(i for i in range(128) if mf[i][0]==jj) for jj in range(4)]+[128+32*jj+31 for jj in range(3)]
epi=[]
for u in range(7):
    g=gelu(u if u<4 else u-4,u)
    if u==0: g.insert(len(g)-1, verify('A'))
    if u==4: g.insert(len(g)-1, verify('B'))
    epi+= [(done[u]+2,x,u) for x in g]

def phi7(cls, rt):
    if cls<4: return cls if rt==0 else 3+((cls+1)&3)
    return 4+(cls-4) if rt==0 else cls-4
groups=[(0,0),(1,0),(0,1),(1,1),(2,0),(3,0),(2,1),(4,0),(5,0),(6,0),(3,1),(4,1),(5,1),(6,1)]
ACC2={(0,0):ACC[3],(0,1):ACC[0],(1,0):ACC[1],(1,1):ACC[2]}
HV=SLOT[22]; P0=96
freeq=[(s_,127) for s_ in range(24,32)]+[(slotB[t],192+t) for t in range(8,30)]
g2=[]; started=set()
base=NM; LEAD=OPT['lead']; PL=OPT.get('pl',18)
pos=0; have=0
fload=f'buffer_load_dword v{vpr}, v{aFl}, {S(sWs,4)}, s{sFi} offen sc1'
for gi,(cls,rt) in enumerate(groups):
    p0=max(pos,base+8*gi-LEAD)
    if cls<7-NSENT and cls+1>have:
        have=min(n_ for n_ in FLAGS.values() if n_>=cls+1)
        c=[f's_add_u32 s{sT1}, s{sNon}, {have}', f'v_subrev_u32 v{vpr}, s{sT1}, v{vpr}', f'v_cmp_lt_u32 vcc, 7, v{vpr}']
        side[p0-PL].append(fload)
        def mkf(have=have,c=c):
            def f(): checked(f'F{have}', [fload], c)
            return f
        side[p0].append(mkf())
        print('poll n>=',have,'issue',p0-PL,'check',p0,file=sys.stderr)
    lds_=[]; sl=[]
    for q in range(4):
        tau=7*q+phi7(cls,rt)
        s_,fr=freeq.pop(0)
        use=base+8*gi+2*q
        freeq.append((s_,use+1))
        l=[f's_add_u32 s{sT2}, s{sG2+rt}, {(tau>>2)*4096}', f'buffer_load_dwordx4 {V(SLOT[s_],4)}, v{vL16}, {S(sWs,4)}, s{sT2} offen offset:{(tau&3)*1024} sc1']
        p=max(pos, fr, p0)
        side[p]+=l; pos=p+2
        lds_+=l; sl.append(s_)
        for ct in range(2):
            g2.append((ACC2[(rt,ct)], (tau*2+ct)*4, SLOT[s_], (rt,ct) not in started)); started.add((rt,ct))
    if cls>=7-NSENT:
        c=maxchk([SLOT[s_]+3 for s_ in sl],vck)+[f'v_cmp_eq_u32 vcc, -1, v{vck}']
        def mk(gi=gi,lds_=lds_,c=c):
            def f(): checked(f'G2_{gi}', lds_, c)
            return f
        side[base+8*gi-1].append(mk())

aRw=vl.get(); aRr=vl.get(2,1); aHo=vl.get(2,1); sEo=sp.get(2,1)
PA=R0
tq=aA
red_setup=f'''v_and_b32 v{tq}, 31, v{vL}
v_lshrrev_b32 v{aRw}, 5, v{vL}
v_and_b32 v{aPr}, 7, v{vL}
v_xor_b32 v{aRw}, v{aRw}, v{aPr}
v_lshlrev_b32 v{aRw}, 4, v{aRw}
v_lshl_add_u32 v{aRw}, v{tq}, 8, v{aRw}
s_lshl_b32 s{sT0}, s{sWave}, 13
s_add_u32 s{sT0}, s{sT0}, {PA}
v_add_u32 v{aRw}, s{sT0}, v{aRw}
v_lshrrev_b32 v{tq}, 3, v{vL}
v_lshlrev_b32 v{aRr}, 1, v{aPr}
v_xor_b32 v{aRr}, v{aRr}, v{tq}
v_lshlrev_b32 v{aRr}, 4, v{aRr}
v_lshl_add_u32 v{aRr}, v{tq}, 8, v{aRr}
s_lshl_b32 s{sT0}, s{sWave}, 11
s_add_u32 s{sT0}, s{sT0}, {PA}
v_add_u32 v{aRr}, s{sT0}, v{aRr}
v_xor_b32 v{aRr+1}, 16, v{aRr}
v_lshlrev_b32 v{aPr}, 4, v{aPr}
v_lshl_add_u32 v{aHo}, v{tq}, 10, v{aPr}
v_lshl_add_u32 v{aHo+1}, v{tq}, 18, v{aPr}
s_and_b32 s{sB0}, s{sJ}, 7
s_lshl_b32 s{sB0}, s{sB0}, 7
s_lshl_b32 s{sB1}, s{sRb}, 3
s_add_u32 s{sB1}, s{sB1}, s{sWave}
s_lshl_b32 s{sEo}, s{sB1}, 13
s_add_u32 s{sEo}, s{sEo}, s{sB0}
s_add_u32 s{sEo}, s{sEo}, {HB}
s_lshl_b32 s{sEo+1}, s{sB1}, 10
s_add_u32 s{sEo+1}, s{sEo+1}, s{sB0}
buffer_load_dwordx4 {V(HV,4)}, v{aHo}, {S(sWs,4)}, s{sEo} offen sc1
s_add_u32 s{sEo}, s{sEo}, {32*1024}
buffer_load_dwordx4 {V(HV+4,4)}, v{aHo}, {S(sWs,4)}, s{sEo} offen sc1'''.split('\n')
red_setup+= [f'v_xor_b32 v{aB+i}, {32*i}, v{aRw}' for i in range(4)]

def run_side(i, budget):
    cost=0; cur['i']=i
    for x in side[i]:
        if callable(x): x()
        else: k(x)
        cost+=4
    while epi and epi[0][0]<=i and cost<budget:
        x=epi.pop(0)[1]
        if callable(x): x(); cost+=4
        else: k(x); cost+= 8 if ('exp' in x or 'rcp' in x) else 4
def flush(u):
    while epi and epi[0][2]<=u:
        x=epi.pop(0)[1]
        x() if callable(x) else k(x)

EB=OPT['eb']
for i,(acc,s_,jj,t,f) in enumerate(mf):
    a=ACC[acc]
    if f and i>=128: flush(acc)
    if i%WE==0: k.wait_regs([A(FR+4*(j%NF),4) for j in range(i,i+WE)])
    k(f'v_mfma_f32_32x32x16_bf16 {V(a,16)}, {A(FR+4*(i%NF),4)}, {V(SLOT[s_],4)}, {"0" if f else V(a,16)}')
    if i+PD<NM:
        for l in bread(i+PD): k(l)
    run_side(i,EB-(4 if (i+1)%WE==0 else 0)+2)
    if i%32==31 and i<NM-1: stamp(f'm{i+1}')
stamp('G1done')

def red_write(rt):
    return [f'ds_write_b128 v{aB+i}, {V(ACC2[(rt,ct)]+4*i,4)} offset:{128*ct}' for ct in range(2) for i in range(4)]
def red_read(): return [f'ds_read_b128 {V(P0+8*pw+4*x,4)}, v{aRr+x} offset:{8192*pw}' for pw in range(4) for x in range(2)]
def red_fin(rt, packed):
    o=[]; p=P0; hq=ACC2[(0,0)]
    for j in range(4):
        o.append(f'v_lshlrev_b32 v{hq+2*j}, 16, v{HV+4*rt+j}')
        o.append(f'v_and_b32 v{hq+2*j+1}, 0xffff0000, v{HV+4*rt+j}')
    def add(d,a,b):
        if packed: o.extend(f'v_pk_add_f32 {V(d+j,2)}, {V(a+j,2)}, {V(b+j,2)}' for j in (0,2,4,6))
        else: o.extend(f'v_add_f32 v{d+j}, v{a+j}, v{b+j}' for j in range(8))
    add(hq,hq,p); add(hq,hq,p+8); add(hq,hq,p+16); add(hq,hq,p+24)
    for j in range(4): o.append(f'v_cvt_pk_bf16_f32 v{hq+8+j}, v{hq+2*j}, v{hq+2*j+1}')
    o.append(f'buffer_store_dwordx4 {V(hq+8,4)}, v{aHo+1}, {S(sOut,4)}, s{sEo+1} offen')
    return o
need_free={ACC[3]:3, ACC[0]:4, ACC[1]:5, ACC[2]:6}
rt0_done=base+8*groups.index((6,0))+7
for x_i,x in enumerate(red_setup): side[base+20+x_i//3].append(x)
for j,x in enumerate(red_write(0)): side[rt0_done+3+j].append(x)
side[rt0_done+15].append(k.barrier)
for j,x in enumerate(red_read()): side[rt0_done+15+j//2].append(x)
fin0=red_fin(0,False)+[f's_add_u32 s{sEo+1}, s{sEo+1}, 4096']+[f'v_xor_b32 v{r}, {PA}, v{r}' for r in (aB,aB+1,aB+2,aB+3,aRr,aRr+1)]
for j,x in enumerate(fin0): side[min(rt0_done+20+j//5, base+111)].append(x)
for i,(a,wa,sl,f) in enumerate(g2):
    if f: flush(need_free[a])
    k(f'v_mfma_f32_32x32x16_bf16 {V(a,16)}, {A(wa,4)}, {V(sl,4)}, {"0" if f else V(a,16)}')
    run_side(base+i,22)
    if i%32==31: stamp(f'mm{i+1}')
assert not epi and not any(side[base+112:])
stamp('G2done')
fin1=red_fin(1,True)
for x in fin1[:8]: k(x)
for x in red_write(1): k(x)
k.barrier()
for x in red_read(): k(x)
for x in fin1[8:]: k(x)
stamp('end')
if 'amp' in OPT:
    ra,rb=[r for n,r in stamp_regs]
    k(f'''s_memrealtime s[4:5]
s_waitcnt lgkmcnt(0)
s_sub_u32 s{sT0}, s{rb}, s{ra}
s_mul_i32 s{sT0}, s{sT0}, {OPT.get('ampk',2)}
s_min_u32 s{sT0}, s{sT0}, 100000''')
    k.label('Lamp')
    k(f'''s_memrealtime s[6:7]
s_waitcnt lgkmcnt(0)
s_sub_u32 s{sT1}, s6, s4
s_cmp_lt_u32 s{sT1}, s{sT0}
s_cbranch_scc1 Lamp''')
if OPT['stamps']:
    k('s_waitcnt vmcnt(0) lgkmcnt(0)')
    stamp('drained')
    k(f'''s_lshl_b32 s{sT0}, s2, 2
s_add_u32 s{sT0}, s{sT0}, s{sWave}
s_lshl_b32 s{sT0}, s{sT0}, 7
s_add_u32 s{sT0}, s{sT0}, {STAMP}''')
    for j,(nm,r) in enumerate(stamp_regs+[('cnt',sCnt)]):
        k(f'v_mov_b32 v{140+j}, s{r}')
        k(f'buffer_store_dword v{140+j}, off, {S(sWs,4)}, s{sT0} offset:{4*j}')
k('s_endpgm')

hdr=f'''; Fused persistent kernel: LN -> 2-D FFT filter (MFMA DFT stages) -> LN -> GEGLU FFN, 256 workgroups.
; @launch grid=(256,1,1) block=(256,1,1) lds={LDSZ}
.amdgcn_target "amdgcn-amd-amdhsa--gfx950"
.text
.globl {KN}
.p2align 8
.type {KN},@function
'''
ftr=f'''
CODE_END:
.section .rodata,"a"
.p2align 6
.amdhsa_kernel {KN}
  .amdhsa_next_free_vgpr 512
  .amdhsa_next_free_sgpr 102
  .amdhsa_accum_offset 256
  .amdhsa_group_segment_fixed_size 0
  .amdhsa_kernarg_size 80
  .amdhsa_user_sgpr_count 2
  .amdhsa_user_sgpr_kernarg_segment_ptr 1
  .amdhsa_system_sgpr_workgroup_id_x 1
.end_amdhsa_kernel
'''
open(sys.argv[1],'w').write(hdr+k.text()+'\n'+'\n'.join(tail)+ftr)
open(sys.argv[1]+'.stamps','w').write(' '.join(n for n,_ in stamp_regs)+' cnt')
print('instrs',k.count,'nops',k.nops,'vl hi',vl.hi,'sp hi',sp.hi, file=sys.stderr)
```

```python
import sys, struct
from asmlib import *

KN = "sequential_preLN__spectral_gfnet__glu_gated_geglu__prompt_kernel"
OPT = dict(stamps=0, ng=2, kmaj=16, eb=14, pre=1, nobg=0, rot=1, early=1,
           p0=0, pa=0, s1=16, s2=12, pb=8, s3=12, s4=8, pc=8, lead=24)
for a in sys.argv[2:]:
    kk,vv = a.split('='); OPT[kk]=int(vv) if vv.lstrip('-').isdigit() else vv
NB = OPT['ng']
def fb(x): return '0x%08x' % struct.unpack('<I', struct.pack('<f', x))[0]

FL=0x40000
X1=0x100000; X1S=16512
X2=0x600000; X2S=16512
X3=0xB00000; X3S=8320
HB=0xE00000
HH=0x1000000
STAMP=0x1800000
WSZ=0x2000000
R0=131072; R1=R0+16384; R2=R1+8192; RH=R0+8192
LDSZ=163840
SPIN=400000
NSENT=2

CG = 0.1029432397**(1/3)
KQ = 2.302208198/CG

k=Asm(); tail=[]
vp=Pool(32,256); vl=Pool(1,32); sp=Pool(52,100)
sX,sWr,sWi,sW1,sWd,sOut,sWs = 24,28,32,36,40,44,48
stamp_regs=[]
stq=[22,100,4,6,8,10,12,14,16,18,20,24,26,28,30,32,34]
def stamp(name):
    st=OPT['stamps']
    on = (st==1 and name[0] not in 'mfp') or (st==2 and (name[0]=='m' or name in ('G1poll','G1got','G1done','G2done','end'))) \
         or (st==4 and (name[0]=='p' or name in ('start','fkarg','fconst','xload','fAbar','Adone'))) \
         or (st==3 and (name[0]=='f' or name in ('start','xload','Adone','Bpoll','Bgot','Bdone','Cpoll','Cgot','Cdone','G1poll','G1got')))
    if on or name in OPT.get('amp','').split(','):
        r=stq.pop(0); stamp_regs.append((name,r)); k(f'{"s_memtime" if OPT.get("cyc") else "s_memrealtime"} {S(r,2)}')

k.raw(f'{KN}:')
k('s_cmp_lt_u32 s2, 256')
k('s_cbranch_scc1 Lgo')
k('s_endpgm')
k.label('Lgo')
k('s_load_dwordx16 s[4:19], s[0:1], 0')
k('s_load_dwordx2 s[20:21], s[0:1], 72')
stamp('start')
sWave=sp.get(); sS2=sp.get(); sT0=sp.get(); sT1=sp.get(); sT2=sp.get(); sCnt=sp.get()
sXc=sp.get(); sJ=sp.get(); sPos=sp.get()
vL=vl.get(); vL16=vl.get(); vL4=vl.get()
vLo=vp.get(); vG=vp.get(); t0=vp.get(); t1=vp.get(); t2=vp.get(); t3=vp.get(); vdum=vp.get(4)
if OPT.get('cpre',1):
    pc=sp.get(2); va=vp.get(2)
    k(f'''s_getpc_b64 {S(pc,2)}
v_lshlrev_b32 v{va}, 7, v0
v_min_u32 v{va}, CODE_END-Lgo-64, v{va}
v_mov_b32 v{va+1}, s{pc+1}
v_add_co_u32 v{va}, vcc, s{pc}, v{va}
v_addc_co_u32 v{va+1}, vcc, 0, v{va+1}, vcc
global_load_dword v{vdum}, {V(va,2)}, off''')
    sp.put(pc,2); vp.put(va,2)
k(f'''v_lshrrev_b32 v{t0}, 6, v0
v_and_b32 v{vL}, 63, v0
v_readfirstlane_b32 s{sWave}, v{t0}
v_lshlrev_b32 v{vL4}, 2, v{vL}
v_lshlrev_b32 v{vL16}, 4, v{vL}
v_and_b32 v{vLo}, 15, v0
v_lshrrev_b32 v{vG}, 4, v{vL}
s_and_b32 s{sXc}, s2, 7
s_lshr_b32 s{sJ}, s2, 3
s_lshl_b32 s{sPos}, s{sXc}, 5
s_add_u32 s{sPos}, s{sPos}, s{sJ}
s_mov_b32 s{sCnt}, 0''')
mA=((1<<NB)-1)<<5; mB=((1<<NB)-1)<<(5-NB)
def swapbits(p): return (p&~(mA|mB))|((p&mA)>>NB)|((p&mB)<<NB)
if NB:
    k(f'''s_and_b32 s{sT0}, s{sPos}, {mA}
s_and_b32 s{sT1}, s{sPos}, {mB}
s_andn2_b32 s{sS2}, s{sPos}, {mA|mB}
s_lshr_b32 s{sT0}, s{sT0}, {NB}
s_lshl_b32 s{sT1}, s{sT1}, {NB}
s_or_b32 s{sS2}, s{sS2}, s{sT0}
s_or_b32 s{sS2}, s{sS2}, s{sT1}''')
else:
    k(f's_mov_b32 s{sS2}, s{sPos}')
sXo=sp.get(2)
k(f'''s_lshl_b32 s{sT0}, s{sWave}, 9
s_add_u32 s{sT0}, s{sT0}, s{sS2}
s_lshl_b32 s{sXo}, s{sT0}, 10
s_add_u32 s{sXo+1}, s{sXo}, 262144''')
for s_,sz in ((sX,2097152),(sWr,1052672),(sWi,1052672),(sW1,512*3584),(sWd,1792*1024),(sOut,2097152),(sWs,WSZ)):
    k(f's_mov_b32 s{s_+2}, {sz}\ns_mov_b32 s{s_+3}, 0x20000')

fLo=vp.get(); fG=vp.get(); fP=vp.get()
k(f'''v_cvt_f32_u32 v{fLo}, v{vLo}
v_cvt_f32_u32 v{fG}, v{vG}
v_and_b32 v{t0}, 3, v{vLo}
v_lshrrev_b32 v{t1}, 2, v{vLo}
v_lshl_add_u32 v{t0}, v{t0}, 2, v{t1}
v_cvt_f32_u32 v{fP}, v{t0}''')

def angles(base, step):
    a=vp.get(4)
    k(f'v_add_f32 v{a+1}, v{base}, v{step}\nv_fma_f32 v{a+2}, v{step}, 2.0, v{base}\nv_fma_f32 v{a+3}, v{step}, 2.0, v{a+1}')
    return a
def cs(base, step):
    a=angles(base,step); c=vp.get(4)
    for r in range(4): k(f'v_cos_f32 v{c+r}, v{a+r if r else base}')
    for r in range(4): k(f'v_sin_f32 v{a+r}, v{a+r if r else base}')
    return (c,a)
def mk_matrix(base, step, neg=False):
    c,a=cs(base,step); re=vp.get(4); im=vp.get(4)
    for r in range(4):
        k(f'v_cvt_pk_bf16_f32 v{re+r}, v{c+r}, v{a+r}')
        k(f'v_cvt_pk_bf16_f32 v{im+r}, -v{a+r}, v{c+r}')
    res=[re,im]
    if neg:
        nre=vp.get(4); nim=vp.get(4)
        for r in range(4):
            k(f'v_xor_b32 v{nre+r}, 0x80008000, v{re+r}')
            k(f'v_xor_b32 v{nim+r}, 0x80008000, v{im+r}')
        res+=[nre,nim]
    vp.put(a,4); vp.put(c,4)
    return res

C={}
def c_F16():
    k(f'v_mul_f32 v{t0}, {fb(1/16)}, v{fLo}\nv_mul_f32 v{t1}, 4.0, v{t0}\nv_mul_f32 v{t0}, v{t0}, v{fG}')
    C['F16']=mk_matrix(t0,t1)
def c_G():
    k(f'v_mul_f32 v{t1}, {fb(1/16)}, v{fP}\nv_mul_f32 v{t0}, 4.0, v{fG}\nv_mul_f32 v{t0}, v{t0}, v{t1}')
    C['G16']=mk_matrix(t0,t1)
    k(f'v_fma_f32 v{t0}, v{t1}, 0.5, v{t0}')
    C['G32']=mk_matrix(t0,t1)
def c_TW():
    k(f'v_mul_f32 v{t1}, {fb(1/256)}, v{fLo}\nv_mul_f32 v{t0}, 4.0, v{fG}\nv_mul_f32 v{t0}, v{t0}, v{t1}')
    C['TW0']=cs(t0,t1)
    k(f'v_fma_f32 v{t0}, v{t1}, 0.5, v{t0}')
    C['TWA']=cs(t0,t1)
M3=vp.get(2); fS2=vp.get(); c4=vp.get(4)
def c_M3():
    k(f'''v_cvt_f32_u32 v{fS2}, s{sS2}
v_lshrrev_b32 v{t0}, 1, v{vLo}
v_and_b32 v{t1}, 1, v{vLo}
v_cvt_f32_u32 v{t0}, v{t0}
v_cvt_f32_u32 v{t1}, v{t1}
v_mul_f32 v{fS2}, {fb(1/2048)}, v{fS2}
v_mul_f32 v{t1}, {fb(0.25)}, v{t1}
v_mul_f32 v{t2}, {fb(0.25)}, v{fG}
v_add_f32 v{t2}, v{t2}, v{fS2}
v_fma_f32 v{t1}, v{t2}, v{t0}, v{t1}
v_mul_f32 v{t0}, {fb(0.125)}, v{t0}
v_add_f32 v{t0}, v{t0}, v{t1}
v_cos_f32 v{c4}, v{t1}
v_sin_f32 v{c4+1}, v{t1}
v_sin_f32 v{c4+3}, v{t0}
v_cos_f32 v{c4+2}, v{t0}
v_sub_f32 v{t0}, v{c4}, v{c4+3}
v_add_f32 v{t2}, v{c4}, v{c4+3}
v_add_f32 v{t1}, v{c4+1}, v{c4+2}
v_sub_f32 v{t3}, v{c4+2}, v{c4+1}
v_cvt_pk_bf16_f32 v{M3}, v{t0}, v{t1}
v_cvt_pk_bf16_f32 v{M3+1}, v{t2}, v{t3}''')
aZw=vp.get(); aP=vp.get(); aN=vp.get(); sX1o=sp.get()
def c_addrA():
    k(f'''s_mul_i32 s{sT0}, s{sWave}, {513*4}
s_add_u32 s{sT0}, s{sT0}, {R0}
v_add_u32 v{aZw}, s{sT0}, v{vL4}
v_mul_u32_u24 v{t0}, {513*4}, v{vG}
v_lshlrev_b32 v{t1}, 3, v{vLo}
s_lshl_b32 s{sT0}, s{sWave}, 8
s_add_u32 s{sT1}, s{sT0}, {R0+4}
s_sub_u32 s{sT0}, {R0+4*(511-33)}, s{sT0}
v_add3_u32 v{aP}, v{t0}, v{t1}, s{sT1}
v_sub_u32 v{t0}, v{t0}, v{t1}
v_add_u32 v{aN}, s{sT0}, v{t0}
s_mul_i32 s{sX1o}, s{sS2}, {X1S}
s_lshl_b32 s{sT1}, s{sWave}, 12
s_add_u32 s{sX1o}, s{sX1o}, s{sT1}
s_add_u32 s{sX1o}, s{sX1o}, {X1}''')
cA=[c_F16,c_TW,c_G,c_M3,c_addrA]
for f in cA[:OPT['early']]: f()

k(f's_mov_b32 s{sX}, s4\ns_mov_b32 s{sX+1}, s5')
stamp('fkarg')
xr=vp.get(8)
for rho in range(2):
    for i in range(4):
        k(f'buffer_load_dword v{xr+4*rho+i}, v{vL4}, {S(sX,4)}, s{sXo+rho} offen offset:{256*i}')
sp.put(sXo,2)
sNon=sp.get(); sTag=sp.get(); sTagF=sp.get()
k(f's_load_dword s{sNon}, s[20:21], 0')
k(f'''s_mov_b64 {S(sWr,2)}, s[6:7]
s_mov_b64 {S(sWi,2)}, s[8:9]
s_mov_b64 {S(sWs,2)}, s[20:21]
s_mov_b64 {S(sWd,2)}, s[16:17]
s_mov_b64 {S(sOut,2)}, s[18:19]
s_cmp_lt_u32 s{sWave}, 2
s_cselect_b64 {S(sW1,2)}, s[12:13], s[14:15]''')

sPar=sp.get(); sF0=sp.get(); sRtA=sp.get(); sRtB=sp.get(); sHo=sp.get(7,1); sX2o=sp.get(); sX3o=sp.get()
def hh_off(u):
    jj=u if u<4 else u-4
    k(f'''s_add_u32 s{sT0}, s{sPar}, {jj}
s_and_b32 s{sT0}, s{sT0}, 3
s_add_u32 s{sT0}, s{sT0}, s{sF0}
s_mul_i32 s{sT1}, s{sRtA if u<4 else sRtB}, 112
s_add_u32 s{sT0}, s{sT0}, s{sT1}
s_lshl_b32 s{sT0}, s{sT0}, 10
s_add_u32 s{sHo+u}, s{sT0}, {HH}''')
vSent=vp.get(4); H_={}; sK4112=sp.get(); k(f's_mov_b32 s{sK4112}, 4112'); aF=vp.get(); sFw=sp.get(2,1)
def m_pre():
    if not OPT['pre'] or OPT['nobg']: return
    P=sp.get(4,4)
    k(f'''s_cmp_eq_u32 s{sWave}, 1
s_cselect_b64 {S(P,2)}, {S(sWd,2)}, {S(sW1,2)}
s_cmp_eq_u32 s{sWave}, 3
s_cselect_b32 s{P+2}, 0, {512*3584}
s_mov_b32 s{P+3}, 0x20000
v_min_u32 v{t0}, 55, v{vL}
v_lshlrev_b32 v{t0}, 7, v{t0}
s_mul_i32 s{sT0}, s2, {56*128}
buffer_load_dword v{vdum+1}, v{t0}, {S(P,4)}, s{sT0} offen''')
    if OPT['pre']==2: k(f'buffer_load_dword v{vdum+3}, v{t0}, {S(P,4)}, s{sT0} offen offset:64')
    sp.put(P,4)
def m_fpre():
    P=sp.get(4,4)
    k(f'''s_cmp_lt_u32 s{sWave}, 2
s_cselect_b64 {S(P,2)}, {S(sWr,2)}, {S(sWi,2)}
s_mov_b32 s{P+2}, 1052672
s_mov_b32 s{P+3}, 0x20000
v_min_u32 v{t0}, 8, v{vLo}
v_lshlrev_b32 v{t0}, 6, v{t0}
v_mad_u32_u24 v{t0}, v{vG}, s{sK4112}, v{t0}
s_lshl_b32 s{sT0}, s{sJ}, 1
s_and_b32 s{sT1}, s{sWave}, 1
s_add_u32 s{sT0}, s{sT0}, s{sT1}
s_lshl_b32 s{sT0}, s{sT0}, 5
s_add_u32 s{sT0}, s{sT0}, s{sXc}
s_mul_i32 s{sT0}, s{sT0}, 514
buffer_load_ushort v{vdum+2}, v{t0}, {S(P,4)}, s{sT0} offen''')
    sp.put(P,4)
def m_filtaddr():
    k(f'''v_mul_u32_u24 v{aF}, 4112, v0
s_mul_i32 s{sT0}, s{sXc}, 514
s_lshl_b32 s{sT1}, s{sJ}, 4
s_add_u32 s{sT0}, s{sT0}, s{sT1}
s_add_u32 s{sFw}, s{sT0}, 2
s_lshl_b32 s{sFw+1}, s{sWave}, 10''')
def m_filt(m):
    k(f's_add_u32 m0, s{sFw+1}, {R2+4096*m}')
    H_['W']=k(f'buffer_load_dwordx4 v{aF}, {S((sWr,sWi)[m],4)}, s{sFw} offen lds')
def m_roles():
    k(f'''s_and_b32 s{sPar}, s{sS2}, 1
s_bfe_u32 s{sT0}, s{sS2}, 0x40001
s_mul_i32 s{sF0}, s{sT0}, 7
s_mul_i32 s{sT0}, s{sPar}, 3
s_add_u32 s{sF0}, s{sF0}, s{sT0}
s_lshr_b32 s{sT0}, s{sS2}, 5
s_lshl_b32 s{sT0}, s{sT0}, 3
s_lshl_b32 s{sT1}, s{sWave}, 1
s_add_u32 s{sT0}, s{sT0}, s{sT1}
s_add_u32 s{sRtA}, s{sT0}, s{sPar}
s_xor_b32 s{sRtB}, s{sRtA}, 1''')
def m_sentaddr():
    for i in range(4): k(f'v_mov_b32 v{vSent+i}, -1')
    k(f'''s_mul_i32 s{sX2o}, s2, {X2S}
s_lshl_b32 s{sT1}, s{sWave}, 12
s_add_u32 s{sX2o}, s{sX2o}, s{sT1}
s_add_u32 s{sX2o}, s{sX2o}, {X2}
s_mul_i32 s{sX3o}, s{sS2}, {X3S}
s_lshl_b32 s{sT1}, s{sWave}, 11
s_add_u32 s{sX3o}, s{sX3o}, s{sT1}
s_add_u32 s{sX3o}, s{sX3o}, {X3}''')
    for u in range(7-NSENT,7): hh_off(u)
def m_sent3():
    for i in range(2): k(f'buffer_store_dwordx4 {V(vSent,4)}, v{vL16}, {S(sWs,4)}, s{sX3o} offen offset:{1024*i} sc1')
    for u in range(7-NSENT,7):
        H_['S3']=k(f'buffer_store_dwordx4 {V(vSent,4)}, v{vL16}, {S(sWs,4)}, s{sHo+u} offen sc1')

vWdS=vl.get(); vB1S=vl.get(); vWdR=vl.get(2)
sLq=sp.get(); sRo=sp.get(4,1); sB0=sp.get(); sB1=sp.get()
def m_wdaddr():
    k(f'''v_lshrrev_b32 v{t0}, 3, v{vL}
v_and_b32 v{t1}, 7, v{vL}
v_and_b32 v{t2}, 1, v{vG}
v_lshlrev_b32 v{t3}, 2, v{t2}
v_xor_b32 v{t3}, v{t3}, v{t1}
v_lshlrev_b32 v{t3}, 4, v{t3}
v_lshl_add_u32 v{vWdS}, v{t0}, 10, v{t3}
s_and_b32 s{sT0}, s{sJ}, 7
s_lshl_b32 s{sT0}, s{sT0}, 7
s_mul_i32 s{sT1}, s{sWave}, {448*1024}
s_add_u32 s{sT0}, s{sT0}, s{sT1}
v_add_u32 v{vWdS}, s{sT0}, v{vWdS}
s_lshl_b32 s{sLq}, s{sWave}, 15''')
    if OPT['rot']:
        k(f'''s_lshr_b32 s{sT0}, s{sJ}, 3
s_lshl_b32 s{sT0}, s{sT0}, 1
s_and_b32 s{sT1}, s{sXc}, 1
s_or_b32 s{sT0}, s{sT0}, s{sT1}
s_lshr_b32 s{sRo+2}, s{sS2}, 5''')
        if NB==1: k(f's_lshl_b32 s{sT1}, s{sRo+2}, 2\ns_lshr_b32 s{sRo+2}, s{sRo+2}, 1\ns_or_b32 s{sRo+2}, s{sRo+2}, s{sT1}\ns_and_b32 s{sRo+2}, s{sRo+2}, 7')
        if NB==2: k(f's_lshl_b32 s{sT1}, s{sRo+2}, 1\ns_lshr_b32 s{sRo+2}, s{sRo+2}, 2\ns_or_b32 s{sRo+2}, s{sRo+2}, s{sT1}\ns_and_b32 s{sRo+2}, s{sRo+2}, 7')
    else:
        k(f's_mov_b32 s{sT0}, 0\ns_mov_b32 s{sRo+2}, 0')
    k(f'''s_lshl_b32 s{sRo}, s{sT0}, 13
s_lshl_b32 s{sT0}, s{sT0}, 10
s_or_b32 s{sRo+1}, s{sT0}, s{sLq}
s_lshl_b32 s{sT0}, s{sRo+2}, 10
s_or_b32 s{sRo+3}, s{sT0}, s{sLq}''')
def m_wdraddr():
    k(f'''v_lshrrev_b32 v{t0}, 5, v{vL}
v_bfe_u32 v{t1}, v{vL}, 2, 2
v_lshl_add_u32 v{t0}, v{t0}, 2, v{t1}
v_lshlrev_b32 v{t0}, 7, v{t0}
v_and_b32 v{t2}, 1, v{vG}
v_lshl_add_u32 v{t0}, v{t2}, 5, v{t0}
v_and_b32 v{t2}, 3, v{vL}
v_lshl_add_u32 v{t0}, v{t2}, 3, v{t0}
v_lshrrev_b32 v{t1}, 1, v{t1}
v_lshlrev_b32 v{t1}, 6, v{t1}
v_add3_u32 v{vWdR}, v{t0}, v{t1}, s{sLq}
v_xor_b32 v{vWdR+1}, 64, v{vWdR}''')
def m_b1addr():
    k(f'''v_bfe_u32 v{t1}, v{vL}, 3, 1
v_lshl_add_u32 v{t1}, v{vG}, 7, v{t1}
v_mul_u32_u24 v{t1}, 3584, v{t1}
v_and_b32 v{t0}, 1, v{vG}
s_and_b32 s{sT0}, s{sWave}, 2
v_or_b32 v{t0}, s{sT0}, v{t0}
v_lshlrev_b32 v{t0}, 1, v{t0}
v_and_b32 v{t2}, 7, v{vL}
v_xor_b32 v{t0}, v{t0}, v{t2}
v_lshl_add_u32 v{vB1S}, v{t0}, 4, v{t1}
s_and_b32 s{sT0}, s{sWave}, 1
s_mul_i32 s{sT1}, s{sT0}, {32*7168}
s_lshl_b32 s{sT0}, s{sF0}, 5
s_add_u32 s{sT0}, s{sT0}, s{sT1}
v_add_u32 v{vB1S}, s{sT0}, v{vB1S}''')
dma_seq=[('w',n) for n in range(56)]+[('b',m) for m in list(range(24,32))+list(range(24))]
dst={'n':0,'tr':0,'trh':None,'trsync':0}; dh={}
def tr_batch(b):
    k.wait_vm(dh[8*b+7])
    for n in range(8*b,8*b+8):
        tau,i=n>>1,n&1
        for ct in range(2):
            dst['trh']=k(f'ds_read_b64_tr_b16 {A((tau*2+ct)*4+2*i,2)}, v{vWdR+ct} offset:{(n%32)*1024}')
    dst['tr']=b+1
def tr_ready():
    if OPT['nobg']: return
    live={e[0] for e in k.vm}
    while dst['tr']<7 and 8*dst['tr']+7<dst['n'] and dh[8*dst['tr']+7] not in live: tr_batch(dst['tr'])
def dma(cnt, force=False):
    if OPT['nobg'] and not force: return
    for _ in range(cnt):
        q=dst['n']
        if q>=len(dma_seq): return
        b=q//8
        if b>=4:
            if dst['tr']<b-3:
                if not force: return
                tr_batch(b-4)
            if dst['trsync']<b-3:
                k.wait_lg(dst['trh']); dst['trsync']=dst['tr']
        ty,n=dma_seq[q]
        if ty=='w':
            k(f's_xor_b32 m0, s{sRo+1}, {(n%32)*1024}\ns_xor_b32 s{sB0}, s{sRo}, {n*8192}')
            dh[q]=k(f'buffer_load_dwordx4 v{vWdS}, {S(sWd,4)}, s{sB0} offen lds')
        else:
            k(f's_xor_b32 m0, s{sRo+3}, {n*1024}\ns_xor_b32 s{sB0}, s{sRo+2}, {n}\ns_mul_i32 s{sB0}, s{sB0}, 7168')
            dh[q]=k(f'buffer_load_dwordx4 v{vB1S}, {S(sW1,4)}, s{sB0} offen lds')
        dst['n']+=1
class Sprinkle:
    def __init__(s,cnt,gap): s.cnt=cnt; s.gap=gap
    def __enter__(s):
        s.old=k.emit; s.c=0; s.busy=False
        def emit(text):
            h=s.old(text)
            if not s.busy and text.startswith('v_') and not text.startswith(('v_cmp','v_readlane')):
                s.c+=1
                if s.c>=s.gap and s.cnt>0:
                    s.busy=True; dma(1); s.busy=False; s.c=0; s.cnt-=1
            return h
        k.emit=emit
    def __exit__(s,*a): k.emit=s.old

stamp('px')
m_fpre(); m_pre(); stamp('ppre')
for f in cA[OPT['early']:]: f()
m_filtaddr(); m_wdaddr()
k(f'''s_add_u32 s{sNon}, s{sNon}, 9
s_and_b32 s{sTag}, s{sNon}, 0x1fff
s_or_b32 s{sTag}, s{sTag}, 0x4000
s_lshl_b32 s{sTagF}, s{sTag}, 16''')
dma(OPT['p0'])
stamp('fconst')
F16,G16,G32,TW0,TWA=C['F16'],C['G16'],C['G32'],C['TW0'],C['TWA']

def pk(op, d, *src, mods=''):
    k(f'{op} {V(d,2)}, '+', '.join(V(x,2) if isinstance(x,int) else x for x in src)+(' '+mods if mods else ''))
sSt=sp.get(4,2)
def stats(xf, scale):
    a=vp.get(8)
    for rho in range(2):
        pk('v_pk_add_f32', a+4*rho, xf+8*rho, xf+8*rho+2)
        pk('v_pk_mul_f32', a+4*rho+2, xf+8*rho, xf+8*rho)
    for j in (2,4,6):
        for rho in range(2):
            if j>2: pk('v_pk_add_f32', a+4*rho, a+4*rho, xf+8*rho+j)
            pk('v_pk_fma_f32', a+4*rho+2, xf+8*rho+j, xf+8*rho+j, a+4*rho+2)
    for j in (0,4,2,6): k(f'v_add_f32 v{a+j}, v{a+j}, v{a+j+1}')
    k(f'v_permlane32_swap_b32 v{a}, v{a+4}')
    k(f'v_permlane32_swap_b32 v{a+2}, v{a+6}')
    k(f'v_add_f32 v{a}, v{a}, v{a+4}')
    k(f'v_add_f32 v{a+2}, v{a+2}, v{a+6}')
    for m in ('row_ror:8 row_mask:0xf','row_ror:4 row_mask:0xf','row_ror:2 row_mask:0xf','row_ror:1 row_mask:0xf','row_bcast:15 row_mask:0xa'):
        for j in (0,2): k(f'v_add_f32_dpp v{a+j}, v{a+j}, v{a+j} {m} bank_mask:0xf')
    k(f'''v_mul_f32 v{a}, {fb(1/512)}, v{a}
v_mul_f32 v{a+2}, {fb(1/512)}, v{a+2}
v_fma_f32 v{a+2}, -v{a}, v{a}, v{a+2}
v_max_f32 v{a+2}, 0, v{a+2}
v_add_f32 v{a+2}, {fb(1e-5)}, v{a+2}
v_rsq_f32 v{a+2}, v{a+2}''')
    if scale!=1: k(f'v_mul_f32 v{a+2}, {fb(scale)}, v{a+2}')
    k(f'''v_mul_f32 v{a}, -v{a}, v{a+2}
v_readlane_b32 s{sSt}, v{a+2}, 31
v_readlane_b32 s{sSt+1}, v{a}, 31
v_readlane_b32 s{sSt+2}, v{a+2}, 63
v_readlane_b32 s{sSt+3}, v{a}, 63''')
    vp.put(a,8)
def normalize(xf):
    n=vp.get(16)
    for rho in range(2):
        for j in range(0,8,2):
            pk('v_pk_fma_f32', n+8*rho+j, xf+8*rho+j, S(sSt+2*rho,2), S(sSt+2*rho,2), mods='op_sel:[0,0,1] op_sel_hi:[1,0,1]')
    return n
def mf32(d,a,b,c='0'): k(f'v_mfma_f32_16x16x32_bf16 {V(d,4)}, {V(a,4)}, {V(b,4)}, {c if c=="0" else V(c,4)}')
def mf16(d,a,b): k(f'v_mfma_f32_16x16x16_bf16 {V(d,4)}, {V(a,2)}, {V(b,2)}, 0')
def cmul_pack(dre,dim,tw,out,conj=True,swap=False):
    c,s_=tw; t=vp.get(8)
    for j in (0,2): pk('v_pk_mul_f32', t+j, dre+j, c+j)
    ng='neg_lo:[1,0] neg_hi:[1,0]'; ng3='neg_lo:[1,0,0] neg_hi:[1,0,0]'
    for j in (0,2): pk('v_pk_mul_f32', t+4+j, dre+j, s_+j, mods=ng if conj else '')
    for j in (0,2):
        pk('v_pk_fma_f32', t+j, dim+j, s_+j, t+j, mods='' if conj else ng3)
        pk('v_pk_fma_f32', t+4+j, dim+j, c+j, t+4+j)
    for r in range(4):
        a,b=(t+4+r,t+r) if swap else (t+r,t+4+r)
        k(f'v_cvt_pk_bf16_f32 v{out+r}, v{a}, v{b}')
    vp.put(t,8)

xf=vp.get(16,4)
op=vp.get(8); D=vp.get(16); D2=vp.get(16)
with Sprinkle(OPT['pa'],14):
    for rho in range(2):
        for i in range(4):
            k(f'v_lshlrev_b32 v{xf+8*rho+i}, 16, v{xr+4*rho+i}')
            k(f'v_and_b32 v{xf+8*rho+4+i}, 0xffff0000, v{xr+4*rho+i}')
    stamp('xload')
    if OPT.get('fpos',1)>=1: m_filt(0)
    if OPT.get('fpos',1)>=2: m_filt(1)
    stats(xf,1)
    n=normalize(xf)
    for e in range(2):
        for i in range(4): k(f'v_cvt_pk_bf16_f32 v{op+4*e+i}, v{n+4*e+i}, v{n+8+4*e+i}')
    for e in range(2):
        mf32(D+8*e, op+4*e, F16[0]); mf32(D+8*e+4, op+4*e, F16[1])
    vp.put(n,16)
    for e in range(2):
        cmul_pack(D+8*e, D+8*e+4, (TW0,TWA)[e], op+4*e)
        Gm=(G16,G32)[e]
        mf32(D2+8*e, Gm[0], op+4*e); mf32(D2+8*e+4, Gm[1], op+4*e)
    for t in range(2):
        for j in (0,2,4,6): pk('v_pk_add_f32', D+8*t+j, D2+j, D2+8+j, mods='neg_lo:[0,1] neg_hi:[0,1]' if t else '')
        for r in range(4): k(f'v_cvt_pk_bf16_f32 v{op+4*t+r}, v{D+8*t+r}, v{D+8*t+4+r}')
        for nn in (2*t,2*t+1):
            k(f'ds_write2st64_b32 v{aZw}, v{op+2*nn}, v{op+2*nn+1} offset0:{2*nn} offset1:{2*nn+1}')
vp.put(xr,8)
stamp('pA')
k.barrier()
stamp('fAbar')
for T in range(2):
    for e in range(2):
        k(f'ds_read_b32 v{op+4*T+2*e}, v{aP} offset:{4*(32*T+e)}')
        k(f'ds_read_b32 v{op+4*T+2*e+1}, v{aN} offset:{4*(33-32*T-e)}')
for T in range(2):
    for e in range(2): mf16(D+8*T+4*e, M3, op+4*T+2*e)
for T in range(2):
    for b0 in range(2):
        o=D2+8*T+4*b0
        for e in range(2):
            for c in range(2): k(f'v_cvt_pk_bf16_f32 v{o+2*e+c}, s{sTagF}, v{D+8*T+4*e+2*b0+c}')
        hA=k(f'buffer_store_dwordx4 {V(o,4)}, v{vL16}, {S(sWs,4)}, s{sX1o} offen offset:{(2*T+b0)*1024} sc1')
stamp('Adone')
for r_,n_ in ((G32[0],4),(G32[1],4),(TWA[0],4),(TWA[1],4),(M3,2),(aZw,1),(aP,1),(aN,1)): vp.put(r_,n_)
sp.put(sX1o)

Wf=vp.get(16); wraw=vp.get(8)
aBin=vp.get(); aBw=vp.get(); aBr=vp.get(); sBo=sp.get(4,1); aOw=vp.get(4); aOr=vp.get(); sPerm=sp.get()
if OPT.get('fpos',1)<1: m_filt(0)
if OPT.get('fpos',1)<2: m_filt(1)
with Sprinkle(OPT['s1'],OPT.get('s1g',4)):
    k(f's_lshl_b32 s{sT0}, s{sWave}, 2\ns_add_u32 s{sT0}, s{sT0}, {R2}\nv_add_u32 v{aF}, s{sT0}, v{vL16}')
    m_roles(); m_sentaddr()
    k(f'''v_lshrrev_b32 v{t1}, 2, v{vL}
v_and_b32 v{t2}, 3, v{vL}
v_mul_u32_u24 v{aBin}, {X1S}, v{t1}
v_lshl_add_u32 v{aBin}, v{t2}, 4, v{aBin}
v_lshlrev_b32 v{t3}, 1, v{t2}
v_xor_b32 v{t3}, v{t3}, v{t1}
v_lshlrev_b32 v{aBw}, 10, v{t2}
v_lshl_add_u32 v{aBw}, v{t3}, 4, v{aBw}
s_lshl_b32 s{sT0}, s{sWave}, 8
s_add_u32 s{sT0}, s{sT0}, {R1}
v_add_u32 v{aBw}, s{sT0}, v{aBw}
s_mul_i32 s{sT0}, s{sWave}, 1056
s_add_u32 s{sT0}, s{sT0}, {R1}
v_xor_b32 v{aBr}, s{sT0}, v{vL16}
s_lshr_b32 s{sT0}, s{sJ}, 2
s_lshl_b32 s{sT0}, s{sT0}, 11
s_and_b32 s{sT1}, s{sXc}, 1
s_lshl_b32 s{sT1}, s{sT1}, 10
s_add_u32 s{sT0}, s{sT0}, s{sT1}
s_lshr_b32 s{sT1}, s{sXc}, 1
s_lshl_b32 s{sT1}, s{sT1}, 8
s_add_u32 s{sT0}, s{sT0}, s{sT1}
s_and_b32 s{sT1}, s{sJ}, 3
s_lshl_b32 s{sT1}, s{sT1}, 6
s_add_u32 s{sT0}, s{sT0}, s{sT1}
s_mul_i32 s{sT1}, s{sWave}, {16*X1S}
s_add_u32 s{sT0}, s{sT0}, s{sT1}''')
    for i in range(4): k(f's_add_u32 s{sBo+i}, s{sT0}, {X1+64*i*X1S}')
    if NB:
        k(f'''v_and_b32 v{t1}, {mA}, v{vL}
v_and_b32 v{t2}, {mB}, v{vL}
v_and_b32 v{t0}, {255&~(mA|mB)}, v{vL}
v_lshrrev_b32 v{t1}, {NB}, v{t1}
v_lshlrev_b32 v{t2}, {NB}, v{t2}
v_or3_b32 v{t0}, v{t0}, v{t1}, v{t2}''')
    else: k(f'v_mov_b32 v{t0}, v{vL}')
    k(f'''s_lshl_b32 s{sT0}, s{sWave}, 4
s_add_u32 s{sT0}, s{sT0}, {R0}
v_and_b32 v{t1}, 6, v{t0}
v_lshlrev_b32 v{t1}, 3, v{t1}
v_lshl_add_u32 v{t0}, v{t0}, 6, s{sT0}
v_xor_b32 v{aOw}, v{t0}, v{t1}''')
    for r in range(1,4):
        p=swapbits(64*r); k(f'v_xor_b32 v{aOw+r}, {(p<<6)^((p&6)<<3)}, v{aOw}')
    k(f'''v_bfe_u32 v{t0}, v{vL}, 3, 2
v_xor_b32 v{t0}, v{t0}, v{vL}
s_lshl_b32 s{sT0}, s{sWave}, 12
s_add_u32 s{sT0}, s{sT0}, {R0}
v_lshl_add_u32 v{aOr}, v{t0}, 4, s{sT0}
s_mov_b32 s{sPerm}, 0x07060302''')
    m_wdraddr(); m_b1addr()
stamp('fS1')
k.wait_vm(hA)

def retry_block(name, loads, check):
    kk=Asm()
    kk.label(f'R_{name}')
    kk('s_nop 3')
    for l in loads: kk(l)
    kk('s_waitcnt vmcnt(0)')
    for c in check: kk(c)
    kk(f's_add_u32 s{sCnt}, s{sCnt}, 1')
    kk(f's_cmp_gt_u32 s{sCnt}, {SPIN}')
    kk(f's_cbranch_scc1 C_{name}')
    kk(f's_cbranch_vccnz R_{name}')
    kk(f's_branch C_{name}')
    tail.append(kk.text())
def checked(name, loads, check):
    for c in check: k(c)
    k(f's_cbranch_vccnz R_{name}')
    k.label(f'C_{name}')
    retry_block(name, loads, check)

ld=vp.get(16); ck=vp.get(2)
loads=[f'buffer_load_dwordx4 {V(ld+4*i,4)}, v{aBin}, {S(sWs,4)}, s{sBo+i} offen sc1' for i in range(4)]
stamp('Bpoll')
for l in loads: k(l)
m_sent3(); tr_ready(); dma(OPT['s2'])
chk=[f'v_xor_b32 v{ck}, s{sTag}, v{ld}', f'v_xor_b32 v{ck+1}, s{sTag}, v{ld+1}']
for j in range(2,16): chk.append(f'v_bitop3_b32 v{ck+(j&1)}, v{ck+(j&1)}, v{ld+j}, s{sTag} bitop3:0xf6')
chk+= [f'v_or_b32 v{ck}, v{ck}, v{ck+1}', f'v_cmp_ne_u16 vcc, 0, v{ck}']
checked('B', loads, chk)
stamp('Bgot')
for e in range(2):
    for i in range(4): k(f'v_perm_b32 v{op+4*e+i}, v{ld+4*i+2*e+1}, v{ld+4*i+2*e}, s{sPerm}')
    k(f'ds_write_b128 v{aBw}, {V(op+4*e,4)} offset:{4096*e}')
k.wait_vm(H_['W'])
k.barrier()
for e in range(2): k(f'ds_read_b128 {V(op+4*e,4)}, v{aBr} offset:{4096*e}')
for m in range(2):
    for r in range(4): k(f'ds_read_b32 v{wraw+4*m+r}, v{aF} offset:{4096*m+1024*r}')
for e in range(2):
    mf32(D+8*e, op+4*e, F16[0]); mf32(D+8*e+4, op+4*e, F16[1])
for r in range(4): k(f'v_lshlrev_b32 v{Wf+r}, 16, v{wraw+r}')
with Sprinkle(OPT['pb'],12):
    for e in range(2):
        cmul_pack(D+8*e, D+8*e+4, TW0, op+4*e)
        for r in (0,1): k(f'v_lshlrev_b32 v{Wf+4+2*e+r}, 16, v{wraw+4+2*e+r}')
        mf32(D2+8*e, G16[0], op+4*e); mf32(D2+8*e+4, G16[1], op+4*e)
    for e in range(2):
        cmul_pack(D2+8*e, D2+8*e+4, (Wf+8*e, Wf+8*e+4), op+4*e, conj=False, swap=True)
        if e==0:
            for r in range(8): k(f'v_and_b32 v{Wf+8+r}, 0xffff0000, v{wraw+r}')
        mf32(D+8*e, op+4*e, F16[0]); mf32(D+8*e+4, op+4*e, F16[1])
    for e in range(2):
        cmul_pack(D+8*e, D+8*e+4, TW0, op+4*e)
        mf32(D2+8*e, G16[0], op+4*e); mf32(D2+8*e+4, G16[1], op+4*e)
for r in range(4):
    for c in range(2): k(f'v_cvt_pk_bf16_f32 v{ld+4*r+c}, s{sTagF}, v{D2+4-4*c+r}')
for r in range(4):
    for c in range(2): k(f'v_cvt_pk_bf16_f32 v{ld+4*r+2+c}, s{sTagF}, v{D2+12-4*c+r}')
    k(f'ds_write_b128 v{aOw+r}, {V(ld+4*r,4)}')
k.wait_vm(H_['S3'])
k.barrier()
for i in range(4): k(f'ds_read_b128 {V(D+4*i,4)}, v{aOr} offset:{1024*i}')
for i in range(4): hB=k(f'buffer_store_dwordx4 {V(D+4*i,4)}, v{vL16}, {S(sWs,4)}, s{sX2o} offen offset:{1024*i} sc1')
stamp('Bdone')
for r_,n_ in ((Wf,16),(aBin,1),(aBw,1),(aBr,1),(aOw,4),(aOr,1),(vSent,4),(wraw,8),(aF,1)): vp.put(r_,n_)
sp.put(sBo,4); sp.put(sX2o); sp.put(sTagF); sp.put(sFw,2); sp.put(sK4112)
k(f'''s_or_b32 s{sT0}, s2, s{sWave}
s_cmp_lg_u32 s{sT0}, 0
s_cbranch_scc1 Lnon
v_mov_b32 v{t1}, s{sNon}''')
k.raw(f'    buffer_store_dword v{t1}, off, {S(sWs,4)}, 0 sc1')
k.label('Lnon')

tr_ready()
M3i=vp.get(2); u0=vp.get(4)
nyq=vp.get(2); aCin=vp.get(); aCp=vp.get(); aCn=vp.get(); aCr=vp.get(2); sCo=sp.get(4,1)
aLw=vp.get(2); aLr=vp.get(); aHw=vp.get(); aHr=vp.get(); sHb=sp.get()
CB=R1+16; CS=2064; SC=2.0**-21
with Sprinkle(OPT['s3'],10):
    k(f'''v_lshrrev_b32 v{t0}, 2, v{vLo}
v_cvt_f32_u32 v{t0}, v{t0}
v_mul_f32 v{u0}, {fb(0.25)}, v{t0}
v_add_f32 v{u0}, v{u0}, v{fS2}
v_bfe_u32 v{t0}, v{vLo}, 1, 1
v_and_b32 v{t1}, 1, v{vLo}
v_cvt_f32_u32 v{t0}, v{t0}
v_cvt_f32_u32 v{t1}, v{t1}
v_fma_f32 v{t0}, v{t0}, 2.0, -1.0
v_mul_f32 v{t0}, {fb(0.25)}, v{t0}
v_mul_f32 v{u0+1}, v{t0}, v{t1}''')
    for nn in range(2):
        k(f'''v_fma_f32 v{t1}, v{fG}, 2.0, {"1.0" if nn else "0"}
v_fma_f32 v{t2}, v{u0}, v{t1}, v{u0+1}
v_mul_f32 v{t1}, {fb(0.125)}, v{t1}
v_sub_f32 v{t1}, v{t1}, v{t0}
v_add_f32 v{t1}, v{t1}, v{t2}
v_cos_f32 v{c4}, v{t2}
v_sin_f32 v{c4+1}, v{t2}
v_cos_f32 v{c4+2}, v{t1}
v_sin_f32 v{c4+3}, v{t1}
v_add_f32 v{t1}, v{c4}, v{c4+2}
v_add_f32 v{t2}, v{c4+1}, v{c4+3}
v_mul_f32 v{t1}, {fb(SC)}, v{t1}
v_mul_f32 v{t2}, {fb(-SC)}, v{t2}
v_cvt_pk_bf16_f32 v{M3i+nn}, v{t1}, v{t2}''')
    k(f'''v_and_b32 v{t0}, 0xcf, v0
v_mov_b32 v{t1}, 0.5
v_cmp_eq_u32 vcc, 0xcf, v{t0}
v_and_b32 v{t0}, 12, v{vLo}
v_add_u32 v{t0}, v{t0}, v{vG}
v_cndmask_b32 v{nyq}, 1.0, v{t1}, vcc
v_cndmask_b32 v{nyq+1}, 0, v{t1}, vcc
v_mul_u32_u24 v{t0}, {2*X2S}, v{t0}
v_and_b32 v{t1}, 3, v{vLo}
v_lshl_add_u32 v{aCin}, v{t1}, 4, v{t0}
s_mul_i32 s{sT0}, s{sWave}, {64*X2S}
s_lshl_b32 s{sT1}, s{sPos}, 6
s_add_u32 s{sT0}, s{sT0}, s{sT1}
s_add_u32 s{sCo}, s{sT0}, {X2+32*X2S}
s_add_u32 s{sCo+1}, s{sT0}, {X2+33*X2S}
s_add_u32 s{sCo+2}, s{sT0}, {X2}
s_add_u32 s{sCo+3}, s{sT0}, {X2+X2S}
v_mul_u32_u24 v{t0}, {CS}, v{vG}
v_lshlrev_b32 v{t1}, 3, v{vLo}
s_lshl_b32 s{sT0}, s{sWave}, 8
s_add_u32 s{sT1}, s{sT0}, {CB}
s_sub_u32 s{sT0}, {CB+1024+4*(254-32)}, s{sT0}
v_add3_u32 v{aCp}, v{t0}, v{t1}, s{sT1}
v_sub_u32 v{t0}, v{t0}, v{t1}
v_add_u32 v{aCn}, s{sT0}, v{t0}
s_mul_i32 s{sT0}, s{sWave}, {CS}
s_add_u32 s{sT0}, s{sT0}, {CB-4}
v_add_u32 v{aCr}, s{sT0}, v{vL4}
v_add_u32 v{aCr+1}, {1028}, v{aCr}
v_mov_b32 v{t0}, s{sT0}
v_mov_b32 v{t1}, 0
ds_write_b32 v{t0}, v{t1}''')
    k(f'''v_fma_f32 v{t3}, v{fLo}, 2.0, 1.0
v_mul_f32 v{t0}, {fb(1/32)}, v{t3}
v_mul_f32 v{t1}, 4.0, v{t0}
v_mul_f32 v{t0}, v{t0}, v{fG}''')
    H=mk_matrix(t0,t1,neg=True)
stamp('fS3')
k.wait_vm(hB)

loads=[f'buffer_load_dwordx4 {V(ld+4*i,4)}, v{aCin}, {S(sWs,4)}, s{sCo+i} offen sc1' for i in range(4)]
stamp('Cpoll')
for l in loads: k(l)
tr_ready()
with Sprinkle(OPT['s4'],4):
    k(f'v_mul_f32 v{t1}, {fb(1/512)}, v{t3}\nv_mul_f32 v{t0}, 4.0, v{fG}\nv_mul_f32 v{t0}, v{t0}, v{t1}')
    TWC=cs(t0,t1)
    k(f'''v_and_b32 v{t0}, 7, v{vL}
s_lshl_b32 s{sT0}, s{sWave}, 1
v_xor_b32 v{t0}, s{sT0}, v{t0}
v_lshlrev_b32 v{t0}, 4, v{t0}
v_lshl_add_u32 v{t0}, v{vL}, 7, v{t0}
v_add_u32 v{aLw}, {R0}, v{t0}
v_xor_b32 v{aLw+1}, 16, v{aLw}
v_lshrrev_b32 v{t0}, 3, v{vL}
v_xor_b32 v{t0}, v{t0}, v{vL}
s_lshl_b32 s{sT0}, s{sWave}, 11
s_add_u32 s{sT1}, s{sT0}, {R0}
v_lshl_add_u32 v{aLr}, v{t0}, 4, s{sT1}
s_add_u32 s{sT1}, s{sT0}, {RH}
v_add_u32 v{aHw}, s{sT1}, v{vL4}
v_add_u32 v{aHr}, s{sT1}, v{vL16}
s_lshl_b32 s{sHb}, s{sS2}, 13
s_add_u32 s{sHb}, s{sHb}, s{sT0}
s_add_u32 s{sHb}, s{sHb}, {HB}''')
def maxchk(regs_, ckr):
    c=[f'v_max_u32 v{ckr}, v{regs_[0]}, v{regs_[1]}']
    for j in range(2,len(regs_),2): c.append(f'v_max3_u32 v{ckr}, v{ckr}, v{regs_[j]}, v{regs_[j+1]}')
    return c
checked('C', loads, chk)
stamp('Cgot')
for Tp in range(2):
    for e in (1,0):
        for nn in range(2): k(f'v_perm_b32 v{op+4*Tp+2*e+nn}, v{ld+8*Tp+4*nn+2*e+1}, v{ld+8*Tp+4*nn+2*e}, s{sPerm}')
for Tp in range(2):
    for e in (1,0): mf16(D+8*Tp+4*e, M3i, op+4*Tp+2*e)
pk('v_pk_mul_f32', D+6, D+6, nyq, mods='op_sel:[0,0] op_sel_hi:[1,0]')
pk('v_pk_fma_f32', D+6, D+4, nyq, D+6, mods='op_sel:[0,1,0] op_sel_hi:[1,1,1]')
for Tp in range(2):
    for e in (1,0): k(f'v_cvt_pk_bf16_f32 v{ld+4*Tp+e}, v{D+8*Tp+4*e+1}, v{D+8*Tp+4*e}')
    k(f'ds_write_b64 v{aCp}, {V(ld+4*Tp,2)} offset:{128*(1-Tp)}')
    for e in (1,0): k(f'v_cvt_pk_bf16_f32 v{ld+4*Tp+3-e}, v{D+8*Tp+4*e+3}, v{D+8*Tp+4*e+2}')
    k(f'ds_write_b64 v{aCn}, {V(ld+4*Tp+2,2)} offset:{128*Tp}')
k.barrier()
for t in range(2):
    for nn in range(2): k(f'ds_read2st64_b32 {V(op+4*t+2*nn,2)}, v{aCr+t} offset0:{2*nn} offset1:{2*nn+1}')
for e in range(2):
    for c in range(2): mf32(D+8*e+4*c, op, (F16,H)[e][c])
    for c in range(2): mf32(D+8*e+4*c, op+4, (F16[c],H[2+c])[e], D+8*e+4*c)
with Sprinkle(OPT['pc'],12):
    for e in range(2):
        cmul_pack(D+8*e, D+8*e+4, (TW0,TWC)[e], ld+4*e)
        mf32(xf+4*e, G16[1], ld+4*e, xf+4*e)
        mf32(xf+8+4*e, G16[0], ld+4*e, xf+8+4*e)
    stats(xf,CG)
    n=normalize(xf)
for rho in range(2):
    for i in range(4): k(f'v_cvt_pk_bf16_f32 v{op+4*rho+i}, v{n+8*rho+i}, v{n+8*rho+4+i}')
    k(f'ds_write_b128 v{aLw+rho}, {V(op+4*rho,4)}')
k.barrier()
for i in range(2): k(f'ds_read_b128 {V(ld+4*i,4)}, v{aLr} offset:{1024*i}')
for rho in range(2):
    for i in range(4): k(f'v_cvt_pk_bf16_f32 v{D+4*rho+i}, v{xf+8*rho+i}, v{xf+8*rho+4+i}')
for i in range(2): k(f'buffer_store_dwordx4 {V(ld+4*i,4)}, v{vL16}, {S(sWs,4)}, s{sX3o} offen offset:{1024*i} sc1')
stamp('Cdone')
for rho in range(2):
    for nn in range(2): k(f'ds_write2st64_b32 v{aHw}, v{D+4*rho+2*nn}, v{D+4*rho+2*nn+1} offset0:{4*rho+2*nn} offset1:{4*rho+2*nn+1}')
k.wait_lg()
for i in range(2): k(f'ds_read_b128 {V(D2+4*i,4)}, v{aHr} offset:{1024*i}')
for i in range(2): k(f'buffer_store_dwordx4 {V(D2+4*i,4)}, v{vL16}, {S(sWs,4)}, s{sHb} offen offset:{1024*i} sc1')

print('dma issued before S5:',dst['n'],'tr',dst['tr'],file=sys.stderr)
if OPT['nobg']<2: dma(99,force=True)
for u in range(7-NSENT): hh_off(u)
aB=vl.get(4,1); aA=vl.get(); aPr=vl.get(); vck=vl.get(); vck2=vl.get(); vpr=vl.get(); aFl=vl.get()
k(f'''v_and_b32 v{t0}, 1, v{vG}
v_bfe_u32 v{t1}, v{vL}, 3, 1
v_lshl_add_u32 v{t1}, v{t0}, 1, v{t1}
v_lshlrev_b32 v{t0}, 16, v{t0}
v_lshrrev_b32 v{t2}, 5, v{vL}
v_lshl_add_u32 v{t0}, v{t2}, 10, v{t0}
v_bfe_u32 v{t2}, v{vL}, 2, 2
v_lshl_add_u32 v{t0}, v{t2}, 7, v{t0}
v_and_b32 v{t2}, 3, v{vL}
v_lshl_add_u32 v{t0}, v{t2}, 3, v{t0}''')
for jj in range(4):
    k(f'''s_add_u32 s{sT0}, s{sPar}, {jj}
s_and_b32 s{sT0}, s{sT0}, 3
v_xor_b32 v{t2}, s{sT0}, v{t1}
v_lshl_add_u32 v{aB+jj}, v{t2}, 5, v{t0}''')
sp.put(sCo,4); sp.put(sPerm); sp.put(sTag); sp.put(sHb); sp.put(sX3o); sp.put(sSt,4); sp.put(sRo,4); sp.put(sLq)
sAo=sp.get(4,1)
k(f'''v_bfe_u32 v{t0}, v{vL}, 3, 2
v_mul_u32_u24 v{t0}, {X3S}, v{t0}
v_lshrrev_b32 v{t1}, 5, v{vL}
v_and_b32 v{t2}, 7, v{vL}
v_lshl_add_u32 v{aA}, v{t1}, 7, v{t0}
v_lshl_add_u32 v{aA}, v{t2}, 4, v{aA}
v_lshl_add_u32 v{aPr}, v{t1}, 9, v{t0}
v_lshl_add_u32 v{aPr}, v{t2}, 10, v{aPr}
s_mul_i32 s{sT0}, s{sRtA}, {4*X3S}
s_add_u32 s{sAo}, s{sT0}, {X3}
s_add_u32 s{sAo+1}, s{sT0}, {X3+4096}
s_mul_i32 s{sT0}, s{sRtB}, {4*X3S}
s_add_u32 s{sAo+2}, s{sT0}, {X3}
s_add_u32 s{sAo+3}, s{sT0}, {X3+4096}''')
sKq=sp.get(); sC2=sp.get(); sG2=sp.get(2,1); sRb=sp.get(); sFo=sp.get(); sFi=sp.get()
k(f'''s_mov_b32 s{sKq}, {fb(KQ)}
s_mov_b32 s{sC2}, {fb(CG*CG)}
s_lshl_b32 s{sRb}, s{sXc}, 2
s_lshr_b32 s{sT2}, s{sJ}, 3
s_add_u32 s{sRb}, s{sRb}, s{sT2}
s_mul_i32 s{sT0}, s{sRb}, 224
s_mul_i32 s{sT1}, s{sWave}, 28
s_add_u32 s{sT0}, s{sT0}, s{sT1}
s_lshl_b32 s{sT0}, s{sT0}, 10
s_add_u32 s{sG2}, s{sT0}, {HH}
s_add_u32 s{sG2+1}, s{sT0}, {HH+112*1024}
s_lshl_b32 s{sFo}, s{sS2}, 2
s_add_u32 s{sFo}, s{sFo}, s{sWave}
s_lshl_b32 s{sFo}, s{sFo}, 7
s_add_u32 s{sFo}, s{sFo}, {FL}
s_lshl_b32 s{sFi}, s{sXc}, 7
s_add_u32 s{sFi}, s{sFi}, s{sT2}
s_lshl_b32 s{sFi}, s{sFi}, 7
s_add_u32 s{sFi}, s{sFi}, {FL}
v_and_b32 v{t0}, 8, v{vL}
v_mov_b32 v{t1}, s{sWave}
v_mov_b32 v{t3}, s{sT2}
v_cmp_eq_u32 vcc, 0, v{t0}
v_cndmask_b32 v{t1}, v{t3}, v{t1}, vcc
v_lshl_add_u32 v{t1}, v{t1}, 3, v{t2}
v_lshlrev_b32 v{aFl}, 9, v{t1}''')
k('s_waitcnt vmcnt(0) lgkmcnt(0)')
k('s_barrier')

ACC=[32,48,64,80]
SLOT=[128+4*i for i in range(32)]+[96+4*i for i in range(8)]
ordA=[4*i for i in range(8)]+[t for t in range(32) if t%4]
def aload(slot, rt, t): return f'buffer_load_dwordx4 {V(SLOT[slot],4)}, v{aA}, {S(sWs,4)}, s{sAo+2*rt+(t>>4)} offen offset:{(t&15)*256} sc1'
k.label('G1')
stamp('G1poll')
loads=[aload(s_,0,ordA[s_]) for s_ in range(8)]+[f'buffer_load_dword v{vpr}, v{aPr}, {S(sWs,4)}, s{sAo+2} offen offset:508 sc1']
for l in loads: k(l)
KM=OPT['kmaj']
mf=[]
for s_ in range(KM):
    for jj in range(4): mf.append((jj,s_,jj,ordA[s_],s_==0))
for jj in range(4):
    for s_ in range(KM,32): mf.append((jj,s_,jj,ordA[s_],False))
slotB=list(range(32,40))+list(range(24))
for jj in range(3):
    for t in range(32): mf.append((jj,slotB[t],jj,t,t==0))
NM=len(mf)
FR=224; NF=8; PD=OPT.get('pd',5); WE=OPT.get('we',2)
def bread(i):
    acc,s_,jj,t,f=mf[i]
    return [f'ds_read_b64_tr_b16 {A(FR+4*(i%NF)+2*x,2)}, v{aB+jj} offset:{t*2048+x*512}' for x in range(2)]
for i in range(PD):
    for l in bread(i): k(l)
chk=maxchk([SLOT[j]+3 for j in range(8)],vck)+[f'v_max_u32 v{vck}, v{vck}, v{vpr}', f'v_cmp_eq_u32 vcc, -1, v{vck}']
checked('G1', loads, chk)
stamp('G1got')

side=[[] for _ in range(NM+200)]
def chk2(s0,s1): return f'v_max3_u32 v{vck}, v{vck}, v{SLOT[s0]+3}, v{SLOT[s1]+3}'
lastuse={}; firstuse={}
for i,(acc,s_,jj,t,f) in enumerate(mf):
    ph=0 if i<128 else 1
    lastuse[(ph,s_)]=i; firstuse.setdefault((ph,s_),i)
for s_ in range(8,32):
    side[2*(s_-8)].append(aload(s_,0,ordA[s_]))
    if s_&1: side[firstuse[(0,s_-1)]-1].append(chk2(s_-1,s_))
pos=48
for t in range(32):
    s_=slotB[t]
    p=max(pos, lastuse.get((0,s_),-1))
    side[p].append(aload(s_,1,t)); pos=p+2
    if t&1: side[firstuse[(1,slotB[t-1])]-1].append(chk2(slotB[t-1],s_))
def verify(name):
    def f():
        k(f'v_cmp_eq_u32 vcc, -1, v{vck}')
        k(f's_cbranch_vccnz RESTART')
    return f
kk=Asm(); kk.label('RESTART')
kk(f'''s_waitcnt vmcnt(0) lgkmcnt(0)
s_nop 15
s_add_u32 s{sCnt}, s{sCnt}, 1000
s_cmp_gt_u32 s{sCnt}, {SPIN}
s_cbranch_scc0 G1
s_endpgm''')
tail.append(kk.text())
EPT=vl.get(4); EPO=vl.get(4)
cur={'i':0}
FLAGS={1:2,3:4,4:5}
FD=OPT.get('fd',24)
def hh_store(u):
    def f():
        h=k(f'buffer_store_dwordx4 {V(EPO,4)}, v{vL16}, {S(sWs,4)}, s{sHo+u} offen sc1')
        print('hh store',u,'at',cur['i'],file=sys.stderr)
        if u in FLAGS:
            def g():
                k(f's_add_u32 s{sT0}, s{sNon}, {FLAGS[u]}\nv_mov_b32 v{vck2}, s{sT0}')
                k.wait_vm(h)
                k(f'buffer_store_dword v{vck2}, off, {S(sWs,4)}, s{sFo} sc1')
            side[cur['i']+FD].append(g)
    return f
def gelu(acc, u):
    a=ACC[acc]; o=[]; tmp=EPT
    for hlf in range(2):
        R=range(4*hlf,4*hlf+4)
        for r in R: o.append(f'v_fma_f32 v{tmp+(r&3)}, v{a+r}, v{a+r}, s{sKq}')
        for r in R: o.append(f'v_mul_f32 v{tmp+(r&3)}, -v{a+r}, v{tmp+(r&3)}')
        for r in R:
            o.append(f'v_exp_f32 v{tmp+(r&3)}, v{tmp+(r&3)}')
            o.append(f'v_mul_f32 v{a+r}, v{a+r}, v{a+8+r}')
        for r in R:
            o.append(f'v_fma_f32 v{tmp+(r&3)}, v{tmp+(r&3)}, s{sC2}, s{sC2}')
            if r&3: o.append(f'v_rcp_f32 v{tmp+(r&3)-1}, v{tmp+(r&3)-1}')
        o.append(f'v_rcp_f32 v{tmp+3}, v{tmp+3}')
        for r in R: o.append(f'v_mul_f32 v{a+r}, v{a+r}, v{tmp+(r&3)}')
        for r in (4*hlf,4*hlf+2): o.append(f'v_cvt_pk_bf16_f32 v{EPO+r//2}, v{a+r}, v{a+r+1}')
    o.append(hh_store(u))
    return o
done=[max(i for i in range(128) if mf[i][0]==jj) for jj in range(4)]+[128+32*jj+31 for jj in range(3)]
epi=[]
for u in range(7):
    g=gelu(u if u<4 else u-4,u)
    if u==0: g.insert(len(g)-1, verify('A'))
    if u==4: g.insert(len(g)-1, verify('B'))
    epi+= [(done[u]+2,x,u) for x in g]

def phi7(cls, rt):
    if cls<4: return cls if rt==0 else 3+((cls+1)&3)
    return 4+(cls-4) if rt==0 else cls-4
groups=[(0,0),(1,0),(0,1),(1,1),(2,0),(3,0),(2,1),(4,0),(5,0),(6,0),(3,1),(4,1),(5,1),(6,1)]
ACC2={(0,0):ACC[3],(0,1):ACC[0],(1,0):ACC[1],(1,1):ACC[2]}
HV=SLOT[22]; P0=96
freeq=[(s_,127) for s_ in range(24,32)]+[(slotB[t],192+t) for t in range(8,30)]
g2=[]; started=set()
base=NM; LEAD=OPT['lead']; PL=OPT.get('pl',18)
pos=0; have=0
fload=f'buffer_load_dword v{vpr}, v{aFl}, {S(sWs,4)}, s{sFi} offen sc1'
for gi,(cls,rt) in enumerate(groups):
    p0=max(pos,base+8*gi-LEAD)
    if cls<7-NSENT and cls+1>have:
        have=min(n_ for n_ in FLAGS.values() if n_>=cls+1)
        c=[f's_add_u32 s{sT1}, s{sNon}, {have}', f'v_subrev_u32 v{vpr}, s{sT1}, v{vpr}', f'v_cmp_lt_u32 vcc, 7, v{vpr}']
        side[p0-PL].append(fload)
        def mkf(have=have,c=c):
            def f(): checked(f'F{have}', [fload], c)
            return f
        side[p0].append(mkf())
        print('poll n>=',have,'issue',p0-PL,'check',p0,file=sys.stderr)
    lds_=[]; sl=[]
    for q in range(4):
        tau=7*q+phi7(cls,rt)
        s_,fr=freeq.pop(0)
        use=base+8*gi+2*q
        freeq.append((s_,use+1))
        l=[f's_add_u32 s{sT2}, s{sG2+rt}, {(tau>>2)*4096}', f'buffer_load_dwordx4 {V(SLOT[s_],4)}, v{vL16}, {S(sWs,4)}, s{sT2} offen offset:{(tau&3)*1024} sc1']
        p=max(pos, fr, p0)
        side[p]+=l; pos=p+2
        lds_+=l; sl.append(s_)
        for ct in range(2):
            g2.append((ACC2[(rt,ct)], (tau*2+ct)*4, SLOT[s_], (rt,ct) not in started)); started.add((rt,ct))
    if cls>=7-NSENT:
        c=maxchk([SLOT[s_]+3 for s_ in sl],vck)+[f'v_cmp_eq_u32 vcc, -1, v{vck}']
        def mk(gi=gi,lds_=lds_,c=c):
            def f(): checked(f'G2_{gi}', lds_, c)
            return f
        side[base+8*gi-1].append(mk())

aRw=vl.get(); aRr=vl.get(2,1); aHo=vl.get(2,1); sEo=sp.get(2,1)
PA=R0
tq=aA
red_setup=f'''v_and_b32 v{tq}, 31, v{vL}
v_lshrrev_b32 v{aRw}, 5, v{vL}
v_and_b32 v{aPr}, 7, v{vL}
v_xor_b32 v{aRw}, v{aRw}, v{aPr}
v_lshlrev_b32 v{aRw}, 4, v{aRw}
v_lshl_add_u32 v{aRw}, v{tq}, 8, v{aRw}
s_lshl_b32 s{sT0}, s{sWave}, 13
s_add_u32 s{sT0}, s{sT0}, {PA}
v_add_u32 v{aRw}, s{sT0}, v{aRw}
v_lshrrev_b32 v{tq}, 3, v{vL}
v_lshlrev_b32 v{aRr}, 1, v{aPr}
v_xor_b32 v{aRr}, v{aRr}, v{tq}
v_lshlrev_b32 v{aRr}, 4, v{aRr}
v_lshl_add_u32 v{aRr}, v{tq}, 8, v{aRr}
s_lshl_b32 s{sT0}, s{sWave}, 11
s_add_u32 s{sT0}, s{sT0}, {PA}
v_add_u32 v{aRr}, s{sT0}, v{aRr}
v_xor_b32 v{aRr+1}, 16, v{aRr}
v_lshlrev_b32 v{aPr}, 4, v{aPr}
v_lshl_add_u32 v{aHo}, v{tq}, 10, v{aPr}
v_lshl_add_u32 v{aHo+1}, v{tq}, 18, v{aPr}
s_and_b32 s{sB0}, s{sJ}, 7
s_lshl_b32 s{sB0}, s{sB0}, 7
s_lshl_b32 s{sB1}, s{sRb}, 3
s_add_u32 s{sB1}, s{sB1}, s{sWave}
s_lshl_b32 s{sEo}, s{sB1}, 13
s_add_u32 s{sEo}, s{sEo}, s{sB0}
s_add_u32 s{sEo}, s{sEo}, {HB}
s_lshl_b32 s{sEo+1}, s{sB1}, 10
s_add_u32 s{sEo+1}, s{sEo+1}, s{sB0}
buffer_load_dwordx4 {V(HV,4)}, v{aHo}, {S(sWs,4)}, s{sEo} offen sc1
s_add_u32 s{sEo}, s{sEo}, {32*1024}
buffer_load_dwordx4 {V(HV+4,4)}, v{aHo}, {S(sWs,4)}, s{sEo} offen sc1'''.split('\n')
red_setup+= [f'v_xor_b32 v{aB+i}, {32*i}, v{aRw}' for i in range(4)]

def run_side(i, budget):
    cost=0; cur['i']=i
    for x in side[i]:
        if callable(x): x()
        else: k(x)
        cost+=4
    while epi and epi[0][0]<=i and cost<budget:
        x=epi.pop(0)[1]
        if callable(x): x(); cost+=4
        else: k(x); cost+= 8 if ('exp' in x or 'rcp' in x) else 4
def flush(u):
    while epi and epi[0][2]<=u:
        x=epi.pop(0)[1]
        x() if callable(x) else k(x)

EB=OPT['eb']
for i,(acc,s_,jj,t,f) in enumerate(mf):
    a=ACC[acc]
    if f and i>=128: flush(acc)
    if i%WE==0: k.wait_regs([A(FR+4*(j%NF),4) for j in range(i,i+WE)])
    k(f'v_mfma_f32_32x32x16_bf16 {V(a,16)}, {A(FR+4*(i%NF),4)}, {V(SLOT[s_],4)}, {"0" if f else V(a,16)}')
    if i+PD<NM:
        for l in bread(i+PD): k(l)
    run_side(i,EB-(4 if (i+1)%WE==0 else 0)+2)
    if i%32==31 and i<NM-1: stamp(f'm{i+1}')
stamp('G1done')

def red_write(rt):
    return [f'ds_write_b128 v{aB+i}, {V(ACC2[(rt,ct)]+4*i,4)} offset:{128*ct}' for ct in range(2) for i in range(4)]
def red_read(): return [f'ds_read_b128 {V(P0+8*pw+4*x,4)}, v{aRr+x} offset:{8192*pw}' for pw in range(4) for x in range(2)]
def red_fin(rt, packed):
    o=[]; p=P0; hq=ACC2[(0,0)]
    for j in range(4):
        o.append(f'v_lshlrev_b32 v{hq+2*j}, 16, v{HV+4*rt+j}')
        o.append(f'v_and_b32 v{hq+2*j+1}, 0xffff0000, v{HV+4*rt+j}')
    def add(d,a,b):
        if packed: o.extend(f'v_pk_add_f32 {V(d+j,2)}, {V(a+j,2)}, {V(b+j,2)}' for j in (0,2,4,6))
        else: o.extend(f'v_add_f32 v{d+j}, v{a+j}, v{b+j}' for j in range(8))
    add(hq,hq,p); add(hq,hq,p+8); add(hq,hq,p+16); add(hq,hq,p+24)
    for j in range(4): o.append(f'v_cvt_pk_bf16_f32 v{hq+8+j}, v{hq+2*j}, v{hq+2*j+1}')
    o.append(f'buffer_store_dwordx4 {V(hq+8,4)}, v{aHo+1}, {S(sOut,4)}, s{sEo+1} offen')
    return o
need_free={ACC[3]:3, ACC[0]:4, ACC[1]:5, ACC[2]:6}
rt0_done=base+8*groups.index((6,0))+7
for x_i,x in enumerate(red_setup): side[base+20+x_i//3].append(x)
for j,x in enumerate(red_write(0)): side[rt0_done+3+j].append(x)
side[rt0_done+15].append(k.barrier)
for j,x in enumerate(red_read()): side[rt0_done+15+j//2].append(x)
fin0=red_fin(0,False)+[f's_add_u32 s{sEo+1}, s{sEo+1}, 4096']+[f'v_xor_b32 v{r}, {PA}, v{r}' for r in (aB,aB+1,aB+2,aB+3,aRr,aRr+1)]
for j,x in enumerate(fin0): side[min(rt0_done+20+j//5, base+111)].append(x)
for i,(a,wa,sl,f) in enumerate(g2):
    if f: flush(need_free[a])
    k(f'v_mfma_f32_32x32x16_bf16 {V(a,16)}, {A(wa,4)}, {V(sl,4)}, {"0" if f else V(a,16)}')
    run_side(base+i,22)
    if i%32==31: stamp(f'mm{i+1}')
assert not epi and not any(side[base+112:])
stamp('G2done')
fin1=red_fin(1,True)
for x in fin1[:8]: k(x)
for x in red_write(1): k(x)
k.barrier()
for x in red_read(): k(x)
for x in fin1[8:]: k(x)
stamp('end')
if 'amp' in OPT:
    ra,rb=[r for n,r in stamp_regs]
    k(f'''s_memrealtime s[4:5]
s_waitcnt lgkmcnt(0)
s_sub_u32 s{sT0}, s{rb}, s{ra}
s_mul_i32 s{sT0}, s{sT0}, {OPT.get('ampk',2)}
s_min_u32 s{sT0}, s{sT0}, 100000''')
    k.label('Lamp')
    k(f'''s_memrealtime s[6:7]
s_waitcnt lgkmcnt(0)
s_sub_u32 s{sT1}, s6, s4
s_cmp_lt_u32 s{sT1}, s{sT0}
s_cbranch_scc1 Lamp''')
if OPT['stamps']:
    k('s_waitcnt vmcnt(0) lgkmcnt(0)')
    stamp('drained')
    k(f'''s_lshl_b32 s{sT0}, s2, 2
s_add_u32 s{sT0}, s{sT0}, s{sWave}
s_lshl_b32 s{sT0}, s{sT0}, 7
s_add_u32 s{sT0}, s{sT0}, {STAMP}''')
    for j,(nm,r) in enumerate(stamp_regs+[('cnt',sCnt)]):
        k(f'v_mov_b32 v{140+j}, s{r}')
        k(f'buffer_store_dword v{140+j}, off, {S(sWs,4)}, s{sT0} offset:{4*j}')
k('s_endpgm')

hdr=f'''; Fused persistent kernel: LN -> 2-D FFT filter (MFMA DFT stages) -> LN -> GEGLU FFN, 256 workgroups.
; @launch grid=(256,1,1) block=(256,1,1) lds={LDSZ}
.amdgcn_target "amdgcn-amd-amdhsa--gfx950"
.text
.globl {KN}
.p2align 8
.type {KN},@function
'''
ftr=f'''
CODE_END:
.section .rodata,"a"
.p2align 6
.amdhsa_kernel {KN}
  .amdhsa_next_free_vgpr 512
  .amdhsa_next_free_sgpr 102
  .amdhsa_accum_offset 256
  .amdhsa_group_segment_fixed_size 0
  .amdhsa_kernarg_size 80
  .amdhsa_user_sgpr_count 2
  .amdhsa_user_sgpr_kernarg_segment_ptr 1
  .amdhsa_system_sgpr_workgroup_id_x 1
.end_amdhsa_kernel
'''
open(sys.argv[1],'w').write(hdr+k.text()+'\n'+'\n'.join(tail)+ftr)
open(sys.argv[1]+'.stamps','w').write(' '.join(n for n,_ in stamp_regs)+' cnt')
print('instrs',k.count,'nops',k.nops,'vl hi',vl.hi,'sp hi',sp.hi, file=sys.stderr)
```

```python
import sys, struct
from asmlib import *

KN = "sequential_preLN__spectral_gfnet__glu_gated_geglu__prompt_kernel"
OPT = dict(stamps=0, ng=2, kmaj=12, eb=14, pre=1, nobg=0, rot=1, early=1,
           p0=0, pa=0, s1=16, s2=12, pb=8, s3=12, s4=8, pc=8, lead=24)
for a in sys.argv[2:]:
    kk,vv = a.split('='); OPT[kk]=int(vv) if vv.lstrip('-').isdigit() else vv
NB = OPT['ng']
def fb(x): return '0x%08x' % struct.unpack('<I', struct.pack('<f', x))[0]

NONCE=0x80000
X1=0x100000; X1S=8320
X2=0x600000; X2S=8320
X3=0xB00000; X3S=8320
HB=0xE00000
HH=0x1000000
STAMP=0x1800000
WSZ=0x2000000
R0=131072; R1=R0+9216; R2=R1+9216; RH=R2
KS=100; KH=82; TM=0x60006000
LDSZ=163840
SPIN=400000
NSENT=OPT.get('nsent',6)

CG = 0.1029432397**(1/3)
KQ = 2.302208198/CG

k=Asm(); tail=[]
vp=Pool(32,256); vl=Pool(1,32); sp=Pool(52,100)
sX,sWr,sWi,sW1,sWd,sOut,sWs = 24,28,32,36,40,44,48
stamp_regs=[]
stq=[22,100,4,6,8,10,12,14,16,18,20,24,26,28,30,32,34]
def stamp(name):
    st=OPT['stamps']
    on = (st==1 and name[0] not in 'mfpd') or (st==2 and (name[0]=='m' or name in ('G1poll','G1got','G1done','G2done','end'))) \
         or (st==4 and (name[0]=='p' or name in ('start','fkarg','fconst','xload','fAbar','Adone'))) \
         or (st==5 and (name[0]=='d' or name in ('Cdone','G1poll','G1got'))) \
         or (st==3 and (name[0]=='f' or name in ('start','xload','Adone','Bpoll','Bgot','Bdone','Cpoll','Cgot','Cdone','G1poll','G1got')))
    if on or name in OPT.get('amp','').split(','):
        r=stq.pop(0); stamp_regs.append((name,r)); k(f'{"s_memtime" if OPT.get("cyc") else "s_memrealtime"} {S(r,2)}')

k.raw(f'{KN}:')
k('s_cmp_lt_u32 s2, 256')
k('s_cbranch_scc1 Lgo')
k('s_endpgm')
k.label('Lgo')
k('s_load_dwordx16 s[4:19], s[0:1], 0')
k('s_load_dwordx2 s[20:21], s[0:1], 72')
stamp('start')
sWave=sp.get(); sS2=sp.get(); sT0=sp.get(); sT1=sp.get(); sT2=sp.get(); sCnt=sp.get()
sXc=sp.get(); sJ=sp.get(); sPos=sp.get()
vL=vl.get(); vL16=vl.get(); vL4=vl.get()
vLo=vp.get(); vG=vp.get(); t0=vp.get(); t1=vp.get(); t2=vp.get(); t3=vp.get(); vdum=vp.get(4)
if OPT.get('cpre',1):
    pc=sp.get(2); va=vp.get(2)
    k(f'''s_getpc_b64 {S(pc,2)}
v_lshlrev_b32 v{va}, 7, v0
v_min_u32 v{va}, CODE_END-Lgo-64, v{va}
v_mov_b32 v{va+1}, s{pc+1}
v_add_co_u32 v{va}, vcc, s{pc}, v{va}
v_addc_co_u32 v{va+1}, vcc, 0, v{va+1}, vcc
global_load_dword v{vdum}, {V(va,2)}, off''')
    sp.put(pc,2); vp.put(va,2)
k(f'''v_lshrrev_b32 v{t0}, 6, v0
v_and_b32 v{vL}, 63, v0
v_readfirstlane_b32 s{sWave}, v{t0}
v_lshlrev_b32 v{vL4}, 2, v{vL}
v_lshlrev_b32 v{vL16}, 4, v{vL}
v_and_b32 v{vLo}, 15, v0
v_lshrrev_b32 v{vG}, 4, v{vL}
s_and_b32 s{sXc}, s2, 7
s_lshr_b32 s{sJ}, s2, 3
s_lshl_b32 s{sPos}, s{sXc}, 5
s_add_u32 s{sPos}, s{sPos}, s{sJ}
s_mov_b32 s{sCnt}, 0''')
mA=((1<<NB)-1)<<5; mB=((1<<NB)-1)<<(5-NB)
def swapbits(p): return (p&~(mA|mB))|((p&mA)>>NB)|((p&mB)<<NB)
if NB:
    k(f'''s_and_b32 s{sT0}, s{sPos}, {mA}
s_and_b32 s{sT1}, s{sPos}, {mB}
s_andn2_b32 s{sS2}, s{sPos}, {mA|mB}
s_lshr_b32 s{sT0}, s{sT0}, {NB}
s_lshl_b32 s{sT1}, s{sT1}, {NB}
s_or_b32 s{sS2}, s{sS2}, s{sT0}
s_or_b32 s{sS2}, s{sS2}, s{sT1}''')
else:
    k(f's_mov_b32 s{sS2}, s{sPos}')
sXo=sp.get(2)
k(f'''s_lshl_b32 s{sT0}, s{sWave}, 9
s_add_u32 s{sT0}, s{sT0}, s{sS2}
s_lshl_b32 s{sXo}, s{sT0}, 10
s_add_u32 s{sXo+1}, s{sXo}, 262144''')
for s_,sz in ((sX,2097152),(sWr,1052672),(sWi,1052672),(sW1,512*3584),(sWd,1792*1024),(sOut,2097152),(sWs,WSZ)):
    k(f's_mov_b32 s{s_+2}, {sz}\ns_mov_b32 s{s_+3}, 0x20000')

fLo=vp.get(); fG=vp.get(); fP=vp.get()
k(f'''v_cvt_f32_u32 v{fLo}, v{vLo}
v_cvt_f32_u32 v{fG}, v{vG}
v_and_b32 v{t0}, 3, v{vLo}
v_lshrrev_b32 v{t1}, 2, v{vLo}
v_lshl_add_u32 v{t0}, v{t0}, 2, v{t1}
v_cvt_f32_u32 v{fP}, v{t0}''')

def angles(base, step):
    a=vp.get(4)
    k(f'v_add_f32 v{a+1}, v{base}, v{step}\nv_fma_f32 v{a+2}, v{step}, 2.0, v{base}\nv_fma_f32 v{a+3}, v{step}, 2.0, v{a+1}')
    return a
def cs(base, step):
    a=angles(base,step); c=vp.get(4)
    for r in range(4): k(f'v_cos_f32 v{c+r}, v{a+r if r else base}')
    for r in range(4): k(f'v_sin_f32 v{a+r}, v{a+r if r else base}')
    return (c,a)
def mk_matrix(base, step, neg=False):
    c,a=cs(base,step); re=vp.get(4); im=vp.get(4)
    for r in range(4):
        k(f'v_cvt_pk_bf16_f32 v{re+r}, v{c+r}, v{a+r}')
        k(f'v_cvt_pk_bf16_f32 v{im+r}, -v{a+r}, v{c+r}')
    res=[re,im]
    if neg:
        nre=vp.get(4); nim=vp.get(4)
        for r in range(4):
            k(f'v_xor_b32 v{nre+r}, 0x80008000, v{re+r}')
            k(f'v_xor_b32 v{nim+r}, 0x80008000, v{im+r}')
        res+=[nre,nim]
    vp.put(a,4); vp.put(c,4)
    return res

C={}
def c_F16():
    k(f'v_mul_f32 v{t0}, {fb(1/16)}, v{fLo}\nv_mul_f32 v{t1}, 4.0, v{t0}\nv_mul_f32 v{t0}, v{t0}, v{fG}')
    C['F16']=mk_matrix(t0,t1)
def c_G():
    k(f'v_mul_f32 v{t1}, {fb(1/16)}, v{fP}\nv_mul_f32 v{t0}, 4.0, v{fG}\nv_mul_f32 v{t0}, v{t0}, v{t1}')
    C['G16']=mk_matrix(t0,t1)
    k(f'v_fma_f32 v{t0}, v{t1}, 0.5, v{t0}')
    C['G32']=mk_matrix(t0,t1)
def c_TW():
    k(f'v_mul_f32 v{t1}, {fb(1/256)}, v{fLo}\nv_mul_f32 v{t0}, 4.0, v{fG}\nv_mul_f32 v{t0}, v{t0}, v{t1}')
    C['TW0']=cs(t0,t1)
    k(f'v_fma_f32 v{t0}, v{t1}, 0.5, v{t0}')
    C['TWA']=cs(t0,t1)
M3=vp.get(2); fS2=vp.get(); c4=vp.get(4)
def c_M3():
    k(f'''v_cvt_f32_u32 v{fS2}, s{sS2}
v_lshrrev_b32 v{t0}, 1, v{vLo}
v_and_b32 v{t1}, 1, v{vLo}
v_cvt_f32_u32 v{t0}, v{t0}
v_cvt_f32_u32 v{t1}, v{t1}
v_mul_f32 v{fS2}, {fb(1/2048)}, v{fS2}
v_mul_f32 v{t1}, {fb(0.25)}, v{t1}
v_mul_f32 v{t2}, {fb(0.25)}, v{fG}
v_add_f32 v{t2}, v{t2}, v{fS2}
v_fma_f32 v{t1}, v{t2}, v{t0}, v{t1}
v_mul_f32 v{t0}, {fb(0.125)}, v{t0}
v_add_f32 v{t0}, v{t0}, v{t1}
v_cos_f32 v{c4}, v{t1}
v_sin_f32 v{c4+1}, v{t1}
v_sin_f32 v{c4+3}, v{t0}
v_cos_f32 v{c4+2}, v{t0}
v_sub_f32 v{t0}, v{c4}, v{c4+3}
v_add_f32 v{t2}, v{c4}, v{c4+3}
v_add_f32 v{t1}, v{c4+1}, v{c4+2}
v_sub_f32 v{t3}, v{c4+2}, v{c4+1}
v_mul_f32 v{t0}, {fb(2.0**-KS)}, v{t0}
v_mul_f32 v{t1}, {fb(2.0**-KS)}, v{t1}
v_mul_f32 v{t2}, {fb(2.0**-KS)}, v{t2}
v_mul_f32 v{t3}, {fb(2.0**-KS)}, v{t3}
v_cvt_pk_bf16_f32 v{M3}, v{t0}, v{t1}
v_cvt_pk_bf16_f32 v{M3+1}, v{t2}, v{t3}''')
aZw=vp.get(); aP=vp.get(); aN=vp.get(); sX1o=sp.get()
def c_addrA():
    k(f'''s_mul_i32 s{sT0}, s{sWave}, {513*4}
s_add_u32 s{sT0}, s{sT0}, {R0}
v_add_u32 v{aZw}, s{sT0}, v{vL4}
v_mul_u32_u24 v{t0}, {513*4}, v{vG}
v_lshlrev_b32 v{t1}, 4, v{vLo}
s_lshl_b32 s{sT0}, s{sWave}, 8
s_add_u32 s{sT1}, s{sT0}, {R0+4}
s_sub_u32 s{sT0}, {R0+4*(511-3)}, s{sT0}
v_add3_u32 v{aP}, v{t0}, v{t1}, s{sT1}
v_sub_u32 v{t0}, v{t0}, v{t1}
v_add_u32 v{aN}, s{sT0}, v{t0}
s_mul_i32 s{sX1o}, s{sS2}, {X1S}
s_lshl_b32 s{sT1}, s{sWave}, 11
s_add_u32 s{sX1o}, s{sX1o}, s{sT1}
s_add_u32 s{sX1o}, s{sX1o}, {X1}''')
cA=[c_F16,c_TW,c_G,c_M3,c_addrA]
for f in cA[:OPT['early']]: f()

k(f's_mov_b32 s{sX}, s4\ns_mov_b32 s{sX+1}, s5')
stamp('fkarg')
xr=vp.get(8)
for rho in range(2):
    for i in range(4):
        k(f'buffer_load_dword v{xr+4*rho+i}, v{vL4}, {S(sX,4)}, s{sXo+rho} offen offset:{256*i}')
sp.put(sXo,2)
sNon=sp.get(); sTag=sp.get(); vTm=vl.get()
k(f's_load_dword s{sNon}, s[20:21], {NONCE}')
k(f'''s_mov_b64 {S(sWr,2)}, s[6:7]
s_mov_b64 {S(sWi,2)}, s[8:9]
s_mov_b64 {S(sWs,2)}, s[20:21]
s_mov_b64 {S(sWd,2)}, s[16:17]
s_mov_b64 {S(sOut,2)}, s[18:19]
s_cmp_lt_u32 s{sWave}, 2
s_cselect_b64 {S(sW1,2)}, s[12:13], s[14:15]''')

sPar=sp.get(); sF0=sp.get(); sRtA=sp.get(); sRtB=sp.get(); sHo=sp.get(7,1); sX2o=sp.get(); sX3o=sp.get()
def hh_off(u):
    jj=u if u<4 else u-4
    k(f'''s_add_u32 s{sT0}, s{sPar}, {jj}
s_and_b32 s{sT0}, s{sT0}, 3
s_add_u32 s{sT0}, s{sT0}, s{sF0}
s_mul_i32 s{sT1}, s{sRtA if u<4 else sRtB}, 112
s_add_u32 s{sT0}, s{sT0}, s{sT1}
s_lshl_b32 s{sT0}, s{sT0}, 10
s_add_u32 s{sHo+u}, s{sT0}, {HH}''')
vSent=vp.get(4); H_={}; sK4112=sp.get(); k(f's_mov_b32 s{sK4112}, 4112'); aF=vp.get(); sFw=sp.get(2,1)
def m_pre():
    if not OPT['pre']: return
    P=sp.get(4,4)
    k(f'''s_cmp_eq_u32 s{sWave}, 1
s_cselect_b64 {S(P,2)}, {S(sWd,2)}, {S(sW1,2)}
s_cmp_eq_u32 s{sWave}, 3
s_cselect_b32 s{P+2}, 0, {512*3584}
s_mov_b32 s{P+3}, 0x20000
v_min_u32 v{t0}, 55, v{vL}
v_lshlrev_b32 v{t0}, 7, v{t0}
s_mul_i32 s{sT0}, s2, {56*128}
buffer_load_dword v{vdum+1}, v{t0}, {S(P,4)}, s{sT0} offen''')
    if OPT['pre']==2: k(f'buffer_load_dword v{vdum+3}, v{t0}, {S(P,4)}, s{sT0} offen offset:64')
    sp.put(P,4)
def m_fpre():
    P=sp.get(4,4)
    k(f'''s_cmp_lt_u32 s{sWave}, 2
s_cselect_b64 {S(P,2)}, {S(sWr,2)}, {S(sWi,2)}
s_mov_b32 s{P+2}, 1052672
s_mov_b32 s{P+3}, 0x20000
v_min_u32 v{t0}, 8, v{vLo}
v_lshlrev_b32 v{t0}, 6, v{t0}
v_mad_u32_u24 v{t0}, v{vG}, s{sK4112}, v{t0}
s_lshl_b32 s{sT0}, s{sJ}, 1
s_and_b32 s{sT1}, s{sWave}, 1
s_add_u32 s{sT0}, s{sT0}, s{sT1}
s_lshl_b32 s{sT0}, s{sT0}, 5
s_add_u32 s{sT0}, s{sT0}, s{sXc}
s_mul_i32 s{sT0}, s{sT0}, 514
buffer_load_ushort v{vdum+2}, v{t0}, {S(P,4)}, s{sT0} offen''')
    sp.put(P,4)
def m_filtaddr():
    k(f'''v_mul_u32_u24 v{aF}, 4112, v0
s_mul_i32 s{sT0}, s{sXc}, 514
s_lshl_b32 s{sT1}, s{sJ}, 4
s_add_u32 s{sT0}, s{sT0}, s{sT1}
s_add_u32 s{sFw}, s{sT0}, 2
s_lshl_b32 s{sFw+1}, s{sWave}, 10''')
def m_filt(m):
    k(f's_add_u32 m0, s{sFw+1}, {R2+4096*m}'); dst['setup']=None
    H_['W']=k(f'buffer_load_dwordx4 v{aF}, {S((sWr,sWi)[m],4)}, s{sFw} offen lds')
def m_roles():
    k(f'''s_and_b32 s{sPar}, s{sS2}, 1
s_bfe_u32 s{sT0}, s{sS2}, 0x40001
s_mul_i32 s{sF0}, s{sT0}, 7
s_mul_i32 s{sT0}, s{sPar}, 3
s_add_u32 s{sF0}, s{sF0}, s{sT0}
s_lshr_b32 s{sT0}, s{sS2}, 5
s_lshl_b32 s{sT0}, s{sT0}, 3
s_lshl_b32 s{sT1}, s{sWave}, 1
s_add_u32 s{sT0}, s{sT0}, s{sT1}
s_add_u32 s{sRtA}, s{sT0}, s{sPar}
s_xor_b32 s{sRtB}, s{sRtA}, 1''')
def m_sentaddr():
    for i in range(4): k(f'v_mov_b32 v{vSent+i}, -1')
    k(f'''s_mul_i32 s{sX2o}, s2, {X2S}
s_lshl_b32 s{sT1}, s{sWave}, 11
s_add_u32 s{sX2o}, s{sX2o}, s{sT1}
s_add_u32 s{sX2o}, s{sX2o}, {X2}
s_mul_i32 s{sX3o}, s{sS2}, {X3S}
s_lshl_b32 s{sT1}, s{sWave}, 11
s_add_u32 s{sX3o}, s{sX3o}, s{sT1}
s_add_u32 s{sX3o}, s{sX3o}, {X3}''')
def m_sent3():
    for i in range(2): H_['S3']=k(f'buffer_store_dwordx4 {V(vSent,4)}, v{vL16}, {S(sWs,4)}, s{sX3o} offen offset:{1024*i} sc1')

vWdS=vl.get(4,1); vB1S=vp.get(4,1); vWdR=vl.get(2,1)
sLq=sp.get(); sB0=sp.get(); sB1=sp.get(); sRb=sp.get(); sCb=sp.get()
def m_wdaddr():
    g=OPT.get('g2',0)
    k(f'''s_lshr_b32 s{sT0}, s{sXc}, {g}
s_lshl_b32 s{sT0}, s{sT0}, {2+g}
s_lshr_b32 s{sT1}, s{sJ}, {3-g}
s_add_u32 s{sRb}, s{sT0}, s{sT1}
s_and_b32 s{sT0}, s{sXc}, {(1<<g)-1}
s_lshl_b32 s{sT0}, s{sT0}, {3-g}
s_and_b32 s{sT1}, s{sJ}, {(8>>g)-1}
s_add_u32 s{sCb}, s{sT0}, s{sT1}''')
    k(f'''v_lshrrev_b32 v{t0}, 3, v{vL}
v_and_b32 v{t1}, 7, v{vL}
v_and_b32 v{t2}, 1, v{vG}
v_lshlrev_b32 v{t3}, 2, v{t2}
v_xor_b32 v{t3}, v{t3}, v{t1}
v_lshlrev_b32 v{t3}, 4, v{t3}
v_lshl_add_u32 v{vWdS}, v{t0}, 10, v{t3}
s_lshl_b32 s{sT0}, s{sCb}, 7
s_mul_i32 s{sT1}, s{sWave}, {448*1024}
s_add_u32 s{sT0}, s{sT0}, s{sT1}
v_add_u32 v{vWdS}, s{sT0}, v{vWdS}
s_lshl_b32 s{sLq}, s{sWave}, 15''')
    for i in range(1,4): k(f'v_add_u32 v{vWdS+i}, {((i>>1)*112+(i&1)*8-i)*1024}, v{vWdS}')
def m_wdraddr():
    k(f'''v_lshrrev_b32 v{t0}, 5, v{vL}
v_bfe_u32 v{t1}, v{vL}, 2, 2
v_lshl_add_u32 v{t0}, v{t0}, 2, v{t1}
v_lshlrev_b32 v{t0}, 7, v{t0}
v_and_b32 v{t2}, 1, v{vG}
v_lshl_add_u32 v{t0}, v{t2}, 5, v{t0}
v_and_b32 v{t2}, 3, v{vL}
v_lshl_add_u32 v{t0}, v{t2}, 3, v{t0}
v_lshrrev_b32 v{t1}, 1, v{t1}
v_lshlrev_b32 v{t1}, 6, v{t1}
v_add3_u32 v{vWdR}, v{t0}, v{t1}, s{sLq}
v_xor_b32 v{vWdR+1}, 64, v{vWdR}''')
def m_b1addr():
    k(f'''v_bfe_u32 v{t1}, v{vL}, 3, 1
v_lshl_add_u32 v{t1}, v{vG}, 7, v{t1}
v_mul_u32_u24 v{t1}, 3584, v{t1}
v_and_b32 v{t0}, 1, v{vG}
s_and_b32 s{sT0}, s{sWave}, 2
v_or_b32 v{t0}, s{sT0}, v{t0}
v_lshlrev_b32 v{t0}, 1, v{t0}
v_and_b32 v{t2}, 7, v{vL}
v_xor_b32 v{t0}, v{t0}, v{t2}
v_lshl_add_u32 v{vB1S}, v{t0}, 4, v{t1}
s_and_b32 s{sT0}, s{sWave}, 1
s_mul_i32 s{sT1}, s{sT0}, {32*7168}
s_lshl_b32 s{sT0}, s{sF0}, 5
s_add_u32 s{sT0}, s{sT0}, s{sT1}
v_add_u32 v{vB1S}, s{sT0}, v{vB1S}''')
    for i in range(1,4): k(f'v_add_u32 v{vB1S+i}, {i*(7168-1024)}, v{vB1S}')
PH=[0,1,2,4,5,6,3]
dma_seq=[]; nb1=0; NFRONT=0
for tok in OPT.get('seq','w3_b12_w3_w2_b20').split('_'):
    if tok[0]=='w': dma_seq+=[('w',NFRONT,i,int(tok[1])) for i in range(8)]; NFRONT+=1
    else: dma_seq+=[('b',m,0,m//8) for m in range(nb1,nb1+int(tok[1:]))]; nb1+=int(tok[1:])
assert nb1==32
dst={'n':0,'tr':0,'setup':None}; dh={}; trh={}; occ={}; grp={}
def wd_dma(b,i,ldsbase):
    o=[]
    if dst['setup']!=('w',b,i>>2):
        o+=[f's_add_u32 m0, s{sLq}, {ldsbase+(i>>2)*4096}', f's_mov_b32 s{sB0}, {(PH[b]*16+(i>>2)*224)*1024}']
        dst['setup']=('w',b,i>>2)
    return o+[f'buffer_load_dwordx4 v{vWdS+(i&3)}, {S(sWd,4)}, s{sB0} offen offset:{(i&3)*1024} lds']
def wd_tr(b,i,ldsbase):
    tau=7*(i>>1)+PH[b]
    return [f'ds_read_b64_tr_b16 {A((tau*2+ct)*4+2*(i&1),2)}, v{vWdR+ct} offset:{ldsbase+i*1024}' for ct in range(2)]
def tr_batch(b):
    k.wait_vm(dh[b])
    for i in range(8):
        for x in wd_tr(b,i,grp[b]*8192): trh[b]=k(x)
    dst['tr']=b+1
def tr_ready(force=0):
    live={e[0] for e in k.vm}
    while dst['tr'] in dh and (force or dh[dst['tr']] not in live): tr_batch(dst['tr'])
def dma(cnt):
    ty=None
    for _ in range(cnt):
        q=dst['n']
        if q>=len(dma_seq): return ty
        ty,n,i,g=dma_seq[q]
        if g in occ and not (ty=='w' and occ[g]==n):
            b=occ.pop(g)
            while dst['tr']<=b: tr_batch(dst['tr'])
            k.wait_lg(trh[b])
        if ty=='w':
            occ[g]=n; grp[n]=g
            for x in wd_dma(n,i,g*8192): h=k(x)
            if i==7: dh[n]=h
        else:
            if dst['setup']!=('b',n>>2):
                k(f's_add_u32 m0, s{sLq}, {(n>>2)*4096}\ns_mov_b32 s{sB0}, {(n>>2)*4*7168}'); dst['setup']=('b',n>>2)
            h=k(f'buffer_load_dwordx4 v{vB1S+(n&3)}, {S(sW1,4)}, s{sB0} offen offset:{(n&3)*1024} lds')
        dst['last']=h
        dst['n']+=1
    return ty
class Sprinkle:
    def __init__(s,cnt,fin=False,first=0): s.cnt=cnt; s.fin=fin; s.gap=first
    def __enter__(s):
        s.old=k.emit; s.c0=k.cyc; s.busy=False
        def emit(text):
            h=s.old(text)
            if not s.busy and s.cnt>0 and text.startswith(('v_','ds_')) and not text.startswith(('v_cmp','v_readlane')) and k.cyc-s.c0>=s.gap:
                s.busy=True; s.c0=k.cyc; ty=dma(1); s.busy=False; s.cnt-=1
                s.gap=OPT.get('gw',80) if ty=='w' else OPT.get('gb',150)
            return h
        k.emit=emit
    def __exit__(s,*a):
        k.emit=s.old
        if s.fin: dma(s.cnt)
        print('window end: dma',dst['n'],'left',s.cnt,file=sys.stderr)

stamp('px')
m_fpre()
if OPT['pre']!=3: m_pre()
stamp('ppre')
for f in cA[OPT['early']:]: f()
m_filtaddr(); m_wdaddr()
if OPT['p0'] or OPT['pa']: m_roles(); m_b1addr()
k(f'''s_bfe_u32 s{sT0}, s{sNon}, 0x2000d
s_bfe_u32 s{sT1}, s{sNon}, 0x2001d
s_lshl_b32 s{sT0}, 1, s{sT0}
s_lshl_b32 s{sT1}, 1, s{sT1}
s_or_b32 s{sT0}, s{sT0}, s{sT1}
s_ff0_i32_b32 s{sNon}, s{sT0}
s_mul_i32 s{sTag}, s{sNon}, 0x20002000
v_mov_b32 v{vTm}, {TM}''')
dma(OPT['p0'])
stamp('fconst')
F16,G16,G32,TW0,TWA=C['F16'],C['G16'],C['G32'],C['TW0'],C['TWA']

def pk(op, d, *src, mods=''):
    k(f'{op} {V(d,2)}, '+', '.join(V(x,2) if isinstance(x,int) else x for x in src)+(' '+mods if mods else ''))
sSt=sp.get(4,2)
def stats(xf, scale):
    a=vp.get(8)
    for rho in range(2):
        pk('v_pk_add_f32', a+4*rho, xf+8*rho, xf+8*rho+2)
        pk('v_pk_mul_f32', a+4*rho+2, xf+8*rho, xf+8*rho)
    for j in (2,4,6):
        for rho in range(2):
            if j>2: pk('v_pk_add_f32', a+4*rho, a+4*rho, xf+8*rho+j)
            pk('v_pk_fma_f32', a+4*rho+2, xf+8*rho+j, xf+8*rho+j, a+4*rho+2)
    for j in (0,4,2,6): k(f'v_add_f32 v{a+j}, v{a+j}, v{a+j+1}')
    k(f'v_permlane32_swap_b32 v{a}, v{a+4}')
    k(f'v_permlane32_swap_b32 v{a+2}, v{a+6}')
    k(f'v_add_f32 v{a}, v{a}, v{a+4}')
    k(f'v_add_f32 v{a+2}, v{a+2}, v{a+6}')
    for m in ('row_ror:8 row_mask:0xf','row_ror:4 row_mask:0xf','row_ror:2 row_mask:0xf','row_ror:1 row_mask:0xf','row_bcast:15 row_mask:0xa'):
        for j in (0,2): k(f'v_add_f32_dpp v{a+j}, v{a+j}, v{a+j} {m} bank_mask:0xf')
    k(f'''v_mul_f32 v{a}, {fb(1/512)}, v{a}
v_mul_f32 v{a+2}, {fb(1/512)}, v{a+2}
v_fma_f32 v{a+2}, -v{a}, v{a}, v{a+2}
v_max_f32 v{a+2}, 0, v{a+2}
v_add_f32 v{a+2}, {fb(1e-5)}, v{a+2}
v_rsq_f32 v{a+2}, v{a+2}''')
    if scale!=1: k(f'v_mul_f32 v{a+2}, {fb(scale)}, v{a+2}')
    k(f'''v_mul_f32 v{a}, -v{a}, v{a+2}
v_readlane_b32 s{sSt}, v{a+2}, 31
v_readlane_b32 s{sSt+1}, v{a}, 31
v_readlane_b32 s{sSt+2}, v{a+2}, 63
v_readlane_b32 s{sSt+3}, v{a}, 63''')
    vp.put(a,8)
def normalize(xf):
    n=vp.get(16)
    for rho in range(2):
        for j in range(0,8,2):
            pk('v_pk_fma_f32', n+8*rho+j, xf+8*rho+j, S(sSt+2*rho,2), S(sSt+2*rho,2), mods='op_sel:[0,0,1] op_sel_hi:[1,0,1]')
    return n
def mf32(d,a,b,c='0'): k(f'v_mfma_f32_16x16x32_bf16 {V(d,4)}, {V(a,4)}, {V(b,4)}, {c if c=="0" else V(c,4)}')
def mf16(d,a,b): k(f'v_mfma_f32_16x16x16_bf16 {V(d,4)}, {V(a,2)}, {V(b,2)}, 0')
def cmul_pack(dre,dim,tw,out,conj=True,swap=False):
    c,s_=tw; t=vp.get(8)
    for j in (0,2): pk('v_pk_mul_f32', t+j, dre+j, c+j)
    ng='neg_lo:[1,0] neg_hi:[1,0]'; ng3='neg_lo:[1,0,0] neg_hi:[1,0,0]'
    for j in (0,2): pk('v_pk_mul_f32', t+4+j, dre+j, s_+j, mods=ng if conj else '')
    for j in (0,2):
        pk('v_pk_fma_f32', t+j, dim+j, s_+j, t+j, mods='' if conj else ng3)
        pk('v_pk_fma_f32', t+4+j, dim+j, c+j, t+4+j)
    for r in range(4):
        a,b=(t+4+r,t+r) if swap else (t+r,t+4+r)
        k(f'v_cvt_pk_bf16_f32 v{out+r}, v{a}, v{b}')
    vp.put(t,8)

xf=vp.get(16,4)
op=vp.get(8); D=vp.get(16); D2=vp.get(16)
with Sprinkle(OPT['pa']):
    for rho in range(2):
        for i in range(4):
            k(f'v_lshlrev_b32 v{xf+8*rho+i}, 16, v{xr+4*rho+i}')
            k(f'v_and_b32 v{xf+8*rho+4+i}, 0xffff0000, v{xr+4*rho+i}')
    stamp('xload')
    if OPT['pre']==3: m_filt(0); m_pre()
    if OPT.get('fpos',0)>=1 and OPT['pre']!=3: m_filt(0)
    if OPT.get('fpos',0)>=2: m_filt(1)
    stats(xf,1)
    n=normalize(xf)
    for e in range(2):
        for i in range(4): k(f'v_cvt_pk_bf16_f32 v{op+4*e+i}, v{n+4*e+i}, v{n+8+4*e+i}')
    for e in range(2):
        mf32(D+8*e, op+4*e, F16[0]); mf32(D+8*e+4, op+4*e, F16[1])
    vp.put(n,16)
    for e in range(2):
        cmul_pack(D+8*e, D+8*e+4, (TW0,TWA)[e], op+4*e)
        Gm=(G16,G32)[e]
        mf32(D2+8*e, Gm[0], op+4*e); mf32(D2+8*e+4, Gm[1], op+4*e)
    for t in range(2):
        for j in (0,2,4,6): pk('v_pk_add_f32', D+8*t+j, D2+j, D2+8+j, mods='neg_lo:[0,1] neg_hi:[0,1]' if t else '')
        for r in range(4): k(f'v_cvt_pk_bf16_f32 v{op+4*t+r}, v{D+8*t+r}, v{D+8*t+4+r}')
        for nn in (2*t,2*t+1):
            k(f'ds_write2st64_b32 v{aZw}, v{op+2*nn}, v{op+2*nn+1} offset0:{2*nn} offset1:{2*nn+1}')
vp.put(xr,8)
stamp('pA')
k.barrier()
stamp('fAbar')
for e in range(4):
    k(f'ds_read_b32 v{op+2*e}, v{aP} offset:{4*e}')
    k(f'ds_read_b32 v{op+2*e+1}, v{aN} offset:{4*(3-e)}')
for e in range(4): mf16(D+4*e, M3, op+2*e)
def settag(r): k(f'v_bfi_b32 v{r}, v{vTm}, s{sTag}, v{r}')
for b0 in range(2):
    o=D2+4*b0
    for e in range(4): k(f'v_cvt_pk_bf16_f32 v{o+e}, v{D+4*e+2*b0}, v{D+4*e+2*b0+1}')
    for e in range(4): settag(o+e)
    hA=k(f'buffer_store_dwordx4 {V(o,4)}, v{vL16}, {S(sWs,4)}, s{sX1o} offen offset:{b0*1024} sc1')
stamp('Adone')
for r_,n_ in ((G32[0],4),(G32[1],4),(TWA[0],4),(TWA[1],4),(M3,2),(aZw,1),(aP,1),(aN,1)): vp.put(r_,n_)
sp.put(sX1o)

Wf=vp.get(16); wraw=vp.get(8)
aBin=vp.get(); aBw=vp.get(); aBr=vp.get(); sBo=sp.get(2,1); aOw=vp.get(4); aOr=vp.get()
if OPT.get('fpos',0)<1: m_filt(0)
if OPT.get('fpos',0)<2: m_filt(1)
with Sprinkle(OPT['s1'],True,9999):
    k(f's_lshl_b32 s{sT0}, s{sWave}, 2\ns_add_u32 s{sT0}, s{sT0}, {R2}\nv_add_u32 v{aF}, s{sT0}, v{vL16}')
    if not (OPT['p0'] or OPT['pa']): m_roles(); m_b1addr()
    m_sentaddr()
    if OPT.get('spos',3)==1: m_sent3()
    k(f'''v_lshrrev_b32 v{t1}, 1, v{vL}
v_and_b32 v{t2}, 1, v{vL}
v_mul_u32_u24 v{aBin}, {X1S}, v{t1}
v_lshl_add_u32 v{aBin}, v{t2}, 4, v{aBin}
v_mul_u32_u24 v{aBw}, 4160, v{t2}
v_lshl_add_u32 v{aBw}, v{t1}, 3, v{aBw}
s_lshl_b32 s{sT0}, s{sWave}, 8
s_add_u32 s{sT0}, s{sT0}, {R1}
v_add_u32 v{aBw}, s{sT0}, v{aBw}
s_lshl_b32 s{sT0}, s{sWave}, 11
s_lshr_b32 s{sT1}, s{sWave}, 1
s_lshl_b32 s{sT1}, s{sT1}, 6
s_add_u32 s{sT0}, s{sT0}, s{sT1}
s_add_u32 s{sT0}, s{sT0}, {R1}
v_lshl_add_u32 v{aBr}, v{vL}, 3, s{sT0}
s_lshr_b32 s{sT0}, s{sJ}, 3
s_lshl_b32 s{sT0}, s{sT0}, 11
s_and_b32 s{sT1}, s{sXc}, 1
s_lshl_b32 s{sT1}, s{sT1}, 10
s_add_u32 s{sT0}, s{sT0}, s{sT1}
s_lshr_b32 s{sT1}, s{sXc}, 1
s_lshl_b32 s{sT1}, s{sT1}, 8
s_add_u32 s{sT0}, s{sT0}, s{sT1}
s_and_b32 s{sT1}, s{sJ}, 7
s_lshl_b32 s{sT1}, s{sT1}, 5
s_add_u32 s{sT0}, s{sT0}, s{sT1}
s_and_b32 s{sT1}, s{sWave}, 1
s_lshr_b32 s{sT2}, s{sWave}, 1
s_lshl_b32 s{sT2}, s{sT2}, 2
s_add_u32 s{sT1}, s{sT1}, s{sT2}
s_mul_i32 s{sT1}, s{sT1}, {32*X1S}
s_add_u32 s{sT0}, s{sT0}, s{sT1}''')
    for i in range(2): k(f's_add_u32 s{sBo+i}, s{sT0}, {X1+64*i*X1S}')
    if NB:
        k(f'''v_and_b32 v{t1}, {mA}, v{vL}
v_and_b32 v{t2}, {mB}, v{vL}
v_and_b32 v{t0}, {255&~(mA|mB)}, v{vL}
v_lshrrev_b32 v{t1}, {NB}, v{t1}
v_lshlrev_b32 v{t2}, {NB}, v{t2}
v_or3_b32 v{t0}, v{t0}, v{t1}, v{t2}''')
    else: k(f'v_mov_b32 v{t0}, v{vL}')
    k(f'''s_lshl_b32 s{sT0}, s{sWave}, 3
s_add_u32 s{sT0}, s{sT0}, {R0}
v_and_b32 v{t1}, 4, v{t0}
v_lshlrev_b32 v{t1}, 2, v{t1}
v_lshl_add_u32 v{t0}, v{t0}, 5, s{sT0}
v_xor_b32 v{aOw}, v{t0}, v{t1}''')
    for r in range(1,4):
        p=swapbits(64*r); k(f'v_xor_b32 v{aOw+r}, {(p<<5)^((p&4)<<2)}, v{aOw}')
    k(f'''v_bfe_u32 v{t0}, v{vL}, 3, 1
v_xor_b32 v{t0}, v{t0}, v{vL}
s_lshl_b32 s{sT0}, s{sWave}, 11
s_add_u32 s{sT0}, s{sT0}, {R0}
v_lshl_add_u32 v{aOr}, v{t0}, 4, s{sT0}''')
    m_wdraddr()
stamp('fS1')
k.wait_vm(hA)
if OPT.get('dB'): k(f"s_sleep {OPT['dB']}")

def retry_block(name, loads, check):
    kk=Asm()
    kk.label(f'R_{name}')
    kk('s_nop 3')
    for l in loads: kk(l)
    kk('s_waitcnt vmcnt(0)')
    for c in check: kk(c)
    kk(f's_add_u32 s{sCnt}, s{sCnt}, 1')
    kk(f's_cmp_gt_u32 s{sCnt}, {SPIN}')
    kk(f's_cbranch_scc1 C_{name}')
    kk(f's_cbranch_vccnz R_{name}')
    kk(f's_branch C_{name}')
    tail.append(kk.text())
def checked(name, loads, check):
    for c in check: k(c)
    k(f's_cbranch_vccnz R_{name}')
    k.label(f'C_{name}')
    retry_block(name, loads, check)

ld=vp.get(16); ck=vp.get(2)
loads=[f'buffer_load_dwordx4 {V(ld+4*i,4)}, v{aBin}, {S(sWs,4)}, s{sBo+i} offen sc1' for i in range(2)]
stamp('Bpoll')
for l in loads: k(l)
if OPT.get('spos',3)==2: m_sent3()
tr_ready(); dma(OPT['s2'])
chk=[]
for nn in range(2):
    chk+=[f'v_xor_b32 v{op+2*e+nn}, s{sTag}, v{ld+4*nn+e}' for e in range(4)]
    if nn==0: chk+=[f'v_or3_b32 v{ck}, v{op}, v{op+2}, v{op+4}']
chk+=[f'v_or3_b32 v{ck+1}, v{op+6}, v{op+1}, v{op+3}', f'v_or3_b32 v{ck}, v{ck}, v{op+5}, v{op+7}',
      f'v_bitop3_b32 v{ck}, v{ck}, v{ck+1}, v{vTm} bitop3:0xa8', f'v_cmp_ne_u32 vcc, 0, v{ck}']
checked('B', loads, chk)
stamp('Bgot')
if OPT.get('spos',3)==3: m_sent3()
spB=Sprinkle(OPT['pb'],False,OPT.get('pbf',0)); spB.__enter__()
for e in range(4): k(f'ds_write_b64 v{aBw}, {V(op+2*e,2)} offset:{1024*e}')
k.wait_vm(H_['W'])
k.barrier()
for e in range(2):
    for ih in range(2): k(f'ds_read_b64 {V(op+4*e+2*ih,2)}, v{aBr} offset:{1024*e+512*ih}')
for m in range(2):
    for r in range(4): k(f'ds_read_b32 v{wraw+4*m+r}, v{aF} offset:{4096*m+1024*r}')
for e in range(2):
    mf32(D+8*e, op+4*e, F16[0]); mf32(D+8*e+4, op+4*e, F16[1])
for r in range(4): k(f'v_lshlrev_b32 v{Wf+r}, 16, v{wraw+r}')
if 1:
    for e in range(2):
        cmul_pack(D+8*e, D+8*e+4, TW0, op+4*e)
        for r in (0,1): k(f'v_lshlrev_b32 v{Wf+4+2*e+r}, 16, v{wraw+4+2*e+r}')
        mf32(D2+8*e, G16[0], op+4*e); mf32(D2+8*e+4, G16[1], op+4*e)
    for e in range(2):
        cmul_pack(D2+8*e, D2+8*e+4, (Wf+8*e, Wf+8*e+4), op+4*e, conj=False, swap=True)
        if e==0:
            for r in range(8): k(f'v_and_b32 v{Wf+8+r}, 0xffff0000, v{wraw+r}')
        mf32(D+8*e, op+4*e, F16[0]); mf32(D+8*e+4, op+4*e, F16[1])
    for e in range(2):
        cmul_pack(D+8*e, D+8*e+4, TW0, op+4*e)
        mf32(D2+8*e, G16[0], op+4*e); mf32(D2+8*e+4, G16[1], op+4*e)
spB.__exit__()
for r in range(4): k(f'v_cvt_pk_bf16_f32 v{ld+2*r}, v{D2+4+r}, v{D2+r}')
for r in range(4): settag(ld+2*r)
for r in range(4):
    k(f'v_cvt_pk_bf16_f32 v{ld+2*r+1}, v{D2+12+r}, v{D2+8+r}')
    settag(ld+2*r+1)
    k(f'ds_write_b64 v{aOw+r}, {V(ld+2*r,2)}')
k.wait_vm(H_['S3'])
k.barrier()
for i in range(2): k(f'ds_read_b128 {V(ld+8+4*i,4)}, v{aOr} offset:{1024*i}')
for i in range(2): hB=k(f'buffer_store_dwordx4 {V(ld+8+4*i,4)}, v{vL16}, {S(sWs,4)}, s{sX2o} offen offset:{1024*i} sc1')
stamp('Bdone')
for r_,n_ in ((Wf,16),(aBin,1),(aBw,1),(aBr,1),(aOw,4),(aOr,1),(vSent,4),(wraw,8),(aF,1)): vp.put(r_,n_)
sp.put(sBo,2); sp.put(sX2o); sp.put(sFw,2); sp.put(sK4112)
k(f'''s_or_b32 s{sT0}, s2, s{sWave}
s_cmp_lg_u32 s{sT0}, 0
s_cbranch_scc1 Lnon
v_mov_b32 v{t1}, s{sTag}
s_mov_b32 s{sT0}, {NONCE}''')
k.raw(f'    buffer_store_dword v{t1}, off, {S(sWs,4)}, s{sT0} sc1')
k.label('Lnon')

tr_ready()
M3i=vp.get(2); u0=vp.get(4)
nyq=vp.get(2); aCin=vp.get(); aCp=vp.get(); aCn=vp.get(); aCr=vp.get(2); sCo=sp.get(2,1)
aLw=vp.get(2); aLr=vp.get(); aHw=vp.get(); aHr=vp.get(); sHb=sp.get()
CB=R1+16; CS=2064; SC=2.0**(KS-21)
with Sprinkle(OPT['s3'],True):
    k(f'''v_lshrrev_b32 v{t0}, 2, v{vLo}
v_cvt_f32_u32 v{t0}, v{t0}
v_mul_f32 v{u0}, {fb(0.25)}, v{t0}
v_add_f32 v{u0}, v{u0}, v{fS2}
v_bfe_u32 v{t0}, v{vLo}, 1, 1
v_and_b32 v{t1}, 1, v{vLo}
v_cvt_f32_u32 v{t0}, v{t0}
v_cvt_f32_u32 v{t1}, v{t1}
v_fma_f32 v{t0}, v{t0}, 2.0, -1.0
v_mul_f32 v{t0}, {fb(0.25)}, v{t0}
v_mul_f32 v{u0+1}, v{t0}, v{t1}''')
    for nn in range(2):
        k(f'''v_fma_f32 v{t1}, v{fG}, 2.0, {"1.0" if nn else "0"}
v_fma_f32 v{t2}, v{u0}, v{t1}, v{u0+1}
v_mul_f32 v{t1}, {fb(0.125)}, v{t1}
v_sub_f32 v{t1}, v{t1}, v{t0}
v_add_f32 v{t1}, v{t1}, v{t2}
v_cos_f32 v{c4}, v{t2}
v_sin_f32 v{c4+1}, v{t2}
v_cos_f32 v{c4+2}, v{t1}
v_sin_f32 v{c4+3}, v{t1}
v_add_f32 v{t1}, v{c4}, v{c4+2}
v_add_f32 v{t2}, v{c4+1}, v{c4+3}
v_mul_f32 v{t1}, {fb(SC)}, v{t1}
v_mul_f32 v{t2}, {fb(-SC)}, v{t2}
v_cvt_pk_bf16_f32 v{M3i+nn}, v{t1}, v{t2}''')
    k(f'''v_and_b32 v{t0}, 0xcf, v0
v_mov_b32 v{t1}, 0.5
v_cmp_eq_u32 vcc, 0xcf, v{t0}
v_lshrrev_b32 v{t0}, 1, v{vLo}
v_lshlrev_b32 v{t0}, 2, v{t0}
v_cndmask_b32 v{nyq}, 1.0, v{t1}, vcc
v_cndmask_b32 v{nyq+1}, 0, v{t1}, vcc
v_add_u32 v{t0}, v{t0}, v{vG}
v_mul_u32_u24 v{t0}, {2*X2S}, v{t0}
v_and_b32 v{t1}, 1, v{vLo}
v_lshl_add_u32 v{aCin}, v{t1}, 4, v{t0}
s_mul_i32 s{sT0}, s{sWave}, {64*X2S}
s_lshl_b32 s{sT1}, s{sPos}, 5
s_add_u32 s{sT0}, s{sT0}, s{sT1}
s_add_u32 s{sCo}, s{sT0}, {X2}
s_add_u32 s{sCo+1}, s{sT0}, {X2+X2S}
v_mul_u32_u24 v{t0}, {CS}, v{vG}
v_lshlrev_b32 v{t1}, 4, v{vLo}
s_lshl_b32 s{sT0}, s{sWave}, 8
s_add_u32 s{sT1}, s{sT0}, {CB}
s_sub_u32 s{sT0}, {CB+1024+4*252}, s{sT0}
v_add3_u32 v{aCp}, v{t0}, v{t1}, s{sT1}
v_sub_u32 v{t0}, v{t0}, v{t1}
v_add_u32 v{aCn}, s{sT0}, v{t0}
s_mul_i32 s{sT0}, s{sWave}, {CS}
s_add_u32 s{sT0}, s{sT0}, {CB-4}
v_add_u32 v{aCr}, s{sT0}, v{vL4}
v_add_u32 v{aCr+1}, {1028}, v{aCr}
v_mov_b32 v{t0}, s{sT0}
v_mov_b32 v{t1}, 0
ds_write_b32 v{t0}, v{t1}''')
    k(f'''v_fma_f32 v{t3}, v{fLo}, 2.0, 1.0
v_mul_f32 v{t0}, {fb(1/32)}, v{t3}
v_mul_f32 v{t1}, 4.0, v{t0}
v_mul_f32 v{t0}, v{t0}, v{fG}''')
    H=mk_matrix(t0,t1,neg=True)
stamp('fS3')
k.wait_vm(hB)
if OPT.get('dC'): k(f"s_sleep {OPT['dC']}")

loads=[f'buffer_load_dwordx4 {V(ld+4*i,4)}, v{aCin}, {S(sWs,4)}, s{sCo+i} offen sc1' for i in range(2)]
stamp('Cpoll')
for l in loads: k(l)
with Sprinkle(OPT['s4'],True,9999):
    k(f'v_mul_f32 v{t1}, {fb(1/512)}, v{t3}\nv_mul_f32 v{t0}, 4.0, v{fG}\nv_mul_f32 v{t0}, v{t0}, v{t1}')
    TWC=cs(t0,t1)
    k(f'''v_and_b32 v{t0}, 7, v{vL}
s_lshl_b32 s{sT0}, s{sWave}, 1
v_xor_b32 v{t0}, s{sT0}, v{t0}
v_lshlrev_b32 v{t0}, 4, v{t0}
v_lshl_add_u32 v{t0}, v{vL}, 7, v{t0}
v_add_u32 v{aLw}, {R0}, v{t0}
v_xor_b32 v{aLw+1}, 16, v{aLw}
v_lshrrev_b32 v{t0}, 3, v{vL}
v_xor_b32 v{t0}, v{t0}, v{vL}
s_lshl_b32 s{sT0}, s{sWave}, 11
s_add_u32 s{sT1}, s{sT0}, {R0}
v_lshl_add_u32 v{aLr}, v{t0}, 4, s{sT1}
s_add_u32 s{sT1}, s{sT0}, {RH}
v_add_u32 v{aHw}, s{sT1}, v{vL4}
v_add_u32 v{aHr}, s{sT1}, v{vL16}
s_lshl_b32 s{sHb}, s{sS2}, 13
s_add_u32 s{sHb}, s{sHb}, s{sT0}
s_add_u32 s{sHb}, s{sHb}, {HB}''')
tr_ready(OPT.get('trf',1))
def maxchk(regs_, ckr):
    c=[f'v_max_u32 v{ckr}, v{regs_[0]}, v{regs_[1]}']
    for j in range(2,len(regs_),2): c.append(f'v_max3_u32 v{ckr}, v{ckr}, v{regs_[j]}, v{regs_[j+1]}')
    return c
checked('C', loads, chk)
stamp('Cgot')
spC=Sprinkle(OPT['pc'],False,OPT.get('pcf',0)); spC.__enter__()
for e in (3,0,1,2): mf16(D+4*e, M3i, op+2*e)
pk('v_pk_mul_f32', D+14, D+14, nyq, mods='op_sel:[0,0] op_sel_hi:[1,0]')
pk('v_pk_fma_f32', D+14, D+12, nyq, D+14, mods='op_sel:[0,1,0] op_sel_hi:[1,1,1]')
for e in (3,0,1,2): k(f'v_cvt_pk_bf16_f32 v{ld+e}, v{D+4*e+1}, v{D+4*e}')
k(f'ds_write_b128 v{aCp}, {V(ld,4)}')
for e in (3,0,1,2): k(f'v_cvt_pk_bf16_f32 v{ld+4+3-e}, v{D+4*e+3}, v{D+4*e+2}')
k(f'ds_write_b128 v{aCn}, {V(ld+4,4)}')
k.barrier()
for t in range(2):
    for nn in range(2): k(f'ds_read2st64_b32 {V(op+4*t+2*nn,2)}, v{aCr+t} offset0:{2*nn} offset1:{2*nn+1}')
for e in range(2):
    for c in range(2): mf32(D+8*e+4*c, op, (F16,H)[e][c])
    for c in range(2): mf32(D+8*e+4*c, op+4, (F16[c],H[2+c])[e], D+8*e+4*c)
if 1:
    for e in range(2):
        cmul_pack(D+8*e, D+8*e+4, (TW0,TWC)[e], ld+4*e)
        mf32(xf+4*e, G16[1], ld+4*e, xf+4*e)
        mf32(xf+8+4*e, G16[0], ld+4*e, xf+8+4*e)
    stats(xf,CG)
    spC.__exit__()
    n=normalize(xf)
for rho in range(2):
    for i in range(4): k(f'v_cvt_pk_bf16_f32 v{op+4*rho+i}, v{n+8*rho+i}, v{n+8*rho+4+i}')
    k(f'ds_write_b128 v{aLw+rho}, {V(op+4*rho,4)}')
k.barrier()
for i in range(2): k(f'ds_read_b128 {V(ld+4*i,4)}, v{aLr} offset:{1024*i}')
k(f's_mov_b32 s{sSt}, {fb(2.0**-KH)}')
for j in range(0,16,2): pk('v_pk_mul_f32', xf+j, xf+j, S(sSt,2), mods='op_sel_hi:[1,0]')
for i in range(2): k(f'buffer_store_dwordx4 {V(ld+4*i,4)}, v{vL16}, {S(sWs,4)}, s{sX3o} offen offset:{1024*i} sc1')
stamp('Cdone')
sp5=Sprinkle(99,True); sp5.__enter__()
for rho in range(2):
    for i in range(4): k(f'v_cvt_pk_bf16_f32 v{D+4*rho+i}, v{xf+8*rho+i}, v{xf+8*rho+4+i}')
    for i in range(4): settag(D+4*rho+i)
for rho in range(2):
    for nn in range(2): k(f'ds_write2st64_b32 v{aHw}, v{D+4*rho+2*nn}, v{D+4*rho+2*nn+1} offset0:{4*rho+2*nn} offset1:{4*rho+2*nn+1}')
k.wait_lg()
for i in range(2): k(f'ds_read_b128 {V(D2+4*i,4)}, v{aHr} offset:{1024*i}')
for i in range(2): k(f'buffer_store_dwordx4 {V(D2+4*i,4)}, v{vL16}, {S(sWs,4)}, s{sHb} offen offset:{1024*i} sc1')

for u in range(7): hh_off(u)
aB=vl.get(4,1); aA=vl.get(); aPr=vl.get(); vck=vl.get(); vpr=vl.get()
k(f'''v_and_b32 v{t0}, 1, v{vG}
v_bfe_u32 v{t1}, v{vL}, 3, 1
v_lshl_add_u32 v{t1}, v{t0}, 1, v{t1}
v_lshlrev_b32 v{t0}, 16, v{t0}
v_lshrrev_b32 v{t2}, 5, v{vL}
v_lshl_add_u32 v{t0}, v{t2}, 10, v{t0}
v_bfe_u32 v{t2}, v{vL}, 2, 2
v_lshl_add_u32 v{t0}, v{t2}, 7, v{t0}
v_and_b32 v{t2}, 3, v{vL}
v_lshl_add_u32 v{t0}, v{t2}, 3, v{t0}''')
for jj in range(4):
    k(f'''s_add_u32 s{sT0}, s{sPar}, {jj}
s_and_b32 s{sT0}, s{sT0}, 3
v_xor_b32 v{t2}, s{sT0}, v{t1}
v_lshl_add_u32 v{aB+jj}, v{t2}, 5, v{t0}''')
sp.put(sCo,2); sp.put(sPos); sp.put(sHb); sp.put(sX3o); sp.put(sSt,4)
sAo=sp.get(4,1)
k(f'''v_bfe_u32 v{t0}, v{vL}, 3, 2
v_mul_u32_u24 v{t0}, {X3S}, v{t0}
v_lshrrev_b32 v{t1}, 5, v{vL}
v_and_b32 v{t2}, 7, v{vL}
v_lshl_add_u32 v{aA}, v{t1}, 7, v{t0}
v_lshl_add_u32 v{aA}, v{t2}, 4, v{aA}
v_lshl_add_u32 v{aPr}, v{t1}, 9, v{t0}
v_lshl_add_u32 v{aPr}, v{t2}, 10, v{aPr}
s_mul_i32 s{sT0}, s{sRtA}, {4*X3S}
s_add_u32 s{sAo}, s{sT0}, {X3}
s_add_u32 s{sAo+1}, s{sT0}, {X3+4096}
s_mul_i32 s{sT0}, s{sRtB}, {4*X3S}
s_add_u32 s{sAo+2}, s{sT0}, {X3}
s_add_u32 s{sAo+3}, s{sT0}, {X3+4096}''')
for r_ in (sPar,sF0,sRtA,sRtB,sXc,sS2,sJ): sp.put(r_)
sKq=sp.get(); sC2=sp.get(); sG2=[sp.get() for _ in range(14)]
k(f'''s_mov_b32 s{sKq}, {fb(KQ)}
s_mov_b32 s{sC2}, {fb(CG*CG*2.0**KH)}
s_mul_i32 s{sT0}, s{sRb}, 224
s_mul_i32 s{sT1}, s{sWave}, 28
s_add_u32 s{sT0}, s{sT0}, s{sT1}
s_lshl_b32 s{sT0}, s{sT0}, 10
''')
for rt in range(2):
    for q in range(7): k(f's_add_u32 s{sG2[7*rt+q]}, s{sT0}, {HH+rt*112*1024+q*4096}')
sp5.__exit__(); tr_ready(1)
k(f'''s_mul_i32 s{sT0}, s{sWave}, {8192-32768}
s_add_u32 s{sT0}, s{sT0}, {R0}
s_add_u32 s{sLq}, s{sLq}, s{sT0}
v_add_u32 v{vWdR}, s{sT0}, v{vWdR}
v_add_u32 v{vWdR+1}, s{sT0}, v{vWdR+1}''')
if OPT.get('dG'): k(f"s_sleep {OPT['dG']}")

ACC=[32,48,64,80]
SLOT=[128+4*i for i in range(32)]+[96+4*i for i in range(8)]
ordA=[4*i for i in range(8)]+[t for t in range(32) if t%4]
def aload(slot, rt, t): return f'buffer_load_dwordx4 {V(SLOT[slot],4)}, v{aA}, {S(sWs,4)}, s{sAo+2*rt+(t>>4)} offen offset:{(t&15)*256} sc1'
stamp('G1poll')
loads=[aload(s_,0,ordA[s_]) for s_ in range(8)]+[f'buffer_load_dword v{vpr}, v{aPr}, {S(sWs,4)}, s{sAo+2} offen offset:508 sc1']
for l in loads: k(l)
k.wait_vm(dst['last'])
k.barrier()
KM=OPT['kmaj']
mf=[]
for s_ in range(KM):
    for jj in range(4): mf.append((jj,s_,jj,ordA[s_],s_==0))
for jj in range(4):
    for s_ in range(KM,32): mf.append((jj,s_,jj,ordA[s_],False))
slotB=list(range(32,40))+list(range(24))
for jj in range(3):
    for t in range(32): mf.append((jj,slotB[t],jj,t,t==0))
NM=len(mf)
FR=224; NF=8; PD=OPT.get('pd',6); WE=OPT.get('we',3)
def bread(i):
    acc,s_,jj,t,f=mf[i]
    return [f'ds_read_b64_tr_b16 {A(FR+4*(i%NF)+2*x,2)}, v{aB+jj} offset:{t*2048+x*512}' for x in range(2)]
for i in range(PD):
    for l in bread(i): k(l)
chk=maxchk([SLOT[j]+3 for j in range(8)],vck)+[f'v_max_u32 v{vck}, v{vck}, v{vpr}', f'v_cmp_eq_u32 vcc, -1, v{vck}']
checked('G1', loads, chk)
stamp('G1got')

side=[[] for _ in range(NM+200)]
def chk2(s0,s1): return f'v_max3_u32 v{vck}, v{vck}, v{SLOT[s0]+3}, v{SLOT[s1]+3}'
lastuse={}; firstuse={}
for i,(acc,s_,jj,t,f) in enumerate(mf):
    ph=0 if i<128 else 1
    lastuse[(ph,s_)]=i; firstuse.setdefault((ph,s_),i)
RA=OPT.get('ra',20)/10; RBB=OPT.get('rbb',25)/10
for s_ in range(8,32):
    side[int(RA*(s_-8))].append(aload(s_,0,ordA[s_]))
    if s_&1: side[firstuse[(0,s_-1)]-1].append(chk2(s_-1,s_))
pos=RA*24
for t in range(32):
    s_=slotB[t]
    p=max(pos, lastuse.get((0,s_),-1))
    side[int(p)].append(aload(s_,1,t)); pos=p+(RBB if t<23 else 2); lastB=int(p)
    if t&1: side[firstuse[(1,slotB[t-1])]-1].append(chk2(slotB[t-1],s_))
def verify(name):
    def f():
        k(f'v_cmp_eq_u32 vcc, -1, v{vck}')
        k(f's_cbranch_vccnz RESTART')
    return f
kk=Asm(); kk.label('RESTART')
kk(f'''s_waitcnt vmcnt(0) lgkmcnt(0)
s_nop 15''')
for i in range(PD):
    for l in bread(i): kk(l)
kk(f'''s_waitcnt lgkmcnt(0)
s_add_u32 s{sCnt}, s{sCnt}, 1000
s_cmp_gt_u32 s{sCnt}, {SPIN}
s_cbranch_scc0 R_G1
s_endpgm''')
tail.append(kk.text())
D0=OPT.get('d0',56); DG=OPT.get('dg',30)/10; DL=OPT.get('dl',26)
pos=D0; dst['setup']=None; prev=None; hd={}; ht={}
def mk_d(b,i,ins):
    def f():
        if (b-1,i) in ht: k.wait_lg(ht[(b-1,i)])
        for x in ins: hd[(b,i)]=k(x)
    return f
def mk_t(b,i):
    def f():
        k.wait_vm(hd[(b,i)])
        for x in wd_tr(b,i,0): ht[(b,i)]=k(x)
    return f
for b in range(NFRONT,7):
    tp=[]
    for i in range(8):
        if prev: pos=max(pos,prev[i]+4)
        side[int(pos)].append(mk_d(b,i,wd_dma(b,i,0)))
        t_=int(pos)+DL
        if b==6: t_=max(t_,OPT.get('tl',244)+i)
        side[t_].append(mk_t(b,i)); tp.append(t_)
        pos+=DG
    print('deferred batch',b,'dma until',int(pos),'tr',tp[0],tp[-1],file=sys.stderr)
    prev=tp
vl.put(vL4)
EPT=vl.get(4); EPO=vl.get(4)
cur={'i':0}
def hh_store(u):
    def f():
        k(f'buffer_store_dwordx4 {V(EPO,4)}, v{vL16}, {S(sWs,4)}, s{sHo+u} offen sc1')
        print('hh store',u,'at',cur['i'],file=sys.stderr)
    return f
def gelu(acc, u):
    a=ACC[acc]; o=[]; tmp=EPT
    for hlf in range(2):
        R=range(4*hlf,4*hlf+4)
        for r in R: o.append(f'v_fma_f32 v{tmp+(r&3)}, v{a+r}, v{a+r}, s{sKq}')
        for r in R: o.append(f'v_mul_f32 v{tmp+(r&3)}, -v{a+r}, v{tmp+(r&3)}')
        for r in R:
            o.append(f'v_exp_f32 v{tmp+(r&3)}, v{tmp+(r&3)}')
            o.append(f'v_mul_f32 v{a+r}, v{a+r}, v{a+8+r}')
        for r in R:
            o.append(f'v_fma_f32 v{tmp+(r&3)}, v{tmp+(r&3)}, s{sC2}, s{sC2}')
            if r&3: o.append(f'v_rcp_f32 v{tmp+(r&3)-1}, v{tmp+(r&3)-1}')
        o.append(f'v_rcp_f32 v{tmp+3}, v{tmp+3}')
        for r in R: o.append(f'v_mul_f32 v{a+r}, v{a+r}, v{tmp+(r&3)}')
        E=EPO
        for r in (4*hlf,4*hlf+2): o.append(f'v_cvt_pk_bf16_f32 v{E+r//2}, v{a+r}, v{a+r+1}')
        for r in (4*hlf,4*hlf+2): o.append(f'v_bfi_b32 v{E+r//2}, v{vTm}, s{sTag}, v{E+r//2}')
    o.append(hh_store(u))
    return o
done=[max(i for i in range(128) if mf[i][0]==jj) for jj in range(4)]+[128+32*jj+31 for jj in range(3)]
epi=[]
for u in range(7):
    g=gelu(u if u<4 else u-4,u)
    if u==0: g.insert(len(g)-1, verify('A'))
    if u==4: g.insert(len(g)-1, verify('B'))
    epi+= [(done[u]+2,x,u) for x in g]

def phi7(cls, rt):
    if cls<4: return cls if rt==0 else 3+((cls+1)&3)
    return 4+(cls-4) if rt==0 else cls-4
groups=[[(0,0),(1,0),(0,1),(1,1),(2,0),(3,0),(2,1),(4,0),(5,0),(6,0),(3,1),(4,1),(5,1),(6,1)],
        [(0,0),(1,0),(0,1),(1,1),(2,0),(2,1),(3,0),(4,0),(3,1),(5,0),(6,0),(4,1),(5,1),(6,1)],
        [(0,0),(1,0),(2,0),(0,1),(1,1),(2,1),(3,0),(4,0),(3,1),(5,0),(6,0),(4,1),(5,1),(6,1)]][OPT.get('go',2)]
ACC2={(0,0):ACC[3],(0,1):ACC[0],(1,0):ACC[1],(1,1):ACC[2]}
HV=SLOT[22]; P0=96
def tagchk(r,ckr):
    return [f'v_xor_b32 v{ckr}, s{sTag}, v{r[0]}']+[f'v_bitop3_b32 v{ckr}, v{ckr}, v{x}, s{sTag} bitop3:0xf6' for x in r[1:]]+\
           [f'v_and_b32 v{ckr}, v{vTm}, v{ckr}', f'v_cmp_ne_u32 vcc, 0, v{ckr}']
g2=[]; started=set()
base=NM
L0=OPT.get('l0',180); RG=OPT.get('rg',24)/10
VIS=OPT.get('vis',36)
stpos=[96,122,150,176,200,222,241]
freeq=[(s_,127) for s_ in range(24,32)]+[(slotB[t],192+t) for t in range(30)]
todo=[(gi,q) for gi in range(14) for q in range(4)]
frag={}; pos=L0
while todo:
    freeq.sort(key=lambda x:x[1])
    pos=max(pos,freeq[0][1])
    av=[x for x in todo if stpos[groups[x[0]][0]]+VIS<=pos or base+8*x[0]-OPT['lead']<=pos]
    if not av: pos+=1; continue
    gi,q=av[0]; todo.remove((gi,q))
    cls,rt=groups[gi]; tau=7*q+phi7(cls,rt)
    s_,fr=freeq.pop(0)
    use=base+8*gi+2*q
    if s_<32: freeq.append((s_,use+1))
    else: assert use<base+8*groups.index((6,0))+8
    l=[f'buffer_load_dwordx4 {V(SLOT[s_],4)}, v{vL16}, {S(sWs,4)}, s{sG2[7*rt+(tau>>2)]} offen offset:{(tau&3)*1024} sc1']
    side[int(pos)]+=l
    frag[(gi,q)]=(s_,l,tau,int(pos))
    pos+=RG
print('G2 loads (group: issue positions, first use):',[(groups[gi],frag[(gi,0)][3],frag[(gi,3)][3],base+8*gi) for gi in range(14)],file=sys.stderr)
for gi,(cls,rt) in enumerate(groups):
    lds_=[]; sl=[]
    for q in range(4):
        s_,l,tau,_=frag[(gi,q)]
        lds_+=l; sl.append(s_)
        for ct in range(2):
            g2.append((ACC2[(rt,ct)], (tau*2+ct)*4, SLOT[s_], (rt,ct) not in started)); started.add((rt,ct))
    c=tagchk([SLOT[s_]+3 for s_ in reversed(sl)],vck)
    def mk(gi=gi,lds_=lds_,c=c):
        def f():
            k(c[-1]); k(f's_cbranch_vccnz R_G2_{gi}'); k.label(f'C_G2_{gi}'); retry_block(f'G2_{gi}', lds_, c)
        return f
    g0=base+8*gi
    side[g0-3]+=c[:3]; side[g0-2]+=c[3:5]; side[g0-1].append(mk())

aRw=vl.get(); aRr=vl.get(2,1); aHo=vl.get(2,1); sEo=sp.get(2,1); sUp=sp.get(2)
PA=R0
tq=aA
red_setup=f'''v_and_b32 v{tq}, 31, v{vL}
v_lshrrev_b32 v{aRw}, 5, v{vL}
v_and_b32 v{aPr}, 7, v{vL}
v_xor_b32 v{aRw}, v{aRw}, v{aPr}
v_lshlrev_b32 v{aRw}, 4, v{aRw}
v_lshl_add_u32 v{aRw}, v{tq}, 8, v{aRw}
s_lshl_b32 s{sT0}, s{sWave}, 13
s_add_u32 s{sT0}, s{sT0}, {PA}
v_add_u32 v{aRw}, s{sT0}, v{aRw}
v_lshrrev_b32 v{tq}, 3, v{vL}
v_lshlrev_b32 v{aRr}, 1, v{aPr}
v_xor_b32 v{aRr}, v{aRr}, v{tq}
v_lshlrev_b32 v{aRr}, 4, v{aRr}
v_lshl_add_u32 v{aRr}, v{tq}, 8, v{aRr}
s_lshl_b32 s{sT0}, s{sWave}, 11
s_add_u32 s{sT0}, s{sT0}, {PA}
v_add_u32 v{aRr}, s{sT0}, v{aRr}
v_xor_b32 v{aRr+1}, 16, v{aRr}
v_lshlrev_b32 v{aPr}, 4, v{aPr}
v_lshl_add_u32 v{aHo}, v{tq}, 10, v{aPr}
v_lshl_add_u32 v{aHo+1}, v{tq}, 18, v{aPr}
s_lshl_b32 s{sB0}, s{sCb}, 7
s_lshl_b32 s{sB1}, s{sRb}, 3
s_add_u32 s{sB1}, s{sB1}, s{sWave}
s_lshl_b32 s{sEo}, s{sB1}, 13
s_add_u32 s{sEo}, s{sEo}, s{sB0}
s_add_u32 s{sEo}, s{sEo}, {HB}
s_lshl_b32 s{sEo+1}, s{sB1}, 10
s_add_u32 s{sEo+1}, s{sEo+1}, s{sB0}
s_add_u32 s{sB1}, s{sEo}, {32*1024}
s_lshl_b32 s{sUp}, s{sNon}, 29
s_sub_u32 s{sUp}, {fb(2.0**KH)}, s{sUp}'''.split('\n')
hl=[f'buffer_load_dwordx4 {V(HV,4)}, v{aHo}, {S(sWs,4)}, s{sEo} offen sc1', f'buffer_load_dwordx4 {V(HV+4,4)}, v{aHo}, {S(sWs,4)}, s{sB1} offen sc1']
red_setup+=hl
hc=tagchk([HV,HV+3,HV+4,HV+7],vpr)
red_setup+= [f'v_xor_b32 v{aB+i}, {32*i}, v{aRw}' for i in range(4)]

def run_side(i, budget):
    cost=0; cur['i']=i
    for x in side[i]:
        if callable(x): x()
        else: k(x)
        cost+=4
    while epi and epi[0][0]<=i and cost<budget:
        x=epi.pop(0)[1]
        if callable(x): x(); cost+=4
        else: k(x); cost+= 8 if ('exp' in x or 'rcp' in x) else 4
def flush(u):
    while epi and epi[0][2]<=u:
        x=epi.pop(0)[1]
        x() if callable(x) else k(x)

EB=OPT['eb']
for i,(acc,s_,jj,t,f) in enumerate(mf):
    a=ACC[acc]
    if f and i>=128: flush(acc)
    if i%WE==0: k.wait_regs([A(FR+4*(j%NF),4) for j in range(i,i+WE)])
    k(f'v_mfma_f32_32x32x16_bf16 {V(a,16)}, {A(FR+4*(i%NF),4)}, {V(SLOT[s_],4)}, {"0" if f else V(a,16)}')
    if i+PD<NM:
        for l in bread(i+PD): k(l)
    run_side(i,EB-(4 if (i+1)%WE==0 else 0)+2)
    if i%32==31 and i<NM-1: stamp(f'm{i+1}')
stamp('G1done')

def red_write(rt):
    return [f'ds_write_b128 v{aB+i}, {V(ACC2[(rt,ct)]+4*i,4)} offset:{128*ct}' for ct in range(2) for i in range(4)]
def red_read(): return [f'ds_read_b128 {V(P0+8*pw+4*x,4)}, v{aRr+x} offset:{8192*pw}' for pw in range(4) for x in range(2)]
def red_fin(rt):
    o=[]; p=P0; hq=ACC2[(0,rt)]
    for j in range(4):
        o.append(f'v_lshlrev_b32 v{hq+2*j}, 16, v{HV+4*rt+j}')
        o.append(f'v_and_b32 v{hq+2*j+1}, 0xffff0000, v{HV+4*rt+j}')
    for pw in range(4): o.extend(f'v_pk_add_f32 {V(hq+j,2)}, {V(hq+j,2)}, {V(p+8*pw+j,2)}' for j in (0,2,4,6))
    o.extend(f'v_pk_mul_f32 {V(hq+j,2)}, {V(hq+j,2)}, {S(sUp,2)} op_sel_hi:[1,0]' for j in (0,2,4,6))
    for j in range(4): o.append(f'v_cvt_pk_bf16_f32 v{hq+8+j}, v{hq+2*j}, v{hq+2*j+1}')
    o.append(f'buffer_store_dwordx4 {V(hq+8,4)}, v{aHo+1}, {S(sOut,4)}, s{sEo+1} offen')
    return o
NL=OPT.get('nl',16)
lastm=g2[-NL:]; g2=g2[:-NL]+lastm[0::2]+lastm[1::2]
if NL==16:
    g0=base+104
    mv=[x for x in side[g0-3]+side[g0-2]+side[g0-1] if callable(x) or f'v{vck},' in x]
    for p in (g0-3,g0-2,g0-1): side[p]=[x for x in side[p] if x not in mv]
    side[g0-7]+=mv[:3]; side[g0-6]+=mv[3:5]; side[g0-5]+=mv[5:]
need_free={ACC[3]:3, ACC[0]:4, ACC[1]:5, ACC[2]:6}
rt0_done=base+8*groups.index((6,0))+7
for x_i,x in enumerate(red_setup): side[base+20+x_i//3].append(x)
hp=base+65
side[hp+8]+=hc[:3]; side[hp+9]+=hc[3:5]
def hchk(): k(hc[-1]); k('s_cbranch_vccnz R_H'); k.label('C_H'); retry_block('H', hl, hc)
side[hp+10].append(hchk)
for j,x in enumerate(red_write(0)): side[rt0_done+3+j].append(x)
RB=OPT.get('rb',14)
side[rt0_done+RB].append(k.barrier)
for j,x in enumerate(red_read()): side[rt0_done+RB+j//3].append(x)
fin0=red_fin(0); fin1=red_fin(1)
pre_=[f'v_xor_b32 v{r}, {PA}, v{r}' for r in (aB,aB+1,aB+2,aB+3,aRr,aRr+1)]+fin0[:8]+fin1[:8]
for j,x in enumerate(pre_): side[min(rt0_done+RB+3+j//4, base+111)].append(x)
w1=red_write(1)
for j in range(4): side[min(max(base+112-NL//2+2,rt0_done+RB+4)+j,base+111)].append(w1[j])
for i,(a,wa,sl,f) in enumerate(g2):
    if f: flush(need_free[a])
    k(f'v_mfma_f32_32x32x16_bf16 {V(a,16)}, {A(wa,4)}, {V(sl,4)}, {"0" if f else V(a,16)}')
    run_side(base+i,OPT.get('eb2',24))
    if i%32==31: stamp(f'mm{i+1}')
assert not epi and not any(side[base+112:])
stamp('G2done')
for x in fin0[8:16]: k(x)
for x in w1[4:]: k(x)
for x in fin0[16:]: k(x)
k(f's_add_u32 s{sEo+1}, s{sEo+1}, 4096')
k.barrier()
for x in red_read(): k(x)
for x in fin1[8:]: k(x)
stamp('end')
if 'amp' in OPT:
    ra,rb=[r for n,r in stamp_regs]
    k(f'''s_memrealtime s[4:5]
s_waitcnt lgkmcnt(0)
s_sub_u32 s{sT0}, s{rb}, s{ra}
s_mul_i32 s{sT0}, s{sT0}, {OPT.get('ampk',2)}
s_min_u32 s{sT0}, s{sT0}, 100000''')
    k.label('Lamp')
    k(f'''s_memrealtime s[6:7]
s_waitcnt lgkmcnt(0)
s_sub_u32 s{sT1}, s6, s4
s_cmp_lt_u32 s{sT1}, s{sT0}
s_cbranch_scc1 Lamp''')
if OPT['stamps']:
    k('s_waitcnt vmcnt(0) lgkmcnt(0)')
    stamp('drained')
    k(f'''s_lshl_b32 s{sT0}, s2, 2
s_add_u32 s{sT0}, s{sT0}, s{sWave}
s_lshl_b32 s{sT0}, s{sT0}, 7
s_add_u32 s{sT0}, s{sT0}, {STAMP}''')
    for j,(nm,r) in enumerate(stamp_regs+[('cnt',sCnt)]):
        k(f'v_mov_b32 v{140+j}, s{r}')
        k(f'buffer_store_dword v{140+j}, off, {S(sWs,4)}, s{sT0} offset:{4*j}')
k('s_endpgm')

hdr=f'''; Fused persistent kernel: LN -> 2-D FFT filter (MFMA DFT stages) -> LN -> GEGLU FFN, 256 workgroups.
; @launch grid=(256,1,1) block=(256,1,1) lds={LDSZ}
.amdgcn_target "amdgcn-amd-amdhsa--gfx950"
.text
.globl {KN}
.p2align 8
.type {KN},@function
'''
ftr=f'''
CODE_END:
.section .rodata,"a"
.p2align 6
.amdhsa_kernel {KN}
  .amdhsa_next_free_vgpr 512
  .amdhsa_next_free_sgpr 102
  .amdhsa_accum_offset 256
  .amdhsa_group_segment_fixed_size 0
  .amdhsa_kernarg_size 80
  .amdhsa_user_sgpr_count 2
  .amdhsa_user_sgpr_kernarg_segment_ptr 1
  .amdhsa_system_sgpr_workgroup_id_x 1
.end_amdhsa_kernel
'''
open(sys.argv[1],'w').write(hdr+k.text()+'\n'+'\n'.join(tail)+ftr)
open(sys.argv[1]+'.stamps','w').write(' '.join(n for n,_ in stamp_regs)+' cnt')
print('instrs',k.count,'nops',k.nops,'vl hi',vl.hi,'sp hi',sp.hi, file=sys.stderr)
```

```python
import sys, struct
from asmlib import *

KN = "sequential_preLN__spectral_gfnet__glu_gated_geglu__prompt_kernel"
OPT = dict(stamps=0, ng=2, g2=0, early=1, thr=14, lord='p_G3_g_s_F6_F100', hint=1, gew=2, geb=1, run='3.5.6.9.11.12.15')
for a in sys.argv[2:]:
    kk,vv = a.split('='); OPT[kk]=int(vv) if vv.lstrip('-').isdigit() else vv
NB = OPT['ng']
def fb(x): return '0x%08x' % struct.unpack('<I', struct.pack('<f', x))[0]

NONCE=0x80000
X1=0x100000; X1S=8320
X2=0x600000; X2S=8320
X3=0xB00000; X3S=8320
HB=0xE00000
HH=0x1000000
XP=0x1900000
STAMP=0x1800000
WSZ=0x2000000
R0=131072; R1=R0+9216; R2=R1+9216; RH=R2; RF=R2+8192
KS=100; KH=82; TM=0x60006000
LDSZ=163840
SPIN=400000
CG = 0.1029432397**(1/3)
KQ = 2.302208198/CG

k=Asm(); tail=[]
sp=Pool(44,96)
sX,sWs,sWd,sOut,sW1 = 24,28,32,36,40
stamps={'F':[], 'L':[]}; path={'p':'F'}
STQ={'F':[22,100,4,6,8,10,12,14,16,18,20,24,26,40,42],'L':[22,100,4,6,8,10,12,14,16,18,20,24,26,96,98]}
def stamp(name):
    st=OPT['stamps']; p=path['p']
    big=('start','xload','Adone','Bpoll','Bgot','Bdone','Cpoll','Cgot','Cdone','gflag','wdone','bdone','Gbar','G1got','G1done','epi','B1','G2done','end')
    on = (st==1 and name in big and not (p=='F' and name in ('wdone','B1','Bpoll','Cpoll'))) or (st==2 and name in ('start','Gbar','wdone','G1got','G1done','epi','B1','G2done','B2','end','g4','g8','g11')) \
         or (st==4 and name in ('Gbar','G1got','k4','k8','k12','G1done','epi','B1','G2done','B2','end','g4','g8','g11')) \
         or (st==6 and (name[0]=='h' or name in (('G1got','k4','k8','G1done','epi','g4','g8','g11','G2done','end') if p=='F' else ('G1got','epi',)))) \
         or (st==5 and (name[0]=='l' or name in ('bdone','Gbar'))) \
         or (st==3 and (name[0]=='f' or name in big[:13]) and not (p=='F' and name in ('wdone','fkarg','fS1','fS3')))
    if on or (p+name) in OPT.get('amp','').split(','):
        r=STQ[p][len(stamps[p])]; stamps[p].append((name,r)); k(f'{"s_memtime" if OPT.get("cyc") else "s_memrealtime"} {S(r,2)}')

def retry_block(name, loads, check):
    kk=Asm()
    kk.label(f'R_{name}')
    kk('s_nop 3')
    for l in loads: kk(l)
    kk('s_waitcnt vmcnt(0)')
    for c in check: kk(c)
    kk(f's_add_u32 s{sCnt}, s{sCnt}, 1')
    kk(f's_cmp_gt_u32 s{sCnt}, {SPIN}')
    kk(f's_cbranch_scc1 C_{name}')
    kk(f's_cbranch_vccnz R_{name}')
    kk(f's_branch C_{name}')
    tail.append(kk.text())
def checked(name, loads, check):
    for c in check: k(c)
    k(f's_cbranch_vccnz R_{name}')
    k.label(f'C_{name}')
    retry_block(name, loads, check)

def bound(lbl):
    k(f's_add_u32 s{sSpin}, s{sSpin}, 1\ns_cmp_lt_u32 s{sSpin}, {8*SPIN}\ns_cbranch_scc0 {lbl}c')
k.raw(f'{KN}:')
k('s_cmp_lt_u32 s2, 256')
k('s_cbranch_scc1 Lgo')
k('s_endpgm')
k.raw('@STUB@')
k.label('Lgo')
k('s_load_dwordx16 s[4:19], s[0:1], 0')
k('s_load_dwordx2 s[20:21], s[0:1], 72')
stamp('start'); stamps['L']=list(stamps['F'])
sWid=sp.get(); sWave=sp.get(); sS2=sp.get(); sT0=sp.get(); sT1=sp.get(); sT2=sp.get(); sCnt=sp.get(); sSpin=sp.get()
sXc=sp.get(); sJ=sp.get(); sPos=sp.get(); sNon=sp.get(); sTag=sp.get()
vL,vL16,vTm,vLo,vG,t0,t1,t2,t3,aFw,vPh = range(1,12)
vdum=127
if OPT.get('cpre',1):
    pc=sp.get(2)
    k(f'''s_getpc_b64 {S(pc,2)}
v_lshlrev_b32 v{t0}, 7, v0
v_min_u32 v{t2}, CODE_END-Lgo-64, v{t0}
v_mov_b32 v{t3}, s{pc+1}
v_add_co_u32 v{t2}, vcc, s{pc}, v{t2}
v_addc_co_u32 v{t3}, vcc, 0, v{t3}, vcc
global_load_dword v{vdum}, {V(t2,2)}, off''')
    sp.put(pc,2)
k(f'''v_lshrrev_b32 v{t0}, 6, v0
v_and_b32 v{vL}, 63, v0
v_readfirstlane_b32 s{sWid}, v{t0}
v_lshlrev_b32 v{vL16}, 4, v{vL}
v_and_b32 v{vLo}, 15, v0
v_lshrrev_b32 v{vG}, 4, v{vL}
s_and_b32 s{sXc}, s2, 7
s_lshr_b32 s{sJ}, s2, 3
s_lshl_b32 s{sPos}, s{sXc}, 5
s_add_u32 s{sPos}, s{sPos}, s{sJ}
s_and_b32 s{sWave}, s{sWid}, 3
s_mov_b32 s{sCnt}, 0
s_mov_b32 s{sSpin}, 0''')
mA=((1<<NB)-1)<<5; mB=((1<<NB)-1)<<(5-NB)
def swapbits(p): return (p&~(mA|mB))|((p&mA)>>NB)|((p&mB)<<NB)
if NB:
    k(f'''s_and_b32 s{sT0}, s{sPos}, {mA}
s_and_b32 s{sT1}, s{sPos}, {mB}
s_andn2_b32 s{sS2}, s{sPos}, {mA|mB}
s_lshr_b32 s{sT0}, s{sT0}, {NB}
s_lshl_b32 s{sT1}, s{sT1}, {NB}
s_or_b32 s{sS2}, s{sS2}, s{sT0}
s_or_b32 s{sS2}, s{sS2}, s{sT1}''')
else:
    k(f's_mov_b32 s{sS2}, s{sPos}')
def srd_consts(lst):
    for s_,sz in lst: k(f's_mov_b32 s{s_+2}, {sz}\ns_mov_b32 s{s_+3}, 0x20000')
def flag_init():
    k(f'''s_lshl_b32 s{sT0}, s{sWid}, 2
s_add_u32 s{sT0}, s{sT0}, {RF}
v_lshl_add_u32 v{aFw}, v{vL}, 2, {64}
v_add_u32 v{aFw}, {RF}, v{aFw}
v_mov_b32 v{vPh}, 0
v_writelane_b32 v{aFw}, s{sT0}, 0
ds_write_b32 v{aFw}, v{vPh}''')
flag_init()
k(f's_cmp_ge_u32 s{sWid}, 4\ns_cbranch_scc1 LSTUB')
def tag_calc():
    k(f'''s_bfe_u32 s{sT0}, s{sNon}, 0x2000d
s_bfe_u32 s{sT1}, s{sNon}, 0x2001d
s_lshl_b32 s{sT0}, 1, s{sT0}
s_lshl_b32 s{sT1}, 1, s{sT1}
s_or_b32 s{sT0}, s{sT0}, s{sT1}
s_ff0_i32_b32 s{sNon}, s{sT0}
s_mul_i32 s{sTag}, s{sNon}, 0x20002000
v_mov_b32 v{vTm}, {TM}''')
sPar=sp.get(); sF0=sp.get(); sRt=sp.get(); sRb=sp.get(); sCb=sp.get(); sX3o=sp.get(); sLq=sp.get(); sB0=sp.get(); sKh=sp.get()
def ffn_roles(isL):
    k(f'''s_and_b32 s{sPar}, s{sS2}, 1
s_bfe_u32 s{sT0}, s{sS2}, 0x40001
s_mul_i32 s{sF0}, s{sT0}, 7
s_mul_i32 s{sT0}, s{sPar}, 3
s_add_u32 s{sF0}, s{sF0}, s{sT0}
s_lshr_b32 s{sT0}, s{sS2}, 5
s_lshl_b32 s{sT0}, s{sT0}, 3
s_lshl_b32 s{sT1}, s{sWave}, 1
s_add_u32 s{sT0}, s{sT0}, s{sT1}
s_add_u32 s{sRt}, s{sT0}, s{sPar}''')
    if not isL: k(f's_xor_b32 s{sRt}, s{sRt}, 1')
    k(f'''s_and_b32 s{sKh}, s{sXc}, 1
s_lshr_b32 s{sT0}, s{sXc}, 1
s_lshl_b32 s{sT0}, s{sT0}, 2
s_lshr_b32 s{sT1}, s{sJ}, 3
s_add_u32 s{sRb}, s{sT0}, s{sT1}
s_and_b32 s{sCb}, s{sJ}, 7''')
def x3_off():
    k(f'''s_mul_i32 s{sX3o}, s{sS2}, {X3S}
s_lshl_b32 s{sT1}, s{sWave}, 11
s_add_u32 s{sX3o}, s{sX3o}, s{sT1}
s_add_u32 s{sX3o}, s{sX3o}, {X3}''')

def wd_addr(vS):
    k(f'''v_lshrrev_b32 v{t0}, 3, v{vL}
v_and_b32 v{t1}, 7, v{vL}
v_and_b32 v{t2}, 1, v{vG}
v_lshlrev_b32 v{t2}, {2 if OPT.get('g32',0) else 1}, v{t2}
v_xor_b32 v{t1}, v{t1}, v{t2}
v_lshlrev_b32 v{t1}, 4, v{t1}
v_lshl_add_u32 v{t0}, v{t0}, 10, v{t1}
s_lshl_b32 s{sT0}, s{sCb}, 7
s_mul_i32 s{sT1}, s{sWave}, {448*1024}
s_add_u32 s{sT0}, s{sT0}, s{sT1}
s_lshl_b32 s{sT1}, s{sKh}, 16
s_add_u32 s{sT0}, s{sT0}, s{sT1}
v_add_u32 v{vS}, s{sT0}, v{t0}
v_xor_b32 v{t0}, {0 if OPT.get('g32',0) else 64}, v{vS}
v_add_u32 v{vS+1}, {(7 if OPT.get('dma',1) else 8)*1024}, v{t0}
v_add_u32 v{vS+2}, {(110 if OPT.get('dma',1) else 112)*1024}, v{vS}
v_add_u32 v{vS+3}, {(117 if OPT.get('dma',1) else 120)*1024}, v{t0}''')
def wd_raddr(vR, sBase):
    if not OPT.get('g32',0): tr_addr(vR, None, sBase)
    else:
        k(f'''v_lshrrev_b32 v{t0}, 5, v{vL}
v_lshlrev_b32 v{t0}, 10, v{t0}
v_bfe_u32 v{t1}, v{vL}, 2, 2
v_lshl_add_u32 v{t0}, v{t1}, 7, v{t0}
v_lshrrev_b32 v{t1}, 1, v{t1}
v_lshl_add_u32 v{t0}, v{t1}, 6, v{t0}
v_and_b32 v{t1}, 1, v{vG}
v_lshl_add_u32 v{t0}, v{t1}, 5, v{t0}
v_and_b32 v{t1}, 3, v{vL}
v_lshl_add_u32 v{t0}, v{t1}, 3, v{t0}
v_add_u32 v{vR}, s{sBase}, v{t0}
v_xor_b32 v{vR+1}, 64, v{vR}
v_add_u32 v{vR+2}, 2048, v{vR}
v_add_u32 v{vR+3}, 2048, v{vR+1}''')
    k(f'v_add_u32 v{vR+4}, s{sBase}, v{vL16}')
def tr_addr(vR, sRot, sBase):
    k(f'''v_and_b32 v{t0}, 1, v{vG}
v_bfe_u32 v{t1}, v{vL}, 3, 1
v_lshl_add_u32 v{t1}, v{t0}, 1, v{t1}
v_bfe_u32 v{t2}, v{vL}, 2, 2
v_lshlrev_b32 v{t0}, 10, v{vG}
v_lshl_add_u32 v{t0}, v{t2}, 7, v{t0}
v_and_b32 v{t2}, 3, v{vL}
v_lshl_add_u32 v{t0}, v{t2}, 3, v{t0}''')
    if sBase is not None: k(f'v_add_u32 v{t0}, s{sBase}, v{t0}')
    for c in range(4):
        if sRot is None: k(f'v_xor_b32 v{t2}, {c}, v{t1}')
        else: k(f's_add_u32 s{sT0}, s{sRot}, {c}\ns_and_b32 s{sT0}, s{sT0}, 3\nv_xor_b32 v{t2}, s{sT0}, v{t1}')
        k(f'v_lshl_add_u32 v{vR+c}, v{t2}, 5, v{t0}')
thc={'n':0}
def throttle(ty='w'):
    if len(k.vm)>OPT['thr']: k(f's_waitcnt vmcnt({OPT["thr"]})')
    thc['n']+=1
    ge=OPT.get('ge'+ty,OPT.get('ge'))
    if ge and thc['n']%ge==0 and flagged['d']: gate(RUN|(0x1c0 if flagged['v']<100 else 0)|0x8000)
    if OPT.get('sl'+ty): k(f"s_sleep {OPT['sl'+ty]}")
def wd_load(b, vS):
    if OPT.get('dma',1): k(f's_add_u32 m0, s{sLq}, {4096*b}')
    if b<6: k(f's_mov_b32 s{sB0}, {(14*(b&1)+(b>>1))*16*1024}')
    else: k(f's_mul_i32 s{sB0}, s{sKh}, {160*1024}\ns_add_u32 s{sB0}, s{sB0}, {48*1024}')
    for i in range(4):
        if OPT.get('dma',1): h=k(f'buffer_load_dwordx4 v{vS+i}, {S(sWd,4)}, s{sB0} offen offset:{i*1024} lds')
        else: h=k(f'buffer_load_dwordx4 {A(b*16+4*i,4)}, v{vS+i}, {S(sWd,4)}, s{sB0} offen')
        throttle()
    return h
def wd_xp(b, vR, hd):
    k.wait_vm(hd); off=4096*b if OPT.get('dma',1) else 7*4096
    if not OPT.get('dma',1):
        for i in range(4): k(f'ds_write_b128 v{vR+4}, {A(b*16+4*i,4)} offset:{off+i*1024}')
    for c in range(4):
        for x in range(2): h=k(f'ds_read_b64_tr_b16 {A((b*4+c)*4+2*x,2)}, v{vR+c} offset:{off+x*512}')
    return h

aA,aG,vck,vc2,aB,aT = 12,13,14,15,16,0
aRw=aRr=20; aHo=aPf=22
ACC=24; RING=88
def tagchk(r,ckr):
    return [f'v_xor_b32 v{ckr}, s{sTag}, v{r[0]}']+[f'v_bitop3_b32 v{ckr}, v{ckr}, v{x}, s{sTag} bitop3:0xf6' for x in r[1:]]+\
           [f'v_and_b32 v{ckr}, v{vTm}, v{ckr}', f'v_cmp_ne_u32 vcc, 0, v{ckr}']
def phi7(cls, rt):
    if cls<4: return cls if rt==0 else 3+((cls+1)&3)
    return 4+(cls-4) if rt==0 else cls-4
def gemm_setup(isL):
    NT=4 if isL else 3
    o={}
    o['sAo']=sAo=sp.get(4,1); o['sHo']=sHo=sp.get(4,1); o['sKq']=sKq=sp.get(); o['sC2']=sC2=sp.get()
    o['s32']=s32=OPT.get('x32' if isL else 'y32',0)
    if not s32:
        tr_addr(aB, sPar, None)
        k(f'''v_bfe_u32 v{t0}, v{vL}, 3, 1
v_mul_u32_u24 v{t0}, {X3S}, v{t0}
v_and_b32 v{t2}, 7, v{vL}
v_lshl_add_u32 v{aA}, v{vG}, 7, v{t0}
v_lshl_add_u32 v{aA}, v{t2}, 4, v{aA}''')
    else:
        k(f'''v_lshrrev_b32 v{t3}, 1, v{vG}
v_and_b32 v{t0}, 1, v{vG}
v_xor_b32 v{t2}, v{t0}, v{t3}
v_bfe_u32 v{t1}, v{vL}, 3, 1
v_lshl_add_u32 v{t1}, v{t2}, 1, v{t1}
v_lshlrev_b32 v{t0}, 15, v{t0}
v_lshl_add_u32 v{t0}, v{t3}, 10, v{t0}
v_bfe_u32 v{t2}, v{vL}, 2, 2
v_lshl_add_u32 v{t0}, v{t2}, 7, v{t0}
v_and_b32 v{t2}, 1, v{vL}
v_lshl_add_u32 v{t0}, v{t2}, 4, v{t0}
v_bfe_u32 v{t2}, v{vL}, 1, 1
v_lshl_add_u32 v{t0}, v{t2}, 3, v{t0}''')
        for c in range(4):
            k(f's_add_u32 s{sT0}, s{sPar}, {c}\ns_and_b32 s{sT0}, s{sT0}, 3\nv_xor_b32 v{t2}, s{sT0}, v{t1}\nv_lshl_add_u32 v{aB+c}, v{t2}, 5, v{t0}')
        k(f'''v_bfe_u32 v{t0}, v{vL}, 3, 2
v_mul_u32_u24 v{t0}, {X3S}, v{t0}
v_and_b32 v{t2}, 7, v{vL}
v_lshl_add_u32 v{aA}, v{t3}, 7, v{t0}
v_lshl_add_u32 v{aA}, v{t2}, 4, v{aA}''')
    k(f'''v_lshrrev_b32 v{t0}, 1, v{vG}
v_mul_u32_u24 v{t0}, {7168-1024}, v{t0}
v_lshl_add_u32 v{t0}, v{vG}, 9, v{t0}
v_lshl_add_u32 v{aG}, v{vLo}, 4, v{t0}
s_mul_i32 s{sT0}, s{sRt}, {4*X3S}''')
    for rh in range(2):
        for kh in range(2): k(f's_add_u32 s{sAo+2*rh+kh}, s{sT0}, {X3+(256*rh if s32 else 2*rh*X3S)+4096*kh}')
    k(f's_mul_i32 s{sT1}, s{sRt}, 112\ns_add_u32 s{sT1}, s{sT1}, s{sF0}')
    for jj in range(NT):
        k(f'''s_add_u32 s{sT0}, s{sPar}, {jj}
s_and_b32 s{sT0}, s{sT0}, 3
s_add_u32 s{sT0}, s{sT0}, s{sT1}
s_lshl_b32 s{sT0}, s{sT0}, 10
s_add_u32 s{sHo+jj}, s{sT0}, {HH}''')
    k(f'''s_mov_b32 s{sKq}, {fb(KQ)}
s_mov_b32 s{sC2}, {fb(CG*CG*2.0**KH)}
v_mov_b32 v{aT}, v{aFw}''')
    return o
def g1_loads(o, tp, nr, base):
    return [f'buffer_load_dwordx4 {V(base+8*(tp%nr)+4*rh,4)}, v{aA}, {S(sWs,4)}, s{o["sAo"]+2*rh+(tp>>3)} offen offset:{(tp&7)*512} sc1' for rh in range(2)]
def gemm1(isL, o, nr, base):
    P='L' if isL else 'F'; NT=4 if isL else 3; NF=4; PD=3; FR=112
    s32=o['s32']
    if not isL: NF=OPT.get('nfy',4); PD=NF-1; FR=128-4*NF
    fr=[(tp,jj,gu) for tp in range(16) for jj in range(NT) for gu in range(2)] if not s32 else \
       [(tp,jj,gu) for tp in range(16) for gu in range(2) for jj in range(NT)]
    flipped=set()
    def bread(i,x):
        tp,jj,gu=fr[i]
        ar=aB+(jj if s32 else jj^(2*gu))
        if tp>=8 and ar not in flipped: k(f'v_xor_b32 v{ar}, 0x10000, v{ar}'); flipped.add(ar)
        k(f'ds_read_b64_tr_b16 {A(FR+4*(i%NF)+2*x,2)}, v{ar} offset:{gu*(2048 if s32 else 32768)+(tp&7)*4096+x*512}')
    iss={'n':OPT.get('xi',nr)}
    for tp in range(iss['n']):
        for l in g1_loads(o,tp,nr,base): k(l)
    def chk_items(tp):
        r=base+8*(tp%nr); name=f'G1{P}{tp}'
        c=[f'v_max_u32 v{vck}, v{r+7}, v{r+3}', f'v_cmp_eq_u32 vcc, -1, v{vck}']
        def br():
            rl=[l for t in range(tp,iss['n']) for l in g1_loads(o,t,nr,base)]
            k(f's_cbranch_vccnz R_{name}'); k.label(f'C_{name}'); retry_block(name, rl, c)
        return c+[br]
    for i in range(PD): bread(i,0); bread(i,1)
    if OPT.get('xj'):
        k.wait_lg()
        for tp in range(iss['n'],OPT['xj']):
            for l in g1_loads(o,tp,nr,base): k(l)
        iss['n']=OPT['xj']
    for x in chk_items(0): x() if callable(x) else k(x)
    stamp('G1got')
    for i,(tp,jj,gu) in enumerate(fr):
        a=ACC+16*jj+8*gu; r=base+8*(tp%nr); j=i%(2*NT)
        if j==0:
            sl=[None]*(2*NT)
            up=min(16,tp+nr,iss['n']+2)
            ll=[l for t in range(iss['n'],up) for l in g1_loads(o,t,nr,base)]; iss['n']=max(iss['n'],up)
            sl[:len(ll)]=ll
            if tp<15: sl[-3:]=chk_items(tp+1)
        w=[A(FR+4*(i%NF),4)]
        if j==2*NT-3 and tp<15: w.append(V(base+8*((tp+1)%nr),8))
        k.wait_regs(w)
        for rh in range(2):
            if not s32: k(f'v_mfma_f32_16x16x32_bf16 {V(a+4*rh,4)}, {A(FR+4*(i%NF),4)}, {V(r+4*rh,4)}, {"0" if tp==0 else V(a+4*rh,4)}')
            elif rh==0: k(f'v_mfma_f32_32x32x16_bf16 {V(ACC+16*jj,16)}, {A(FR+4*(i%NF),4)}, {V(r+4*gu,4)}, {"0" if tp==0 and gu==0 else V(ACC+16*jj,16)}')
            if i+PD<len(fr): bread(i+PD,rh)
            if rh==0 and sl[j] is not None: sl[j]() if callable(sl[j]) else k(sl[j])
        if j==2*NT-1 and tp in (3,7,11): stamp(f'k{tp+1}')
    stamp('G1done')
def yreg(tp,rh,n=4,off=0):
    f,b=('a',8*tp) if tp<14 else ('v',112+8*(tp-14))
    b+=4*rh+off
    return f'{f}{b}' if n==1 else f'{f}[{b}:{b+n-1}]'
def y_loads(o,tp): return [f'buffer_load_dwordx4 {yreg(tp,rh)}, v{aA}, {S(sWs,4)}, s{o["sAo"]+2*rh+(tp>>3)} offen offset:{(tp&7)*512} sc1' for rh in range(2)]
def y_chk(o,q):
    ll=[l for tp in range(4*q,4*q+4) for l in y_loads(o,tp)]
    c=[]; T=ACC+48
    for i,(tp,rh) in enumerate((tp,rh) for tp in reversed(range(4*q,4*q+4)) for rh in (1,0)):
        r=yreg(tp,rh,1,3)
        c.append(f'v_accvgpr_read_b32 v{T+i}, {r}' if r[0]=='a' else f'v_mov_b32 v{T+i}, {r}')
    c+=[f'v_max3_u32 v{vck}, v{T}, v{T+1}, v{T+2}',f'v_max3_u32 v{vck}, v{vck}, v{T+3}, v{T+4}',f'v_max3_u32 v{vck}, v{vck}, v{T+5}, v{T+6}',
        f'v_max_u32 v{vck}, v{vck}, v{T+7}',f'v_cmp_eq_u32 vcc, -1, v{vck}']
    def br(): k(f's_cbranch_vccnz R_YF{q}'); k.label(f'C_YF{q}'); retry_block(f'YF{q}', ll, c)
    return c+[br]
def y_fill(o):
    YW=OPT.get('yw',4); YQ=OPT.get('yq',3)
    for q in range(YQ):
        for l in [l for tp in range(4*q,4*q+4) for l in y_loads(o,tp)]:
            k(l)
            if len(k.vm)>YW: k(f's_waitcnt vmcnt({YW})')
        if q:
            for x in y_chk(o,q-1): x() if callable(x) else k(x)
    side={}
    n=0
    for tp in range(4*YQ,16):
        for l in y_loads(o,tp): side.setdefault(2*n,[]).append(l); n+=1
    return side,list(range(YQ-1,4))
hi_={}
def y_pass(o, tiles, rev, fill=None):
    NF=4; PD=3; FR=112; s32=o['s32']
    tps=list(range(16))[::-1 if rev else 1]
    fr=[(tp,jj,gu) for tp in tps for jj in tiles for gu in range(2)] if not s32 else [(tp,jj,gu) for tp in tps for gu in range(2) for jj in tiles]
    def bread(i,x):
        tp,jj,gu=fr[i]
        ar=aB+(jj if s32 else jj^(2*gu))
        if hi_.get(ar,0)!=tp>>3: k(f'v_xor_b32 v{ar}, 0x10000, v{ar}'); hi_[ar]=tp>>3
        k(f'ds_read_b64_tr_b16 {A(FR+4*(i%NF)+2*x,2)}, v{ar} offset:{gu*(2048 if s32 else 32768)+(tp&7)*4096+x*512}')
    def prefetch():
        for i in range(PD): bread(i,0); bread(i,1)
    side={}
    if fill:
        side=fill[0]; per=2*len(tiles)
        for q in fill[1]:
            c=y_chk(o,q); e=4*q*per
            for j,x in enumerate(c): side.setdefault(max(0,e-len(c)+j),[]).append(x)
    def body():
        for i,(tp,jj,gu) in enumerate(fr):
            a=ACC+16*jj+8*gu; first=tp==tps[0]
            for rh in range(2):
                if not s32: k(f'v_mfma_f32_16x16x32_bf16 {V(a+4*rh,4)}, {A(FR+4*(i%NF),4)}, {yreg(tp,rh)}, {"0" if first else V(a+4*rh,4)}')
                elif rh==0: k(f'v_mfma_f32_32x32x16_bf16 {V(ACC+16*jj,16)}, {A(FR+4*(i%NF),4)}, {yreg(tp,gu)}, {"0" if first and gu==0 else V(ACC+16*jj,16)}')
                if i+PD<len(fr): bread(i+PD,rh)
                if rh==0:
                    for x in side.get(i,[]): x() if callable(x) else k(x)
    return prefetch,body
def gelu(o, jj, tmp, out):
    a=ACC+16*jj
    for r in range(8): k(f'v_fma_f32 v{tmp+r}, v{a+r}, v{a+r}, s{o["sKq"]}')
    for r in range(8): k(f'v_mul_f32 v{tmp+r}, -v{a+r}, v{tmp+r}')
    for r in range(8): k(f'v_exp_f32 v{tmp+r}, v{tmp+r}')
    for r in range(8): k(f'v_mul_f32 v{a+r}, v{a+r}, v{a+8+r}')
    for r in range(8): k(f'v_fma_f32 v{tmp+r}, v{tmp+r}, s{o["sC2"]}, s{o["sC2"]}')
    for r in range(8): k(f'v_rcp_f32 v{tmp+r}, v{tmp+r}')
    for r in range(8): k(f'v_mul_f32 v{a+r}, v{a+r}, v{tmp+r}')
    for r in (0,2,1,3): k(f'v_cvt_pk_bf16_f32 v{out+r}, v{a+2*r}, v{a+2*r+1}')
    for r in (0,2,1,3): k(f'v_bfi_b32 v{out+r}, v{vTm}, s{sTag}, v{out+r}')
    if o['s32']: return
    k(f'v_permlane16_swap_b32 v{out}, v{out+2}')
    k(f'v_permlane16_swap_b32 v{out+1}, v{out+3}')
def hh_store(o,jj,out): return k(f'buffer_store_dwordx4 {V(out,4)}, v{vL16}, {S(sWs,4)}, s{o["sHo"]+jj} offen sc1')
def flag(v,r): return [f'v_mov_b32 v{r}, {v}', f'ds_write_b32 v{aT}, v{r}']
def x_setup(o):
    o['sG2']=sG2=[sp.get() for _ in range(12)]
    if OPT.get('g32',0): k(f'v_lshrrev_b32 v{t1}, 5, v{vL}\nv_and_b32 v{t2}, 31, v{vL}\nv_add_u32 v{aG}, 7168, v{vL16}')
    else: k(f'v_mov_b32 v{t1}, v{vG}\nv_mov_b32 v{t2}, v{vLo}')
    k(f'''v_and_b32 v{t0}, 7, v{vL}
v_xor_b32 v{aRw}, v{t1}, v{t0}
v_lshlrev_b32 v{aRw}, 4, v{aRw}
v_lshl_add_u32 v{aRw}, v{t2}, 8, v{aRw}
s_lshl_b32 s{sT0}, s{sWave}, 13
v_add_u32 v{aRw}, s{sT0}, v{aRw}
v_xor_b32 v{aRw+1}, 64, v{aRw}
v_and_b32 v{aPf}, 7, v{vL}
v_lshlrev_b32 v{aPf}, 2, v{aPf}
v_add_u32 v{aPf}, {RF}, v{aPf}
s_mul_i32 s{sT0}, s{sRb}, 448
s_mul_i32 s{sT1}, s{sWave}, 28
s_add_u32 s{sT0}, s{sT0}, s{sT1}
s_lshl_b32 s{sT1}, s{sKh}, 2
s_add_u32 s{sT0}, s{sT0}, s{sT1}
s_lshl_b32 s{sT0}, s{sT0}, 10
s_mul_i32 s{sT1}, s{sKh}, {112*1024}
s_mul_i32 s{sT2}, s{sKh}, {10*1024}''')
    for z in range(4):
        c=HH+(2*(z&1)+(z>>1))*112*1024
        k(f's_{"sub" if z>>1 else "add"}_u32 s{sG2[3*z]}, s{sT0}, s{sT1}')
        k(f's_add_u32 s{sG2[3*z]}, s{sG2[3*z]}, {c}')
        k(f's_add_u32 s{sG2[3*z+1]}, s{sG2[3*z]}, {14*1024}')
        k(f's_add_u32 s{sG2[3*z+2]}, s{sG2[3*z]}, s{sT2}')
def x_tail(o):
    g32=OPT.get('g32',0)
    groups=[(2*jj+hp,z) for jj in range(2) for z in range(2) for hp in range(2)]+[(b,z) for z in range(2) for b in (4,5,6)]+\
           [(6,2),(6,3),(0,2),(1,2),(0,3),(1,3),(2,2),(2,3)]+[(b,z) for z in (2,3) for b in (3,4,5)]
    blocks=[(0,2),(2,2),(4,2),(6,2),(8,3),(11,3),(14,2),(16,2),(18,2),(20,2),(22,3),(25,3)]
    PAIR=[('v',88),('v',96),('v',104),('v',112),('a',112),('a',120),('v',4),('v',120)]; NR=8
    def reg(gi,rh): f,b=PAIR[gi%NR]; return f'{f}[{b+4*rh}:{b+4*rh+3}]'
    def gl(gi):
        b,z=groups[gi]
        so,im=(o['sG2'][3*z+(b&1)],(b>>1)*1024) if b<6 else (o['sG2'][3*z+2],3072)
        if g32: return [f'buffer_load_dwordx4 {reg(gi,m)}, v{(vL16,aG)[m]}, {S(sWs,4)}, s{so} offen offset:{im} sc1' for m in range(2)]
        return [f'buffer_load_dwordx4 {reg(gi,rh)}, v{aG}, {S(sWs,4)}, s{so} offen offset:{im+256*rh} sc1' for rh in range(2)]
    st={'n':0}
    def issue(upto):
        while st['n']<upto:
            for l in gl(st['n']): k(l)
            st['n']+=1
    def chk_items(gi,n=2):
        name=f'G2_{gi}'; c=[]; rr=[]
        for g in reversed(range(gi,gi+n)):
            f,r=PAIR[g%NR]
            for x in (r+7,r+3):
                if f=='a': c.append(f'v_accvgpr_read_b32 v{vc2}, a{x}'); x=vc2
                c.append(f'v_bitop3_b32 v{vck}, v{vck}, v{x}, s{sTag} bitop3:0xf6' if rr else f'v_xor_b32 v{vck}, s{sTag}, v{x}'); rr.append(x)
        c+=[f'v_and_b32 v{vck}, v{vTm}, v{vck}', f'v_cmp_ne_u32 vcc, 0, v{vck}']
        def br():
            rl=[l for g in range(gi,gi+n) for l in gl(g)]
            k(f's_cbranch_vccnz R_{name}'); k.label(f'C_{name}'); retry_block(name, rl, c)
        return c+[br]
    verified=set()
    def verify(gi):
        for x in chk_items(gi): x() if callable(x) else k(x)
        verified.add(gi)
    k(f's_setprio {OPT.get("pe",3)}')
    for x in flag(117,aB): k(x)
    pre=[0,0,OPT.get('x2',0),OPT.get('x3',4)]
    for jj in range(4):
        out=ACC+16*jj+8
        gelu(o,jj,120 if jj==0 else ACC+16*(jj-1),out)
        if jj==3 and OPT.get('xv') and st['n']:
            for g in range(0,st['n'],2): verify(g)
        issue(pre[jj])
        hh_store(o,jj,out)
    stamp('epi')
    k(f's_setprio {OPT.get("pg",1)}')
    seq=[int(c) for c in str(OPT.get('chain',48))]
    for n_ in seq[:-1]:
        issue(n_)
        for g in range(0,n_,2):
            if g not in verified: verify(g)
    issue(seq[-1]); stamp('hc')
    def red_write(z):
        q=[]
        W4=[aRw,aB+2,aRw+1,aB+3]
        if z==0 and g32: q+=[f'v_xor_b32 v{aB+2+m}, 32, v{aRw+m}' for m in range(2)]
        if z==2: q+=[f'v_xor_b32 v{r}, 0x10000, v{r}' for r in (W4 if g32 else W4[::2])]
        if g32: q+=[f'ds_write_b128 v{W4[i]}, {V(ACC+32*(z&1)+16*ct+4*i,4)} offset:{32768*(z&1)+ct*128}' for ct in range(2) for i in range(4)]
        else: q+=[f'ds_write_b128 v{aRw+(c&1)}, {V(ACC+32*(z&1)+16*rh+4*c,4)} offset:{32768*(z&1)+rh*4096+(c>>1)*128}' for c in range(4) for rh in range(2)]
        return [(z,x) for x in q+flag(120+z,aB)]
    started=set(); pend=[]
    LIM=[int(x) for x in str(OPT.get('lim','16.16.16.16.16.28.28.28.28.28.28.28')).split('.')]
    for bi,(g0,n) in enumerate(blocks):
        upto=min(LIM[bi],g0+NR)
        lq=[l for g in range(st['n'],upto) for l in gl(g)]; st['n']=max(st['n'],upto)
        if OPT.get('nog2'): lq=[]
        lq2=[]
        if n==2 and min(LIM[bi],g0+1+NR)>st['n']: lq2=gl(st['n']) if not OPT.get('nog2') else []; st['n']+=1
        cq=chk_items(*blocks[bi+1]) if bi+1<len(blocks) and blocks[bi+1][0] not in verified else []
        assert bi+1==len(blocks) or sum(blocks[bi+1])<=upto
        gq=[]
        if bi==3:
            def gbr():
                k('s_cbranch_vccnz YGr'); k.label('YGc')
                kk=Asm(); kk.label('YGr')
                kk(f'''ds_read_b32 v{aB+1}, v{aPf}
s_add_u32 s{sSpin}, s{sSpin}, 1
s_cmp_lt_u32 s{sSpin}, {8*SPIN}
s_waitcnt lgkmcnt(0)
s_cbranch_scc0 YGc
v_cmp_gt_u32 vcc, 117, v{aB+1}
s_cbranch_vccnz YGr
s_branch YGc''')
                tail.append(kk.text())
            gq=[f'ds_read_b32 v{aB+1}, v{aPf}',None,None,None,None,f'v_cmp_gt_u32 vcc, 117, v{aB+1}', gbr]
        if bi==OPT.get('pb',99): k(f's_setprio {OPT.get("px",2)}')
        if not g32: seq=[(g0+i,m) for i in range(n) for m in range(8)] if n==2 else [(g0+i,m) for m in range(8) for i in range(n)]
        else: seq=[(g0+i,m) for i in range(n) for m in range(8)] if n==2 else [(g0+i,4*t+2*ct+e) for ct in range(2) for i in range(n) for t in range(2) for e in range(2)]
        NM=len(seq); c0=NM-max(len(cq),1)
        if OPT.get('nock'): cq=[]
        if n==3: wq=red_write(groups[g0][1])
        if n==3 and OPT.get('nowr'): wq=[(z_,'s_nop 0 ; b128' if 'b128' in x_ else x_) for z_,x_ in wq]
        for p,(gi,m) in enumerate(seq):
            b,z=groups[gi]; c,rh=m>>1,m&1
            while pend and pend[0][0]<=z-2: k(pend.pop(0)[1])
            if not g32:
                a=ACC+32*(z&1)+16*rh+4*c
                k(f'v_mfma_f32_16x16x32_bf16 {V(a,4)}, {A((b*4+c)*4,4)}, {reg(gi,rh)}, {V(a,4) if z in started else "0"}')
            elif rh==0:
                a=ACC+32*(z&1)+16*(c&1)
                k(f'v_mfma_f32_32x32x16_bf16 {V(a,16)}, {A((b*4+c)*4,4)}, {reg(gi,c>>1)}, {V(a,16) if z in started or c>=2 else "0"}')
            if m==7: started.add(z)
            if gq:
                x=gq.pop(0)
                if x: x() if callable(x) else k(x)
            if lq and (p&1==0 or len(lq)>(c0-p)//2): k(lq.pop(0))
            if p>=8 and lq2 and not lq and p&1==0: k(lq2.pop(0))
            if p>=c0 and cq:
                x=cq.pop(0); x() if callable(x) else k(x)
            if pend and 'b128' not in pend[0][1]: k(pend.pop(0)[1])
            elif pend and p%3==2 and (p>=5 or not g32): k(pend.pop(0)[1])
            if n==3 and p==0:
                while 'xor' in wq[0][1]: pend.append(wq.pop(0))
            if n==3 and not g32 and p%3==1 and p>=7: pend.append(wq.pop(0))
            if n==3 and g32 and p==15:
                for _ in range(4): pend.append(wq.pop(0))
        assert not lq and not lq2 and not cq
        if n==3:
            pend+=wq
        stamp(f'h{bi}')
        if bi in (3,5,6,8,10): stamp({3:'g4',5:'g8',6:'B1',8:'g11',10:'B2'}[bi])
    stamp('G2done')
    for x in pend: k(x[1])
    stamp('end')
    finish('L')
def y_setup(o):
    o['sEo']=sEo=sp.get(4,1); o['sUp']=sUp=sp.get(2); o['sXp']=sXp=sp.get(2,1); o['sDn']=sDn=sp.get()
    k(f'''v_and_b32 v{t0}, 7, v{vL}
v_lshrrev_b32 v{t1}, 3, v{vL}
v_lshlrev_b32 v{aRr}, 1, v{t0}
v_xor_b32 v{aRr}, v{aRr}, v{t1}
v_lshlrev_b32 v{aRr}, 4, v{aRr}
v_lshl_add_u32 v{aRr}, v{t1}, 8, v{aRr}
s_lshl_b32 s{sT2}, s{sWave}, 11
v_add_u32 v{aRr}, s{sT2}, v{aRr}
v_xor_b32 v{aRr+1}, 16, v{aRr}
v_lshlrev_b32 v{t0}, 4, v{t0}
v_lshl_add_u32 v{aHo}, v{t1}, 10, v{t0}
v_lshl_add_u32 v{aHo+1}, v{t1}, 18, v{t0}
v_and_b32 v{vc2}, 3, v{vL}
v_lshlrev_b32 v{vc2}, 2, v{vc2}
v_add_u32 v{vc2}, {RF+16}, v{vc2}
s_lshl_b32 s{sT0}, s{sCb}, 7
s_lshl_b32 s{sT1}, s{sRb}, 2
s_sub_u32 s{sT1}, s{sT1}, s{sKh}
s_add_u32 s{sT1}, s{sT1}, 1
s_lshl_b32 s{sT1}, s{sT1}, 2
s_add_u32 s{sT1}, s{sT1}, s{sWave}
s_lshl_b32 s{sEo}, s{sT1}, 13
s_add_u32 s{sEo}, s{sEo}, s{sT0}
s_add_u32 s{sEo}, s{sEo}, {HB}
s_add_u32 s{sEo+1}, s{sEo}, 65536
s_lshl_b32 s{sEo+2}, s{sT1}, 10
s_add_u32 s{sEo+2}, s{sEo+2}, s{sT0}
s_add_u32 s{sEo+3}, s{sEo+2}, 8192
s_lshl_b32 s{sUp}, s{sNon}, 29
s_sub_u32 s{sUp}, {fb(2.0**KH)}, s{sUp}
s_mul_i32 s{sDn}, s{sNon}, -64
s_lshl_b32 s{sT0}, s2, 13
s_lshl_b32 s{sT1}, s{sWave}, 11
s_add_u32 s{sT0}, s{sT0}, s{sT1}
s_add_u32 s{sXp}, s{sT0}, {XP}
s_xor_b32 s{sXp+1}, s{sXp}, 8192''')
def y_tail(o):
    sEo,sUp,sXp,sDn=o['sEo'],o['sUp'],o['sXp'],o['sDn']
    HV=88; RV=96; hq=104
    hl=[f'buffer_load_dwordx4 {V(HV+4*i,4)}, v{aHo}, {S(sWs,4)}, s{sEo+i} offen sc1' for i in range(2)]
    plan=OPT.get('yp','01_2')
    passes=[[int(c) for c in p_] for p_ in plan.split('_')]
    pf,body=y_pass(o,passes[0],False,o['fill']); pf()
    stamp('G1got')
    for pi,tiles in enumerate(passes):
        k(f's_setprio {OPT.get("pm",2)}')
        body()
        last=pi==len(passes)-1
        stamp('G1done' if last else f'k{4*(pi+1)}')
        if last:
            for x in flag(117,t0): k(x)
            for l in hl: k(l)
        k(f's_setprio {OPT.get("py",0)}')
        for jj in tiles:
            out=ACC+16*jj+8
            gelu(o,jj,ACC+48,out)
            if not last and jj==tiles[-1]: pf,body=y_pass(o,passes[pi+1],(pi+1)&1); pf()
            hh_store(o,jj,out)
        if not last: stamp(f'he{pi}')
    stamp('epi')
    def stage(z):
        p=ACC+32*(z&1)
        k(f's_setprio {OPT.get("psp",0)}')
        k.label(f'Rd{z}')
        k(f'ds_read_b32 v{vck}, v{vc2}')
        spec = z==3 and OPT.get('spec',0)
        rd=[f'ds_read_b128 {V(p+8*pw+4*x,4)}, v{aRr+x} offset:{32768*(z&1)+8192*pw}' for pw in range(4) for x in range(2)]
        if spec:
            for x in rd: k(x)
        bound(f'Rd{z}')
        if OPT.get('ssl'): k(f"s_sleep {OPT['ssl']}")
        k(f'v_cmp_gt_u32 vcc, {120+z}, v{vck}')
        k(f's_cbranch_vccnz Rd{z}'); k.label(f'Rd{z}c')
        k(f's_setprio {OPT.get("pr",0)}')
        if not spec:
            for x in rd: k(x)
        return p
    def add8(d,a,b,packed=False):
        if packed:
            for j in (0,2,4,6): k(f'v_pk_add_f32 {V(d+j,2)}, {V(a+j,2)}, {V(b+j,2)}')
        else:
            for j in range(8): k(f'v_add_f32 v{d+j}, v{a+j}, v{b+j}')
    for z in range(2):
        q=stage(z)
        if z==0: stamp('g4')
        for pw in range(1,4): add8(q,q,q+8*pw)
        for j in range(8): k(f'v_ldexp_f32 v{q+j}, v{q+j}, s{sDn}')
        for j in range(4): k(f'v_cvt_pk_bf16_f32 v{q+j}, v{q+2*j}, v{q+2*j+1}')
        for j in range(4): k(f'v_bfi_b32 v{q+j}, v{vTm}, s{sTag}, v{q+j}')
        hs=k(f'buffer_store_dwordx4 {V(q,4)}, v{vL16}, {S(sWs,4)}, s{sXp} offen offset:{1024*z} sc1')
    stamp('g8')
    k(f'v_xor_b32 v{aRr}, 0x10000, v{aRr}\nv_xor_b32 v{aRr+1}, 0x10000, v{aRr+1}')
    checked('H', hl, tagchk([HV,HV+3,HV+4,HV+7],vck))
    def unpack(d,src):
        for j in range(8):
            k(f'v_lshlrev_b32 v{d+2*j}, 16, v{src+j}')
            k(f'v_and_b32 v{d+2*j+1}, 0xffff0000, v{src+j}')
    unpack(hq,HV)
    k.wait_vm(hs)
    rl=[f'buffer_load_dwordx4 {V(RV+4*i,4)}, v{vL16}, {S(sWs,4)}, s{sXp+1} offen offset:{1024*i} sc1' for i in range(2)]
    for l in rl: k(l)
    def remote():
        checked('XP', rl, tagchk([RV+7,RV+4,RV+3,RV],vck))
        stamp('g11')
        unpack(ACC,RV); add8(hq,hq,ACC,True); add8(hq+8,hq+8,ACC+8,True)
    def fin(i):
        q=hq+8*i
        for j in (0,2,4,6): k(f'v_pk_mul_f32 {V(q+j,2)}, {V(q+j,2)}, {S(sUp,2)} op_sel_hi:[1,0]')
        for j in range(4): k(f'v_cvt_pk_bf16_f32 v{q+j}, v{q+2*j}, v{q+2*j+1}')
        k(f'buffer_store_dwordx4 {V(q,4)}, v{aHo+1}, {S(sOut,4)}, s{sEo+2+i} offen')
    ro=OPT.get('ro',1)
    if ro==0: remote()
    p=stage(2)
    for pw in range(4): add8(hq,hq,p+8*pw)
    if ro==1: remote()
    if ro<2: fin(0)
    stamp('G2done')
    p=stage(3)
    for pw in range(4): add8(hq+8,hq+8,p+8*pw,True)
    if ro==2: remote(); fin(0)
    fin(1)
    stamp('end')
    finish('F')
def finish(P):
    if OPT.get('amp','x')[0]==P:
        ra,rb=[r for n,r in stamps[P]]
        k(f'''s_memrealtime s[4:5]
s_waitcnt lgkmcnt(0)
s_sub_u32 s{sT0}, s{rb}, s{ra}
s_mul_i32 s{sT0}, s{sT0}, {OPT.get('ampk',2)}
s_min_u32 s{sT0}, s{sT0}, 100000''')
        k.label('Lamp')
        k(f'''s_memrealtime s[6:7]
s_waitcnt lgkmcnt(0)
s_sub_u32 s{sT1}, s6, s4
s_cmp_lt_u32 s{sT1}, s{sT0}
s_cbranch_scc1 Lamp''')
    if OPT['stamps']:
        k('s_waitcnt vmcnt(0) lgkmcnt(0)')
        k(f'''s_lshl_b32 s{sT0}, s2, 3
s_add_u32 s{sT0}, s{sT0}, s{sWid}
s_lshl_b32 s{sT0}, s{sT0}, 7
s_add_u32 s{sT0}, s{sT0}, {STAMP}''')
        for j,(nm,r) in enumerate(stamps[P]+[('cnt',sCnt)]):
            k(f'v_mov_b32 v{40+j}, s{r}')
            k(f'buffer_store_dword v{40+j}, off, {S(sWs,4)}, s{sT0} offset:{4*j}')
    k('s_endpgm')

import copy
sp_common=copy.deepcopy(sp); vm_common=list(k.vm)

vp=Pool(12,127); ap=Pool(112,128)
k(f"s_setprio {OPT.get('pf',3)}")
vL4=vp.get(); sXo=sp.get(2)
k(f'''v_lshlrev_b32 v{vL4}, 2, v{vL}
s_lshl_b32 s{sT0}, s{sWave}, 9
s_add_u32 s{sT0}, s{sT0}, s{sS2}
s_lshl_b32 s{sXo}, s{sT0}, 10
s_add_u32 s{sXo+1}, s{sXo}, 262144''')
srd_consts(((sX,2097152),(sWs,WSZ),(sWd,1792*1024),(sOut,2097152)))
fLo=vp.get(); fG=vp.get(); fP=vp.get()
k(f'''v_cvt_f32_u32 v{fLo}, v{vLo}
v_cvt_f32_u32 v{fG}, v{vG}
v_and_b32 v{t0}, 3, v{vLo}
v_lshrrev_b32 v{t1}, 2, v{vLo}
v_lshl_add_u32 v{t0}, v{t0}, 2, v{t1}
v_cvt_f32_u32 v{fP}, v{t0}''')
def cs(base, step):
    a=vp.get(4); c=vp.get(4)
    k(f'v_add_f32 v{a+1}, v{base}, v{step}\nv_fma_f32 v{a+2}, v{step}, 2.0, v{base}\nv_fma_f32 v{a+3}, v{step}, 2.0, v{a+1}')
    for r in range(4): k(f'v_cos_f32 v{c+r}, v{a+r if r else base}')
    for r in range(4): k(f'v_sin_f32 v{a+r}, v{a+r if r else base}')
    return (c,a)
def mk_matrix(base, step, neg=False):
    c,a=cs(base,step); re=vp.get(4); im=vp.get(4)
    for r in range(4):
        k(f'v_cvt_pk_bf16_f32 v{re+r}, v{c+r}, v{a+r}')
        k(f'v_cvt_pk_bf16_f32 v{im+r}, -v{a+r}, v{c+r}')
    res=[V(re,4),V(im,4),re,im]
    if neg:
        n=ap.get(16,4)
        for r in range(4):
            k(f'v_xor_b32 v{c+r}, 0x80008000, v{re+r}\nv_xor_b32 v{a+r}, 0x80008000, v{im+r}')
        for j,src in enumerate((re,im,c,a)):
            for r in range(4): k(f'v_accvgpr_write_b32 a{n+4*j+r}, v{src+r}')
        res=[A(n+4*j,4) for j in range(4)]
        vp.put(re,4); vp.put(im,4)
    vp.put(a,4); vp.put(c,4)
    return res
C={}
def c_F16():
    k(f'v_mul_f32 v{t0}, {fb(1/16)}, v{fLo}\nv_mul_f32 v{t1}, 4.0, v{t0}\nv_mul_f32 v{t0}, v{t0}, v{fG}')
    C['F16']=mk_matrix(t0,t1)
def c_G():
    k(f'v_mul_f32 v{t1}, {fb(1/16)}, v{fP}\nv_mul_f32 v{t0}, 4.0, v{fG}\nv_mul_f32 v{t0}, v{t0}, v{t1}')
    C['G16']=mk_matrix(t0,t1)
    k(f'v_fma_f32 v{t0}, v{t1}, 0.5, v{t0}')
    C['G32']=mk_matrix(t0,t1)
def c_TW():
    k(f'v_mul_f32 v{t1}, {fb(1/256)}, v{fLo}\nv_mul_f32 v{t0}, 4.0, v{fG}\nv_mul_f32 v{t0}, v{t0}, v{t1}')
    C['TW0']=cs(t0,t1)
    k(f'v_fma_f32 v{t0}, v{t1}, 0.5, v{t0}')
    C['TWA']=cs(t0,t1)
M3=vp.get(2); fS2=vp.get(); aFr=vp.get()
xf=vp.get(16,4); op=vp.get(8,4); D=vp.get(16,4); D2=vp.get(16,4); c4=D
def c_M3():
    k(f'''v_cvt_f32_u32 v{fS2}, s{sS2}
v_lshrrev_b32 v{t0}, 1, v{vLo}
v_and_b32 v{t1}, 1, v{vLo}
v_cvt_f32_u32 v{t0}, v{t0}
v_cvt_f32_u32 v{t1}, v{t1}
v_mul_f32 v{fS2}, {fb(1/2048)}, v{fS2}
v_mul_f32 v{t1}, {fb(0.25)}, v{t1}
v_mul_f32 v{t2}, {fb(0.25)}, v{fG}
v_add_f32 v{t2}, v{t2}, v{fS2}
v_fma_f32 v{t1}, v{t2}, v{t0}, v{t1}
v_mul_f32 v{t0}, {fb(0.125)}, v{t0}
v_add_f32 v{t0}, v{t0}, v{t1}
v_cos_f32 v{c4}, v{t1}
v_sin_f32 v{c4+1}, v{t1}
v_sin_f32 v{c4+3}, v{t0}
v_cos_f32 v{c4+2}, v{t0}
v_sub_f32 v{t0}, v{c4}, v{c4+3}
v_add_f32 v{t2}, v{c4}, v{c4+3}
v_add_f32 v{t1}, v{c4+1}, v{c4+2}
v_sub_f32 v{t3}, v{c4+2}, v{c4+1}
v_mul_f32 v{t0}, {fb(2.0**-KS)}, v{t0}
v_mul_f32 v{t1}, {fb(2.0**-KS)}, v{t1}
v_mul_f32 v{t2}, {fb(2.0**-KS)}, v{t2}
v_mul_f32 v{t3}, {fb(2.0**-KS)}, v{t3}
v_cvt_pk_bf16_f32 v{M3}, v{t0}, v{t1}
v_cvt_pk_bf16_f32 v{M3+1}, v{t2}, v{t3}''')
sX1o=sp.get(); AD={}
def c_addrA():
    vp.put(fP)
    AD['Zw']=aZw=vp.get(); AD['P']=aP=vp.get(); AD['N']=aN=vp.get()
    k(f'''s_mul_i32 s{sT0}, s{sWave}, {513*4}
s_add_u32 s{sT0}, s{sT0}, {R0}
v_add_u32 v{aZw}, s{sT0}, v{vL4}
v_mul_u32_u24 v{t0}, {513*4}, v{vG}
v_lshlrev_b32 v{t1}, 4, v{vLo}
s_lshl_b32 s{sT0}, s{sWave}, 8
s_add_u32 s{sT1}, s{sT0}, {R0+4}
s_sub_u32 s{sT0}, {R0+4*(511-3)}, s{sT0}
v_add3_u32 v{aP}, v{t0}, v{t1}, s{sT1}
v_sub_u32 v{t0}, v{t0}, v{t1}
v_add_u32 v{aN}, s{sT0}, v{t0}
s_mul_i32 s{sX1o}, s{sS2}, {X1S}
s_lshl_b32 s{sT1}, s{sWave}, 11
s_add_u32 s{sX1o}, s{sX1o}, s{sT1}
s_add_u32 s{sX1o}, s{sX1o}, {X1}
v_and_b32 v{aFr}, 12, v{vL4}
v_add_u32 v{aFr}, {RF}, v{aFr}''')
cA=[c_F16,c_TW,c_G,c_M3,c_addrA]
for f in cA[:OPT['early']]: f()
k(f's_mov_b64 {S(sX,2)}, s[4:5]')
stamp('fkarg')
xr=op
for rho in range(2):
    for i in range(4):
        k(f'buffer_load_dword v{xr+4*rho+i}, v{vL4}, {S(sX,4)}, s{sXo+rho} offen offset:{256*i}')
sp.put(sXo,2)
k.barrier()
k(f'''s_load_dword s{sNon}, s[20:21], {NONCE}
s_mov_b64 {S(sWs,2)}, s[20:21]
s_mov_b64 {S(sWd,2)}, s[16:17]
s_mov_b64 {S(sOut,2)}, s[18:19]''')
for f in cA[OPT['early']:]: f()
tag_calc()
stamp('fconst')
F16,G16,G32,TW0,TWA=C['F16'],C['G16'],C['G32'],C['TW0'],C['TWA']
nsync={'n':0}
def fsync(reads):
    nsync['n']+=1; n=[0,2,6,8,12,14][nsync['n']]
    k(f'v_mov_b32 v{vPh}, {n}')
    k(f'ds_write_b32 v{aFw}, v{vPh}')
    k.label(f'Sy{n}')
    k(f'ds_read_b32 v{t3}, v{aFr}')
    for r in reads: k(r)
    bound(f'Sy{n}')
    k(f'v_cmp_gt_u32 vcc, {n}, v{t3}')
    k(f's_cbranch_vccnz Sy{n}'); k.label(f'Sy{n}c')

def hint(n):
    if OPT.get('hint'): k(f'v_mov_b32 v{vPh}, {n}\nds_write_b32 v{aFw}, v{vPh}')
def pk(op_, d, *src, mods=''):
    k(f'{op_} {V(d,2)}, '+', '.join(V(x,2) if isinstance(x,int) else x for x in src)+(' '+mods if mods else ''))
sSt=sp.get(4,2)
def stats(xf, scale, a):
    for rho in range(2):
        pk('v_pk_add_f32', a+4*rho, xf+8*rho, xf+8*rho+2)
        pk('v_pk_mul_f32', a+4*rho+2, xf+8*rho, xf+8*rho)
    for j in (2,4,6):
        for rho in range(2):
            if j>2: pk('v_pk_add_f32', a+4*rho, a+4*rho, xf+8*rho+j)
            pk('v_pk_fma_f32', a+4*rho+2, xf+8*rho+j, xf+8*rho+j, a+4*rho+2)
    for j in (0,4,2,6): k(f'v_add_f32 v{a+j}, v{a+j}, v{a+j+1}')
    k(f'v_permlane32_swap_b32 v{a}, v{a+4}')
    k(f'v_permlane32_swap_b32 v{a+2}, v{a+6}')
    k(f'v_add_f32 v{a}, v{a}, v{a+4}')
    k(f'v_add_f32 v{a+2}, v{a+2}, v{a+6}')
    for m in ('row_ror:8 row_mask:0xf','row_ror:4 row_mask:0xf','row_ror:2 row_mask:0xf','row_ror:1 row_mask:0xf','row_bcast:15 row_mask:0xa'):
        for j in (0,2): k(f'v_add_f32_dpp v{a+j}, v{a+j}, v{a+j} {m} bank_mask:0xf')
    k(f'''v_mul_f32 v{a}, {fb(1/512)}, v{a}
v_mul_f32 v{a+2}, {fb(1/512)}, v{a+2}
v_fma_f32 v{a+2}, -v{a}, v{a}, v{a+2}
v_max_f32 v{a+2}, 0, v{a+2}
v_add_f32 v{a+2}, {fb(1e-5)}, v{a+2}
v_rsq_f32 v{a+2}, v{a+2}''')
    if scale!=1: k(f'v_mul_f32 v{a+2}, {fb(scale)}, v{a+2}')
    k(f'''v_mul_f32 v{a}, -v{a}, v{a+2}
v_readlane_b32 s{sSt}, v{a+2}, 31
v_readlane_b32 s{sSt+1}, v{a}, 31
v_readlane_b32 s{sSt+2}, v{a+2}, 63
v_readlane_b32 s{sSt+3}, v{a}, 63''')
def normalize(xf,n):
    for rho in range(2):
        for j in range(0,8,2):
            pk('v_pk_fma_f32', n+8*rho+j, xf+8*rho+j, S(sSt+2*rho,2), S(sSt+2*rho,2), mods='op_sel:[0,0,1] op_sel_hi:[1,0,1]')
def R4(x): return V(x,4) if isinstance(x,int) else x
def mf32(d,a,b,c='0'): k(f'v_mfma_f32_16x16x32_bf16 {V(d,4)}, {R4(a)}, {R4(b)}, {R4(c)}')
def mf16(d,a,b): k(f'v_mfma_f32_16x16x16_bf16 {V(d,4)}, {V(a,2)}, {V(b,2)}, 0')
tc=vp.get(4)
def cmul_pack(dre,dim,tw,out,conj=True,swap=False):
    c,s_=tw
    ng='neg_lo:[1,0] neg_hi:[1,0]'; ng3='neg_lo:[1,0,0] neg_hi:[1,0,0]'
    for j in (0,2): pk('v_pk_mul_f32', tc+j, dre+j, c+j)
    for j in (0,2): pk('v_pk_mul_f32', dre+j, dre+j, s_+j, mods=ng if conj else '')
    for j in (0,2):
        pk('v_pk_fma_f32', tc+j, dim+j, s_+j, tc+j, mods='' if conj else ng3)
        pk('v_pk_fma_f32', dre+j, dim+j, c+j, dre+j)
    for r in range(4):
        a,b=(dre+r,tc+r) if swap else (tc+r,dre+r)
        k(f'v_cvt_pk_bf16_f32 v{out+r}, v{a}, v{b}')
def settag(r): k(f'v_bfi_b32 v{r}, v{vTm}, s{sTag}, v{r}')

for rho in range(2):
    for i in range(4):
        k(f'v_lshlrev_b32 v{xf+8*rho+i}, 16, v{xr+4*rho+i}')
        k(f'v_and_b32 v{xf+8*rho+4+i}, 0xffff0000, v{xr+4*rho+i}')
stamp('xload')
stats(xf,1,D)
normalize(xf,D2)
for e in range(2):
    for i in range(4): k(f'v_cvt_pk_bf16_f32 v{op+4*e+i}, v{D2+4*e+i}, v{D2+8+4*e+i}')
for e in range(2):
    mf32(D+8*e, op+4*e, F16[0]); mf32(D+8*e+4, op+4*e, F16[1])
for e in range(2):
    cmul_pack(D+8*e, D+8*e+4, (TW0,TWA)[e], op+4*e)
    Gm=(G16,G32)[e]
    mf32(D2+8*e, Gm[0], op+4*e); mf32(D2+8*e+4, Gm[1], op+4*e)
for t in range(2):
    for j in (0,2,4,6): pk('v_pk_add_f32', D+8*t+j, D2+j, D2+8+j, mods='neg_lo:[0,1] neg_hi:[0,1]' if t else '')
    for r in range(4): k(f'v_cvt_pk_bf16_f32 v{op+4*t+r}, v{D+8*t+r}, v{D+8*t+4+r}')
    for nn in (2*t,2*t+1):
        k(f'ds_write2st64_b32 v{AD["Zw"]}, v{op+2*nn}, v{op+2*nn+1} offset0:{2*nn} offset1:{2*nn+1}')
fsync([x for e in range(4) for x in (f'ds_read_b32 v{D2+8+2*e}, v{AD["P"]} offset:{4*e}', f'ds_read_b32 v{D2+8+2*e+1}, v{AD["N"]} offset:{4*(3-e)}')])
stamp('fAbar')
for e in range(4): mf16(D+4*e, M3, D2+8+2*e)
for b0 in range(2):
    o=D2+4*b0
    for e in range(4): k(f'v_cvt_pk_bf16_f32 v{o+e}, v{D+4*e+2*b0}, v{D+4*e+2*b0+1}')
    for e in range(4): settag(o+e)
    hA=k(f'buffer_store_dwordx4 {V(o,4)}, v{vL16}, {S(sWs,4)}, s{sX1o} offen offset:{b0*1024} sc1')
stamp('Adone')
hint(3)
for r_,n_ in ((G32[2],4),(G32[3],4),(TWA[0],4),(TWA[1],4),(M3,2),(AD['Zw'],1),(AD['P'],1),(AD['N'],1)): vp.put(r_,n_)
sp.put(sX1o)

k(f'''v_fma_f32 v{t3}, v{fLo}, 2.0, 1.0
v_mul_f32 v{t0}, {fb(1/32)}, v{t3}
v_mul_f32 v{t1}, 4.0, v{t0}
v_mul_f32 v{t0}, v{t0}, v{fG}''')
H=mk_matrix(t0,t1,neg=True)
M3i=vp.get(2); u0=D+4; SC=2.0**(KS-21)
k(f'''v_lshrrev_b32 v{t0}, 2, v{vLo}
v_cvt_f32_u32 v{t0}, v{t0}
v_mul_f32 v{u0}, {fb(0.25)}, v{t0}
v_add_f32 v{u0}, v{u0}, v{fS2}
v_bfe_u32 v{t0}, v{vLo}, 1, 1
v_and_b32 v{t1}, 1, v{vLo}
v_cvt_f32_u32 v{t0}, v{t0}
v_cvt_f32_u32 v{t1}, v{t1}
v_fma_f32 v{t0}, v{t0}, 2.0, -1.0
v_mul_f32 v{t0}, {fb(0.25)}, v{t0}
v_mul_f32 v{u0+1}, v{t0}, v{t1}''')
for nn in range(2):
    k(f'''v_fma_f32 v{t1}, v{fG}, 2.0, {"1.0" if nn else "0"}
v_fma_f32 v{t2}, v{u0}, v{t1}, v{u0+1}
v_mul_f32 v{t1}, {fb(0.125)}, v{t1}
v_sub_f32 v{t1}, v{t1}, v{t0}
v_add_f32 v{t1}, v{t1}, v{t2}
v_cos_f32 v{c4}, v{t2}
v_sin_f32 v{c4+1}, v{t2}
v_cos_f32 v{c4+2}, v{t1}
v_sin_f32 v{c4+3}, v{t1}
v_add_f32 v{t1}, v{c4}, v{c4+2}
v_add_f32 v{t2}, v{c4+1}, v{c4+3}
v_mul_f32 v{t1}, {fb(SC)}, v{t1}
v_mul_f32 v{t2}, {fb(-SC)}, v{t2}
v_cvt_pk_bf16_f32 v{M3i+nn}, v{t1}, v{t2}''')
vp.put(fS2)
Wf=[vp.get(4) for _ in range(4)]
aF=vp.get(); aBin=vp.get(); aBw=vp.get(); aBr=vp.get(); sBo=sp.get(2,1); aOw=vp.get(); aOr=vp.get(); sX2o=sp.get()
k(f'''s_lshl_b32 s{sT0}, s{sWave}, 2
s_add_u32 s{sT0}, s{sT0}, {R2}
v_add_u32 v{aF}, s{sT0}, v{vL16}
s_mul_i32 s{sX2o}, s2, {X2S}
s_lshl_b32 s{sT1}, s{sWave}, 11
s_add_u32 s{sX2o}, s{sX2o}, s{sT1}
s_add_u32 s{sX2o}, s{sX2o}, {X2}
v_lshrrev_b32 v{t1}, 1, v{vL}
v_and_b32 v{t2}, 1, v{vL}
v_mul_u32_u24 v{aBin}, {X1S}, v{t1}
v_lshl_add_u32 v{aBin}, v{t2}, 4, v{aBin}
v_mul_u32_u24 v{aBw}, 4160, v{t2}
v_lshl_add_u32 v{aBw}, v{t1}, 3, v{aBw}
s_lshl_b32 s{sT0}, s{sWave}, 8
s_add_u32 s{sT0}, s{sT0}, {R1}
v_add_u32 v{aBw}, s{sT0}, v{aBw}
s_lshl_b32 s{sT0}, s{sWave}, 11
s_lshr_b32 s{sT1}, s{sWave}, 1
s_lshl_b32 s{sT1}, s{sT1}, 6
s_add_u32 s{sT0}, s{sT0}, s{sT1}
s_add_u32 s{sT0}, s{sT0}, {R1}
v_lshl_add_u32 v{aBr}, v{vL}, 3, s{sT0}
s_lshr_b32 s{sT0}, s{sJ}, 3
s_lshl_b32 s{sT0}, s{sT0}, 11
s_and_b32 s{sT1}, s{sXc}, 1
s_lshl_b32 s{sT1}, s{sT1}, 10
s_add_u32 s{sT0}, s{sT0}, s{sT1}
s_lshr_b32 s{sT1}, s{sXc}, 1
s_lshl_b32 s{sT1}, s{sT1}, 8
s_add_u32 s{sT0}, s{sT0}, s{sT1}
s_and_b32 s{sT1}, s{sJ}, 7
s_lshl_b32 s{sT1}, s{sT1}, 5
s_add_u32 s{sT0}, s{sT0}, s{sT1}
s_and_b32 s{sT1}, s{sWave}, 1
s_lshr_b32 s{sT2}, s{sWave}, 1
s_lshl_b32 s{sT2}, s{sT2}, 2
s_add_u32 s{sT1}, s{sT1}, s{sT2}
s_mul_i32 s{sT1}, s{sT1}, {32*X1S}
s_add_u32 s{sT0}, s{sT0}, s{sT1}''')
for i in range(2): k(f's_add_u32 s{sBo+i}, s{sT0}, {X1+64*i*X1S}')
assert all(swapbits(64*r)&4==0 for r in range(4))
if NB:
    k(f'''v_and_b32 v{t1}, {mA}, v{vL}
v_and_b32 v{t2}, {mB}, v{vL}
v_and_b32 v{t0}, {255&~(mA|mB)}, v{vL}
v_lshrrev_b32 v{t1}, {NB}, v{t1}
v_lshlrev_b32 v{t2}, {NB}, v{t2}
v_or3_b32 v{t0}, v{t0}, v{t1}, v{t2}''')
else: k(f'v_mov_b32 v{t0}, v{vL}')
k(f'''s_lshl_b32 s{sT0}, s{sWave}, 3
s_add_u32 s{sT0}, s{sT0}, {R0}
v_and_b32 v{t1}, 4, v{t0}
v_lshlrev_b32 v{t1}, 2, v{t1}
v_lshl_add_u32 v{t0}, v{t0}, 5, s{sT0}
v_xor_b32 v{aOw}, v{t0}, v{t1}
v_bfe_u32 v{t0}, v{vL}, 3, 1
v_xor_b32 v{t0}, v{t0}, v{vL}
s_lshl_b32 s{sT0}, s{sWave}, 11
s_add_u32 s{sT0}, s{sT0}, {R0}
v_lshl_add_u32 v{aOr}, v{t0}, 4, s{sT0}''')
ffn_roles(0); x3_off()
stamp('fS1')
k.wait_vm(hA)
hint(4)
if OPT.get('dB'): k(f"s_sleep {OPT['dB']}")

ld=D; ck=t0
loads=[f'buffer_load_dwordx4 {V(ld+4*i,4)}, v{aBin}, {S(sWs,4)}, s{sBo+i} offen sc1' for i in range(2)]
stamp('Bpoll')
for l in loads: k(l)
hint(5)
chk=[]
for nn in range(2):
    chk+=[f'v_xor_b32 v{op+2*e+nn}, s{sTag}, v{ld+4*nn+e}' for e in range(4)]
    if nn==0: chk+=[f'v_or3_b32 v{ck}, v{op}, v{op+2}, v{op+4}']
chk+=[f'v_or3_b32 v{ck+1}, v{op+6}, v{op+1}, v{op+3}', f'v_or3_b32 v{ck}, v{ck}, v{op+5}, v{op+7}',
      f'v_bitop3_b32 v{ck}, v{ck}, v{ck+1}, v{vTm} bitop3:0xa8', f'v_cmp_ne_u32 vcc, 0, v{ck}']
checked('B', loads, chk)
stamp('Bgot')
for e in range(4): k(f'ds_write_b64 v{aBw}, {V(op+2*e,2)} offset:{1024*e}')
fsync([f'ds_read_b64 {V(D2+4*e+2*ih,2)}, v{aBr} offset:{1024*e+512*ih}' for e in range(2) for ih in range(2)])
wrd=[f'ds_read_b32 v{t3}, v{aFr} offset:16']+[f'ds_read_b32 v{Wf[2+m]+r}, v{aF} offset:{4096*m+1024*r}' for m in range(2) for r in range(4)]
for e in range(2):
    mf32(D+8*e, D2+4*e, F16[0]); mf32(D+8*e+4, D2+4*e, F16[1])
stamp('fB0')
wq=list(wrd)
for x in wq[:5]: k(x)
cmul_pack(D, D+4, TW0, op)
for x in wq[5:7]: k(x)
mf32(D2, G16[0], op); mf32(D2+4, G16[1], op)
for x in wq[7:]: k(x)
cmul_pack(D+8, D+12, TW0, op+4)
k(f'v_cmp_gt_u32 vcc, 6, v{t3}')
k(f'v_and_b32 v{aFr}, 28, v{vL4}')
mf32(D2+8, G16[0], op+4); mf32(D2+12, G16[1], op+4)
k('s_cbranch_vccnz WSr'); k.label('WSc')
kk=Asm(); kk.label('WSr')
kk(f'v_and_b32 v{t2}, 12, v{vL4}\nv_add_u32 v{t2}, {RF}, v{t2}')
kk.label('WSl')
kk(wrd[0].replace(f'v{aFr} ',f'v{t2} '))
for x in wrd[1:]: kk(x)
kk(f'''s_add_u32 s{sSpin}, s{sSpin}, 1
s_cmp_lt_u32 s{sSpin}, {8*SPIN}
s_waitcnt lgkmcnt(0)
s_cbranch_scc0 WSc
v_cmp_gt_u32 vcc, 6, v{t3}
s_cbranch_vccnz WSl
s_branch WSc''')
tail.insert(0,kk.text())
for m in range(2):
    for r in range(4): k(f'v_lshlrev_b32 v{Wf[m]+r}, 16, v{Wf[2+m]+r}')
for e in range(2):
    cmul_pack(D2+8*e, D2+8*e+4, (Wf[2*e], Wf[2*e+1]), op+4*e, conj=False, swap=True)
    if e==0:
        for r in range(2): k(f'v_and_b32 v{Wf[2]+r}, 0xffff0000, v{Wf[2]+r}')
    else: k(f'v_add_u32 v{aFr}, {RF}, v{aFr}')
    mf32(D+8*e, op+4*e, F16[0]); mf32(D+8*e+4, op+4*e, F16[1])
    if e==0:
        for r in (Wf[2]+2,Wf[2]+3,Wf[3],Wf[3]+1,Wf[3]+2,Wf[3]+3): k(f'v_and_b32 v{r}, 0xffff0000, v{r}')
hint(7)
for e in range(2):
    cmul_pack(D+8*e, D+8*e+4, TW0, op+4*e)
    mf32(D2+8*e, G16[0], op+4*e); mf32(D2+8*e+4, G16[1], op+4*e)
for r in range(4): k(f'v_cvt_pk_bf16_f32 v{D+2*r}, v{D2+4+r}, v{D2+r}')
for r in range(4): settag(D+2*r)
for r in range(4):
    k(f'v_cvt_pk_bf16_f32 v{D+2*r+1}, v{D2+12+r}, v{D2+8+r}')
    settag(D+2*r+1)
    k(f'ds_write_b64 v{aOw}, {V(D+2*r,2)} offset:{swapbits(64*r)*32}')
stamp('fB1')
fsync([f'ds_read_b128 {V(D+8+4*i,4)}, v{aOr} offset:{1024*i}' for i in range(2)])
stamp('fB2')
for i in range(2): hB=k(f'buffer_store_dwordx4 {V(D+8+4*i,4)}, v{vL16}, {S(sWs,4)}, s{sX2o} offen offset:{1024*i} sc1')
stamp('Bdone')
hint(9)
for r_,n_ in [(w_,4) for w_ in Wf]+[(aBin,1),(aBw,1),(aBr,1),(aOw,1),(aOr,1),(aF,1)]: vp.put(r_,n_)
sp.put(sBo,2); sp.put(sX2o)
k(f'v_fma_f32 v{t3}, v{fLo}, 2.0, 1.0\nv_mul_f32 v{t1}, {fb(1/512)}, v{t3}\nv_mul_f32 v{t0}, 4.0, v{fG}\nv_mul_f32 v{t0}, v{t0}, v{t1}')
TWC=cs(t0,t1)
nyq=vp.get(2); aCin=vp.get(); aCp=vp.get(); aCn=vp.get(); aCr=vp.get(2,1); sCo=sp.get(2,1)
aLw=vp.get(2,1); aLr=vp.get(); aHw=vp.get(); aHr=vp.get(); sHb=sp.get()
CB=R1+16; CS=2064
k(f'''v_and_b32 v{t0}, 0xcf, v0
v_mov_b32 v{t1}, 0.5
v_cmp_eq_u32 vcc, 0xcf, v{t0}
v_lshrrev_b32 v{t0}, 1, v{vLo}
v_lshlrev_b32 v{t0}, 2, v{t0}
v_cndmask_b32 v{nyq}, 1.0, v{t1}, vcc
v_cndmask_b32 v{nyq+1}, 0, v{t1}, vcc
v_add_u32 v{t0}, v{t0}, v{vG}
v_mul_u32_u24 v{t0}, {2*X2S}, v{t0}
v_and_b32 v{t1}, 1, v{vLo}
v_lshl_add_u32 v{aCin}, v{t1}, 4, v{t0}
s_mul_i32 s{sT0}, s{sWave}, {64*X2S}
s_lshl_b32 s{sT1}, s{sPos}, 5
s_add_u32 s{sT0}, s{sT0}, s{sT1}
s_add_u32 s{sCo}, s{sT0}, {X2}
s_add_u32 s{sCo+1}, s{sT0}, {X2+X2S}
v_mul_u32_u24 v{t0}, {CS}, v{vG}
v_lshlrev_b32 v{t1}, 4, v{vLo}
s_lshl_b32 s{sT0}, s{sWave}, 8
s_add_u32 s{sT1}, s{sT0}, {CB}
s_sub_u32 s{sT0}, {CB+1024+4*252}, s{sT0}
v_add3_u32 v{aCp}, v{t0}, v{t1}, s{sT1}
v_sub_u32 v{t0}, v{t0}, v{t1}
v_add_u32 v{aCn}, s{sT0}, v{t0}
s_mul_i32 s{sT0}, s{sWave}, {CS}
s_add_u32 s{sT0}, s{sT0}, {CB-4}
v_add_u32 v{aCr}, s{sT0}, v{vL4}
v_add_u32 v{aCr+1}, {1028}, v{aCr}
v_mov_b32 v{t0}, s{sT0}
v_mov_b32 v{t1}, 0
ds_write_b32 v{t0}, v{t1}
v_and_b32 v{t0}, 7, v{vL}
s_lshl_b32 s{sT0}, s{sWave}, 1
v_xor_b32 v{t0}, s{sT0}, v{t0}
v_lshlrev_b32 v{t0}, 4, v{t0}
v_lshl_add_u32 v{t0}, v{vL}, 7, v{t0}
v_add_u32 v{aLw}, {R0}, v{t0}
v_xor_b32 v{aLw+1}, 16, v{aLw}
v_lshrrev_b32 v{t0}, 3, v{vL}
v_xor_b32 v{t0}, v{t0}, v{vL}
s_lshl_b32 s{sT0}, s{sWave}, 11
s_add_u32 s{sT1}, s{sT0}, {R0}
v_lshl_add_u32 v{aLr}, v{t0}, 4, s{sT1}
s_add_u32 s{sT1}, s{sT0}, {RH}
v_add_u32 v{aHw}, s{sT1}, v{vL4}
v_add_u32 v{aHr}, s{sT1}, v{vL16}
s_lshl_b32 s{sHb}, s{sS2}, 13
s_add_u32 s{sHb}, s{sHb}, s{sT0}
s_add_u32 s{sHb}, s{sHb}, {HB}''')
stamp('fS3')
k.wait_vm(hB)
hint(10)
if OPT.get('dC'): k(f"s_sleep {OPT['dC']}")

loads=[f'buffer_load_dwordx4 {V(ld+4*i,4)}, v{aCin}, {S(sWs,4)}, s{sCo+i} offen sc1' for i in range(2)]
stamp('Cpoll')
for l in loads: k(l)
hint(11)
checked('C', loads, chk)
stamp('Cgot')
for e in (3,0,1,2): mf16(D+4*e, M3i, op+2*e)
pk('v_pk_mul_f32', D+14, D+14, nyq, mods='op_sel:[0,0] op_sel_hi:[1,0]')
pk('v_pk_fma_f32', D+14, D+12, nyq, D+14, mods='op_sel:[0,1,0] op_sel_hi:[1,1,1]')
for e in (3,0,1,2): k(f'v_cvt_pk_bf16_f32 v{D2+e}, v{D+4*e+1}, v{D+4*e}')
k(f'ds_write_b128 v{aCp}, {V(D2,4)}')
for e in (3,0,1,2): k(f'v_cvt_pk_bf16_f32 v{D2+4+3-e}, v{D+4*e+3}, v{D+4*e+2}')
k(f'ds_write_b128 v{aCn}, {V(D2+4,4)}')
fsync([f'ds_read2st64_b32 {V(op+4*t+2*nn,2)}, v{aCr+t} offset0:{2*nn} offset1:{2*nn+1}' for t in range(2) for nn in range(2)])
for e in range(2):
    for c in range(2): mf32(D+8*e+4*c, op, (F16,H)[e][c])
    for c in range(2): mf32(D+8*e+4*c, op+4, (F16[c],H[2+c])[e], D+8*e+4*c)
for e in range(2):
    cmul_pack(D+8*e, D+8*e+4, (TW0,TWC)[e], D2+4*e)
    mf32(xf+4*e, G16[1], D2+4*e, xf+4*e)
    mf32(xf+8+4*e, G16[0], D2+4*e, xf+8+4*e)
hint(13)
stats(xf,CG,D)
normalize(xf,D2)
for rho in range(2):
    for i in range(4): k(f'v_cvt_pk_bf16_f32 v{op+4*rho+i}, v{D2+8*rho+i}, v{D2+8*rho+4+i}')
    k(f'ds_write_b128 v{aLw+rho}, {V(op+4*rho,4)}')
fsync([f'ds_read_b128 {V(D+4*i,4)}, v{aLr} offset:{1024*i}' for i in range(2)])
for i in range(2): hC=k(f'buffer_store_dwordx4 {V(D+4*i,4)}, v{vL16}, {S(sWs,4)}, s{sX3o} offen offset:{1024*i} sc1')
stamp('Cdone')
hint(15)
k(f's_mov_b32 s{sSt}, {fb(2.0**-KH)}')
for j in range(0,16,2): pk('v_pk_mul_f32', xf+j, xf+j, S(sSt,2), mods='op_sel_hi:[1,0]')
for rho in range(2):
    for i in range(4): k(f'v_cvt_pk_bf16_f32 v{D2+4*rho+i}, v{xf+8*rho+i}, v{xf+8*rho+4+i}')
    for i in range(4): settag(D2+4*rho+i)
    for nn in range(2): k(f'ds_write2st64_b32 v{aHw}, v{D2+4*rho+2*nn}, v{D2+4*rho+2*nn+1} offset0:{4*rho+2*nn} offset1:{4*rho+2*nn+1}')
k(f'v_mov_b32 v{t0}, v{aHr}')
for i in range(2): k(f'ds_read_b128 {V(RING+4*i,4)}, v{t0} offset:{1024*i}')
k.wait_lg()
sp.put(sCo,2); sp.put(sSt,4)
k(f'''s_or_b32 s{sT0}, s2, s{sWave}
s_cmp_lg_u32 s{sT0}, 0
s_cbranch_scc1 Lnon
v_mov_b32 v{t1}, s{sTag}
s_mov_b32 s{sT0}, {NONCE}''')
k.raw(f'    buffer_store_dword v{t1}, off, {S(sWs,4)}, s{sT0} sc1')
k.label('Lnon')

oF=gemm_setup(0); y_setup(oF)
k.wait_vm(hC)
if OPT.get('dG'): k(f"s_sleep {OPT['dG']}")
k.barrier()
stamp('Gbar')
k('s_setprio 1')
for i in range(2): k(f'buffer_store_dwordx4 {V(RING+4*i,4)}, v{vL16}, {S(sWs,4)}, s{sHb} offen offset:{1024*i} sc1')
k('s_waitcnt vmcnt(0)')
oF['fill']=y_fill(oF)
stamp('wdone')
y_tail(oF)
nF=k.count

path['p']='L'; sp.free=list(sp_common.free)
k.hist=[]; k.vm=vm_common; k.lg=[]
mark=len(k.out)
k.label('LSTUB')
k(f'''s_mov_b32 s{sX+2}, 1052672
s_mov_b32 s{sX+3}, 0x20000
v_min_u32 v{t0}, 8, v{vLo}
v_lshlrev_b32 v{t0}, 6, v{t0}
v_mul_u32_u24 v{t1}, 4112, v{vG}
v_add_u32 v{t0}, v{t0}, v{t1}
s_lshl_b32 s{sT0}, s{sJ}, 1
s_and_b32 s{sT1}, s{sWave}, 1
s_add_u32 s{sT0}, s{sT0}, s{sT1}
s_lshl_b32 s{sT0}, s{sT0}, 5
s_add_u32 s{sT0}, s{sT0}, s{sXc}
s_mul_i32 s{sT0}, s{sT0}, 514
s_cmp_lt_u32 s{sWave}, 2
s_waitcnt lgkmcnt(0)
s_cselect_b64 {S(sX,2)}, s[6:7], s[8:9]''')
if not OPT.get('fe'): k('s_barrier')
hF=k(f'buffer_load_ushort v33, v{t0}, {S(sX,4)}, s{sT0} offen')
if OPT.get('fe'): k('s_barrier')
k('s_branch LPATH')
stub='\n'.join(k.out[mark:]); del k.out[mark:]
k.label('LPATH')
vdum=32; vS=40; vR=64; vB=48; aF=52; vSent=56
sFw=sp.get(2,1); sWr=sp.get(4,4); sWi=sp.get(4,4)
k(f'''s_load_dword s{sNon}, s[20:21], {NONCE}
s_mov_b64 {S(sWs,2)}, s[20:21]
s_mov_b64 {S(sWr,2)}, s[6:7]
s_mov_b64 {S(sWi,2)}, s[8:9]
s_mov_b64 {S(sWd,2)}, s[16:17]
s_mov_b64 {S(sOut,2)}, s[18:19]
s_bitcmp0_b32 s{sWave}, 0
s_cselect_b64 {S(sW1,2)}, s[12:13], s[14:15]''')
stamp('fkarg')
def l_pre():
    k(f'''s_cmp_lt_u32 s{sWave}, 2
s_cselect_b64 {S(sX,2)}, {S(sW1,2)}, {S(sWd,2)}
s_cmp_eq_u32 s{sWave}, 3
s_cselect_b32 s{sX+2}, 0, {512*3584}
s_mov_b32 s{sX+3}, 0x20000
v_min_u32 v{t0}, 55, v{vL}
v_lshlrev_b32 v{t0}, 7, v{t0}
s_mul_i32 s{sT0}, s2, {56*128}''')
    return k(f'buffer_load_dword v{vdum+2}, v{t0}, {S(sX,4)}, s{sT0} offen')
def l_p1():
    k(f'''s_mov_b32 s{sWd+2}, {1792*1024}
s_mov_b32 s{sWd+3}, 0x20000
s_lshl_b32 s{sT0}, s2, 2
s_add_u32 s{sT0}, s{sT0}, s{sWave}
s_mul_i32 s{sT0}, s{sT0}, {14*128}
v_min_u32 v{t0}, 13, v{vL}
v_lshlrev_b32 v{t0}, 7, v{t0}''')
    return k(f'buffer_load_dword v{vdum+2}, v{t0}, {S(sWd,4)}, s{sT0} offen')
def l_p2():
    k(f'''s_lshl_b32 s{sT0}, s2, 1
s_lshr_b32 s{sT1}, s{sWave}, 1
s_add_u32 s{sT0}, s{sT0}, s{sT1}
s_mul_i32 s{sT0}, s{sT0}, {28*128}
v_min_u32 v{t0}, 27, v{vL}
v_lshlrev_b32 v{t0}, 7, v{t0}''')
    return k(f'buffer_load_dword v{vdum+3}, v{t0}, {S(sW1,4)}, s{sT0} offen')
def l_bpre():
    assert NB==2
    k(f'''s_lshl_b32 s{sT0}, s{sJ}, 1
s_lshr_b32 s{sT1}, s{sWave}, 1
s_add_u32 s{sT0}, s{sT0}, s{sT1}
s_mul_i32 s{sT0}, s{sT0}, {8*3584}
s_and_b32 s{sT1}, s{sXc}, 3
s_mul_i32 s{sT1}, s{sT1}, 896
s_add_u32 s{sT0}, s{sT0}, s{sT1}
v_and_b32 v{t0}, 7, v{vL}
v_min_u32 v{t0}, 6, v{t0}
v_lshrrev_b32 v{t1}, 3, v{vL}
v_mul_u32_u24 v{t1}, 3584, v{t1}
v_lshl_add_u32 v{t0}, v{t0}, 7, v{t1}''')
    return k(f'buffer_load_dword v{vdum+4}, v{t0}, {S(sW1,4)}, s{sT0} offen')
def l_sent():
    for i in range(2): h=k(f'buffer_store_dwordx4 {V(vSent,4)}, v{vL16}, {S(sWs,4)}, s{sX3o} offen offset:{1024*i} sc1')
    return h
def l_gath(ms=(0,1)):
    for m in ms:
        k(f's_add_u32 m0, s{sFw+1}, {R2+4096*m}')
        h=k(f'buffer_load_dwordx4 v{aF}, {S((sWr,sWi)[m],4)}, s{sFw} offen lds')
    return h
def l_setup():
    srd_consts(((sWs,WSZ),(sWd,1792*1024),(sOut,2097152),(sW1,512*3584),(sWr,1052672),(sWi,1052672)))
    ffn_roles(1); x3_off()
    k(f'''v_and_b32 v{t0}, 255, v0
v_mul_u32_u24 v{aF}, 4112, v{t0}
s_mul_i32 s{sT0}, s{sXc}, 514
s_lshl_b32 s{sT1}, s{sJ}, 4
s_add_u32 s{sT0}, s{sT0}, s{sT1}
s_add_u32 s{sFw}, s{sT0}, 2
s_lshl_b32 s{sFw+1}, s{sWave}, 10
s_lshl_b32 s{sLq}, s{sWave}, 15''')
    for i in range(4): k(f'v_mov_b32 v{vSent+i}, -1')
    wd_addr(vS); wd_raddr(vR,sLq)
    k(f'''v_bfe_u32 v{t1}, v{vL}, 3, 1
v_lshl_add_u32 v{t1}, v{vG}, 7, v{t1}
v_mul_u32_u24 v{t1}, 3584, v{t1}
v_and_b32 v{t0}, 1, v{vG}
v_lshlrev_b32 v{t0}, 1, v{t0}
v_and_b32 v{t2}, 7, v{vL}
v_xor_b32 v{t0}, v{t0}, v{t2}
s_and_b32 s{sT0}, s{sWave}, 1
s_lshl_b32 s{sT0}, s{sT0}, 2
v_xor_b32 v{t0}, s{sT0}, v{t0}
v_xor_b32 v{t2}, 4, v{t0}
s_lshr_b32 s{sT0}, s{sWave}, 1
s_mul_i32 s{sT1}, s{sT0}, {32*7168}
s_lshl_b32 s{sT0}, s{sF0}, 5
s_add_u32 s{sT0}, s{sT0}, s{sT1}
v_add_u32 v{t1}, s{sT0}, v{t1}
v_lshl_add_u32 v{vB}, v{t0}, 4, v{t1}
v_lshl_add_u32 v{t2}, v{t2}, 4, v{t1}
v_add_u32 v{vB+1}, {6144}, v{t2}
v_add_u32 v{vB+2}, {2*6144}, v{vB}
v_add_u32 v{vB+3}, {3*6144}, v{t2}''')
    tag_calc()
    k(f"s_setprio {OPT.get('pl',0)}")
aPk=60; ngate={'n':0}
def gate(mask):
    ngate['n']+=1; n=ngate['n']
    k.label(f'Gt{n}')
    k(f'ds_read_b32 v{aPk+1}, v{aPk}')
    bound(f'Gt{n}')
    k(f'v_readfirstlane_b32 s{sT0}, v{aPk+1}')
    k(f's_bitcmp0_b32 {mask}, s{sT0}')
    k(f's_cbranch_scc1 Gt{n}'); k.label(f'Gt{n}c')
k(f's_lshl_b32 s{sT0}, s{sWave}, 2\ns_add_u32 s{sT0}, s{sT0}, {RF}\nv_mov_b32 v{aPk}, s{sT0}')
RUN=sum(1<<int(x) for x in str(OPT.get('run','3.6.9.12.15')).split('.'))
hl={'f':hF}; done_setup=False
flagged={'d':True,'v':0}
def try_flag(force=0):
    for v,names in ((6,('g','g1')),(100,('s',))):
        hs=[hl[n] for n in names if n in hl]
        if flagged['v']>=v or not hs or (v==100 and flagged['v']<6): continue
        if force>=v: k.wait_vm(hs[0])
        if hs[0] not in {e[0] for e in k.vm}:
            k(f'v_mov_b32 v{vPh}, {v}\nds_write_b32 v{aFw}, v{vPh}'); flagged['v']=v; stamp('gflag' if v==6 else 'fsent')
hd={}; nwd={'n':0}
def wd_next():
    b=nwd['n']; hd[b]=wd_load(b,vS); nwd['n']+=1; try_flag()
for tok in OPT['lord'].split('_'):
    if tok not in ('p','p1') and not done_setup: l_setup(); done_setup=True
    if tok[0]=='w': k.wait_vm(hl[tok[1:]]); stamp('f'+tok)
    elif tok[0]=='G': gate(0xffff&~((1<<int(tok[1:]))-1))
    elif tok[0]=='F': try_flag(int(tok[1:]))
    elif tok=='W': wd_next()
    else:
        hl[tok]={'p':l_pre,'p1':l_p1,'p2':l_p2,'s':l_sent,'g':l_gath,'g0':lambda:l_gath([0]),'g1':lambda:l_gath([1]),'b':l_bpre}[tok]()
        stamp('f'+tok)
assert flagged['v']==100
def b1_dma(g):
    k(f's_add_u32 m0, s{sLq}, {g*4096}\ns_mov_b32 s{sB0}, {g*4*7168}')
    for i in range(4):
        k(f'buffer_load_dwordx4 v{vB+i}, {S(sW1,4)}, s{sB0} offen offset:{i*1024} lds'); throttle('b')
if OPT.get('lgate'): gate(0xffff&~((1<<OPT['lgate'])-1))
nb=0; nx=0; hx={}
border=[7,0,1,2,3,4,5,6] if OPT.get('dma',1) else list(range(8))
for tok in OPT.get('seq','WWWWWWWXBXBXBXBXBXBXBB' if OPT.get('dma',1) else 'WWWWWWWBXBXBXBXBXBXBXB'):
    if tok=='W':
        if nwd['n']<7: wd_next()
    elif tok=='X': hx[nx]=wd_xp(nx,vR,hd[nx]); nx+=1
    else:
        g=border[nb]
        if OPT.get('dma',1):
            if g<7: k.wait_lg(hx[g])
        elif g==7: k.wait_lg(hx[6])
        if nb==7: stamp('wdone')
        b1_dma(g); nb+=1
assert nb==8 and nwd['n']==7 and nx==7
for r_,n_ in ((sFw,2),(sWr,4),(sWi,4)): sp.put(r_,n_)
oL=gemm_setup(1); x_setup(oL)
k('s_waitcnt vmcnt(0)')
stamp('bdone')
k.barrier()
stamp('Gbar')
k('s_setprio 3')
NRL=5
gemm1(1,oL,NRL,RING)
x_tail(oL)

hdr=f'''; Fused persistent kernel: LN -> 2-D FFT filter (MFMA DFT stages) -> LN -> GEGLU FFN, 256 workgroups.
; @launch grid=(256,1,1) block=(512,1,1) lds={LDSZ}
.amdgcn_target "amdgcn-amd-amdhsa--gfx950"
.text
.globl {KN}
.p2align 8
.type {KN},@function
'''
ftr=f'''
CODE_END:
.section .rodata,"a"
.p2align 6
.amdhsa_kernel {KN}
  .amdhsa_next_free_vgpr 256
  .amdhsa_next_free_sgpr 102
  .amdhsa_accum_offset 128
  .amdhsa_group_segment_fixed_size 0
  .amdhsa_kernarg_size 80
  .amdhsa_user_sgpr_count 2
  .amdhsa_user_sgpr_kernarg_segment_ptr 1
  .amdhsa_system_sgpr_workgroup_id_x 1
.end_amdhsa_kernel
'''
open(sys.argv[1],'w').write(hdr+k.text().replace('@STUB@',stub)+'\n'+'\n'.join(tail)+ftr)
open(sys.argv[1]+'.stamps','w').write('\n'.join(' '.join(n for n,_ in stamps[p])+' cnt' for p in 'FL'))
print('instrs F',nF,'total',k.count,'nops',k.nops,'vp hi',vp.hi,'sp hi',sp.hi, file=sys.stderr)
```

```python
import sys, struct
from asmlib import *

KN = "sequential_preLN__spectral_gfnet__glu_gated_geglu__prompt_kernel"
OPT = dict(stamps=0, ng=2, g2=0, early=0, thr=14, lord='p_G3_g_F6_G5_B7_s_W_W_F100', hint=1, gew=4, geb=1, run='3.6.7.8.9.11.12.15', seq='WWWWWWWXXBXBZXBXBXBXBB', zt=6, thrb=20, thrw=10, zany=1, p2=1, ro=0)
for a in sys.argv[2:]:
    kk,vv = a.split('='); OPT[kk]=int(vv) if vv.lstrip('-').isdigit() else vv
NB = OPT['ng']; SW=OPT.get('sw',0)
def fb(x): return '0x%08x' % struct.unpack('<I', struct.pack('<f', x))[0]

NONCE=0x80000
X1=0x100000; X1S=8320
X2=0x600000; X2S=8320
X3=0xB00000; X3S=8320
HB=0xE00000
HH=0x1000000
XP=0x1A00000
STAMP=0x1800000
WSZ=0x2000000
R0=131072; R1=R0+9216; R2=R1+9216; RH=R2; RF=R2+8192
KS=100; KH=82; TM=0x60006000
LDSZ=163840
SPIN=400000
CG = 0.1029432397**(1/3)
KQ = 2.302208198/CG

k=Asm(); tail=[]
LS='' if OPT.get('loc')==2 else 'sc1'
sp=Pool(44,96)
sX,sWs,sWd,sOut,sW1 = 24,28,32,36,40
stamps={'F':[], 'L':[]}; path={'p':'F'}
STQ={'F':[22,100,4,6,8,10,12,14,16,18,20,24,26,40,42],'L':[22,100,4,6,8,10,12,14,16,18,20,24,26,96,98]}
def stamp(name):
    st=OPT['stamps']; p=path['p']
    if OPT.get('probe')==p+name: k('s_sleep 10')
    big=('start','xload','Adone','Bpoll','Bgot','Bdone','Cpoll','Cgot','Cdone','gflag','wdone','bdone','Gbar','G1got','G1done','epi','B1','G2done','end')
    on = (st==1 and name in big and not (p=='F' and name in ('wdone','B1','Bpoll','Cpoll'))) or (st==2 and name in ('start','Gbar','wdone','G1got','G1done','epi','B1','G2done','B2','end','g4','g8','g11')) \
         or (st==4 and name in ('Gbar','G1got','k4','k8','k12','G1done','epi','B1','G2done','B2','end','g4','g8','g11')) \
         or (st==8 and name in ('start','xload','Adone','Bpoll','Bgot','Bdone','Cpoll','Cgot','Cdone','Gbar','end','gflag','fZ')) \
         or (st==7 and name in ('start','Gbar','end')) \
         or (st==6 and (name[0]=='h' or name in (('G1got','k4','k8','k12','G1done','epi','g4','g8','g11','G2done','end') if p=='F' else ('G1got','epi',)))) \
         or (st==5 and (name[0]=='l' or name in ('bdone','Gbar'))) \
         or (st==3 and (name[0]=='f' or name in big[:13]) and not (p=='F' and name in ('wdone','fkarg','fS1','fS3')))
    if on or (p+name) in OPT.get('amp','').split(','):
        r=STQ[p][len(stamps[p])]; stamps[p].append((name,r)); k(f'{"s_memtime" if OPT.get("cyc") else "s_memrealtime"} {S(r,2)}')

def retry_block(name, loads, check):
    kk=Asm()
    kk.label(f'R_{name}')
    kk('s_nop 3')
    for l in loads: kk(l)
    kk('s_waitcnt vmcnt(0)')
    for c in check: kk(c)
    kk(f's_add_u32 s{sCnt}, s{sCnt}, 1')
    if OPT['stamps']: kk(f's_add_u32 s{sDg}, s{sDg}, {1<<(8*dict(B=0,C=1,Y=2,X=3,H=3,G=0 if name[:2]=="G1" else 1 if name in ("G2_0","G2_2") else 2 if name in ("G2_4","G2_6","G2_8","G2_11","G2_14") else 3)[name[0]])}')
    kk(f's_cmp_gt_u32 s{sCnt}, {SPIN}')
    kk(f's_cbranch_scc1 C_{name}')
    kk(f's_cbranch_vccnz R_{name}')
    kk(f's_branch C_{name}')
    tail.append(kk.text())
def checked(name, loads, check):
    for c in check: k(c)
    k(f's_cbranch_vccnz R_{name}')
    k.label(f'C_{name}')
    retry_block(name, loads, check)

def bound(lbl):
    k(f's_add_u32 s{sSpin}, s{sSpin}, 1\ns_cmp_lt_u32 s{sSpin}, {8*SPIN}\ns_cbranch_scc0 {lbl}c')
k.raw(f'{KN}:')
k('s_cmp_lt_u32 s2, 256')
k('s_cbranch_scc1 Lgo')
k('s_endpgm')
k.raw('@STUB@')
k.label('Lgo')
k('s_load_dwordx16 s[4:19], s[0:1], 0')
k('s_load_dwordx2 s[20:21], s[0:1], 72')
stamp('start'); stamps['L']=list(stamps['F'])
sWid=sp.get(); sWave=sp.get(); sS2=sp.get(); sT0=sp.get(); sT1=sp.get(); sT2=sp.get(); sCnt=sp.get(); sSpin=sp.get(); sDg=sp.get()
sXc=sp.get(); sJ=sp.get(); sPos=sp.get(); sNon=sp.get(); sTag=sp.get()
vL,vL16,vTm,vLo,vG,t0,t1,t2,t3,aFw,vPh = range(1,12)
vdum=127
if OPT.get('cpre',1):
    pc=sp.get(2)
    k(f'''s_getpc_b64 {S(pc,2)}
v_lshlrev_b32 v{t0}, 7, v0
v_min_u32 v{t2}, CODE_END-Lgo-64, v{t0}
v_mov_b32 v{t3}, s{pc+1}
v_add_co_u32 v{t2}, vcc, s{pc}, v{t2}
v_addc_co_u32 v{t3}, vcc, 0, v{t3}, vcc
global_load_dword v{vdum}, {V(t2,2)}, off''')
    sp.put(pc,2)
k(f'''v_lshrrev_b32 v{t0}, 6, v0
v_and_b32 v{vL}, 63, v0
v_readfirstlane_b32 s{sWid}, v{t0}
v_lshlrev_b32 v{vL16}, 4, v{vL}
v_and_b32 v{vLo}, 15, v0
v_lshrrev_b32 v{vG}, 4, v{vL}
s_and_b32 s{sXc}, s2, 7
s_lshr_b32 s{sJ}, s2, 3
s_lshl_b32 s{sPos}, s{sXc}, 5
s_add_u32 s{sPos}, s{sPos}, s{sJ}
s_and_b32 s{sWave}, s{sWid}, 3
s_mov_b32 s{sCnt}, 0
s_mov_b32 s{sSpin}, 0''')
mA=((1<<NB)-1)<<5; mB=((1<<NB)-1)<<(5-NB)
def swapbits(p): return (p&~(mA|mB))|((p&mA)>>NB)|((p&mB)<<NB)
if NB:
    k(f'''s_and_b32 s{sT0}, s{sPos}, {mA}
s_and_b32 s{sT1}, s{sPos}, {mB}
s_andn2_b32 s{sS2}, s{sPos}, {mA|mB}
s_lshr_b32 s{sT0}, s{sT0}, {NB}
s_lshl_b32 s{sT1}, s{sT1}, {NB}
s_or_b32 s{sS2}, s{sS2}, s{sT0}
s_or_b32 s{sS2}, s{sS2}, s{sT1}''')
else:
    k(f's_mov_b32 s{sS2}, s{sPos}')
def srd_consts(lst):
    for s_,sz in lst: k(f's_mov_b32 s{s_+2}, {sz}\ns_mov_b32 s{s_+3}, 0x20000')
def flag_init():
    k(f'''s_lshl_b32 s{sT0}, s{sWid}, 2
s_add_u32 s{sT0}, s{sT0}, {RF}
v_lshl_add_u32 v{aFw}, v{vL}, 2, {64}
v_add_u32 v{aFw}, {RF}, v{aFw}
v_mov_b32 v{vPh}, 0
v_writelane_b32 v{aFw}, s{sT0}, 0
ds_write_b32 v{aFw}, v{vPh}''')
flag_init()
if OPT['stamps']: k(f's_mov_b32 s{sDg}, 0')
k(f's_cmp_ge_u32 s{sWid}, 4\ns_cbranch_scc1 LSTUB')
def tag_calc():
    k(f'''s_bfe_u32 s{sT0}, s{sNon}, 0x2000d
s_bfe_u32 s{sT1}, s{sNon}, 0x2001d
s_lshl_b32 s{sT0}, 1, s{sT0}
s_lshl_b32 s{sT1}, 1, s{sT1}
s_or_b32 s{sT0}, s{sT0}, s{sT1}
s_ff0_i32_b32 s{sNon}, s{sT0}
s_mul_i32 s{sTag}, s{sNon}, 0x20002000
v_mov_b32 v{vTm}, {TM}''')
sPar=sp.get(); sF0=sp.get(); sRt=sp.get(); sRb=sp.get(); sCb=sp.get(); sX3o=sp.get(); sLq=sp.get(); sB0=sp.get(); sKh=sp.get()
def ffn_roles(isL):
    k(f'''s_and_b32 s{sPar}, s{sS2}, 1
s_bfe_u32 s{sT0}, s{sS2}, 0x40001
s_mul_i32 s{sF0}, s{sT0}, 7
s_mul_i32 s{sT0}, s{sPar}, 3
s_add_u32 s{sF0}, s{sF0}, s{sT0}
s_lshr_b32 s{sT0}, s{sS2}, 5
s_lshl_b32 s{sT0}, s{sT0}, 3
s_lshl_b32 s{sT1}, s{sWave}, 1
s_add_u32 s{sT0}, s{sT0}, s{sT1}
s_add_u32 s{sRt}, s{sT0}, s{sPar}''')
    if isL==SW: k(f's_xor_b32 s{sRt}, s{sRt}, 1')
    if OPT.get('loc'): k(f'''s_bfe_u32 s{sKh}, s{sJ}, 0x10003
s_lshl_b32 s{sT0}, s{sXc}, 1
s_lshr_b32 s{sT1}, s{sJ}, 4
s_add_u32 s{sRb}, s{sT0}, s{sT1}
s_and_b32 s{sCb}, s{sJ}, 7''')
    elif OPT.get('g2'): k(f'''s_and_b32 s{sKh}, s{sXc}, 1
s_lshr_b32 s{sT0}, s{sXc}, 2
s_lshl_b32 s{sT0}, s{sT0}, 3
s_lshr_b32 s{sT1}, s{sJ}, 2
s_add_u32 s{sRb}, s{sT0}, s{sT1}
s_and_b32 s{sT0}, s{sXc}, 2
s_lshl_b32 s{sT0}, s{sT0}, 1
s_and_b32 s{sCb}, s{sJ}, 3
s_add_u32 s{sCb}, s{sCb}, s{sT0}''')
    else: k(f'''s_and_b32 s{sKh}, s{sXc}, 1
s_lshr_b32 s{sT0}, s{sXc}, 1
s_lshl_b32 s{sT0}, s{sT0}, 2
s_lshr_b32 s{sT1}, s{sJ}, 3
s_add_u32 s{sRb}, s{sT0}, s{sT1}
s_and_b32 s{sCb}, s{sJ}, 7''')
def x3_off():
    k(f'''s_mul_i32 s{sX3o}, s{sS2}, {X3S}
s_lshl_b32 s{sT1}, s{sWave}, 11
s_add_u32 s{sX3o}, s{sX3o}, s{sT1}
s_add_u32 s{sX3o}, s{sX3o}, {X3}''')

def wd_addr(vS):
    k(f'''v_lshrrev_b32 v{t0}, 3, v{vL}
v_and_b32 v{t1}, 7, v{vL}
v_and_b32 v{t2}, 1, v{vG}
v_lshlrev_b32 v{t2}, {2 if OPT.get('g32',0) else 1}, v{t2}
v_xor_b32 v{t1}, v{t1}, v{t2}
v_lshlrev_b32 v{t1}, 4, v{t1}
v_lshl_add_u32 v{t0}, v{t0}, 10, v{t1}
s_lshl_b32 s{sT0}, s{sCb}, 7
s_mul_i32 s{sT1}, s{sWave}, {448*1024}
s_add_u32 s{sT0}, s{sT0}, s{sT1}
s_lshl_b32 s{sT1}, s{sKh}, 16
s_add_u32 s{sT0}, s{sT0}, s{sT1}
v_add_u32 v{vS}, s{sT0}, v{t0}
v_xor_b32 v{t0}, {0 if OPT.get('g32',0) else 64}, v{vS}
v_add_u32 v{vS+1}, {7*1024}, v{t0}
v_add_u32 v{vS+2}, {110*1024}, v{vS}
v_add_u32 v{vS+3}, {117*1024}, v{t0}''')
def wd_raddr(vR, sBase):
    if not OPT.get('g32',0): tr_addr(vR, None, sBase)
    else:
        k(f'''v_lshrrev_b32 v{t0}, 5, v{vL}
v_lshlrev_b32 v{t0}, 10, v{t0}
v_bfe_u32 v{t1}, v{vL}, 2, 2
v_lshl_add_u32 v{t0}, v{t1}, 7, v{t0}
v_lshrrev_b32 v{t1}, 1, v{t1}
v_lshl_add_u32 v{t0}, v{t1}, 6, v{t0}
v_and_b32 v{t1}, 1, v{vG}
v_lshl_add_u32 v{t0}, v{t1}, 5, v{t0}
v_and_b32 v{t1}, 3, v{vL}
v_lshl_add_u32 v{t0}, v{t1}, 3, v{t0}
v_add_u32 v{vR}, s{sBase}, v{t0}
v_xor_b32 v{vR+1}, 64, v{vR}
v_add_u32 v{vR+2}, 2048, v{vR}
v_add_u32 v{vR+3}, 2048, v{vR+1}''')
    k(f'v_add_u32 v{vR+4}, s{sBase}, v{vL16}')
def tr_addr(vR, sRot, sBase):
    k(f'''v_and_b32 v{t0}, 1, v{vG}
v_bfe_u32 v{t1}, v{vL}, 3, 1
v_lshl_add_u32 v{t1}, v{t0}, 1, v{t1}
v_bfe_u32 v{t2}, v{vL}, 2, 2
v_lshlrev_b32 v{t0}, 10, v{vG}
v_lshl_add_u32 v{t0}, v{t2}, 7, v{t0}
v_and_b32 v{t2}, 3, v{vL}
v_lshl_add_u32 v{t0}, v{t2}, 3, v{t0}''')
    if sBase is not None: k(f'v_add_u32 v{t0}, s{sBase}, v{t0}')
    for c in range(4):
        if sRot is None: k(f'v_xor_b32 v{t2}, {c}, v{t1}')
        else: k(f's_add_u32 s{sT0}, s{sRot}, {c}\ns_and_b32 s{sT0}, s{sT0}, 3\nv_xor_b32 v{t2}, s{sT0}, v{t1}')
        k(f'v_lshl_add_u32 v{vR+c}, v{t2}, 5, v{t0}')
thc={'n':0}
def throttle(ty='w'):
    th=OPT.get('thr'+ty,OPT['thr'])
    if len(k.vm)>th: k(f's_waitcnt vmcnt({th})')
    thc['n']+=1
    ge=OPT.get('ge'+ty,OPT.get('ge'))
    if ge and thc['n']%ge==0 and flagged['d']: gate(RUN|(0x1c0 if flagged['v']<100 else 0)|0x18000)
    if OPT.get('sl'+ty): k(f"s_sleep {OPT['sl'+ty]}")
rawb=set(); slot={}; freeg=list(range(8)); lastx={}
def take(hi):
    g=freeg.pop(-1 if hi and freeg[-1] not in lastx else 0)
    if g in lastx: k.wait_lg(lastx.pop(g))
    return g
def wd_load(b, vS, raw):
    if raw: rawb.add(b)
    else: slot[b]=take(0); k(f's_add_u32 m0, s{sLq}, {4096*slot[b]}')
    if b<6: k(f's_mov_b32 s{sB0}, {(14*(b&1)+(b>>1))*16*1024}')
    else: k(f's_mul_i32 s{sB0}, s{sKh}, {160*1024}\ns_add_u32 s{sB0}, s{sB0}, {48*1024}')
    for i in range(4):
        if not raw: h=k(f'buffer_load_dwordx4 v{vS+i}, {S(sWd,4)}, s{sB0} offen offset:{i*1024} lds')
        else: h=k(f'buffer_load_dwordx4 {A(b*16+4*i,4)}, v{vS+i}, {S(sWd,4)}, s{sB0} offen offset:{i*1024}')
        throttle()
    return h
def wd_xp(b, vR, hd):
    k.wait_vm(hd)
    if b in rawb: slot[b]=freeg.pop(0)
    off=4096*slot[b]
    if b in rawb:
        for i in range(4): k(f'ds_write_b128 v{vR+4}, {A(b*16+4*i,4)} offset:{off+i*1024}')
    for c in range(4):
        for x in range(2): h=k(f'ds_read_b64_tr_b16 {A((b*4+c)*4+2*x,2)}, v{vR+c} offset:{off+x*512}')
    freeg.append(slot[b]); lastx[slot[b]]=h
    return h

aA,aG,vck,vc2,aB,aT = 12,13,14,15,16,0
aRw=aRr=20; aHo=aPf=22
ACC=24; RING=88
def tagchk(r,ckr):
    return [f'v_xor_b32 v{ckr}, s{sTag}, v{r[0]}']+[f'v_bitop3_b32 v{ckr}, v{ckr}, v{x}, s{sTag} bitop3:0xf6' for x in r[1:]]+\
           [f'v_and_b32 v{ckr}, v{vTm}, v{ckr}', f'v_cmp_ne_u32 vcc, 0, v{ckr}']
def phi7(cls, rt):
    if cls<4: return cls if rt==0 else 3+((cls+1)&3)
    return 4+(cls-4) if rt==0 else cls-4
def gemm_setup(isL):
    NT=4 if isL!=SW else 3
    o={}
    o['sAo']=sAo=sp.get(4,1); o['sHo']=sHo=sp.get(4,1); o['sKq']=sKq=sp.get(); o['sC2']=sC2=sp.get()
    o['s32']=s32=OPT.get('x32' if isL else 'y32',0)
    if not s32:
        tr_addr(aB, sPar, None)
        k(f'''v_bfe_u32 v{t0}, v{vL}, 3, 1
v_mul_u32_u24 v{t0}, {X3S}, v{t0}
v_and_b32 v{t2}, 7, v{vL}
v_lshl_add_u32 v{aA}, v{vG}, 7, v{t0}
v_lshl_add_u32 v{aA}, v{t2}, 4, v{aA}''')
    else:
        k(f'''v_lshrrev_b32 v{t3}, 1, v{vG}
v_and_b32 v{t0}, 1, v{vG}
v_xor_b32 v{t2}, v{t0}, v{t3}
v_bfe_u32 v{t1}, v{vL}, 3, 1
v_lshl_add_u32 v{t1}, v{t2}, 1, v{t1}
v_lshlrev_b32 v{t0}, 15, v{t0}
v_lshl_add_u32 v{t0}, v{t3}, 10, v{t0}
v_bfe_u32 v{t2}, v{vL}, 2, 2
v_lshl_add_u32 v{t0}, v{t2}, 7, v{t0}
v_and_b32 v{t2}, 1, v{vL}
v_lshl_add_u32 v{t0}, v{t2}, 4, v{t0}
v_bfe_u32 v{t2}, v{vL}, 1, 1
v_lshl_add_u32 v{t0}, v{t2}, 3, v{t0}''')
        for c in range(4):
            k(f's_add_u32 s{sT0}, s{sPar}, {c}\ns_and_b32 s{sT0}, s{sT0}, 3\nv_xor_b32 v{t2}, s{sT0}, v{t1}\nv_lshl_add_u32 v{aB+c}, v{t2}, 5, v{t0}')
        k(f'''v_bfe_u32 v{t0}, v{vL}, 3, 2
v_mul_u32_u24 v{t0}, {X3S}, v{t0}
v_and_b32 v{t2}, 7, v{vL}
v_lshl_add_u32 v{aA}, v{t3}, 7, v{t0}
v_lshl_add_u32 v{aA}, v{t2}, 4, v{aA}''')
    k(f'''v_lshrrev_b32 v{t0}, 1, v{vG}
v_mul_u32_u24 v{t0}, {7168-1024}, v{t0}
v_lshl_add_u32 v{t0}, v{vG}, 9, v{t0}
v_lshl_add_u32 v{aG}, v{vLo}, 4, v{t0}
s_mul_i32 s{sT0}, s{sRt}, {4*X3S}''')
    for rh in range(2):
        for kh in range(2): k(f's_add_u32 s{sAo+2*rh+kh}, s{sT0}, {X3+(256*rh if s32 else 2*rh*X3S)+4096*kh}')
    k(f's_mul_i32 s{sT1}, s{sRt}, 112\ns_add_u32 s{sT1}, s{sT1}, s{sF0}')
    for jj in range(NT):
        k(f'''s_add_u32 s{sT0}, s{sPar}, {jj}
s_and_b32 s{sT0}, s{sT0}, 3
s_add_u32 s{sT0}, s{sT0}, s{sT1}
s_lshl_b32 s{sT0}, s{sT0}, 10
s_add_u32 s{sHo+jj}, s{sT0}, {HH}''')
    k(f'''s_mov_b32 s{sKq}, {fb(KQ)}
s_mov_b32 s{sC2}, {fb(CG*CG*2.0**KH)}
v_mov_b32 v{aT}, v{aFw}''')
    return o
def g1_loads(o, tp, nr, base):
    return [f'buffer_load_dwordx4 {V(base+8*(tp%nr)+4*rh,4)}, v{aA}, {S(sWs,4)}, s{o["sAo"]+2*rh+(tp>>3)} offen offset:{(tp&7)*512} sc1' for rh in range(2)]
def gemm1(isL, o, nr, base):
    P='L' if isL else 'F'; NT=4 if isL!=SW else 3; NF=4; PD=3; FR=112
    s32=o['s32']
    if not isL: NF=OPT.get('nfy',4); PD=NF-1; FR=128-4*NF
    fr=[(tp,jj,gu) for tp in range(16) for jj in range(NT) for gu in range(2)] if not s32 else \
       [(tp,jj,gu) for tp in range(16) for gu in range(2) for jj in range(NT)]
    flipped=set()
    def bread(i,x):
        tp,jj,gu=fr[i]
        ar=aB+(jj if s32 else jj^(2*gu))
        if tp>=8 and ar not in flipped: k(f'v_xor_b32 v{ar}, 0x10000, v{ar}'); flipped.add(ar)
        k(f'ds_read_b64_tr_b16 {A(FR+4*(i%NF)+2*x,2)}, v{ar} offset:{gu*(2048 if s32 else 32768)+(tp&7)*4096+x*512}')
    k.label('XSTART')
    iss={'n':OPT.get('xi',2)}
    assert not (OPT.get('ea') and OPT.get('lazy'))
    for tp in range(0 if OPT.get('ea') else iss['n']):
        for l in g1_loads(o,tp,nr,base): k(l)
    def chk_items(tp):
        r=base+8*(tp%nr); name=f'G1{P}{tp}'
        c=[f'v_max_u32 v{vck}, v{r+7}, v{r+3}', f'v_cmp_eq_u32 vcc, -1, v{vck}']
        def br():
            rl=[l for t in range(tp,iss['n']) for l in g1_loads(o,t,nr,base)]
            k(f's_cbranch_vccnz R_{name}'); k.label(f'C_{name}'); retry_block(name, rl, c)
        return c+[br]
    for i in range(PD): bread(i,0); bread(i,1)
    if OPT.get('xj'):
        k.wait_lg()
        for tp in range(iss['n'],OPT['xj']):
            for l in g1_loads(o,tp,nr,base): k(l)
        iss['n']=OPT['xj']
    lazy=OPT.get('lazy',99)
    for x in chk_items(0): x() if callable(x) else k(x)
    stamp('G1got')
    for i,(tp,jj,gu) in enumerate(fr):
        a=ACC+16*jj+8*gu; r=base+8*(tp%nr); j=i%(2*NT)
        if j==0:
            sl=[None]*(2*NT)
            up=min(16,tp+nr,iss['n']+(2 if NT==4 or tp+1>=lazy else 1))
            ll=[l for t in range(iss['n'],up) for l in g1_loads(o,t,nr,base)]; iss['n']=max(iss['n'],up)
            sl[:len(ll)]=ll
            if tp<15 and tp+1<lazy: sl[-3:]=chk_items(tp+1)
            elif tp<15:
                r1=base+8*((tp+1)%nr); sl[-1]=f'v_max3_u32 v{vck}, v{vck}, v{r1+7}, v{r1+3}'
        w=[A(FR+4*(i%NF),4)]
        if j==2*NT-(3 if tp+1<lazy else 1) and tp<15: w.append(V(base+8*((tp+1)%nr),8))
        k.wait_regs(w)
        for rh in range(2):
            if not s32: k(f'v_mfma_f32_16x16x32_bf16 {V(a+4*rh,4)}, {A(FR+4*(i%NF),4)}, {V(r+4*rh,4)}, {"0" if tp==0 else V(a+4*rh,4)}')
            elif rh==0: k(f'v_mfma_f32_32x32x16_bf16 {V(ACC+16*jj,16)}, {A(FR+4*(i%NF),4)}, {V(r+4*gu,4)}, {"0" if tp==0 and gu==0 else V(ACC+16*jj,16)}')
            if i+PD<len(fr): bread(i+PD,rh)
            if rh==0 and sl[j] is not None: sl[j]() if callable(sl[j]) else k(sl[j])
        if j==2*NT-1 and tp in (3,7,11): stamp(f'k{tp+1}')
    if lazy<16:
        k(f'v_cmp_eq_u32 vcc, -1, v{vck}\ns_cbranch_vccnz XR')
        kk=Asm(); kk.label('XR'); kk('s_nop 7')
        for ar in range(aB,aB+4): kk(f'v_and_b32 v{ar}, 0xffff, v{ar}')
        kk(f's_add_u32 s{sCnt}, s{sCnt}, 1000\ns_cmp_gt_u32 s{sCnt}, {SPIN}\ns_cbranch_scc0 XSTART\ns_endpgm')
        tail.append(kk.text())
    stamp('G1done')
YT=104 if SW else ACC+48
def yreg(tp,rh,n=4,off=0):
    f,b=('a',8*tp) if tp<14 else ('v',112+8*(tp-14))
    b+=4*rh+off
    return f'{f}{b}' if n==1 else f'{f}[{b}:{b+n-1}]'
def y_loads(o,tp): return [f'buffer_load_dwordx4 {yreg(tp,rh)}, v{aA}, {S(sWs,4)}, s{o["sAo"]+2*rh+(tp>>3)} offen offset:{(tp&7)*512} sc1' for rh in range(2)]
def y_chk(o,q):
    ll=[l for tp in range(4*q,4*q+4) for l in y_loads(o,tp)]
    c=[]; T=YT
    for i,(tp,rh) in enumerate((tp,rh) for tp in reversed(range(4*q,4*q+4)) for rh in (1,0)):
        r=yreg(tp,rh,1,3)
        c.append(f'v_accvgpr_read_b32 v{T+i}, {r}' if r[0]=='a' else f'v_mov_b32 v{T+i}, {r}')
    c+=[f'v_max3_u32 v{vck}, v{T}, v{T+1}, v{T+2}',f'v_max3_u32 v{vck}, v{vck}, v{T+3}, v{T+4}',f'v_max3_u32 v{vck}, v{vck}, v{T+5}, v{T+6}',
        f'v_max_u32 v{vck}, v{vck}, v{T+7}',f'v_cmp_eq_u32 vcc, -1, v{vck}']
    def br(): k(f's_cbranch_vccnz R_YF{q}'); k.label(f'C_YF{q}'); retry_block(f'YF{q}', ll, c)
    return c+[br]
def y_fill(o, after=None):
    YW=OPT.get('yw',3); YN=OPT.get('yn',10); YV=OPT.get('yv',(YN-1)//4)
    for tp in range(YN):
        for l in y_loads(o,tp):
            k(l)
            if len(k.vm)>YW: k(f's_waitcnt vmcnt({YW})')
        if tp%4==1 and 0<tp//4<=YV:
            for x in y_chk(o,tp//4-1): x() if callable(x) else k(x)
    assert YV*4+2<=YN
    if after: after()
    o['side']={OPT.get('yg',2)*n:[l] for n,l in enumerate(l for tp in range(YN,16) for l in y_loads(o,tp))}
    return list(range(YV,4))
hi_={}
def y_stream(o, fill):
    NF=4; PD=3; FR=112; s32=o['s32']
    def mk(tps,tiles): return [(tp,jj,gu) for tp in tps for jj in tiles for gu in range(2)] if not s32 else [(tp,jj,gu) for tp in tps for gu in range(2) for jj in tiles]
    fr=mk(range(16),(0,1))+mk(range(15,-1,-1),(2,))
    if SW: fr=mk(range(16),(3,0))+mk(range(15,7,-1),(1,2))+mk(range(8),(1,))+mk(range(8),(2,))
    seen=set()
    def bread(i,x):
        tp,jj,gu=fr[i]
        ar=aB+(jj if s32 else jj^(2*gu))
        if hi_.get(ar,0)!=tp>>3: k(f'v_xor_b32 v{ar}, 0x10000, v{ar}'); hi_[ar]=tp>>3
        k(f'ds_read_b64_tr_b16 {A(FR+4*(i%NF)+2*x,2)}, v{ar} offset:{gu*(2048 if s32 else 32768)+(tp&7)*4096+x*512}')
    side=o['side']
    k.label('YSTART')
    for i in range(PD): bread(i,0); bread(i,1)
    def run(a_,b_):
        for i in range(a_,b_):
            tp,jj,gu=fr[i]
            a=ACC+16*jj+8*gu; first=(jj,gu) not in seen; seen.add((jj,gu))
            for rh in range(2):
                if not s32: k(f'v_mfma_f32_16x16x32_bf16 {V(a+4*rh,4)}, {A(FR+4*(i%NF),4)}, {yreg(tp,rh)}, {"0" if first else V(a+4*rh,4)}')
                elif rh==0: k(f'v_mfma_f32_32x32x16_bf16 {V(ACC+16*jj,16)}, {A(FR+4*(i%NF),4)}, {yreg(tp,gu)}, {"0" if first and gu==0 else V(ACC+16*jj,16)}')
                if i+PD<len(fr): bread(i+PD,rh)
                if rh==0:
                    for x in side.get(i,[]): x() if callable(x) else k(x)
    return run
def gelu(o, jj, tmp, out, mid=None):
    a=ACC+16*jj
    old=k.emit; cnt={'n':0}
    def emit(t):
        h=old(t); cnt['n']+=1
        if mid: k.emit=old; mid(cnt['n']); k.emit=emit
        return h
    k.emit=emit
    for r in range(8): k(f'v_fma_f32 v{tmp+r}, v{a+r}, v{a+r}, s{o["sKq"]}')
    for r in range(8): k(f'v_mul_f32 v{tmp+r}, -v{a+r}, v{tmp+r}')
    for r in range(8): k(f'v_exp_f32 v{tmp+r}, v{tmp+r}')
    for r in range(8): k(f'v_mul_f32 v{a+r}, v{a+r}, v{a+8+r}')
    for r in range(8): k(f'v_fma_f32 v{tmp+r}, v{tmp+r}, s{o["sC2"]}, s{o["sC2"]}')
    for r in range(8): k(f'v_rcp_f32 v{tmp+r}, v{tmp+r}')
    for r in range(8): k(f'v_mul_f32 v{a+r}, v{a+r}, v{tmp+r}')
    for r in (0,2,1,3): k(f'v_cvt_pk_bf16_f32 v{out+r}, v{a+2*r}, v{a+2*r+1}')
    for r in (0,2,1,3): k(f'v_bfi_b32 v{out+r}, v{vTm}, s{sTag}, v{out+r}')
    k.emit=old
    if o['s32']: return
    k(f'v_permlane16_swap_b32 v{out}, v{out+2}')
    k(f'v_permlane16_swap_b32 v{out+1}, v{out+3}')
def hh_store(o,jj,out): return k(f'buffer_store_dwordx4 {V(out,4)}, v{vL16}, {S(sWs,4)}, s{o["sHo"]+jj} offen {LS}')
def flag(v,r): return [f'v_mov_b32 v{r}, {v}', f'ds_write_b32 v{aT}, v{r}']
def x_setup(o):
    o['sG2']=sG2=[sp.get() for _ in range(12)]
    if OPT.get('g32',0): k(f'v_lshrrev_b32 v{t1}, 5, v{vL}\nv_and_b32 v{t2}, 31, v{vL}\nv_add_u32 v{aG}, 7168, v{vL16}')
    else: k(f'v_mov_b32 v{t1}, v{vG}\nv_mov_b32 v{t2}, v{vLo}')
    k(f'''v_and_b32 v{t0}, 7, v{vL}
v_xor_b32 v{aRw}, v{t1}, v{t0}
v_lshlrev_b32 v{aRw}, 4, v{aRw}
v_lshl_add_u32 v{aRw}, v{t2}, 8, v{aRw}
s_lshl_b32 s{sT0}, s{sWave}, 13
s_add_u32 s{sT0}, s{sT0}, 0x10000
v_add_u32 v{aRw}, s{sT0}, v{aRw}
v_xor_b32 v{aRw+1}, 64, v{aRw}
v_and_b32 v{aPf}, 7, v{vL}
v_lshlrev_b32 v{aPf}, 2, v{aPf}
v_add_u32 v{aPf}, {RF}, v{aPf}
s_mul_i32 s{sT0}, s{sRb}, 448
s_mul_i32 s{sT1}, s{sWave}, 28
s_add_u32 s{sT0}, s{sT0}, s{sT1}
s_lshl_b32 s{sT1}, s{sKh}, 2
s_add_u32 s{sT0}, s{sT0}, s{sT1}
s_lshl_b32 s{sT0}, s{sT0}, 10
s_mul_i32 s{sT1}, s{sKh}, {112*1024}
s_mul_i32 s{sT2}, s{sKh}, {10*1024}''')
    for z in range(4):
        c=HH+(2*(z&1)+((z>>1)^SW))*112*1024
        k(f's_{"sub" if (z>>1)^SW else "add"}_u32 s{sG2[3*z]}, s{sT0}, s{sT1}')
        k(f's_add_u32 s{sG2[3*z]}, s{sG2[3*z]}, {c}')
        k(f's_add_u32 s{sG2[3*z+1]}, s{sG2[3*z]}, {14*1024}')
        k(f's_add_u32 s{sG2[3*z+2]}, s{sG2[3*z]}, s{sT2}')
def x_tail(o):
    g32=OPT.get('g32',0)
    groups=[(2*jj+hp,z) for jj in range(2) for z in range(2) for hp in range(2)]+[(b,z) for z in range(2) for b in (4,5,6)]+\
           [(6,2),(6,3),(0,2),(1,2),(0,3),(1,3),(2,2),(2,3)]+[(b,z) for z in (2,3) for b in (3,4,5)]
    blocks=[(0,2),(2,2),(4,2),(6,2),(8,3),(11,3),(14,2),(16,2),(18,2),(20,2),(22,3),(25,3)]
    closing={4,5,10,11}
    if OPT.get('p2')==1:
        groups=groups[:14]+[(6,2),(0,2),(1,2),(6,3),(2,2),(0,3),(3,2),(4,2),(5,2),(1,3),(2,3),(3,3),(4,3),(5,3)]
        blocks=blocks[:9]+[(20,3),(23,2),(25,3)]; closing={4,5,9,11}
    if OPT.get('p2')==2:
        groups=groups[:14]+[(6,2),(0,2),(1,2),(2,2),(3,2),(4,2),(5,2),(6,3),(0,3),(1,3),(2,3),(3,3),(4,3),(5,3)]
        blocks=blocks[:8]+[(18,3),(21,2),(23,2),(25,3)]; closing={4,5,8,11}
    if OPT.get('p1')==1:
        groups=[(0,0),(1,0),(0,1),(1,1),(2,0),(3,0),(4,0),(5,0),(6,0),(2,1),(3,1),(4,1),(5,1),(6,1)]+groups[14:]
        blocks=blocks[:3]+[(6,3),(9,2),(11,3)]+blocks[6:]; closing=(closing-{4})|{3}
    GATES={min(closing)-1:116, OPT.get('g2b',7):117}
    LIM=[int(x) for x in str(OPT.get('lim','16.16.16.16.16.28.28.28.28.28.28.28' if not OPT.get('p2') else '15.15.15.15.15.28.28.28.28.28.28.28')).split('.')]
    if SW:
        groups=[(2*jj+hp,z) for jj in range(2) for z in range(2) for hp in range(2)]+[(4,0),(4,1),(5,0),(6,0),(5,1),(6,1)]+\
               [(6,2),(6,3),(0,2),(1,2),(0,3),(1,3),(2,2),(3,2),(2,3),(3,3),(4,2),(5,2),(4,3),(5,3)]
        blocks=[(2*i,2) for i in range(14)]; closing={5,6,12,13}
        GATES={int(a.split('x')[0]):int(a.split('x')[1]) for a in OPT.get('gates','2x112.4x116.7x118.9x119').split('.')}
        lv=[(112,11),(116,16),(118,20),(119,24)]
        LIM=[]
        for bi in range(14):
            have=max([0]+[v for b_,v in GATES.items() if b_<bi])
            LIM.append(min([28]+[g for v,g in lv if v>have]))
    PAIR=[('v',88),('v',96),('v',104),('v',112),('a',112),('a',120),('v',4),('v',120)]; NR=8
    def reg(gi,rh): f,b=PAIR[gi%NR]; return f'{f}[{b+4*rh}:{b+4*rh+3}]'
    def gl(gi):
        b,z=groups[gi]
        so,im=(o['sG2'][3*z+(b&1)],(b>>1)*1024) if b<6 else (o['sG2'][3*z+2],3072)
        if g32: return [f'buffer_load_dwordx4 {reg(gi,m)}, v{(vL16,aG)[m]}, {S(sWs,4)}, s{so} offen offset:{im} sc1' for m in range(2)]
        return [f'buffer_load_dwordx4 {reg(gi,rh)}, v{aG}, {S(sWs,4)}, s{so} offen offset:{im+256*rh} sc1' for rh in range(2)]
    st={'n':0}
    def issue(upto):
        while st['n']<upto:
            for l in gl(st['n']): k(l)
            st['n']+=1
    def chk_items(gi,n=2):
        name=f'G2_{gi}'; c=[]; rr=[]
        for g in reversed(range(gi,gi+n)):
            f,r=PAIR[g%NR]
            for x in (r+7,r+3):
                if f=='a': c.append(f'v_accvgpr_read_b32 v{vc2}, a{x}'); x=vc2
                c.append(f'v_bitop3_b32 v{vck}, v{vck}, v{x}, s{sTag} bitop3:0xf6' if rr else f'v_xor_b32 v{vck}, s{sTag}, v{x}'); rr.append(x)
        c+=[f'v_and_b32 v{vck}, v{vTm}, v{vck}', f'v_cmp_ne_u32 vcc, 0, v{vck}']
        def br():
            rl=[l for g in range(gi,gi+n) for l in gl(g)]
            k(f's_cbranch_vccnz R_{name}'); k.label(f'C_{name}'); retry_block(name, rl, c)
        return c+[br]
    verified=set()
    def verify(gi):
        for x in chk_items(gi): x() if callable(x) else k(x)
        verified.add(gi)
    k(f's_setprio {OPT.get("pe",3)}')
    for x in flag(119,aB): k(x)
    xq=[]
    pre=[0,0,OPT.get('x2',0),OPT.get('x3',4)]
    for jj in range(4-SW):
        out=ACC+16*jj+8
        lq_=[]
        def mid(n):
            p=64*jj+n-OPT.get('x0',999)
            if p>=0 and p%OPT.get('xg',8)==0:
                if not xq and st['n']<OPT.get('xn',8): xq.extend(gl(st['n'])); st['n']+=1
                if xq: k(xq.pop(0))
        gelu(o,jj,120 if jj==0 else ACC+16*(jj-1),out,mid)
        if jj==3-SW:
            while xq: k(xq.pop(0))
        if jj==3 and OPT.get('xv') and st['n']:
            for g in range(0,st['n'],2): verify(g)
        issue(pre[jj])
        hh_store(o,jj,out)
    stamp('epi')
    k(f's_setprio {OPT.get("pg",1)}')
    seq=[int(c) for c in str(OPT.get('chain',48))]
    for n_ in seq[:-1]:
        issue(n_)
        for g in range(0,n_,2):
            if g not in verified: verify(g)
    issue(seq[-1]); stamp('hc')
    def red_write(z):
        q=[]
        W4=[aRw,aB+2,aRw+1,aB+3]
        if z==0 and g32: q+=[f'v_xor_b32 v{aB+2+m}, 32, v{aRw+m}' for m in range(2)]
        if z==2: q+=[f'v_xor_b32 v{r}, 0x10000, v{r}' for r in (W4 if g32 else W4[::2])]
        if g32: q+=[f'ds_write_b128 v{W4[i]}, {V(ACC+32*(z&1)+16*ct+4*i,4)} offset:{32768*(z&1)+ct*128}' for ct in range(2) for i in range(4)]
        elif OPT.get('w64') and z<OPT['w64']:
            for c in range(4):
                for rh in range(2):
                    q.append(f'ds_write_b64 v{aRw+(c&1)}, {V(ACC+32*(z&1)+16*rh+4*c,2)} offset:{32768*(z&1)+rh*4096+(c>>1)*128} ; b128')
                    q.append(f'ds_write_b64 v{aRw+(c&1)}, {V(ACC+32*(z&1)+16*rh+4*c+2,2)} offset:{32768*(z&1)+rh*4096+(c>>1)*128+8}')
        else: q+=[f'ds_write_b128 v{aRw+(c&1)}, {V(ACC+32*(z&1)+16*rh+4*c,4)} offset:{32768*(z&1)+rh*4096+(c>>1)*128}' for c in range(4) for rh in range(2)]
        return [(z,x) for x in q+flag(120+z,aB)]
    started=set(); pend=[]; WS=OPT.get('ws',2 if SW else 3)
    for bi,(g0,n) in enumerate(blocks):
        cl=bi in closing
        upto=min(LIM[bi],g0+NR)
        lq=[l for g in range(st['n'],upto) for l in gl(g)]; st['n']=max(st['n'],upto)
        if OPT.get('nog2'): lq=[]
        lq2=[]
        if not cl and min(LIM[bi],g0+1+NR)>st['n']: lq2=gl(st['n']) if not OPT.get('nog2') else []; st['n']+=1
        cq=chk_items(*blocks[bi+1]) if bi+1<len(blocks) and blocks[bi+1][0] not in verified else []
        assert bi+1==len(blocks) or sum(blocks[bi+1])<=upto
        gq=[]
        if bi in GATES:
            val=GATES[bi]
            def gbr(val=val):
                k(f's_cbranch_vccnz YG{val}r'); k.label(f'YG{val}c')
                kk=Asm(); kk.label(f'YG{val}r')
                kk(f'''ds_read_b32 v{aB+1}, v{aPf}
s_add_u32 s{sSpin}, s{sSpin}, 1
s_cmp_lt_u32 s{sSpin}, {8*SPIN}
s_waitcnt lgkmcnt(0)
s_cbranch_scc0 YG{val}c
v_cmp_gt_u32 vcc, {val}, v{aB+1}
s_cbranch_vccnz YG{val}r
s_branch YG{val}c''')
                tail.append(kk.text())
            gq=[f'ds_read_b32 v{aB+1}, v{aPf}',None,None,None,f'v_cmp_gt_u32 vcc, {val}, v{aB+1}', gbr]
        if bi==OPT.get('pb',99): k(f's_setprio {OPT.get("px",2)}')
        if not g32: seq=[(g0+i,m) for i in range(n) for m in range(8)] if not cl else [(g0+i,m) for m in range(8) for i in range(n)]
        else: seq=[(g0+i,m) for i in range(n) for m in range(8)] if not cl else [(g0+i,4*t+2*ct+e) for ct in range(2) for i in range(n) for t in range(2) for e in range(2)]
        CG_=OPT.get('cg',1); NM=len(seq); c0=NM-max(-(-(len(cq)-1)//CG_)+1,1)
        if OPT.get('nock'): cq=[]
        if cl: wq=red_write(groups[g0][1])
        if cl and OPT.get('nowr'): wq=[(z_,'s_nop 0 ; b128' if 'b128' in x_ else x_) for z_,x_ in wq]
        for p,(gi,m) in enumerate(seq):
            b,z=groups[gi]; c,rh=m>>1,m&1
            while pend and pend[0][0]<=z-2: k(pend.pop(0)[1])
            if not g32:
                a=ACC+32*(z&1)+16*rh+4*c
                k(f'v_mfma_f32_16x16x32_bf16 {V(a,4)}, {A((b*4+c)*4,4)}, {reg(gi,rh)}, {V(a,4) if z in started else "0"}')
            elif rh==0:
                a=ACC+32*(z&1)+16*(c&1)
                k(f'v_mfma_f32_32x32x16_bf16 {V(a,16)}, {A((b*4+c)*4,4)}, {reg(gi,c>>1)}, {V(a,16) if z in started or c>=2 else "0"}')
            if m==7: started.add(z)
            if gq:
                x=gq.pop(0)
                if x: x() if callable(x) else k(x)
            if lq and (p&1==0 or len(lq)>(c0-p)//2): k(lq.pop(0))
            if p>=8 and lq2 and not lq and p&1==0: k(lq2.pop(0))
            if p>=c0:
                for _ in range(CG_):
                    if cq and (len(cq)>1 or p==NM-1):
                        x=cq.pop(0); x() if callable(x) else k(x)
            if pend and 'b128' not in pend[0][1]: k(pend.pop(0)[1])
            elif pend and p%WS==WS-1 and (p>=5 or not g32): k(pend.pop(0)[1])
            if cl and p==0:
                while 'xor' in wq[0][1]: pend.append(wq.pop(0))
            if cl and not g32 and p%n==n-2 and p>=6:
                pend.append(wq.pop(0))
                if 'b64' in wq[0][1] and 'b128' not in wq[0][1]: pend.append(wq.pop(0))
            if cl and g32 and p==4*n+3:
                for _ in range(4): pend.append(wq.pop(0))
        assert not lq and not lq2 and not cq
        if cl:
            pend+=wq
        if not (SW and bi in (0,8)): stamp(f'h{bi}')
        if bi in (3,5,6,8,10): stamp({3:'g4',5:'g8',6:'B1',8:'g11',10:'B2'}[bi])
    stamp('G2done')
    for x in pend: k(x[1])
    stamp('end')
    finish('L')
def y_setup(o):
    o['sEo']=sEo=sp.get(4,1); o['sUp']=sUp=sp.get(2); o['sXp']=sXp=sp.get(2,1); o['sDn']=sDn=sp.get()
    k(f'''v_and_b32 v{t0}, 7, v{vL}
v_lshrrev_b32 v{t1}, 3, v{vL}
v_lshlrev_b32 v{aRr}, 1, v{t0}
v_xor_b32 v{aRr}, v{aRr}, v{t1}
v_lshlrev_b32 v{aRr}, 4, v{aRr}
v_lshl_add_u32 v{aRr}, v{t1}, 8, v{aRr}
s_lshl_b32 s{sT2}, s{sWave}, 11
s_add_u32 s{sT2}, s{sT2}, 0x10000
v_add_u32 v{aRr}, s{sT2}, v{aRr}
v_xor_b32 v{aRr+1}, 16, v{aRr}
v_lshlrev_b32 v{t0}, 4, v{t0}
v_lshl_add_u32 v{aHo}, v{t1}, 10, v{t0}
v_lshl_add_u32 v{aHo+1}, v{t1}, 18, v{t0}
v_and_b32 v{vc2}, 3, v{vL}
v_lshlrev_b32 v{vc2}, 2, v{vc2}
v_add_u32 v{vc2}, {RF+16}, v{vc2}
s_lshl_b32 s{sT0}, s{sCb}, 7
s_lshl_b32 s{sT1}, s{sRb}, 2
s_{"add" if SW else "sub"}_u32 s{sT1}, s{sT1}, s{sKh}
s_add_u32 s{sT1}, s{sT1}, {1-SW}
s_lshl_b32 s{sT1}, s{sT1}, 2
s_add_u32 s{sT1}, s{sT1}, s{sWave}
s_lshl_b32 s{sEo}, s{sT1}, 13
s_add_u32 s{sEo}, s{sEo}, s{sT0}
s_add_u32 s{sEo}, s{sEo}, {HB}
s_add_u32 s{sEo+1}, s{sEo}, 65536
s_lshl_b32 s{sEo+2}, s{sT1}, 10
s_add_u32 s{sEo+2}, s{sEo+2}, s{sT0}
s_add_u32 s{sEo+3}, s{sEo+2}, 8192
s_lshl_b32 s{sUp}, s{sNon}, 29
s_sub_u32 s{sUp}, {fb(2.0**KH)}, s{sUp}
s_mul_i32 s{sDn}, s{sNon}, -64
s_lshl_b32 s{sT0}, s2, 13
s_lshl_b32 s{sT1}, s{sWave}, 11
s_add_u32 s{sT0}, s{sT0}, s{sT1}
s_add_u32 s{sXp}, s{sT0}, {XP}
s_xor_b32 s{sXp+1}, s{sXp}, {8192*64 if OPT.get('loc') else 8192}''')
def y_tail(o):
    sEo,sUp,sXp,sDn=o['sEo'],o['sUp'],o['sXp'],o['sDn']
    HV=88; RV=96; hq=104
    hl=[f'buffer_load_dwordx4 {V(HV+4*i,4)}, v{aHo}, {S(sWs,4)}, s{sEo+i} offen sc1' for i in range(2)]
    run=y_stream(o,o['fill'])
    stamp('G1got')
    if SW: order=[3,0,1,2]; cut=[64+2*OPT.get('ys0',0), 64+2*OPT.get('ys1',8), 112+2*OPT.get('ys2',0), 128]; half=96
    else: order=[0,1,2]; cut=[64+2*OPT.get('ys0',8), 64+2*OPT.get('ys1',8), 96]; half=80
    cur=0; NFR=cut[-1]; assert cut[0]<NFR
    for ji,jj in enumerate(order):
        if cut[ji]>cur:
            k(f's_setprio {OPT.get("pm",2)}')
            if ji and cur<half<cut[ji]:
                run(cur,half); cur=half; o['f116']=1
                for x in flag(116,t0): k(x)
            run(cur,cut[ji]); cur=cut[ji]
            if cur==NFR:
                stamp('G1done')
                for x in flag(117,t0): k(x)
                for l in hl: k(l)
            else: stamp(f'k{4*(ji+1)}')
            k(f's_setprio {OPT.get("py",0)}')
        if ji==0:
            for q in o['fill']:
                c=y_chk(o,q)[:-1]
                for x in c: k(x)
                k(f's_cbranch_vccnz YR{q}')
                kk=Asm(); kk.label(f'YR{q}'); kk('s_waitcnt lgkmcnt(0)\ns_nop 7')
                for tp in range(4*q,4*q+4):
                    for l in y_loads(o,tp): kk(l)
                for ar in range(aB,aB+4): kk(f'v_and_b32 v{ar}, 0xffff, v{ar}')
                kk(f's_waitcnt vmcnt(0)\ns_add_u32 s{sCnt}, s{sCnt}, 1000\ns_cmp_gt_u32 s{sCnt}, {SPIN}\ns_cbranch_scc0 YSTART\ns_endpgm')
                tail.append(kk.text())
        if half<=cur<NFR and not o.get('f116'):
            o['f116']=1
            for x in flag(116,t0): k(x)
        out=ACC+16*jj+8
        gelu(o,jj,YT,out)
        hy=hh_store(o,jj,out)
        if SW and ji==OPT.get('f112',1) and not o.get('f116'):
            for x in flag(112,t0): k(x)
        if ji<len(order)-1: stamp(f'he{ji}')
    stamp('epi')
    if SW:
        for x in flag(118,t0): k(x)
        if not OPT.get('late119'):
            k.wait_vm(hy)
            for x in flag(119,t0): k(x)
    def stage(z):
        p=ACC+32*(z&1)
        k(f's_setprio {OPT.get("psp",0)}')
        k.label(f'Rd{z}')
        k(f'ds_read_b32 v{vck}, v{vc2}')
        spec = z==3 and OPT.get('spec',0)
        rd=[f'ds_read_b128 {V(p+8*pw+4*x,4)}, v{aRr+x} offset:{32768*(z&1)+8192*pw}' for pw in range(4) for x in range(2)]
        if spec:
            for x in rd: k(x)
        bound(f'Rd{z}')
        if OPT.get('ssl'): k(f"s_sleep {OPT['ssl']}")
        k(f'v_cmp_gt_u32 vcc, {120+z}, v{vck}')
        k(f's_cbranch_vccnz Rd{z}'); k.label(f'Rd{z}c')
        k(f's_setprio {OPT.get("pr",0)}')
        if not spec:
            for x in rd: k(x)
        return p
    def add8(d,a,b,packed=False):
        if packed:
            for j in (0,2,4,6): k(f'v_pk_add_f32 {V(d+j,2)}, {V(a+j,2)}, {V(b+j,2)}')
        else:
            for j in range(8): k(f'v_add_f32 v{d+j}, v{a+j}, v{b+j}')
    for z in range(2):
        q=stage(z)
        if z==0: stamp('g4')
        for pw in range(1,4): add8(q,q,q+8*pw)
        for j in range(8): k(f'v_ldexp_f32 v{q+j}, v{q+j}, s{sDn}')
        for j in range(4): k(f'v_cvt_pk_bf16_f32 v{q+j}, v{q+2*j}, v{q+2*j+1}')
        for j in range(4): k(f'v_bfi_b32 v{q+j}, v{vTm}, s{sTag}, v{q+j}')
        if SW and OPT.get('late119')==z+1:
            k.wait_vm(hy)
            for x in flag(119,t0): k(x)
        hs=k(f'buffer_store_dwordx4 {V(q,4)}, v{vL16}, {S(sWs,4)}, s{sXp} offen offset:{1024*z} {LS}')
    stamp('g8')
    k(f'v_xor_b32 v{aRr}, 0x10000, v{aRr}\nv_xor_b32 v{aRr+1}, 0x10000, v{aRr+1}')
    checked('H', hl, tagchk([HV,HV+3,HV+4,HV+7],vck))
    def unpack(d,src):
        for j in range(8):
            k(f'v_lshlrev_b32 v{d+2*j}, 16, v{src+j}')
            k(f'v_and_b32 v{d+2*j+1}, 0xffff0000, v{src+j}')
    unpack(hq,HV)
    if not OPT.get('nxw'): k.wait_vm(hs)
    rl=[f'buffer_load_dwordx4 {V(RV+4*i,4)}, v{vL16}, {S(sWs,4)}, s{sXp+1} offen offset:{1024*i} sc1' for i in range(2)]
    for l in rl: k(l)
    def remote():
        checked('XP', rl, tagchk([RV+7,RV+4,RV+3,RV],vck))
        stamp('g11')
        unpack(ACC,RV); add8(hq,hq,ACC,True); add8(hq+8,hq+8,ACC+8,True)
    def fin(i):
        q=hq+8*i
        for j in (0,2,4,6): k(f'v_pk_mul_f32 {V(q+j,2)}, {V(q+j,2)}, {S(sUp,2)} op_sel_hi:[1,0]')
        for j in range(4): k(f'v_cvt_pk_bf16_f32 v{q+j}, v{q+2*j}, v{q+2*j+1}')
        k(f'buffer_store_dwordx4 {V(q,4)}, v{aHo+1}, {S(sOut,4)}, s{sEo+2+i} offen {OPT.get("of","").replace("_"," ")}')
    ro=OPT.get('ro',1)
    if ro==0: remote()
    p=stage(2)
    for pw in range(4): add8(hq,hq,p+8*pw)
    if ro==1: remote()
    if ro<2: fin(0)
    stamp('G2done')
    p=stage(3)
    for pw in range(4): add8(hq+8,hq+8,p+8*pw,True)
    if ro==2: remote(); fin(0)
    fin(1)
    stamp('end')
    finish('F')
def finish(P):
    if OPT.get('amp','x')[0]==P:
        ra,rb=[r for n,r in stamps[P]]
        k(f'''s_memrealtime s[4:5]
s_waitcnt lgkmcnt(0)
s_sub_u32 s{sT0}, s{rb}, s{ra}
s_mul_i32 s{sT0}, s{sT0}, {OPT.get('ampk',2)}
s_min_u32 s{sT0}, s{sT0}, 100000''')
        k.label('Lamp')
        k(f'''s_memrealtime s[6:7]
s_waitcnt lgkmcnt(0)
s_sub_u32 s{sT1}, s6, s4
s_cmp_lt_u32 s{sT1}, s{sT0}
s_cbranch_scc1 Lamp''')
    if OPT['stamps']:
        k('s_waitcnt vmcnt(0) lgkmcnt(0)')
        k(f'''s_lshl_b32 s{sT0}, s2, 3
s_add_u32 s{sT0}, s{sT0}, s{sWid}
s_lshl_b32 s{sT0}, s{sT0}, 7
s_add_u32 s{sT0}, s{sT0}, {STAMP}''')
        for j,(nm,r) in enumerate(stamps[P]+[('cnt',sCnt),('dg',sDg)]):
            k(f'v_mov_b32 v{40+j}, s{r}')
            k(f'buffer_store_dword v{40+j}, off, {S(sWs,4)}, s{sT0} offset:{4*j}')
    k('s_endpgm')

import copy
sp_common=copy.deepcopy(sp); vm_common=list(k.vm)

vp=Pool(12,127); ap=Pool(112,128)
k(f"s_setprio {OPT.get('pf',3)}")
vL4=vp.get(); sXo=sp.get(2)
k(f'''v_lshlrev_b32 v{vL4}, 2, v{vL}
s_lshl_b32 s{sT0}, s{sWave}, 9
s_add_u32 s{sT0}, s{sT0}, s{sS2}
s_lshl_b32 s{sXo}, s{sT0}, 10
s_add_u32 s{sXo+1}, s{sXo}, 262144''')
srd_consts(((sX,2097152),(sWs,WSZ),(sWd,1792*1024),(sOut,2097152)))
fLo=vp.get(); fG=vp.get(); fP=vp.get()
k(f'''v_cvt_f32_u32 v{fLo}, v{vLo}
v_cvt_f32_u32 v{fG}, v{vG}
v_and_b32 v{t0}, 3, v{vLo}
v_lshrrev_b32 v{t1}, 2, v{vLo}
v_lshl_add_u32 v{t0}, v{t0}, 2, v{t1}
v_cvt_f32_u32 v{fP}, v{t0}''')
def cs(base, step):
    a=vp.get(4); c=vp.get(4)
    k(f'v_add_f32 v{a+1}, v{base}, v{step}\nv_fma_f32 v{a+2}, v{step}, 2.0, v{base}\nv_fma_f32 v{a+3}, v{step}, 2.0, v{a+1}')
    for r in range(4): k(f'v_cos_f32 v{c+r}, v{a+r if r else base}')
    for r in range(4): k(f'v_sin_f32 v{a+r}, v{a+r if r else base}')
    return (c,a)
def mk_matrix(base, step, neg=False):
    c,a=cs(base,step); re=vp.get(4); im=vp.get(4)
    for r in range(4):
        k(f'v_cvt_pk_bf16_f32 v{re+r}, v{c+r}, v{a+r}')
        k(f'v_cvt_pk_bf16_f32 v{im+r}, -v{a+r}, v{c+r}')
    res=[V(re,4),V(im,4),re,im]
    if neg:
        n=ap.get(16,4)
        for r in range(4):
            k(f'v_xor_b32 v{c+r}, 0x80008000, v{re+r}\nv_xor_b32 v{a+r}, 0x80008000, v{im+r}')
        for j,src in enumerate((re,im,c,a)):
            for r in range(4): k(f'v_accvgpr_write_b32 a{n+4*j+r}, v{src+r}')
        res=[A(n+4*j,4) for j in range(4)]
        vp.put(re,4); vp.put(im,4)
    vp.put(a,4); vp.put(c,4)
    return res
C={}
def c_F16():
    k(f'v_mul_f32 v{t0}, {fb(1/16)}, v{fLo}\nv_mul_f32 v{t1}, 4.0, v{t0}\nv_mul_f32 v{t0}, v{t0}, v{fG}')
    C['F16']=mk_matrix(t0,t1)
def c_G():
    k(f'v_mul_f32 v{t1}, {fb(1/16)}, v{fP}\nv_mul_f32 v{t0}, 4.0, v{fG}\nv_mul_f32 v{t0}, v{t0}, v{t1}')
    C['G16']=mk_matrix(t0,t1)
    k(f'v_fma_f32 v{t0}, v{t1}, 0.5, v{t0}')
    C['G32']=mk_matrix(t0,t1)
def c_TW():
    k(f'v_mul_f32 v{t1}, {fb(1/256)}, v{fLo}\nv_mul_f32 v{t0}, 4.0, v{fG}\nv_mul_f32 v{t0}, v{t0}, v{t1}')
    C['TW0']=cs(t0,t1)
    k(f'v_fma_f32 v{t0}, v{t1}, 0.5, v{t0}')
    C['TWA']=cs(t0,t1)
M3=vp.get(2); fS2=vp.get(); aFr=vp.get()
xf=vp.get(16,4); op=vp.get(8,4); D=vp.get(16,4); D2=vp.get(16,4); c4=D
def c_M3():
    k(f'''v_cvt_f32_u32 v{fS2}, s{sS2}
v_lshrrev_b32 v{t0}, 1, v{vLo}
v_and_b32 v{t1}, 1, v{vLo}
v_cvt_f32_u32 v{t0}, v{t0}
v_cvt_f32_u32 v{t1}, v{t1}
v_mul_f32 v{fS2}, {fb(1/2048)}, v{fS2}
v_mul_f32 v{t1}, {fb(0.25)}, v{t1}
v_mul_f32 v{t2}, {fb(0.25)}, v{fG}
v_add_f32 v{t2}, v{t2}, v{fS2}
v_fma_f32 v{t1}, v{t2}, v{t0}, v{t1}
v_mul_f32 v{t0}, {fb(0.125)}, v{t0}
v_add_f32 v{t0}, v{t0}, v{t1}
v_cos_f32 v{c4}, v{t1}
v_sin_f32 v{c4+1}, v{t1}
v_sin_f32 v{c4+3}, v{t0}
v_cos_f32 v{c4+2}, v{t0}
v_sub_f32 v{t0}, v{c4}, v{c4+3}
v_add_f32 v{t2}, v{c4}, v{c4+3}
v_add_f32 v{t1}, v{c4+1}, v{c4+2}
v_sub_f32 v{t3}, v{c4+2}, v{c4+1}
v_mul_f32 v{t0}, {fb(2.0**-KS)}, v{t0}
v_mul_f32 v{t1}, {fb(2.0**-KS)}, v{t1}
v_mul_f32 v{t2}, {fb(2.0**-KS)}, v{t2}
v_mul_f32 v{t3}, {fb(2.0**-KS)}, v{t3}
v_cvt_pk_bf16_f32 v{M3}, v{t0}, v{t1}
v_cvt_pk_bf16_f32 v{M3+1}, v{t2}, v{t3}''')
sX1o=sp.get(); AD={}
def c_addrA():
    vp.put(fP)
    AD['Zw']=aZw=vp.get(); AD['P']=aP=vp.get(); AD['N']=aN=vp.get()
    k(f'''s_mul_i32 s{sT0}, s{sWave}, {513*4}
s_add_u32 s{sT0}, s{sT0}, {R0}
v_add_u32 v{aZw}, s{sT0}, v{vL4}
v_mul_u32_u24 v{t0}, {513*4}, v{vG}
v_lshlrev_b32 v{t1}, 4, v{vLo}
s_lshl_b32 s{sT0}, s{sWave}, 8
s_add_u32 s{sT1}, s{sT0}, {R0+4}
s_sub_u32 s{sT0}, {R0+4*(511-3)}, s{sT0}
v_add3_u32 v{aP}, v{t0}, v{t1}, s{sT1}
v_sub_u32 v{t0}, v{t0}, v{t1}
v_add_u32 v{aN}, s{sT0}, v{t0}
s_mul_i32 s{sX1o}, s{sS2}, {X1S}
s_lshl_b32 s{sT1}, s{sWave}, 11
s_add_u32 s{sX1o}, s{sX1o}, s{sT1}
s_add_u32 s{sX1o}, s{sX1o}, {X1}
v_and_b32 v{aFr}, 12, v{vL4}
v_add_u32 v{aFr}, {RF}, v{aFr}''')
cA=[c_F16,c_TW,c_G,c_M3,c_addrA]
for f in cA[:OPT['early']]: f()
k(f's_mov_b64 {S(sX,2)}, s[4:5]')
stamp('fkarg')
xr=op
for rho in range(2):
    for i in range(4):
        k(f'buffer_load_dword v{xr+4*rho+i}, v{vL4}, {S(sX,4)}, s{sXo+rho} offen offset:{256*i}')
sp.put(sXo,2)
k.barrier()
k(f'''s_load_dword s{sNon}, s[20:21], {NONCE}
s_mov_b64 {S(sWs,2)}, s[20:21]
s_mov_b64 {S(sWd,2)}, s[16:17]
s_mov_b64 {S(sOut,2)}, s[18:19]''')
for f in cA[OPT['early']:]: f()
tag_calc()
stamp('fconst')
F16,G16,G32,TW0,TWA=C['F16'],C['G16'],C['G32'],C['TW0'],C['TWA']
nsync={'n':0}
def fsync(reads):
    nsync['n']+=1; n=[0,2,6,8,12,14][nsync['n']]
    k(f'v_mov_b32 v{vPh}, {n}')
    k(f'ds_write_b32 v{aFw}, v{vPh}')
    k.label(f'Sy{n}')
    k(f'ds_read_b32 v{t3}, v{aFr}')
    for r in reads: k(r)
    bound(f'Sy{n}')
    k(f'v_cmp_gt_u32 vcc, {n}, v{t3}')
    k(f's_cbranch_vccnz Sy{n}'); k.label(f'Sy{n}c')

def hint(n):
    if OPT.get('hint'): k(f'v_mov_b32 v{vPh}, {n}\nds_write_b32 v{aFw}, v{vPh}')
def pk(op_, d, *src, mods=''):
    k(f'{op_} {V(d,2)}, '+', '.join(V(x,2) if isinstance(x,int) else x for x in src)+(' '+mods if mods else ''))
sSt=sp.get(4,2)
def stats(xf, scale, a):
    for rho in range(2):
        pk('v_pk_add_f32', a+4*rho, xf+8*rho, xf+8*rho+2)
        pk('v_pk_mul_f32', a+4*rho+2, xf+8*rho, xf+8*rho)
    for j in (2,4,6):
        for rho in range(2):
            if j>2: pk('v_pk_add_f32', a+4*rho, a+4*rho, xf+8*rho+j)
            pk('v_pk_fma_f32', a+4*rho+2, xf+8*rho+j, xf+8*rho+j, a+4*rho+2)
    for j in (0,4,2,6): k(f'v_add_f32 v{a+j}, v{a+j}, v{a+j+1}')
    k(f'v_permlane32_swap_b32 v{a}, v{a+4}')
    k(f'v_permlane32_swap_b32 v{a+2}, v{a+6}')
    k(f'v_add_f32 v{a}, v{a}, v{a+4}')
    k(f'v_add_f32 v{a+2}, v{a+2}, v{a+6}')
    for m in ('row_ror:8 row_mask:0xf','row_ror:4 row_mask:0xf','row_ror:2 row_mask:0xf','row_ror:1 row_mask:0xf','row_bcast:15 row_mask:0xa'):
        for j in (0,2): k(f'v_add_f32_dpp v{a+j}, v{a+j}, v{a+j} {m} bank_mask:0xf')
    k(f'''v_mul_f32 v{a}, {fb(1/512)}, v{a}
v_mul_f32 v{a+2}, {fb(1/512)}, v{a+2}
v_fma_f32 v{a+2}, -v{a}, v{a}, v{a+2}
v_max_f32 v{a+2}, 0, v{a+2}
v_add_f32 v{a+2}, {fb(1e-5)}, v{a+2}
v_rsq_f32 v{a+2}, v{a+2}''')
    if scale!=1: k(f'v_mul_f32 v{a+2}, {fb(scale)}, v{a+2}')
    k(f'''v_mul_f32 v{a}, -v{a}, v{a+2}
v_readlane_b32 s{sSt}, v{a+2}, 31
v_readlane_b32 s{sSt+1}, v{a}, 31
v_readlane_b32 s{sSt+2}, v{a+2}, 63
v_readlane_b32 s{sSt+3}, v{a}, 63''')
def normalize(xf,n):
    for rho in range(2):
        for j in range(0,8,2):
            pk('v_pk_fma_f32', n+8*rho+j, xf+8*rho+j, S(sSt+2*rho,2), S(sSt+2*rho,2), mods='op_sel:[0,0,1] op_sel_hi:[1,0,1]')
def R4(x): return V(x,4) if isinstance(x,int) else x
def mf32(d,a,b,c='0'): k(f'v_mfma_f32_16x16x32_bf16 {V(d,4)}, {R4(a)}, {R4(b)}, {R4(c)}')
def mf16(d,a,b): k(f'v_mfma_f32_16x16x16_bf16 {V(d,4)}, {V(a,2)}, {V(b,2)}, 0')
tc=vp.get(4)
def cmul_pack(dre,dim,tw,out,conj=True,swap=False):
    c,s_=tw
    ng='neg_lo:[1,0] neg_hi:[1,0]'; ng3='neg_lo:[1,0,0] neg_hi:[1,0,0]'
    for j in (0,2): pk('v_pk_mul_f32', tc+j, dre+j, c+j)
    for j in (0,2): pk('v_pk_mul_f32', dre+j, dre+j, s_+j, mods=ng if conj else '')
    for j in (0,2):
        pk('v_pk_fma_f32', tc+j, dim+j, s_+j, tc+j, mods='' if conj else ng3)
        pk('v_pk_fma_f32', dre+j, dim+j, c+j, dre+j)
    for r in range(4):
        a,b=(dre+r,tc+r) if swap else (tc+r,dre+r)
        k(f'v_cvt_pk_bf16_f32 v{out+r}, v{a}, v{b}')
def settag(r): k(f'v_bfi_b32 v{r}, v{vTm}, s{sTag}, v{r}')

for rho in range(2):
    for i in range(4):
        k(f'v_lshlrev_b32 v{xf+8*rho+i}, 16, v{xr+4*rho+i}')
        k(f'v_and_b32 v{xf+8*rho+4+i}, 0xffff0000, v{xr+4*rho+i}')
stamp('xload')
if 'G1' in OPT['lord']: hint(1)
stats(xf,1,D)
normalize(xf,D2)
for e in range(2):
    for i in range(4): k(f'v_cvt_pk_bf16_f32 v{op+4*e+i}, v{D2+4*e+i}, v{D2+8+4*e+i}')
for e in range(2):
    mf32(D+8*e, op+4*e, F16[0]); mf32(D+8*e+4, op+4*e, F16[1])
for e in range(2):
    cmul_pack(D+8*e, D+8*e+4, (TW0,TWA)[e], op+4*e)
    Gm=(G16,G32)[e]
    mf32(D2+8*e, Gm[0], op+4*e); mf32(D2+8*e+4, Gm[1], op+4*e)
for t in range(2):
    for j in (0,2,4,6): pk('v_pk_add_f32', D+8*t+j, D2+j, D2+8+j, mods='neg_lo:[0,1] neg_hi:[0,1]' if t else '')
    for r in range(4): k(f'v_cvt_pk_bf16_f32 v{op+4*t+r}, v{D+8*t+r}, v{D+8*t+4+r}')
    for nn in (2*t,2*t+1):
        k(f'ds_write2st64_b32 v{AD["Zw"]}, v{op+2*nn}, v{op+2*nn+1} offset0:{2*nn} offset1:{2*nn+1}')
fsync([x for e in range(4) for x in (f'ds_read_b32 v{D2+8+2*e}, v{AD["P"]} offset:{4*e}', f'ds_read_b32 v{D2+8+2*e+1}, v{AD["N"]} offset:{4*(3-e)}')])
stamp('fAbar')
for e in range(4): mf16(D+4*e, M3, D2+8+2*e)
for b0 in range(2):
    o=D2+4*b0
    for e in range(4): k(f'v_cvt_pk_bf16_f32 v{o+e}, v{D+4*e+2*b0}, v{D+4*e+2*b0+1}')
    for e in range(4): settag(o+e)
    hA=k(f'buffer_store_dwordx4 {V(o,4)}, v{vL16}, {S(sWs,4)}, s{sX1o} offen offset:{b0*1024} sc1')
stamp('Adone')
hint(3)
if OPT.get('fs'): k('s_setprio 0')
for r_,n_ in ((G32[2],4),(G32[3],4),(TWA[0],4),(TWA[1],4),(M3,2),(AD['Zw'],1),(AD['P'],1),(AD['N'],1)): vp.put(r_,n_)
sp.put(sX1o)

k(f'''v_fma_f32 v{t3}, v{fLo}, 2.0, 1.0
v_mul_f32 v{t0}, {fb(1/32)}, v{t3}
v_mul_f32 v{t1}, 4.0, v{t0}
v_mul_f32 v{t0}, v{t0}, v{fG}''')
H=mk_matrix(t0,t1,neg=True)
M3i=vp.get(2); u0=D+4; SC=2.0**(KS-21)
k(f'''v_lshrrev_b32 v{t0}, 2, v{vLo}
v_cvt_f32_u32 v{t0}, v{t0}
v_mul_f32 v{u0}, {fb(0.25)}, v{t0}
v_add_f32 v{u0}, v{u0}, v{fS2}
v_bfe_u32 v{t0}, v{vLo}, 1, 1
v_and_b32 v{t1}, 1, v{vLo}
v_cvt_f32_u32 v{t0}, v{t0}
v_cvt_f32_u32 v{t1}, v{t1}
v_fma_f32 v{t0}, v{t0}, 2.0, -1.0
v_mul_f32 v{t0}, {fb(0.25)}, v{t0}
v_mul_f32 v{u0+1}, v{t0}, v{t1}''')
for nn in range(2):
    k(f'''v_fma_f32 v{t1}, v{fG}, 2.0, {"1.0" if nn else "0"}
v_fma_f32 v{t2}, v{u0}, v{t1}, v{u0+1}
v_mul_f32 v{t1}, {fb(0.125)}, v{t1}
v_sub_f32 v{t1}, v{t1}, v{t0}
v_add_f32 v{t1}, v{t1}, v{t2}
v_cos_f32 v{c4}, v{t2}
v_sin_f32 v{c4+1}, v{t2}
v_cos_f32 v{c4+2}, v{t1}
v_sin_f32 v{c4+3}, v{t1}
v_add_f32 v{t1}, v{c4}, v{c4+2}
v_add_f32 v{t2}, v{c4+1}, v{c4+3}
v_mul_f32 v{t1}, {fb(SC)}, v{t1}
v_mul_f32 v{t2}, {fb(-SC)}, v{t2}
v_cvt_pk_bf16_f32 v{M3i+nn}, v{t1}, v{t2}''')
vp.put(fS2)
Wf=[vp.get(4) for _ in range(4)]
aF=vp.get(); aBin=vp.get(); aBw=vp.get(); aBr=vp.get(); sBo=sp.get(2,1); aOw=vp.get(); aOr=vp.get(); sX2o=sp.get()
k(f'''s_lshl_b32 s{sT0}, s{sWave}, 2
s_add_u32 s{sT0}, s{sT0}, {R2}
v_add_u32 v{aF}, s{sT0}, v{vL16}
s_mul_i32 s{sX2o}, s2, {X2S}
s_lshl_b32 s{sT1}, s{sWave}, 11
s_add_u32 s{sX2o}, s{sX2o}, s{sT1}
s_add_u32 s{sX2o}, s{sX2o}, {X2}
v_lshrrev_b32 v{t1}, 1, v{vL}
v_and_b32 v{t2}, 1, v{vL}
v_mul_u32_u24 v{aBin}, {X1S}, v{t1}
v_lshl_add_u32 v{aBin}, v{t2}, 4, v{aBin}
v_mul_u32_u24 v{aBw}, 4160, v{t2}
v_lshl_add_u32 v{aBw}, v{t1}, 3, v{aBw}
s_lshl_b32 s{sT0}, s{sWave}, 8
s_add_u32 s{sT0}, s{sT0}, {R1}
v_add_u32 v{aBw}, s{sT0}, v{aBw}
s_lshl_b32 s{sT0}, s{sWave}, 11
s_lshr_b32 s{sT1}, s{sWave}, 1
s_lshl_b32 s{sT1}, s{sT1}, 6
s_add_u32 s{sT0}, s{sT0}, s{sT1}
s_add_u32 s{sT0}, s{sT0}, {R1}
v_lshl_add_u32 v{aBr}, v{vL}, 3, s{sT0}
s_lshr_b32 s{sT0}, s{sJ}, 3
s_lshl_b32 s{sT0}, s{sT0}, 11
s_and_b32 s{sT1}, s{sXc}, 1
s_lshl_b32 s{sT1}, s{sT1}, 10
s_add_u32 s{sT0}, s{sT0}, s{sT1}
s_lshr_b32 s{sT1}, s{sXc}, 1
s_lshl_b32 s{sT1}, s{sT1}, 8
s_add_u32 s{sT0}, s{sT0}, s{sT1}
s_and_b32 s{sT1}, s{sJ}, 7
s_lshl_b32 s{sT1}, s{sT1}, 5
s_add_u32 s{sT0}, s{sT0}, s{sT1}
s_and_b32 s{sT1}, s{sWave}, 1
s_lshr_b32 s{sT2}, s{sWave}, 1
s_lshl_b32 s{sT2}, s{sT2}, 2
s_add_u32 s{sT1}, s{sT1}, s{sT2}
s_mul_i32 s{sT1}, s{sT1}, {32*X1S}
s_add_u32 s{sT0}, s{sT0}, s{sT1}''')
for i in range(2): k(f's_add_u32 s{sBo+i}, s{sT0}, {X1+64*i*X1S}')
assert all(swapbits(64*r)&4==0 for r in range(4))
if NB:
    k(f'''v_and_b32 v{t1}, {mA}, v{vL}
v_and_b32 v{t2}, {mB}, v{vL}
v_and_b32 v{t0}, {255&~(mA|mB)}, v{vL}
v_lshrrev_b32 v{t1}, {NB}, v{t1}
v_lshlrev_b32 v{t2}, {NB}, v{t2}
v_or3_b32 v{t0}, v{t0}, v{t1}, v{t2}''')
else: k(f'v_mov_b32 v{t0}, v{vL}')
k(f'''s_lshl_b32 s{sT0}, s{sWave}, 3
s_add_u32 s{sT0}, s{sT0}, {R0}
v_and_b32 v{t1}, 4, v{t0}
v_lshlrev_b32 v{t1}, 2, v{t1}
v_lshl_add_u32 v{t0}, v{t0}, 5, s{sT0}
v_xor_b32 v{aOw}, v{t0}, v{t1}
v_bfe_u32 v{t0}, v{vL}, 3, 1
v_xor_b32 v{t0}, v{t0}, v{vL}
s_lshl_b32 s{sT0}, s{sWave}, 11
s_add_u32 s{sT0}, s{sT0}, {R0}
v_lshl_add_u32 v{aOr}, v{t0}, 4, s{sT0}''')
ffn_roles(0); x3_off()
stamp('fS1')
if OPT.get('h4'): hint(4)
if not OPT.get('na'): k.wait_vm(hA)
if OPT.get('zb'):
    k.label('Zb'); k(f'ds_read_b32 v{t3}, v{aFr} offset:16'); bound('Zb'); k(f'v_cmp_gt_u32 vcc, {OPT["zb"]}, v{t3}\ns_cbranch_vccnz Zb'); k.label('Zbc')
if not OPT.get('h4'): hint(4)
if OPT.get('dB'): k(f"s_sleep {OPT['dB']}")

ld=D; ck=t0
loads=[f'buffer_load_dwordx4 {V(ld+4*i,4)}, v{aBin}, {S(sWs,4)}, s{sBo+i} offen sc1' for i in range(2)]
stamp('Bpoll')
for l in loads: k(l)
hint(5)
if OPT.get('fs'): k('s_setprio 3')
chk=[]
for nn in range(2):
    chk+=[f'v_xor_b32 v{op+2*e+nn}, s{sTag}, v{ld+4*nn+e}' for e in range(4)]
    if nn==0: chk+=[f'v_or3_b32 v{ck}, v{op}, v{op+2}, v{op+4}']
chk+=[f'v_or3_b32 v{ck+1}, v{op+6}, v{op+1}, v{op+3}', f'v_or3_b32 v{ck}, v{ck}, v{op+5}, v{op+7}',
      f'v_bitop3_b32 v{ck}, v{ck}, v{ck+1}, v{vTm} bitop3:0xa8', f'v_cmp_ne_u32 vcc, 0, v{ck}']
checked('B', loads, chk)
stamp('Bgot')
for e in range(4): k(f'ds_write_b64 v{aBw}, {V(op+2*e,2)} offset:{1024*e}')
fsync([f'ds_read_b64 {V(D2+4*e+2*ih,2)}, v{aBr} offset:{1024*e+512*ih}' for e in range(2) for ih in range(2)])
wrd=[f'ds_read_b32 v{t3}, v{aFr} offset:16']+[f'ds_read_b32 v{Wf[2+m]+r}, v{aF} offset:{4096*m+1024*r}' for m in range(2) for r in range(4)]
for e in range(2):
    mf32(D+8*e, D2+4*e, F16[0]); mf32(D+8*e+4, D2+4*e, F16[1])
stamp('fB0')
wq=list(wrd)
for x in wq[:5]: k(x)
cmul_pack(D, D+4, TW0, op)
for x in wq[5:7]: k(x)
mf32(D2, G16[0], op); mf32(D2+4, G16[1], op)
for x in wq[7:]: k(x)
cmul_pack(D+8, D+12, TW0, op+4)
k(f'v_cmp_gt_u32 vcc, 6, v{t3}')
k(f'v_and_b32 v{aFr}, 28, v{vL4}')
mf32(D2+8, G16[0], op+4); mf32(D2+12, G16[1], op+4)
k('s_cbranch_vccnz WSr'); k.label('WSc')
kk=Asm(); kk.label('WSr')
kk(f'v_and_b32 v{t2}, 12, v{vL4}\nv_add_u32 v{t2}, {RF}, v{t2}')
kk.label('WSl')
kk(wrd[0].replace(f'v{aFr} ',f'v{t2} '))
for x in wrd[1:]: kk(x)
kk(f'''s_add_u32 s{sSpin}, s{sSpin}, 1
s_cmp_lt_u32 s{sSpin}, {8*SPIN}
s_waitcnt lgkmcnt(0)
s_cbranch_scc0 WSc
v_cmp_gt_u32 vcc, 6, v{t3}
s_cbranch_vccnz WSl
s_branch WSc''')
tail.insert(0,kk.text())
for m in range(2):
    for r in range(4): k(f'v_lshlrev_b32 v{Wf[m]+r}, 16, v{Wf[2+m]+r}')
for e in range(2):
    cmul_pack(D2+8*e, D2+8*e+4, (Wf[2*e], Wf[2*e+1]), op+4*e, conj=False, swap=True)
    if e==0:
        for r in range(2): k(f'v_and_b32 v{Wf[2]+r}, 0xffff0000, v{Wf[2]+r}')
    else: k(f'v_add_u32 v{aFr}, {RF}, v{aFr}')
    mf32(D+8*e, op+4*e, F16[0]); mf32(D+8*e+4, op+4*e, F16[1])
    if e==0:
        for r in (Wf[2]+2,Wf[2]+3,Wf[3],Wf[3]+1,Wf[3]+2,Wf[3]+3): k(f'v_and_b32 v{r}, 0xffff0000, v{r}')
hint(7)
for e in range(2):
    cmul_pack(D+8*e, D+8*e+4, TW0, op+4*e)
    mf32(D2+8*e, G16[0], op+4*e); mf32(D2+8*e+4, G16[1], op+4*e)
for r in range(4): k(f'v_cvt_pk_bf16_f32 v{D+2*r}, v{D2+4+r}, v{D2+r}')
for r in range(4): settag(D+2*r)
for r in range(4):
    k(f'v_cvt_pk_bf16_f32 v{D+2*r+1}, v{D2+12+r}, v{D2+8+r}')
    settag(D+2*r+1)
    k(f'ds_write_b64 v{aOw}, {V(D+2*r,2)} offset:{swapbits(64*r)*32}')
stamp('fB1')
fsync([f'ds_read_b128 {V(D+8+4*i,4)}, v{aOr} offset:{1024*i}' for i in range(2)])
stamp('fB2')
for i in range(2): hB=k(f'buffer_store_dwordx4 {V(D+8+4*i,4)}, v{vL16}, {S(sWs,4)}, s{sX2o} offen offset:{1024*i} sc1')
stamp('Bdone')
hint(9)
if OPT.get('fs'): k('s_setprio 0')
for r_,n_ in [(w_,4) for w_ in Wf]+[(aBin,1),(aBw,1),(aBr,1),(aOw,1),(aOr,1),(aF,1)]: vp.put(r_,n_)
sp.put(sBo,2); sp.put(sX2o)
k(f'v_fma_f32 v{t3}, v{fLo}, 2.0, 1.0\nv_mul_f32 v{t1}, {fb(1/512)}, v{t3}\nv_mul_f32 v{t0}, 4.0, v{fG}\nv_mul_f32 v{t0}, v{t0}, v{t1}')
TWC=cs(t0,t1)
nyq=vp.get(2); aCin=vp.get(); aCp=vp.get(); aCn=vp.get(); aCr=vp.get(2,1); sCo=sp.get(2,1)
aLw=vp.get(2,1); aLr=vp.get(); aHw=vp.get(); aHr=vp.get(); sHb=sp.get()
CB=R1+16; CS=2064
k(f'''v_and_b32 v{t0}, 0xcf, v0
v_mov_b32 v{t1}, 0.5
v_cmp_eq_u32 vcc, 0xcf, v{t0}
v_lshrrev_b32 v{t0}, 1, v{vLo}
v_lshlrev_b32 v{t0}, 2, v{t0}
v_cndmask_b32 v{nyq}, 1.0, v{t1}, vcc
v_cndmask_b32 v{nyq+1}, 0, v{t1}, vcc
v_add_u32 v{t0}, v{t0}, v{vG}
v_mul_u32_u24 v{t0}, {2*X2S}, v{t0}
v_and_b32 v{t1}, 1, v{vLo}
v_lshl_add_u32 v{aCin}, v{t1}, 4, v{t0}
s_mul_i32 s{sT0}, s{sWave}, {64*X2S}
s_lshl_b32 s{sT1}, s{sPos}, 5
s_add_u32 s{sT0}, s{sT0}, s{sT1}
s_add_u32 s{sCo}, s{sT0}, {X2}
s_add_u32 s{sCo+1}, s{sT0}, {X2+X2S}
v_mul_u32_u24 v{t0}, {CS}, v{vG}
v_lshlrev_b32 v{t1}, 4, v{vLo}
s_lshl_b32 s{sT0}, s{sWave}, 8
s_add_u32 s{sT1}, s{sT0}, {CB}
s_sub_u32 s{sT0}, {CB+1024+4*252}, s{sT0}
v_add3_u32 v{aCp}, v{t0}, v{t1}, s{sT1}
v_sub_u32 v{t0}, v{t0}, v{t1}
v_add_u32 v{aCn}, s{sT0}, v{t0}
s_mul_i32 s{sT0}, s{sWave}, {CS}
s_add_u32 s{sT0}, s{sT0}, {CB-4}
v_add_u32 v{aCr}, s{sT0}, v{vL4}
v_add_u32 v{aCr+1}, {1028}, v{aCr}
v_mov_b32 v{t0}, s{sT0}
v_mov_b32 v{t1}, 0
ds_write_b32 v{t0}, v{t1}
v_and_b32 v{t0}, 7, v{vL}
s_lshl_b32 s{sT0}, s{sWave}, 1
v_xor_b32 v{t0}, s{sT0}, v{t0}
v_lshlrev_b32 v{t0}, 4, v{t0}
v_lshl_add_u32 v{t0}, v{vL}, 7, v{t0}
v_add_u32 v{aLw}, {R0}, v{t0}
v_xor_b32 v{aLw+1}, 16, v{aLw}
v_lshrrev_b32 v{t0}, 3, v{vL}
v_xor_b32 v{t0}, v{t0}, v{vL}
s_lshl_b32 s{sT0}, s{sWave}, 11
s_add_u32 s{sT1}, s{sT0}, {R0}
v_lshl_add_u32 v{aLr}, v{t0}, 4, s{sT1}
s_add_u32 s{sT1}, s{sT0}, {RH}
v_add_u32 v{aHw}, s{sT1}, v{vL4}
v_add_u32 v{aHr}, s{sT1}, v{vL16}
s_lshl_b32 s{sHb}, s{sS2}, 13
s_add_u32 s{sHb}, s{sHb}, s{sT0}
s_add_u32 s{sHb}, s{sHb}, {HB}''')
stamp('fS3')
if OPT.get('h10'): hint(10)
k.wait_vm(hB)
if 'Z' in OPT.get('seq',''):
    k(f'v_or_b32 v{t2}, 16, v{aFr}')
    k.label('Zw'); k(f'ds_read_b32 v{t3}, v{t2}'); bound('Zw'); k(f'v_cmp_gt_u32 vcc, 101, v{t3}\ns_cbranch_vccnz Zw' if not OPT.get('zany') else f'v_cmp_le_u32 vcc, 101, v{t3}\ns_cbranch_vccz Zw'); k.label('Zwc')
elif not OPT.get('h10'):
    if OPT.get('dC0'): k(f"s_sleep {OPT['dC0']}")
    hint(10)
if OPT.get('dC'): k(f"s_sleep {OPT['dC']}")

loads=[f'buffer_load_dwordx4 {V(ld+4*i,4)}, v{aCin}, {S(sWs,4)}, s{sCo+i} offen sc1' for i in range(2)]
stamp('Cpoll')
for l in loads: k(l)
hint(11)
if OPT.get('fs'): k('s_setprio 3')
checked('C', loads, chk)
stamp('Cgot')
for e in (3,0,1,2): mf16(D+4*e, M3i, op+2*e)
pk('v_pk_mul_f32', D+14, D+14, nyq, mods='op_sel:[0,0] op_sel_hi:[1,0]')
pk('v_pk_fma_f32', D+14, D+12, nyq, D+14, mods='op_sel:[0,1,0] op_sel_hi:[1,1,1]')
for e in (3,0,1,2): k(f'v_cvt_pk_bf16_f32 v{D2+e}, v{D+4*e+1}, v{D+4*e}')
k(f'ds_write_b128 v{aCp}, {V(D2,4)}')
for e in (3,0,1,2): k(f'v_cvt_pk_bf16_f32 v{D2+4+3-e}, v{D+4*e+3}, v{D+4*e+2}')
k(f'ds_write_b128 v{aCn}, {V(D2+4,4)}')
fsync([f'ds_read2st64_b32 {V(op+4*t+2*nn,2)}, v{aCr+t} offset0:{2*nn} offset1:{2*nn+1}' for t in range(2) for nn in range(2)])
for e in range(2):
    for c in range(2): mf32(D+8*e+4*c, op, (F16,H)[e][c])
    for c in range(2): mf32(D+8*e+4*c, op+4, (F16[c],H[2+c])[e], D+8*e+4*c)
for e in range(2):
    cmul_pack(D+8*e, D+8*e+4, (TW0,TWC)[e], D2+4*e)
    mf32(xf+4*e, G16[1], D2+4*e, xf+4*e)
    mf32(xf+8+4*e, G16[0], D2+4*e, xf+8+4*e)
hint(13)
stats(xf,CG,D)
normalize(xf,D2)
for rho in range(2):
    for i in range(4): k(f'v_cvt_pk_bf16_f32 v{op+4*rho+i}, v{D2+8*rho+i}, v{D2+8*rho+4+i}')
    k(f'ds_write_b128 v{aLw+rho}, {V(op+4*rho,4)}')
fsync([f'ds_read_b128 {V(D+4*i,4)}, v{aLr} offset:{1024*i}' for i in range(2)])
for i in range(2): hC=k(f'buffer_store_dwordx4 {V(D+4*i,4)}, v{vL16}, {S(sWs,4)}, s{sX3o} offen offset:{1024*i} {LS}')
stamp('Cdone')
hint(15)
if OPT.get('fs'): k('s_setprio 0')
k(f's_mov_b32 s{sSt}, {fb(2.0**-KH)}')
for j in range(0,16,2): pk('v_pk_mul_f32', xf+j, xf+j, S(sSt,2), mods='op_sel_hi:[1,0]')
for rho in range(2):
    for i in range(4): k(f'v_cvt_pk_bf16_f32 v{D2+4*rho+i}, v{xf+8*rho+i}, v{xf+8*rho+4+i}')
    for i in range(4): settag(D2+4*rho+i)
    for nn in range(2): k(f'ds_write2st64_b32 v{aHw}, v{D2+4*rho+2*nn}, v{D2+4*rho+2*nn+1} offset0:{4*rho+2*nn} offset1:{4*rho+2*nn+1}')
k(f'v_mov_b32 v{t0}, v{aHr}')
for i in range(2): k(f'ds_read_b128 {V(RING+4*i,4)}, v{t0} offset:{1024*i}')
k.wait_lg()
sp.put(sCo,2); sp.put(sSt,4)
k(f'''s_or_b32 s{sT0}, s2, s{sWave}
s_cmp_lg_u32 s{sT0}, 0
s_cbranch_scc1 Lnon
v_mov_b32 v{t1}, s{sTag}
s_mov_b32 s{sT0}, {NONCE}''')
k.raw(f'    buffer_store_dword v{t1}, off, {S(sWs,4)}, s{sT0} sc1')
k.label('Lnon')

if OPT.get('ea')==2: k.wait_vm(hC); hint(16)
oF=gemm_setup(0); y_setup(oF)
k.wait_vm(hC)
if OPT.get('ea')==1: hint(16)
if OPT.get('dG'): k(f"s_sleep {OPT['dG']}")
k.barrier()
stamp('Gbar')
k('s_setprio 1')
def h_store():
    for i in range(2): k(f'buffer_store_dwordx4 {V(RING+4*i,4)}, v{vL16}, {S(sWs,4)}, s{sHb} offen offset:{1024*i} {LS}')
    if OPT.get('xpw'):
        for j in range(4): k(f'v_mov_b32 v{ACC+j}, -1')
        for i in range(2): k(f'buffer_store_dwordx4 {V(ACC,4)}, v{vL16}, {S(sWs,4)}, s{oF["sXp"]} offen offset:{1024*i} sc1')
if OPT.get('hp',0)==0: h_store(); k('s_waitcnt vmcnt(0)')
oF['fill']=y_fill(oF, h_store if OPT.get('hp',0) else None)
stamp('wdone')
y_tail(oF)
nF=k.count

path['p']='L'; sp.free=list(sp_common.free)
k.hist=[]; k.vm=vm_common; k.lg=[]
mark=len(k.out)
k.label('LSTUB')
k(f'''s_mov_b32 s{sX+2}, 1052672
s_mov_b32 s{sX+3}, 0x20000
v_min_u32 v{t0}, 8, v{vLo}
v_lshlrev_b32 v{t0}, 6, v{t0}
v_mul_u32_u24 v{t1}, 4112, v{vG}
v_add_u32 v{t0}, v{t0}, v{t1}
s_lshl_b32 s{sT0}, s{sJ}, 1
s_and_b32 s{sT1}, s{sWave}, 1
s_add_u32 s{sT0}, s{sT0}, s{sT1}
s_lshl_b32 s{sT0}, s{sT0}, 5
s_add_u32 s{sT0}, s{sT0}, s{sXc}
s_mul_i32 s{sT0}, s{sT0}, 514
s_cmp_lt_u32 s{sWave}, 2
s_waitcnt lgkmcnt(0)
s_cselect_b64 {S(sX,2)}, s[6:7], s[8:9]''')
if not OPT.get('fe'): k('s_barrier')
hF=k(f'buffer_load_ushort v33, v{t0}, {S(sX,4)}, s{sT0} offen')
if OPT.get('fe'): k('s_barrier')
k('s_branch LPATH')
stub='\n'.join(k.out[mark:]); del k.out[mark:]
k.label('LPATH')
vdum=32; vS=40; vR=64; vB=48; aF=52; vSent=56
sFw=sp.get(2,1); sWr=sp.get(4,4); sWi=sp.get(4,4)
k(f'''s_load_dword s{sNon}, s[20:21], {NONCE}
s_mov_b64 {S(sWs,2)}, s[20:21]
s_mov_b64 {S(sWr,2)}, s[6:7]
s_mov_b64 {S(sWi,2)}, s[8:9]
s_mov_b64 {S(sWd,2)}, s[16:17]
s_mov_b64 {S(sOut,2)}, s[18:19]
s_bitcmp0_b32 s{sWave}, 0
s_cselect_b64 {S(sW1,2)}, s[12:13], s[14:15]''')
stamp('fkarg')
def l_pre():
    k(f'''s_cmp_lt_u32 s{sWave}, 2
s_cselect_b64 {S(sX,2)}, {S(sW1,2)}, {S(sWd,2)}
s_cmp_eq_u32 s{sWave}, 3
s_cselect_b32 s{sX+2}, 0, {512*3584}
s_mov_b32 s{sX+3}, 0x20000
v_min_u32 v{t0}, 55, v{vL}
v_lshlrev_b32 v{t0}, 7, v{t0}
s_mul_i32 s{sT0}, s2, {56*128}''')
    return k(f'buffer_load_dword v{vdum+2}, v{t0}, {S(sX,4)}, s{sT0} offen')
def l_p1():
    k(f'''s_mov_b32 s{sWd+2}, {1792*1024}
s_mov_b32 s{sWd+3}, 0x20000
s_lshl_b32 s{sT0}, s2, 2
s_add_u32 s{sT0}, s{sT0}, s{sWave}
s_mul_i32 s{sT0}, s{sT0}, {14*128}
v_min_u32 v{t0}, 13, v{vL}
v_lshlrev_b32 v{t0}, 7, v{t0}''')
    return k(f'buffer_load_dword v{vdum+2}, v{t0}, {S(sWd,4)}, s{sT0} offen')
def l_p2():
    k(f'''s_lshl_b32 s{sT0}, s2, 1
s_lshr_b32 s{sT1}, s{sWave}, 1
s_add_u32 s{sT0}, s{sT0}, s{sT1}
s_mul_i32 s{sT0}, s{sT0}, {28*128}
v_min_u32 v{t0}, 27, v{vL}
v_lshlrev_b32 v{t0}, 7, v{t0}''')
    return k(f'buffer_load_dword v{vdum+3}, v{t0}, {S(sW1,4)}, s{sT0} offen')
def l_bpre():
    assert NB==2
    k(f'''s_lshl_b32 s{sT0}, s{sJ}, 1
s_lshr_b32 s{sT1}, s{sWave}, 1
s_add_u32 s{sT0}, s{sT0}, s{sT1}
s_mul_i32 s{sT0}, s{sT0}, {8*3584}
s_and_b32 s{sT1}, s{sXc}, 3
s_mul_i32 s{sT1}, s{sT1}, 896
s_add_u32 s{sT0}, s{sT0}, s{sT1}
v_and_b32 v{t0}, 7, v{vL}
v_min_u32 v{t0}, 6, v{t0}
v_lshrrev_b32 v{t1}, 3, v{vL}
v_mul_u32_u24 v{t1}, 3584, v{t1}
v_lshl_add_u32 v{t0}, v{t0}, 7, v{t1}''')
    return k(f'buffer_load_dword v{vdum+4}, v{t0}, {S(sW1,4)}, s{sT0} offen')
def l_sent():
    for i in range(2): h=k(f'buffer_store_dwordx4 {V(vSent,4)}, v{vL16}, {S(sWs,4)}, s{sX3o} offen offset:{1024*i} {LS}')
    return h
def l_gath(ms=(0,1)):
    for m in ms:
        k(f's_add_u32 m0, s{sFw+1}, {R2+4096*m}')
        h=k(f'buffer_load_dwordx4 v{aF}, {S((sWr,sWi)[m],4)}, s{sFw} offen lds')
    return h
def l_setup():
    srd_consts(((sWs,WSZ),(sWd,1792*1024),(sOut,2097152),(sW1,512*3584),(sWr,1052672),(sWi,1052672)))
    ffn_roles(1); x3_off()
    k(f'''v_and_b32 v{t0}, 255, v0
v_mul_u32_u24 v{aF}, 4112, v{t0}
s_mul_i32 s{sT0}, s{sXc}, 514
s_lshl_b32 s{sT1}, s{sJ}, 4
s_add_u32 s{sT0}, s{sT0}, s{sT1}
s_add_u32 s{sFw}, s{sT0}, 2
s_lshl_b32 s{sFw+1}, s{sWave}, 10
s_lshl_b32 s{sLq}, s{sWave}, 15''')
    for i in range(4): k(f'v_mov_b32 v{vSent+i}, -1')
    wd_addr(vS); wd_raddr(vR,sLq)
    k(f'''v_bfe_u32 v{t1}, v{vL}, 3, 1
v_lshl_add_u32 v{t1}, v{vG}, 7, v{t1}
v_mul_u32_u24 v{t1}, 3584, v{t1}
v_and_b32 v{t0}, 1, v{vG}
v_lshlrev_b32 v{t0}, 1, v{t0}
v_and_b32 v{t2}, 7, v{vL}
v_xor_b32 v{t0}, v{t0}, v{t2}
s_and_b32 s{sT0}, s{sWave}, 1
s_lshl_b32 s{sT0}, s{sT0}, 2
v_xor_b32 v{t0}, s{sT0}, v{t0}
v_xor_b32 v{t2}, 4, v{t0}
s_lshr_b32 s{sT0}, s{sWave}, 1
s_mul_i32 s{sT1}, s{sT0}, {32*7168}
s_lshl_b32 s{sT0}, s{sF0}, 5
s_add_u32 s{sT0}, s{sT0}, s{sT1}
v_add_u32 v{t1}, s{sT0}, v{t1}
v_lshl_add_u32 v{vB}, v{t0}, 4, v{t1}
v_lshl_add_u32 v{t2}, v{t2}, 4, v{t1}
v_add_u32 v{vB+1}, {6144}, v{t2}
v_add_u32 v{vB+2}, {2*6144}, v{vB}
v_add_u32 v{vB+3}, {3*6144}, v{t2}''')
    tag_calc()
    k(f"s_setprio {OPT.get('pl',0)}")
aPk=60; ngate={'n':0}
def gate(mask):
    ngate['n']+=1; n=ngate['n']
    k.label(f'Gt{n}')
    k(f'ds_read_b32 v{aPk+1}, v{aPk}')
    bound(f'Gt{n}')
    k(f'v_readfirstlane_b32 s{sT0}, v{aPk+1}')
    k(f's_bitcmp0_b32 {mask}, s{sT0}')
    k(f's_cbranch_scc1 Gt{n}'); k.label(f'Gt{n}c')
k(f's_lshl_b32 s{sT0}, s{sWave}, 2\ns_add_u32 s{sT0}, s{sT0}, {RF}\nv_mov_b32 v{aPk}, s{sT0}')
RUN=sum(1<<int(x) for x in str(OPT.get('run','3.6.9.12.15')).split('.'))
hl={'f':hF}; done_setup=False
flagged={'d':True,'v':0}
def try_flag(force=0):
    for v,names in ((6,('g','g1')),(100,('s',))):
        hs=[hl[n] for n in names if n in hl]
        if flagged['v']>=v or not hs or (v==100 and flagged['v']<6): continue
        if force>=v: k.wait_vm(hs[0])
        if hs[0] not in {e[0] for e in k.vm}:
            k(f'v_mov_b32 v{vPh}, {v}\nds_write_b32 v{aFw}, v{vPh}'); flagged['v']=v; stamp('gflag' if v==6 else 'fsent')
def b1_dma(g):
    k(f's_add_u32 m0, s{sLq}, {g*4096}\ns_mov_b32 s{sB0}, {g*4*7168}')
    for i in range(4):
        k(f'buffer_load_dwordx4 v{vB+i}, {S(sW1,4)}, s{sB0} offen offset:{i*1024} lds'); throttle('b')
hd={}; nwd={'n':0}; nb=0
def wd_next(raw=False):
    b=nwd['n']; hd[b]=wd_load(b,vS,raw); nwd['n']+=1; try_flag()
for tok in OPT['lord'].split('_'):
    if tok not in ('p','p1') and not done_setup: l_setup(); done_setup=True
    if tok[0]=='w': k.wait_vm(hl[tok[1:]]); stamp('f'+tok)
    elif tok[0]=='G': gate(0xffff&~((1<<int(tok[1:]))-1))
    elif tok[0]=='F': try_flag(int(tok[1:]))
    elif tok[0]=='V': k(f'v_mov_b32 v{vPh}, {tok[1:]}\nds_write_b32 v{aFw}, v{vPh}')
    elif tok=='W': wd_next()
    elif tok in ('B7','B'): flagged['d']=tok=='B'; b1_dma(take(1)); nb+=1; flagged['d']=True; try_flag()
    elif tok in 'UR': flagged['d']=False; wd_next(tok=='R'); flagged['d']=True
    else:
        hl[tok]={'p':l_pre,'p1':l_p1,'p2':l_p2,'s':l_sent,'g':l_gath,'g0':lambda:l_gath([0]),'g1':lambda:l_gath([1]),'b':l_bpre}[tok]()
        stamp('f'+tok)
assert flagged['v']==100
if OPT.get('lgate'): gate(0xffff&~((1<<OPT['lgate'])-1))
nx=0; hx={}; oL=None
for r_,n_ in ((sFw,2),(sWr,4),(sWi,4)): sp.put(r_,n_)
xo=[int(c) for c in str(OPT.get('xo','0123456')).lstrip('o')]
border=[7]+xo
for tok in OPT.get('seq','WWWWWWWXBXBXBXBXBXBXBB'):
    flagged['d']=tok.isupper()
    if tok in 'WwR':
        if nwd['n']<7: wd_next(tok=='R')
    elif tok.isdigit(): gate(0x1ffff&~((1<<int(tok))-1))
    elif tok=='S': oL=gemm_setup(1); x_setup(oL)
    elif tok=='Z':
        k(f"s_waitcnt vmcnt({OPT.get('zt',2)})")
        k(f'v_mov_b32 v{vPh}, 101\nds_write_b32 v{aFw}, v{vPh}'); stamp('fZ')
        if OPT.get('zs'): oL=gemm_setup(1); x_setup(oL)
        if not OPT.get('zn'): gate(0x1ffff&~((1<<11)-1))
    elif tok=='X': hx[xo[nx]]=wd_xp(xo[nx],vR,hd[xo[nx]]); nx+=1
    else:
        if nb==7: stamp('wdone')
        b1_dma(take(1)); nb+=1
assert nb==8 and nwd['n']==7 and nx==7
if oL is None: oL=gemm_setup(1); x_setup(oL)
NRL=5+2*SW
if OPT.get('ea'):
    hlast=k.vm[-1][0]
    gate(0x10000)
    for tp in range(OPT.get('xi',2)):
        for l in g1_loads(oL,tp,NRL,128-8*NRL): k(l)
    k.wait_vm(hlast)
else: k('s_waitcnt vmcnt(0)')
stamp('bdone')
k.barrier()
stamp('Gbar')
k('s_setprio 3')
gemm1(1,oL,NRL,128-8*NRL)
x_tail(oL)

hdr=f'''; Fused persistent kernel: LN -> 2-D FFT filter (MFMA DFT stages) -> LN -> GEGLU FFN, 256 workgroups.
; @launch grid=(256,1,1) block=(512,1,1) lds={LDSZ}
.amdgcn_target "amdgcn-amd-amdhsa--gfx950"
.text
.globl {KN}
.p2align 8
.type {KN},@function
'''
ftr=f'''
CODE_END:
.section .rodata,"a"
.p2align 6
.amdhsa_kernel {KN}
  .amdhsa_next_free_vgpr 256
  .amdhsa_next_free_sgpr 102
  .amdhsa_accum_offset 128
  .amdhsa_group_segment_fixed_size 0
  .amdhsa_kernarg_size 80
  .amdhsa_user_sgpr_count 2
  .amdhsa_user_sgpr_kernarg_segment_ptr 1
  .amdhsa_system_sgpr_workgroup_id_x 1
.end_amdhsa_kernel
'''
open(sys.argv[1],'w').write(hdr+k.text().replace('@STUB@',stub)+'\n'+'\n'.join(tail)+ftr+(''.join('; STAMPS '+' '.join(n for n,_ in stamps[p])+' cnt\n' for p in 'FL') if OPT['stamps'] else ''))
open(sys.argv[1]+'.stamps','w').write('\n'.join(' '.join(n for n,_ in stamps[p])+' cnt' for p in 'FL'))
print('instrs F',nF,'total',k.count,'nops',k.nops,'vp hi',vp.hi,'sp hi',sp.hi, file=sys.stderr)
```

```python
import sys, struct
from asmlib import *

KN = "sequential_preLN__spectral_gfnet__glu_gated_geglu__prompt_kernel"
OPT = dict(stamps=0, ng=2, g2=0, early=0, thr=14, lord='p_G3_g_F6_G5_s_G6_B7_W_W_F100', yn=14, hint=1, gew=4, geb=1, run='3.6.7.8.9.11.12.15', seq='WWWWWWWXXBXBZXBXBXBXBB', zt=6, thrb=20, thrw=10, zany=1, ro=1, xl=1, plan=5, lw=1, yw=3)
for a in sys.argv[2:]:
    kk,vv = a.split('='); OPT[kk]=int(vv) if vv.lstrip('-').isdigit() else vv
NB = OPT['ng']; SW=0
def fb(x): return '0x%08x' % struct.unpack('<I', struct.pack('<f', x))[0]

NONCE=0x80000
X1=0x100000; X1S=8320
X2=0x600000; X2S=8320
X3=0xB00000; X3S=8320
HB=0xE00000
HH=0x1000000
XP=0x1A00000
STAMP=0x1800000
WSZ=0x2000000
R0=131072; R1=R0+9216; R2=R1+9216; RH=R2; RF=R2+8192
KS=100; KH=82; TM=0x60006000
LDSZ=163840
SPIN=400000
CG = 0.1029432397**(1/3)
KQ = 2.302208198/CG

k=Asm(); tail=[]
LS='' if OPT.get('loc')==2 else 'sc1'
sp=Pool(44,96)
sX,sWs,sWd,sOut,sW1 = 24,28,32,36,40
stamps={'F':[], 'L':[]}; path={'p':'F'}
STQ={'F':[22,100,4,6,8,10,12,14,16,18,20,24,26,40,42],'L':[22,100,4,6,8,10,12,14,16,18,20,24,26,96,98]}
def stamp(name):
    st=OPT['stamps']; p=path['p']
    if OPT.get('probe')==p+name: k('s_sleep 10')
    big=('start','xload','Adone','Bpoll','Bgot','Bdone','Cpoll','Cgot','Cdone','gflag','wdone','bdone','Gbar','G1got','G1done','epi','B1','G2done','end')
    on = (st==1 and name in big and not (p=='F' and name in ('wdone','B1','Bpoll','Cpoll'))) or (st==2 and name in ('start','Gbar','wdone','G1got','G1done','epi','B1','G2done','B2','end','g4','g8','g11')) \
         or (st==4 and name in ('Gbar','G1got','k4','k8','k12','G1done','epi','B1','G2done','B2','end','g4','g8','g11')) \
         or (st==8 and name in ('start','xload','Adone','Bpoll','Bgot','Bdone','Cpoll','Cgot','Cdone','Gbar','end','gflag','fZ')) \
         or (st==7 and name in ('start','Gbar','end')) \
         or (st==6 and (name[0]=='h' or name in (('G1got','k4','k8','k12','G1done','epi','g4','g8','g11','G2done','end') if p=='F' else ('G1got','G1done','epi',)))) \
         or (st==5 and (name[0]=='l' or name in ('bdone','Gbar'))) \
         or (st==3 and (name[0]=='f' or name in big[:13]) and not (p=='F' and name in ('wdone','fkarg','fS1','fS3')))
    if on or (p+name) in OPT.get('amp','').split(','):
        r=STQ[p][len(stamps[p])]; stamps[p].append((name,r)); k(f'{"s_memtime" if OPT.get("cyc") else "s_memrealtime"} {S(r,2)}')

def retry_block(name, loads, check):
    kk=Asm()
    kk.label(f'R_{name}')
    kk('s_nop 3')
    for l in loads: kk(l)
    kk('s_waitcnt vmcnt(0)')
    for c in check: kk(c)
    kk(f's_add_u32 s{sCnt}, s{sCnt}, 1')
    if OPT['stamps']: kk(f's_add_u32 s{sDg}, s{sDg}, {1<<(8*dict(B=0,C=1,Y=2,X=3,H=3,G=0 if name[:2] in ("G1","Gp") else 1 if name in ("G2_0","G2_2") else 2 if name in ("G2_4","G2_6","G2_8","G2_11","G2_14") else 3)[name[0]])}')
    kk(f's_cmp_gt_u32 s{sCnt}, {SPIN}')
    kk(f's_cbranch_scc1 C_{name}')
    kk(f's_cbranch_vccnz R_{name}')
    kk(f's_branch C_{name}')
    tail.append(kk.text())
def checked(name, loads, check):
    for c in check: k(c)
    k(f's_cbranch_vccnz R_{name}')
    k.label(f'C_{name}')
    retry_block(name, loads, check)

def bound(lbl):
    k(f's_add_u32 s{sSpin}, s{sSpin}, 1\ns_cmp_lt_u32 s{sSpin}, {8*SPIN}\ns_cbranch_scc0 {lbl}c')
k.raw(f'{KN}:')
k('s_cmp_lt_u32 s2, 256')
k('s_cbranch_scc1 Lgo')
k('s_endpgm')
k.raw('@STUB@')
k.label('Lgo')
k('s_load_dwordx16 s[4:19], s[0:1], 0')
k('s_load_dwordx2 s[20:21], s[0:1], 72')
stamp('start'); stamps['L']=list(stamps['F'])
sWid=sp.get(); sWave=sp.get(); sS2=sp.get(); sT0=sp.get(); sT1=sp.get(); sT2=sp.get(); sCnt=sp.get(); sSpin=sp.get(); sDg=sp.get()
sXc=sp.get(); sJ=sp.get(); sPos=sp.get(); sNon=sp.get(); sTag=sp.get()
vL,vL16,vTm,vLo,vG,t0,t1,t2,t3,aFw,vPh = range(1,12)
vdum=127
if OPT.get('cpre',1):
    pc=sp.get(2)
    k(f'''s_getpc_b64 {S(pc,2)}
v_lshlrev_b32 v{t0}, 7, v0
v_min_u32 v{t2}, CODE_END-Lgo-64, v{t0}
v_mov_b32 v{t3}, s{pc+1}
v_add_co_u32 v{t2}, vcc, s{pc}, v{t2}
v_addc_co_u32 v{t3}, vcc, 0, v{t3}, vcc
global_load_dword v{vdum}, {V(t2,2)}, off''')
    sp.put(pc,2)
k(f'''v_lshrrev_b32 v{t0}, 6, v0
v_and_b32 v{vL}, 63, v0
v_readfirstlane_b32 s{sWid}, v{t0}
v_lshlrev_b32 v{vL16}, 4, v{vL}
v_and_b32 v{vLo}, 15, v0
v_lshrrev_b32 v{vG}, 4, v{vL}
s_and_b32 s{sXc}, s2, 7
s_lshr_b32 s{sJ}, s2, 3
s_lshl_b32 s{sPos}, s{sXc}, 5
s_add_u32 s{sPos}, s{sPos}, s{sJ}
s_and_b32 s{sWave}, s{sWid}, 3
s_mov_b32 s{sCnt}, 0
s_mov_b32 s{sSpin}, 0''')
mA=((1<<NB)-1)<<5; mB=((1<<NB)-1)<<(5-NB)
def swapbits(p): return (p&~(mA|mB))|((p&mA)>>NB)|((p&mB)<<NB)
if NB:
    k(f'''s_and_b32 s{sT0}, s{sPos}, {mA}
s_and_b32 s{sT1}, s{sPos}, {mB}
s_andn2_b32 s{sS2}, s{sPos}, {mA|mB}
s_lshr_b32 s{sT0}, s{sT0}, {NB}
s_lshl_b32 s{sT1}, s{sT1}, {NB}
s_or_b32 s{sS2}, s{sS2}, s{sT0}
s_or_b32 s{sS2}, s{sS2}, s{sT1}''')
else:
    k(f's_mov_b32 s{sS2}, s{sPos}')
def srd_consts(lst):
    for s_,sz in lst: k(f's_mov_b32 s{s_+2}, {sz}\ns_mov_b32 s{s_+3}, 0x20000')
def flag_init():
    k(f'''s_lshl_b32 s{sT0}, s{sWid}, 2
s_add_u32 s{sT0}, s{sT0}, {RF}
v_lshl_add_u32 v{aFw}, v{vL}, 2, {64}
v_add_u32 v{aFw}, {RF}, v{aFw}
v_mov_b32 v{vPh}, 0
v_writelane_b32 v{aFw}, s{sT0}, 0
ds_write_b32 v{aFw}, v{vPh}''')
flag_init()
if OPT['stamps']: k(f's_mov_b32 s{sDg}, 0')
k(f's_cmp_ge_u32 s{sWid}, 4\ns_cbranch_scc1 LSTUB')
def tag_calc():
    k(f'''s_bfe_u32 s{sT0}, s{sNon}, 0x2000d
s_bfe_u32 s{sT1}, s{sNon}, 0x2001d
s_lshl_b32 s{sT0}, 1, s{sT0}
s_lshl_b32 s{sT1}, 1, s{sT1}
s_or_b32 s{sT0}, s{sT0}, s{sT1}
s_ff0_i32_b32 s{sNon}, s{sT0}
s_mul_i32 s{sTag}, s{sNon}, 0x20002000
v_mov_b32 v{vTm}, {TM}''')
sPar=sp.get(); sF0=sp.get(); sRt=sp.get(); sRb=sp.get(); sCb=sp.get(); sX3o=sp.get(); sLq=sp.get(); sB0=sp.get(); sKh=sp.get()
def ffn_roles(isL):
    k(f'''s_and_b32 s{sPar}, s{sS2}, 1
s_bfe_u32 s{sT0}, s{sS2}, 0x40001
s_mul_i32 s{sF0}, s{sT0}, 7
s_mul_i32 s{sT0}, s{sPar}, 3
s_add_u32 s{sF0}, s{sF0}, s{sT0}
s_lshr_b32 s{sT0}, s{sS2}, 5
s_lshl_b32 s{sT0}, s{sT0}, 3
s_lshl_b32 s{sT1}, s{sWave}, 1
s_add_u32 s{sT0}, s{sT0}, s{sT1}
s_add_u32 s{sRt}, s{sT0}, s{sPar}''')
    if isL: k(f's_xor_b32 s{sRt}, s{sRt}, 1')
    if OPT.get('loc'): k(f'''s_bfe_u32 s{sKh}, s{sJ}, 0x10003
s_lshl_b32 s{sT0}, s{sXc}, 1
s_lshr_b32 s{sT1}, s{sJ}, 4
s_add_u32 s{sRb}, s{sT0}, s{sT1}
s_and_b32 s{sCb}, s{sJ}, 7''')
    elif OPT.get('g2'): k(f'''s_and_b32 s{sKh}, s{sXc}, 1
s_lshr_b32 s{sT0}, s{sXc}, 2
s_lshl_b32 s{sT0}, s{sT0}, 3
s_lshr_b32 s{sT1}, s{sJ}, 2
s_add_u32 s{sRb}, s{sT0}, s{sT1}
s_and_b32 s{sT0}, s{sXc}, 2
s_lshl_b32 s{sT0}, s{sT0}, 1
s_and_b32 s{sCb}, s{sJ}, 3
s_add_u32 s{sCb}, s{sCb}, s{sT0}''')
    else: k(f'''s_and_b32 s{sKh}, s{sXc}, 1
s_lshr_b32 s{sT0}, s{sXc}, 1
s_lshl_b32 s{sT0}, s{sT0}, 2
s_lshr_b32 s{sT1}, s{sJ}, 3
s_add_u32 s{sRb}, s{sT0}, s{sT1}
s_and_b32 s{sCb}, s{sJ}, 7''')
def x3_off():
    k(f'''s_mul_i32 s{sX3o}, s{sS2}, {X3S}
s_lshl_b32 s{sT1}, s{sWave}, 11
s_add_u32 s{sX3o}, s{sX3o}, s{sT1}
s_add_u32 s{sX3o}, s{sX3o}, {X3}''')

def wd_addr(vS):
    k(f'''v_lshrrev_b32 v{t0}, 3, v{vL}
v_and_b32 v{t1}, 7, v{vL}
v_and_b32 v{t2}, 1, v{vG}
v_lshlrev_b32 v{t2}, {2 if OPT.get('g32',0) else 1}, v{t2}
v_xor_b32 v{t1}, v{t1}, v{t2}
v_lshlrev_b32 v{t1}, 4, v{t1}
v_lshl_add_u32 v{t0}, v{t0}, 10, v{t1}
s_lshl_b32 s{sT0}, s{sCb}, 7
s_mul_i32 s{sT1}, s{sWave}, {448*1024}
s_add_u32 s{sT0}, s{sT0}, s{sT1}
s_lshl_b32 s{sT1}, s{sKh}, 16
s_add_u32 s{sT0}, s{sT0}, s{sT1}
v_add_u32 v{vS}, s{sT0}, v{t0}
v_xor_b32 v{t0}, {0 if OPT.get('g32',0) else 64}, v{vS}
v_add_u32 v{vS+1}, {7*1024}, v{t0}
v_add_u32 v{vS+2}, {110*1024}, v{vS}
v_add_u32 v{vS+3}, {117*1024}, v{t0}''')
def wd_raddr(vR, sBase):
    if not OPT.get('g32',0): tr_addr(vR, None, sBase)
    else:
        k(f'''v_lshrrev_b32 v{t0}, 5, v{vL}
v_lshlrev_b32 v{t0}, 10, v{t0}
v_bfe_u32 v{t1}, v{vL}, 2, 2
v_lshl_add_u32 v{t0}, v{t1}, 7, v{t0}
v_lshrrev_b32 v{t1}, 1, v{t1}
v_lshl_add_u32 v{t0}, v{t1}, 6, v{t0}
v_and_b32 v{t1}, 1, v{vG}
v_lshl_add_u32 v{t0}, v{t1}, 5, v{t0}
v_and_b32 v{t1}, 3, v{vL}
v_lshl_add_u32 v{t0}, v{t1}, 3, v{t0}
v_add_u32 v{vR}, s{sBase}, v{t0}
v_xor_b32 v{vR+1}, 64, v{vR}
v_add_u32 v{vR+2}, 2048, v{vR}
v_add_u32 v{vR+3}, 2048, v{vR+1}''')
    k(f'v_add_u32 v{vR+4}, s{sBase}, v{vL16}')
def tr_addr(vR, sRot, sBase):
    k(f'''v_and_b32 v{t0}, 1, v{vG}
v_bfe_u32 v{t1}, v{vL}, 3, 1
v_lshl_add_u32 v{t1}, v{t0}, 1, v{t1}
v_bfe_u32 v{t2}, v{vL}, 2, 2
v_lshlrev_b32 v{t0}, 10, v{vG}
v_lshl_add_u32 v{t0}, v{t2}, 7, v{t0}
v_and_b32 v{t2}, 3, v{vL}
v_lshl_add_u32 v{t0}, v{t2}, 3, v{t0}''')
    if sBase is not None: k(f'v_add_u32 v{t0}, s{sBase}, v{t0}')
    for c in range(4):
        if sRot is None: k(f'v_xor_b32 v{t2}, {c}, v{t1}')
        else: k(f's_add_u32 s{sT0}, s{sRot}, {c}\ns_and_b32 s{sT0}, s{sT0}, 3\nv_xor_b32 v{t2}, s{sT0}, v{t1}')
        k(f'v_lshl_add_u32 v{vR+c}, v{t2}, 5, v{t0}')
thc={'n':0}
def throttle(ty='w'):
    th=OPT.get('thr'+ty,OPT['thr'])
    if len(k.vm)>th: k(f's_waitcnt vmcnt({th})')
    thc['n']+=1
    ge=OPT.get('ge'+ty,OPT.get('ge'))
    if ge and thc['n']%ge==0 and flagged['d']: gate(RUN|(0x1c0 if flagged['v']<100 else 0)|0x18000)
    if OPT.get('sl'+ty): k(f"s_sleep {OPT['sl'+ty]}")
rawb=set(); slot={}; freeg=list(range(8)); lastx={}
def take(hi):
    g=freeg.pop(-1 if hi and freeg[-1] not in lastx else 0)
    if g in lastx: k.wait_lg(lastx.pop(g))
    return g
def wd_load(b, vS, raw):
    if raw: rawb.add(b)
    else: slot[b]=take(0); k(f's_add_u32 m0, s{sLq}, {4096*slot[b]}')
    if b<6: k(f's_mov_b32 s{sB0}, {(14*(b&1)+(b>>1))*16*1024}')
    else: k(f's_mul_i32 s{sB0}, s{sKh}, {160*1024}\ns_add_u32 s{sB0}, s{sB0}, {48*1024}')
    for i in range(4):
        if not raw: h=k(f'buffer_load_dwordx4 v{vS+i}, {S(sWd,4)}, s{sB0} offen offset:{i*1024} lds')
        else: h=k(f'buffer_load_dwordx4 {A(b*16+4*i,4)}, v{vS+i}, {S(sWd,4)}, s{sB0} offen offset:{i*1024}')
        throttle()
    return h
def wd_xp(b, vR, hd):
    k.wait_vm(hd)
    if b in rawb: slot[b]=freeg.pop(0)
    off=4096*slot[b]
    if b in rawb:
        for i in range(4): k(f'ds_write_b128 v{vR+4}, {A(b*16+4*i,4)} offset:{off+i*1024}')
    for c in range(4):
        for x in range(2): h=k(f'ds_read_b64_tr_b16 {A((b*4+c)*4+2*x,2)}, v{vR+c} offset:{off+x*512}')
    freeg.append(slot[b]); lastx[slot[b]]=h
    return h

aA,aG,vck,vc2,aB,aT = 12,13,14,15,16,0
aRw=aRr=20; aHo=aPf=22
ACC=24; RING=88
def tagchk(r,ckr):
    return [f'v_xor_b32 v{ckr}, s{sTag}, v{r[0]}']+[f'v_bitop3_b32 v{ckr}, v{ckr}, v{x}, s{sTag} bitop3:0xf6' for x in r[1:]]+\
           [f'v_and_b32 v{ckr}, v{vTm}, v{ckr}', f'v_cmp_ne_u32 vcc, 0, v{ckr}']
def phi7(cls, rt):
    if cls<4: return cls if rt==0 else 3+((cls+1)&3)
    return 4+(cls-4) if rt==0 else cls-4
def gemm_setup(isL):
    NT=3 if isL else 4
    o={}
    o['sAo']=sAo=sp.get(4,1); o['sHo']=sHo=sp.get(4,1); o['sKq']=sKq=sp.get(); o['sC2']=sC2=sp.get()
    o['s32']=s32=OPT.get('x32' if isL else 'y32',0)
    if not s32:
        tr_addr(aB, sPar, None)
        k(f'''v_bfe_u32 v{t0}, v{vL}, 3, 1
v_mul_u32_u24 v{t0}, {X3S}, v{t0}
v_and_b32 v{t2}, 7, v{vL}
v_lshl_add_u32 v{aA}, v{vG}, 7, v{t0}
v_lshl_add_u32 v{aA}, v{t2}, 4, v{aA}''')
    else:
        k(f'''v_lshrrev_b32 v{t3}, 1, v{vG}
v_and_b32 v{t0}, 1, v{vG}
v_xor_b32 v{t2}, v{t0}, v{t3}
v_bfe_u32 v{t1}, v{vL}, 3, 1
v_lshl_add_u32 v{t1}, v{t2}, 1, v{t1}
v_lshlrev_b32 v{t0}, 15, v{t0}
v_lshl_add_u32 v{t0}, v{t3}, 10, v{t0}
v_bfe_u32 v{t2}, v{vL}, 2, 2
v_lshl_add_u32 v{t0}, v{t2}, 7, v{t0}
v_and_b32 v{t2}, 1, v{vL}
v_lshl_add_u32 v{t0}, v{t2}, 4, v{t0}
v_bfe_u32 v{t2}, v{vL}, 1, 1
v_lshl_add_u32 v{t0}, v{t2}, 3, v{t0}''')
        for c in range(4):
            k(f's_add_u32 s{sT0}, s{sPar}, {c}\ns_and_b32 s{sT0}, s{sT0}, 3\nv_xor_b32 v{t2}, s{sT0}, v{t1}\nv_lshl_add_u32 v{aB+c}, v{t2}, 5, v{t0}')
        k(f'''v_bfe_u32 v{t0}, v{vL}, 3, 2
v_mul_u32_u24 v{t0}, {X3S}, v{t0}
v_and_b32 v{t2}, 7, v{vL}
v_lshl_add_u32 v{aA}, v{t3}, 7, v{t0}
v_lshl_add_u32 v{aA}, v{t2}, 4, v{aA}''')
    k(f'''v_lshrrev_b32 v{t0}, 1, v{vG}
v_mul_u32_u24 v{t0}, {7168-1024}, v{t0}
v_lshl_add_u32 v{t0}, v{vG}, 9, v{t0}
v_lshl_add_u32 v{aG}, v{vLo}, 4, v{t0}
s_mul_i32 s{sT0}, s{sRt}, {4*X3S}''')
    for rh in range(2):
        for kh in range(2): k(f's_add_u32 s{sAo+2*rh+kh}, s{sT0}, {X3+(256*rh if s32 else 2*rh*X3S)+4096*kh}')
    k(f's_mul_i32 s{sT1}, s{sRt}, 112\ns_add_u32 s{sT1}, s{sT1}, s{sF0}')
    for jj in range(NT):
        k(f'''s_add_u32 s{sT0}, s{sPar}, {jj}
s_and_b32 s{sT0}, s{sT0}, 3
s_add_u32 s{sT0}, s{sT0}, s{sT1}
s_lshl_b32 s{sT0}, s{sT0}, 10
s_add_u32 s{sHo+jj}, s{sT0}, {HH}''')
    k(f'''s_mov_b32 s{sKq}, {fb(KQ)}
s_mov_b32 s{sC2}, {fb(CG*CG*2.0**KH)}
v_mov_b32 v{aT}, v{aFw}''')
    return o
def g1_loads(o, tp, nr, base):
    return [f'buffer_load_dwordx4 {V(base+8*(tp%nr)+4*rh,4)}, v{aA}, {S(sWs,4)}, s{o["sAo"]+2*rh+(tp>>3)} offen offset:{(tp&7)*512} sc1' for rh in range(2)]
def gemm1(isL, o, nr, base, early=None):
    P='L' if isL else 'F'; NT=3 if isL else 4; NF=4; PD=3; FR=112
    s32=o['s32']
    if not isL: NF=OPT.get('nfy',4); PD=NF-1; FR=128-4*NF
    fr=[(tp,jj,gu) for tp in range(16) for jj in range(NT) for gu in range(2)] if not s32 else \
       [(tp,jj,gu) for tp in range(16) for gu in range(2) for jj in range(NT)]
    flipped=set()
    def bread(i,x):
        tp,jj,gu=fr[i]
        ar=aB+(jj if s32 else jj^(2*gu))
        if tp>=8 and ar not in flipped: k(f'v_xor_b32 v{ar}, 0x10000, v{ar}'); flipped.add(ar)
        k(f'ds_read_b64_tr_b16 {A(FR+4*(i%NF)+2*x,2)}, v{ar} offset:{gu*(2048 if s32 else 32768)+(tp&7)*4096+x*512}')
    iss={'n':o.get('pre',OPT.get('xi',2))}
    for tp in range(0 if 'pre' in o else iss['n']):
        for l in g1_loads(o,tp,nr,base): k(l)
    def chk_items(tp):
        r=base+8*(tp%nr); name=f'G1{P}{tp}'
        c=[f'v_max_u32 v{vck}, v{r+7}, v{r+3}', f'v_cmp_eq_u32 vcc, -1, v{vck}']
        def br():
            rl=[l for t in range(tp,iss['n']) for l in g1_loads(o,t,nr,base)]
            k(f's_cbranch_vccnz R_{name}'); k.label(f'C_{name}'); retry_block(name, rl, c)
        return c+[br]
    k.label(f'{P}START'); n0=iss['n']
    for i in range(PD): bread(i,0); bread(i,1)
    lazy=OPT.get('lz'+P,99)
    for x in chk_items(0): x() if callable(x) else k(x)
    stamp('G1got')
    if not isL and OPT.get('lw'):
        for x in flag(17,t0): k(x)
    for i,(tp,jj,gu) in enumerate(fr):
        a=ACC+16*jj+8*gu; r=base+8*(tp%nr); j=i%(2*NT)
        if j==0:
            sl=[None]*(2*NT)
            up=min(16,tp+nr,iss['n']+(2 if NT==4 or tp+1>=lazy else 1))
            ll=[l for t in range(iss['n'],up) for l in g1_loads(o,t,nr,base)]; iss['n']=max(iss['n'],up)
            if early and not ll: ll=early(tp)
            sl[:len(ll)]=ll
            if tp<15 and tp+1<lazy: sl[-3:]=chk_items(tp+1)
            elif tp<15:
                r1=base+8*((tp+1)%nr); sl[-1]=f'v_max3_u32 v{vck}, v{vck}, v{r1+7}, v{r1+3}'
        w=[A(FR+4*(i%NF),4)]
        if j==2*NT-(3 if tp+1<lazy else 1) and tp<15: w.append(V(base+8*((tp+1)%nr),8))
        k.wait_regs(w)
        for rh in range(2):
            if not s32: k(f'v_mfma_f32_16x16x32_bf16 {V(a+4*rh,4)}, {A(FR+4*(i%NF),4)}, {V(r+4*rh,4)}, {"0" if tp==0 else V(a+4*rh,4)}')
            elif rh==0: k(f'v_mfma_f32_32x32x16_bf16 {V(ACC+16*jj,16)}, {A(FR+4*(i%NF),4)}, {V(r+4*gu,4)}, {"0" if tp==0 and gu==0 else V(ACC+16*jj,16)}')
            if i+PD<len(fr): bread(i+PD,rh)
            if rh==0 and sl[j] is not None: sl[j]() if callable(sl[j]) else k(sl[j])
        if j==2*NT-1 and tp in (3,7,11): stamp(f'k{tp+1}')
    if lazy<16:
        k(f'v_cmp_eq_u32 vcc, -1, v{vck}\ns_cbranch_vccnz {P}R')
        kk=Asm(); kk.label(f'{P}R'); kk('s_waitcnt vmcnt(0)\ns_nop 7')
        for tp in range(n0):
            for l in g1_loads(o,tp,nr,base): kk(l)
        for ar in range(aB,aB+4): kk(f'v_and_b32 v{ar}, 0xffff, v{ar}')
        kk(f's_waitcnt vmcnt(0)\ns_add_u32 s{sCnt}, s{sCnt}, 1000\ns_cmp_gt_u32 s{sCnt}, {SPIN}\ns_cbranch_scc0 {P}START\ns_endpgm')
        tail.append(kk.text())
    stamp('G1done')
def gelu(o, jj, tmp):
    a=ACC+16*jj; q=[]; n=len(tmp)
    for r0 in range(0,8,n):
        R=range(r0,r0+n)
        q+=[f'v_fma_f32 v{tmp[r%n]}, v{a+r}, v{a+r}, s{o["sKq"]}' for r in R]
        q+=[f'v_mul_f32 v{a+8+r}, v{a+r}, v{a+8+r}' for r in R]
        q+=[f'v_mul_f32 v{a+r}, -v{a+r}, v{tmp[r%n]}' for r in R]
    q+=[f'v_exp_f32 v{a+r}, v{a+r}' for r in range(8)]
    q+=[f'v_fma_f32 v{a+r}, v{a+r}, s{o["sC2"]}, s{o["sC2"]}' for r in range(8)]
    q+=[f'v_rcp_f32 v{a+r}, v{a+r}' for r in range(8)]
    q+=[f'v_mul_f32 v{a+8+r}, v{a+8+r}, v{a+r}' for r in range(8)]
    q+=[f'v_cvt_pk_bf16_f32 v{a+r}, v{a+8+2*r}, v{a+9+2*r}' for r in (0,2,1,3)]
    q+=[f'v_bfi_b32 v{a+r}, v{vTm}, s{sTag}, v{a+r}' for r in (0,2,1,3)]
    if not o['s32']: q+=[f'v_permlane16_swap_b32 v{a}, v{a+2}', f'v_permlane16_swap_b32 v{a+1}, v{a+3}']
    return q+[f'buffer_store_dwordx4 {V(a,4)}, v{vL16}, {S(sWs,4)}, s{o["sHo"]+jj} offen {LS}']
def flag(v,r): return [f'v_mov_b32 v{r}, {v}', f'ds_write_b32 v{aT}, v{r}']
def x_setup(o):
    o['sG2']=sG2=[sp.get() for _ in range(12)]
    if OPT.get('g32',0): k(f'v_lshrrev_b32 v{t1}, 5, v{vL}\nv_and_b32 v{t2}, 31, v{vL}\nv_add_u32 v{aG}, 7168, v{vL16}')
    else: k(f'v_mov_b32 v{t1}, v{vG}\nv_mov_b32 v{t2}, v{vLo}')
    k(f'''v_and_b32 v{t0}, 7, v{vL}
v_xor_b32 v{aRw}, v{t1}, v{t0}
v_lshlrev_b32 v{aRw}, 4, v{aRw}
v_lshl_add_u32 v{aRw}, v{t2}, 8, v{aRw}
s_lshl_b32 s{sT0}, s{sWave}, 13
s_add_u32 s{sT0}, s{sT0}, 0x10000
v_add_u32 v{aRw}, s{sT0}, v{aRw}
v_xor_b32 v{aRw+1}, 64, v{aRw}
v_and_b32 v{aPf}, 7, v{vL}
v_lshlrev_b32 v{aPf}, 2, v{aPf}
v_add_u32 v{aPf}, {RF}, v{aPf}
s_mul_i32 s{sT0}, s{sRb}, 448
s_mul_i32 s{sT1}, s{sWave}, 28
s_add_u32 s{sT0}, s{sT0}, s{sT1}
s_lshl_b32 s{sT1}, s{sKh}, 2
s_add_u32 s{sT0}, s{sT0}, s{sT1}
s_lshl_b32 s{sT0}, s{sT0}, 10
s_mul_i32 s{sT1}, s{sKh}, {112*1024}
s_mul_i32 s{sT2}, s{sKh}, {10*1024}''')
    for z in range(4):
        c=HH+(2*(z&1)+((z>>1)^SW))*112*1024
        k(f's_{"sub" if (z>>1)^SW else "add"}_u32 s{sG2[3*z]}, s{sT0}, s{sT1}')
        k(f's_add_u32 s{sG2[3*z]}, s{sG2[3*z]}, {c}')
        k(f's_add_u32 s{sG2[3*z+1]}, s{sG2[3*z]}, {14*1024}')
        k(f's_add_u32 s{sG2[3*z+2]}, s{sG2[3*z]}, s{sT2}')
def x_tail(o):
    g32=OPT.get('g32',0)
    plan={0:'00.10_01.11_20.30_40.50.60*_21.31_41.51.61*_62.02_12.63_22.03_32.42.52*_13.23_33.43.53*',
          1:'00.10_20.30_40.50_01.11_60*_21.31_41.51.61*_62.02_12.63_22.03_32.42.52*_13.23_33.43.53*',
          2:'00.10_20.30_40.50.60*_01.11_21.31_41.51.61*_62.02_12.63_22.03_32.42.52*_13.23_33.43.53*',
          3:'00.10_20.30_01.11_40.50.60*_21.31_41.51.61*_62.02_12.63_22.03_32.42.52*_13.23_33.43.53*',
          5:'00.10_01.11_20.30_40.50.60*_21.31_41.51.61*_62.02_12.22_32.42.52*_63.03_13.23_33.43.53*',
          6:'00.10_01.11_20.30_40.50.60*_21.31_41.51.61*_62.02_12.63_22.32_42.52*_03.13_23.33_43.53*',
          7:'00.10_20.30_01.11_40.50.60*_21.31_41.51.61*_62.02_12.22_32.42.52*_63.03_13.23_33.43.53*',
          8:'00.10.01.11_20.30_40.50.60*_21.31_41.51.61*_62.02.12.22_32.42.52*_63.03.13.23_33.43.53*',
          4:'00.10_20.30_40.50_01.11_60*_21.31_41.51.61*_62.63_02.12_03.13_22.23_32.42.52*_33.43.53*'}[OPT.get('plan',0)]
    groups=[]; blocks=[]; closing=set()
    for bi,bl in enumerate(plan.split('_')):
        if bl[-1]=='*': closing.add(bi)
        it=[(int(x[0]),int(x[1])) for x in bl.rstrip('*').split('.')]
        blocks.append((len(groups),len(it))); groups+=it
    GATES={min(closing)-1:117}
    LIM=[int(x) for x in str(OPT.get('lim','28.28')).split('.')]; LIM+=[28]*20
    AC=[[ACC,ACC+48],[ACC+16,ACC+32]]
    PAIR=[('v',4),('v',88),('v',96),('v',104),('v',112),('v',120),('a',112),('a',120)]; NR=8
    def reg(gi,rh): f,b=PAIR[gi%NR]; return f'{f}[{b+4*rh}:{b+4*rh+3}]'
    def gl(gi):
        b,z=groups[gi]
        so,im=(o['sG2'][3*z+(b&1)],(b>>1)*1024) if b<6 else (o['sG2'][3*z+2],3072)
        if g32: return [f'buffer_load_dwordx4 {reg(gi,m)}, v{(vL16,aG)[m]}, {S(sWs,4)}, s{so} offen offset:{im} sc1' for m in range(2)]
        return [f'buffer_load_dwordx4 {reg(gi,rh)}, v{aG}, {S(sWs,4)}, s{so} offen offset:{im+256*rh} sc1' for rh in range(2)]
    st={'n':0}
    def issue(upto):
        while st['n']<upto:
            for l in gl(st['n']): k(l)
            st['n']+=1
    def chk_items(gi,n=2):
        name=f'G2_{gi}'; c=[]; rr=[]
        for g in reversed(range(gi,gi+n)):
            f,r=PAIR[g%NR]
            for x in (r+7,r+3):
                if f=='a': c.append(f'v_accvgpr_read_b32 v{vc2}, a{x}'); x=vc2
                c.append(f'v_bitop3_b32 v{vck}, v{vck}, v{x}, s{sTag} bitop3:0xf6' if rr else f'v_xor_b32 v{vck}, s{sTag}, v{x}'); rr.append(x)
        c+=[f'v_and_b32 v{vck}, v{vTm}, v{vck}', f'v_cmp_ne_u32 vcc, 0, v{vck}']
        def br():
            rl=[l for g in range(gi,gi+n) for l in gl(g)]
            k(f's_cbranch_vccnz R_{name}'); k.label(f'C_{name}'); retry_block(name, rl, c)
        return c+[br]
    verified=set()
    def verify(gi):
        for x in chk_items(*blocks[0]): x() if callable(x) else k(x)
        verified.add(gi)
    E0=OPT.get('e0',11)
    def early(tp):
        q=[]
        while tp>=E0 and st['n']<min(OPT.get('en',6),tp-8) and len(q)<2: q+=gl(st['n']); st['n']+=1
        return q
    gemm1(1,o,7,72,early)
    k(f's_setprio {OPT.get("pg",2)}')
    for x in flag(117,aB): k(x)
    IL=OPT.get('il',0); xq=[]; cnt=0
    for jj in range(3-IL):
        q=gelu(o,jj,[aA,23])
        for x in q:
            if 'store' in x and jj==2-IL:
                while xq: k(xq.pop(0))
                issue(min(LIM[0],OPT.get('xn',8)))
            k(x); cnt+=1
            if cnt>=OPT.get('x0',1) and (cnt-OPT.get('x0',1))%OPT.get('xg',8)==0:
                if not xq and st['n']<min(LIM[0],OPT.get('xn',8)): xq.extend(gl(st['n'])); st['n']+=1
                if xq: k(xq.pop(0))
    eq=[x for jj in range(3-IL,3) for x in gelu(o,jj,[aA,23])]
    ecost=lambda x: 8 if ('exp' in x or 'rcp' in x) else 4
    nfirst=8*next(i for i,g in enumerate(groups) if g[1]==1)
    erate=sum(map(ecost,eq))/nfirst*OPT.get('er',100)/100; eacc=0
    stamp('epi')
    verify(0); stamp('hc')
    def red_write(z):
        q=[]
        W4=[aRw,aB+2,aRw+1,aB+3]
        if z==0 and g32: q+=[f'v_xor_b32 v{aB+2+m}, 32, v{aRw+m}' for m in range(2)]
        if z==2: q+=[f'v_xor_b32 v{r}, 0x10000, v{r}' for r in (W4 if g32 else W4[::2])]
        if g32: q+=[f'ds_write_b128 v{W4[i]}, {V(AC[z&1][ct]+4*i,4)} offset:{32768*(z&1)+ct*128}' for ct in range(2) for i in range(4)]
        else: q+=[f'ds_write_b128 v{aRw+(c&1)}, {V(AC[z&1][rh]+4*c,4)} offset:{32768*(z&1)+rh*4096+(c>>1)*128}' for c in range(4) for rh in range(2)]
        return [(z,x) for x in q+flag(120+z,aB)]
    started=set(); pend=[]; WS=OPT.get('ws',2 if SW else 3)
    for bi,(g0,n) in enumerate(blocks):
        cl=bi in closing
        upto=min(LIM[bi],g0+NR)
        lq=[l for g in range(st['n'],upto) for l in gl(g)]; st['n']=max(st['n'],upto)
        if OPT.get('nog2'): lq=[]
        lq2=[]
        for i_ in range(1,n):
            if not cl and min(LIM[bi],g0+i_+NR)>st['n']: lq2+=[(8*i_,l) for l in gl(st['n'])]; st['n']+=1
        cq=chk_items(*blocks[bi+1]) if bi+1<len(blocks) and blocks[bi+1][0] not in verified else []
        assert bi+1==len(blocks) or sum(blocks[bi+1])<=upto
        gq=[]
        if bi in GATES:
            val=GATES[bi]
            def gbr(val=val):
                k(f's_cbranch_vccnz YG{val}r'); k.label(f'YG{val}c')
                kk=Asm(); kk.label(f'YG{val}r')
                kk(f'''ds_read_b32 v{aB+1}, v{aPf}
s_add_u32 s{sSpin}, s{sSpin}, 1
s_cmp_lt_u32 s{sSpin}, {8*SPIN}
s_waitcnt lgkmcnt(0)
s_cbranch_scc0 YG{val}c
v_cmp_gt_u32 vcc, {val}, v{aB+1}
s_cbranch_vccnz YG{val}r
s_branch YG{val}c''')
                tail.append(kk.text())
            gq=[f'ds_read_b32 v{aB+1}, v{aPf}',None,None,None,f'v_cmp_gt_u32 vcc, {val}, v{aB+1}', gbr]
        if bi==OPT.get('pb',99): k(f's_setprio {OPT.get("px",2)}')
        if not g32: seq=[(g0+i,m) for i in range(n) for m in range(8)] if not cl else [(g0+i,m) for m in range(8) for i in range(n)]
        else: seq=[(g0+i,m) for i in range(n) for m in range(8)] if not cl else [(g0+i,4*t+2*ct+e) for ct in range(2) for i in range(n) for t in range(2) for e in range(2)]
        NM=len(seq); CG_=OPT.get('cg',1) if len(cq)<NM-2 else 2; c0=NM-max(-(-(len(cq)-1)//CG_)+1,1)
        if OPT.get('nock'): cq=[]
        if cl: wq=red_write(groups[g0][1])
        if cl and OPT.get('nowr'): wq=[(z_,'s_nop 0 ; b128' if 'b128' in x_ else x_) for z_,x_ in wq]
        for p,(gi,m) in enumerate(seq):
            b,z=groups[gi]; c,rh=m>>1,m&1
            while pend and pend[0][0]<=z-2: k(pend.pop(0)[1])
            while eq and z>0: k(eq.pop(0))
            if not g32:
                a=AC[z&1][rh]+4*c
                k(f'v_mfma_f32_16x16x32_bf16 {V(a,4)}, {A((b*4+c)*4,4)}, {reg(gi,rh)}, {V(a,4) if z in started else "0"}')
            elif rh==0:
                a=AC[z&1][c&1]
                k(f'v_mfma_f32_32x32x16_bf16 {V(a,16)}, {A((b*4+c)*4,4)}, {reg(gi,c>>1)}, {V(a,16) if z in started or c>=2 else "0"}')
            if m==7: started.add(z)
            eacc+=erate
            while eq and eacc>0: eacc-=ecost(eq[0]); k(eq.pop(0))
            if gq:
                x=gq.pop(0)
                if x: x() if callable(x) else k(x)
            if lq and (p&1==0 or len(lq)>(c0-p)//2): k(lq.pop(0))
            while lq and p==NM-1: k(lq.pop(0))
            if lq2 and p>=lq2[0][0] and not lq and (p&1==0 or len(lq2)>(NM-p)//2): k(lq2.pop(0)[1])
            if p>=c0:
                for _ in range(CG_):
                    if cq and (len(cq)>1 or p==NM-1):
                        x=cq.pop(0); x() if callable(x) else k(x)
            if pend and 'b128' not in pend[0][1]: k(pend.pop(0)[1])
            elif pend and p%WS==WS-1 and (p>=5 or not g32): k(pend.pop(0)[1])
            if cl and p==0:
                while 'xor' in wq[0][1]: pend.append(wq.pop(0))
            if cl and not g32 and n>1 and p%n==n-2 and p>=6:
                pend.append(wq.pop(0))
            if cl and g32 and p==4*n+3:
                for _ in range(4): pend.append(wq.pop(0))
        assert not lq and not lq2 and not cq
        if cl:
            pend+=wq
        if bi not in (0,8): stamp(f'h{bi}')
        if bi in (3,5,6,8,10): stamp({3:'g4',5:'g8',6:'B1',8:'g11',10:'B2'}[bi])
    stamp('G2done')
    for x in pend: k(x[1])
    stamp('end')
    finish('L')
def y_setup(o):
    o['sEo']=sEo=sp.get(4,1); o['sUp']=sUp=sp.get(2); o['sXp']=sXp=sp.get(2,1); o['sDn']=sDn=sp.get()
    k(f'''v_and_b32 v{t0}, 7, v{vL}
v_lshrrev_b32 v{t1}, 3, v{vL}
v_lshlrev_b32 v{aRr}, 1, v{t0}
v_xor_b32 v{aRr}, v{aRr}, v{t1}
v_lshlrev_b32 v{aRr}, 4, v{aRr}
v_lshl_add_u32 v{aRr}, v{t1}, 8, v{aRr}
s_lshl_b32 s{sT2}, s{sWave}, 11
s_add_u32 s{sT2}, s{sT2}, 0x10000
v_add_u32 v{aRr}, s{sT2}, v{aRr}
v_xor_b32 v{aRr+1}, 16, v{aRr}
v_lshlrev_b32 v{t0}, 4, v{t0}
v_lshl_add_u32 v{aHo}, v{t1}, 10, v{t0}
v_lshl_add_u32 v{aHo+1}, v{t1}, 18, v{t0}
v_and_b32 v{vc2}, 3, v{vL}
v_lshlrev_b32 v{vc2}, 2, v{vc2}
v_add_u32 v{vc2}, {RF+16}, v{vc2}
s_lshl_b32 s{sT0}, s{sCb}, 7
s_lshl_b32 s{sT1}, s{sRb}, 2
s_{"add" if SW else "sub"}_u32 s{sT1}, s{sT1}, s{sKh}
s_add_u32 s{sT1}, s{sT1}, {1-SW}
s_lshl_b32 s{sT1}, s{sT1}, 2
s_add_u32 s{sT1}, s{sT1}, s{sWave}
s_lshl_b32 s{sEo}, s{sT1}, 13
s_add_u32 s{sEo}, s{sEo}, s{sT0}
s_add_u32 s{sEo}, s{sEo}, {HB}
s_add_u32 s{sEo+1}, s{sEo}, 65536
s_lshl_b32 s{sEo+2}, s{sT1}, 10
s_add_u32 s{sEo+2}, s{sEo+2}, s{sT0}
s_add_u32 s{sEo+3}, s{sEo+2}, 8192
s_lshl_b32 s{sUp}, s{sNon}, 29
s_sub_u32 s{sUp}, {fb(2.0**KH)}, s{sUp}
s_mul_i32 s{sDn}, s{sNon}, -64
s_lshl_b32 s{sT0}, s2, 13
s_lshl_b32 s{sT1}, s{sWave}, 11
s_add_u32 s{sT0}, s{sT0}, s{sT1}
s_add_u32 s{sXp}, s{sT0}, {XP}
s_xor_b32 s{sXp+1}, s{sXp}, {8192*64 if OPT.get('loc') else 8192}''')
def y_tail(o):
    sEo,sUp,sXp,sDn=o['sEo'],o['sUp'],o['sXp'],o['sDn']
    HV=88; RV=96; hq=104
    hl=[f'buffer_load_dwordx4 {V(HV+4*i,4)}, v{aHo}, {S(sWs,4)}, s{sEo+i} offen sc1' for i in range(2)]
    for x in flag(117,t0): k(x)
    k(f's_setprio {OPT.get("py",3)}')
    for jj in range(4):
        for x in gelu(o,jj,[120,121,122,123]): k(x)
        if jj<3: stamp(f'he{jj}')
    for l in hl: k(l)
    stamp('epi')
    def stage(z):
        p=ACC+32*(z&1)
        k(f's_setprio {OPT.get("psp",0)}')
        k.label(f'Rd{z}')
        k(f'ds_read_b32 v{vck}, v{vc2}')
        spec = z==3 and OPT.get('spec',0)
        rd=[f'ds_read_b128 {V(p+8*pw+4*x,4)}, v{aRr+x} offset:{32768*(z&1)+8192*pw}' for pw in range(4) for x in range(2)]
        if spec:
            for x in rd: k(x)
        bound(f'Rd{z}')
        if OPT.get('ssl'): k(f"s_sleep {OPT['ssl']}")
        k(f'v_cmp_gt_u32 vcc, {120+z}, v{vck}')
        k(f's_cbranch_vccnz Rd{z}'); k.label(f'Rd{z}c')
        k(f's_setprio {OPT.get("pr",0)}')
        if not spec:
            for x in rd: k(x)
        return p
    def add8(d,a,b,packed=False):
        if packed:
            for j in (0,2,4,6): k(f'v_pk_add_f32 {V(d+j,2)}, {V(a+j,2)}, {V(b+j,2)}')
        else:
            for j in range(8): k(f'v_add_f32 v{d+j}, v{a+j}, v{b+j}')
    for z in range(2):
        q=stage(z)
        if z==0: stamp('g4')
        for pw in range(1,4): add8(q,q,q+8*pw)
        for j in range(8): k(f'v_ldexp_f32 v{q+j}, v{q+j}, s{sDn}')
        for j in range(4): k(f'v_cvt_pk_bf16_f32 v{q+j}, v{q+2*j}, v{q+2*j+1}')
        for j in range(4): k(f'v_bfi_b32 v{q+j}, v{vTm}, s{sTag}, v{q+j}')
        if SW and OPT.get('late119')==z+1:
            k.wait_vm(hy)
            for x in flag(119,t0): k(x)
        hs=k(f'buffer_store_dwordx4 {V(q,4)}, v{vL16}, {S(sWs,4)}, s{sXp} offen offset:{1024*z} {LS}')
    stamp('g8')
    k(f'v_xor_b32 v{aRr}, 0x10000, v{aRr}\nv_xor_b32 v{aRr+1}, 0x10000, v{aRr+1}')
    checked('H', hl, tagchk([HV,HV+3,HV+4,HV+7],vck))
    def unpack(d,src):
        for j in range(8):
            k(f'v_lshlrev_b32 v{d+2*j}, 16, v{src+j}')
            k(f'v_and_b32 v{d+2*j+1}, 0xffff0000, v{src+j}')
    unpack(hq,HV)
    if not OPT.get('nxw') and not OPT.get('xl'): k.wait_vm(hs)
    rl=[f'buffer_load_dwordx4 {V(RV+4*i,4)}, v{vL16}, {S(sWs,4)}, s{sXp+1} offen offset:{1024*i} sc1' for i in range(2)]
    if not OPT.get('xl'):
        for l in rl: k(l)
    def remote():
        checked('XP', rl, tagchk([RV+7,RV+4,RV+3,RV],vck))
        stamp('g11')
        unpack(ACC,RV); add8(hq,hq,ACC,True); add8(hq+8,hq+8,ACC+8,True)
    def fin(i):
        q=hq+8*i
        for j in (0,2,4,6): k(f'v_pk_mul_f32 {V(q+j,2)}, {V(q+j,2)}, {S(sUp,2)} op_sel_hi:[1,0]')
        for j in range(4): k(f'v_cvt_pk_bf16_f32 v{q+j}, v{q+2*j}, v{q+2*j+1}')
        k(f'buffer_store_dwordx4 {V(q,4)}, v{aHo+1}, {S(sOut,4)}, s{sEo+2+i} offen {OPT.get("of","").replace("_"," ")}')
    ro=OPT.get('ro',1)
    if ro==0: remote()
    p=stage(2)
    if OPT.get('xl')==1:
        for l in rl: k(l)
    for pw in range(4): add8(hq,hq,p+8*pw)
    if OPT.get('xl')==2:
        for l in rl: k(l)
    if ro==1: remote()
    if ro<2: fin(0)
    stamp('G2done')
    p=stage(3)
    for pw in range(4): add8(hq+8,hq+8,p+8*pw,True)
    if ro==2: remote(); fin(0)
    fin(1)
    stamp('end')
    finish('F')
def finish(P):
    if OPT.get('amp','x')[0]==P:
        ra,rb=[r for n,r in stamps[P]]
        k(f'''s_memrealtime s[4:5]
s_waitcnt lgkmcnt(0)
s_sub_u32 s{sT0}, s{rb}, s{ra}
s_mul_i32 s{sT0}, s{sT0}, {OPT.get('ampk',2)}
s_min_u32 s{sT0}, s{sT0}, 100000''')
        k.label('Lamp')
        k(f'''s_memrealtime s[6:7]
s_waitcnt lgkmcnt(0)
s_sub_u32 s{sT1}, s6, s4
s_cmp_lt_u32 s{sT1}, s{sT0}
s_cbranch_scc1 Lamp''')
    if OPT['stamps']:
        k('s_waitcnt vmcnt(0) lgkmcnt(0)')
        k(f'''s_lshl_b32 s{sT0}, s2, 3
s_add_u32 s{sT0}, s{sT0}, s{sWid}
s_lshl_b32 s{sT0}, s{sT0}, 7
s_add_u32 s{sT0}, s{sT0}, {STAMP}''')
        for j,(nm,r) in enumerate(stamps[P]+[('cnt',sCnt),('dg',sDg)]):
            k(f'v_mov_b32 v{40+j}, s{r}')
            k(f'buffer_store_dword v{40+j}, off, {S(sWs,4)}, s{sT0} offset:{4*j}')
    k('s_endpgm')

import copy
sp_common=copy.deepcopy(sp); vm_common=list(k.vm)

vp=Pool(12,127); ap=Pool(112,128)
k(f"s_setprio {OPT.get('pf',3)}")
vL4=vp.get(); sXo=sp.get(2)
k(f'''v_lshlrev_b32 v{vL4}, 2, v{vL}
s_lshl_b32 s{sT0}, s{sWave}, 9
s_add_u32 s{sT0}, s{sT0}, s{sS2}
s_lshl_b32 s{sXo}, s{sT0}, 10
s_add_u32 s{sXo+1}, s{sXo}, 262144''')
srd_consts(((sX,2097152),(sWs,WSZ),(sWd,1792*1024),(sOut,2097152)))
fLo=vp.get(); fG=vp.get(); fP=vp.get()
k(f'''v_cvt_f32_u32 v{fLo}, v{vLo}
v_cvt_f32_u32 v{fG}, v{vG}
v_and_b32 v{t0}, 3, v{vLo}
v_lshrrev_b32 v{t1}, 2, v{vLo}
v_lshl_add_u32 v{t0}, v{t0}, 2, v{t1}
v_cvt_f32_u32 v{fP}, v{t0}''')
def cs(base, step):
    a=vp.get(4); c=vp.get(4)
    k(f'v_add_f32 v{a+1}, v{base}, v{step}\nv_fma_f32 v{a+2}, v{step}, 2.0, v{base}\nv_fma_f32 v{a+3}, v{step}, 2.0, v{a+1}')
    for r in range(4): k(f'v_cos_f32 v{c+r}, v{a+r if r else base}')
    for r in range(4): k(f'v_sin_f32 v{a+r}, v{a+r if r else base}')
    return (c,a)
def mk_matrix(base, step, neg=False):
    c,a=cs(base,step); re=vp.get(4); im=vp.get(4)
    for r in range(4):
        k(f'v_cvt_pk_bf16_f32 v{re+r}, v{c+r}, v{a+r}')
        k(f'v_cvt_pk_bf16_f32 v{im+r}, -v{a+r}, v{c+r}')
    res=[V(re,4),V(im,4),re,im]
    if neg:
        n=ap.get(16,4)
        for r in range(4):
            k(f'v_xor_b32 v{c+r}, 0x80008000, v{re+r}\nv_xor_b32 v{a+r}, 0x80008000, v{im+r}')
        for j,src in enumerate((re,im,c,a)):
            for r in range(4): k(f'v_accvgpr_write_b32 a{n+4*j+r}, v{src+r}')
        res=[A(n+4*j,4) for j in range(4)]
        vp.put(re,4); vp.put(im,4)
    vp.put(a,4); vp.put(c,4)
    return res
C={}
def c_F16():
    k(f'v_mul_f32 v{t0}, {fb(1/16)}, v{fLo}\nv_mul_f32 v{t1}, 4.0, v{t0}\nv_mul_f32 v{t0}, v{t0}, v{fG}')
    C['F16']=mk_matrix(t0,t1)
def c_G():
    k(f'v_mul_f32 v{t1}, {fb(1/16)}, v{fP}\nv_mul_f32 v{t0}, 4.0, v{fG}\nv_mul_f32 v{t0}, v{t0}, v{t1}')
    C['G16']=mk_matrix(t0,t1)
    k(f'v_fma_f32 v{t0}, v{t1}, 0.5, v{t0}')
    C['G32']=mk_matrix(t0,t1)
def c_TW():
    k(f'v_mul_f32 v{t1}, {fb(1/256)}, v{fLo}\nv_mul_f32 v{t0}, 4.0, v{fG}\nv_mul_f32 v{t0}, v{t0}, v{t1}')
    C['TW0']=cs(t0,t1)
    k(f'v_fma_f32 v{t0}, v{t1}, 0.5, v{t0}')
    C['TWA']=cs(t0,t1)
M3=vp.get(2); fS2=vp.get(); aFr=vp.get()
xf=vp.get(16,4); op=vp.get(8,4); D=vp.get(16,4); D2=vp.get(16,4); c4=D
def c_M3():
    k(f'''v_cvt_f32_u32 v{fS2}, s{sS2}
v_lshrrev_b32 v{t0}, 1, v{vLo}
v_and_b32 v{t1}, 1, v{vLo}
v_cvt_f32_u32 v{t0}, v{t0}
v_cvt_f32_u32 v{t1}, v{t1}
v_mul_f32 v{fS2}, {fb(1/2048)}, v{fS2}
v_mul_f32 v{t1}, {fb(0.25)}, v{t1}
v_mul_f32 v{t2}, {fb(0.25)}, v{fG}
v_add_f32 v{t2}, v{t2}, v{fS2}
v_fma_f32 v{t1}, v{t2}, v{t0}, v{t1}
v_mul_f32 v{t0}, {fb(0.125)}, v{t0}
v_add_f32 v{t0}, v{t0}, v{t1}
v_cos_f32 v{c4}, v{t1}
v_sin_f32 v{c4+1}, v{t1}
v_sin_f32 v{c4+3}, v{t0}
v_cos_f32 v{c4+2}, v{t0}
v_sub_f32 v{t0}, v{c4}, v{c4+3}
v_add_f32 v{t2}, v{c4}, v{c4+3}
v_add_f32 v{t1}, v{c4+1}, v{c4+2}
v_sub_f32 v{t3}, v{c4+2}, v{c4+1}
v_mul_f32 v{t0}, {fb(2.0**-KS)}, v{t0}
v_mul_f32 v{t1}, {fb(2.0**-KS)}, v{t1}
v_mul_f32 v{t2}, {fb(2.0**-KS)}, v{t2}
v_mul_f32 v{t3}, {fb(2.0**-KS)}, v{t3}
v_cvt_pk_bf16_f32 v{M3}, v{t0}, v{t1}
v_cvt_pk_bf16_f32 v{M3+1}, v{t2}, v{t3}''')
sX1o=sp.get(); AD={}
def c_addrA():
    vp.put(fP)
    AD['Zw']=aZw=vp.get(); AD['P']=aP=vp.get(); AD['N']=aN=vp.get()
    k(f'''s_mul_i32 s{sT0}, s{sWave}, {513*4}
s_add_u32 s{sT0}, s{sT0}, {R0}
v_add_u32 v{aZw}, s{sT0}, v{vL4}
v_mul_u32_u24 v{t0}, {513*4}, v{vG}
v_lshlrev_b32 v{t1}, 4, v{vLo}
s_lshl_b32 s{sT0}, s{sWave}, 8
s_add_u32 s{sT1}, s{sT0}, {R0+4}
s_sub_u32 s{sT0}, {R0+4*(511-3)}, s{sT0}
v_add3_u32 v{aP}, v{t0}, v{t1}, s{sT1}
v_sub_u32 v{t0}, v{t0}, v{t1}
v_add_u32 v{aN}, s{sT0}, v{t0}
s_mul_i32 s{sX1o}, s{sS2}, {X1S}
s_lshl_b32 s{sT1}, s{sWave}, 11
s_add_u32 s{sX1o}, s{sX1o}, s{sT1}
s_add_u32 s{sX1o}, s{sX1o}, {X1}
v_and_b32 v{aFr}, 12, v{vL4}
v_add_u32 v{aFr}, {RF}, v{aFr}''')
cA=[c_F16,c_TW,c_G,c_M3,c_addrA]
for f in cA[:OPT['early']]: f()
k(f's_mov_b64 {S(sX,2)}, s[4:5]')
stamp('fkarg')
xr=op
for rho in range(2):
    for i in range(4):
        k(f'buffer_load_dword v{xr+4*rho+i}, v{vL4}, {S(sX,4)}, s{sXo+rho} offen offset:{256*i}')
sp.put(sXo,2)
k.barrier()
k(f'''s_load_dword s{sNon}, s[20:21], {NONCE}
s_mov_b64 {S(sWs,2)}, s[20:21]
s_mov_b64 {S(sWd,2)}, s[16:17]
s_mov_b64 {S(sOut,2)}, s[18:19]''')
for f in cA[OPT['early']:]: f()
tag_calc()
stamp('fconst')
F16,G16,G32,TW0,TWA=C['F16'],C['G16'],C['G32'],C['TW0'],C['TWA']
nsync={'n':0}
def fsync(reads):
    nsync['n']+=1; n=[0,2,6,8,12,14][nsync['n']]
    k(f'v_mov_b32 v{vPh}, {n}')
    k(f'ds_write_b32 v{aFw}, v{vPh}')
    k.label(f'Sy{n}')
    k(f'ds_read_b32 v{t3}, v{aFr}')
    for r in reads: k(r)
    bound(f'Sy{n}')
    k(f'v_cmp_gt_u32 vcc, {n}, v{t3}')
    k(f's_cbranch_vccnz Sy{n}'); k.label(f'Sy{n}c')

def hint(n):
    if OPT.get('hint'): k(f'v_mov_b32 v{vPh}, {n}\nds_write_b32 v{aFw}, v{vPh}')
def pk(op_, d, *src, mods=''):
    k(f'{op_} {V(d,2)}, '+', '.join(V(x,2) if isinstance(x,int) else x for x in src)+(' '+mods if mods else ''))
sSt=sp.get(4,2)
def stats(xf, scale, a):
    for rho in range(2):
        pk('v_pk_add_f32', a+4*rho, xf+8*rho, xf+8*rho+2)
        pk('v_pk_mul_f32', a+4*rho+2, xf+8*rho, xf+8*rho)
    for j in (2,4,6):
        for rho in range(2):
            if j>2: pk('v_pk_add_f32', a+4*rho, a+4*rho, xf+8*rho+j)
            pk('v_pk_fma_f32', a+4*rho+2, xf+8*rho+j, xf+8*rho+j, a+4*rho+2)
    for j in (0,4,2,6): k(f'v_add_f32 v{a+j}, v{a+j}, v{a+j+1}')
    k(f'v_permlane32_swap_b32 v{a}, v{a+4}')
    k(f'v_permlane32_swap_b32 v{a+2}, v{a+6}')
    k(f'v_add_f32 v{a}, v{a}, v{a+4}')
    k(f'v_add_f32 v{a+2}, v{a+2}, v{a+6}')
    for m in ('row_ror:8 row_mask:0xf','row_ror:4 row_mask:0xf','row_ror:2 row_mask:0xf','row_ror:1 row_mask:0xf','row_bcast:15 row_mask:0xa'):
        for j in (0,2): k(f'v_add_f32_dpp v{a+j}, v{a+j}, v{a+j} {m} bank_mask:0xf')
    k(f'''v_mul_f32 v{a}, {fb(1/512)}, v{a}
v_mul_f32 v{a+2}, {fb(1/512)}, v{a+2}
v_fma_f32 v{a+2}, -v{a}, v{a}, v{a+2}
v_max_f32 v{a+2}, 0, v{a+2}
v_add_f32 v{a+2}, {fb(1e-5)}, v{a+2}
v_rsq_f32 v{a+2}, v{a+2}''')
    if scale!=1: k(f'v_mul_f32 v{a+2}, {fb(scale)}, v{a+2}')
    k(f'''v_mul_f32 v{a}, -v{a}, v{a+2}
v_readlane_b32 s{sSt}, v{a+2}, 31
v_readlane_b32 s{sSt+1}, v{a}, 31
v_readlane_b32 s{sSt+2}, v{a+2}, 63
v_readlane_b32 s{sSt+3}, v{a}, 63''')
def normalize(xf,n):
    for rho in range(2):
        for j in range(0,8,2):
            pk('v_pk_fma_f32', n+8*rho+j, xf+8*rho+j, S(sSt+2*rho,2), S(sSt+2*rho,2), mods='op_sel:[0,0,1] op_sel_hi:[1,0,1]')
def R4(x): return V(x,4) if isinstance(x,int) else x
def mf32(d,a,b,c='0'): k(f'v_mfma_f32_16x16x32_bf16 {V(d,4)}, {R4(a)}, {R4(b)}, {R4(c)}')
def mf16(d,a,b): k(f'v_mfma_f32_16x16x16_bf16 {V(d,4)}, {V(a,2)}, {V(b,2)}, 0')
tc=vp.get(4)
def cmul_pack(dre,dim,tw,out,conj=True,swap=False):
    c,s_=tw
    ng='neg_lo:[1,0] neg_hi:[1,0]'; ng3='neg_lo:[1,0,0] neg_hi:[1,0,0]'
    for j in (0,2): pk('v_pk_mul_f32', tc+j, dre+j, c+j)
    for j in (0,2): pk('v_pk_mul_f32', dre+j, dre+j, s_+j, mods=ng if conj else '')
    for j in (0,2):
        pk('v_pk_fma_f32', tc+j, dim+j, s_+j, tc+j, mods='' if conj else ng3)
        pk('v_pk_fma_f32', dre+j, dim+j, c+j, dre+j)
    for r in range(4):
        a,b=(dre+r,tc+r) if swap else (tc+r,dre+r)
        k(f'v_cvt_pk_bf16_f32 v{out+r}, v{a}, v{b}')
def settag(r): k(f'v_bfi_b32 v{r}, v{vTm}, s{sTag}, v{r}')

for rho in range(2):
    for i in range(4):
        k(f'v_lshlrev_b32 v{xf+8*rho+i}, 16, v{xr+4*rho+i}')
        k(f'v_and_b32 v{xf+8*rho+4+i}, 0xffff0000, v{xr+4*rho+i}')
stamp('xload')
if 'G1' in OPT['lord']: hint(1)
stats(xf,1,D)
normalize(xf,D2)
for e in range(2):
    for i in range(4): k(f'v_cvt_pk_bf16_f32 v{op+4*e+i}, v{D2+4*e+i}, v{D2+8+4*e+i}')
for e in range(2):
    mf32(D+8*e, op+4*e, F16[0]); mf32(D+8*e+4, op+4*e, F16[1])
for e in range(2):
    cmul_pack(D+8*e, D+8*e+4, (TW0,TWA)[e], op+4*e)
    Gm=(G16,G32)[e]
    mf32(D2+8*e, Gm[0], op+4*e); mf32(D2+8*e+4, Gm[1], op+4*e)
for t in range(2):
    for j in (0,2,4,6): pk('v_pk_add_f32', D+8*t+j, D2+j, D2+8+j, mods='neg_lo:[0,1] neg_hi:[0,1]' if t else '')
    for r in range(4): k(f'v_cvt_pk_bf16_f32 v{op+4*t+r}, v{D+8*t+r}, v{D+8*t+4+r}')
    for nn in (2*t,2*t+1):
        k(f'ds_write2st64_b32 v{AD["Zw"]}, v{op+2*nn}, v{op+2*nn+1} offset0:{2*nn} offset1:{2*nn+1}')
fsync([x for e in range(4) for x in (f'ds_read_b32 v{D2+8+2*e}, v{AD["P"]} offset:{4*e}', f'ds_read_b32 v{D2+8+2*e+1}, v{AD["N"]} offset:{4*(3-e)}')])
stamp('fAbar')
for e in range(4): mf16(D+4*e, M3, D2+8+2*e)
for b0 in range(2):
    o=D2+4*b0
    for e in range(4): k(f'v_cvt_pk_bf16_f32 v{o+e}, v{D+4*e+2*b0}, v{D+4*e+2*b0+1}')
    for e in range(4): settag(o+e)
    hA=k(f'buffer_store_dwordx4 {V(o,4)}, v{vL16}, {S(sWs,4)}, s{sX1o} offen offset:{b0*1024} sc1')
stamp('Adone')
hint(3)
if OPT.get('fs'): k('s_setprio 0')
for r_,n_ in ((G32[2],4),(G32[3],4),(TWA[0],4),(TWA[1],4),(M3,2),(AD['Zw'],1),(AD['P'],1),(AD['N'],1)): vp.put(r_,n_)
sp.put(sX1o)

k(f'''v_fma_f32 v{t3}, v{fLo}, 2.0, 1.0
v_mul_f32 v{t0}, {fb(1/32)}, v{t3}
v_mul_f32 v{t1}, 4.0, v{t0}
v_mul_f32 v{t0}, v{t0}, v{fG}''')
H=mk_matrix(t0,t1,neg=True)
M3i=vp.get(2); u0=D+4; SC=2.0**(KS-21)
k(f'''v_lshrrev_b32 v{t0}, 2, v{vLo}
v_cvt_f32_u32 v{t0}, v{t0}
v_mul_f32 v{u0}, {fb(0.25)}, v{t0}
v_add_f32 v{u0}, v{u0}, v{fS2}
v_bfe_u32 v{t0}, v{vLo}, 1, 1
v_and_b32 v{t1}, 1, v{vLo}
v_cvt_f32_u32 v{t0}, v{t0}
v_cvt_f32_u32 v{t1}, v{t1}
v_fma_f32 v{t0}, v{t0}, 2.0, -1.0
v_mul_f32 v{t0}, {fb(0.25)}, v{t0}
v_mul_f32 v{u0+1}, v{t0}, v{t1}''')
for nn in range(2):
    k(f'''v_fma_f32 v{t1}, v{fG}, 2.0, {"1.0" if nn else "0"}
v_fma_f32 v{t2}, v{u0}, v{t1}, v{u0+1}
v_mul_f32 v{t1}, {fb(0.125)}, v{t1}
v_sub_f32 v{t1}, v{t1}, v{t0}
v_add_f32 v{t1}, v{t1}, v{t2}
v_cos_f32 v{c4}, v{t2}
v_sin_f32 v{c4+1}, v{t2}
v_cos_f32 v{c4+2}, v{t1}
v_sin_f32 v{c4+3}, v{t1}
v_add_f32 v{t1}, v{c4}, v{c4+2}
v_add_f32 v{t2}, v{c4+1}, v{c4+3}
v_mul_f32 v{t1}, {fb(SC)}, v{t1}
v_mul_f32 v{t2}, {fb(-SC)}, v{t2}
v_cvt_pk_bf16_f32 v{M3i+nn}, v{t1}, v{t2}''')
vp.put(fS2)
Wf=[vp.get(4) for _ in range(4)]
aF=vp.get(); aBin=vp.get(); aBw=vp.get(); aBr=vp.get(); sBo=sp.get(2,1); aOw=vp.get(); aOr=vp.get(); sX2o=sp.get()
k(f'''s_lshl_b32 s{sT0}, s{sWave}, 2
s_add_u32 s{sT0}, s{sT0}, {R2}
v_add_u32 v{aF}, s{sT0}, v{vL16}
s_mul_i32 s{sX2o}, s2, {X2S}
s_lshl_b32 s{sT1}, s{sWave}, 11
s_add_u32 s{sX2o}, s{sX2o}, s{sT1}
s_add_u32 s{sX2o}, s{sX2o}, {X2}
v_lshrrev_b32 v{t1}, 1, v{vL}
v_and_b32 v{t2}, 1, v{vL}
v_mul_u32_u24 v{aBin}, {X1S}, v{t1}
v_lshl_add_u32 v{aBin}, v{t2}, 4, v{aBin}
v_mul_u32_u24 v{aBw}, 4160, v{t2}
v_lshl_add_u32 v{aBw}, v{t1}, 3, v{aBw}
s_lshl_b32 s{sT0}, s{sWave}, 8
s_add_u32 s{sT0}, s{sT0}, {R1}
v_add_u32 v{aBw}, s{sT0}, v{aBw}
s_lshl_b32 s{sT0}, s{sWave}, 11
s_lshr_b32 s{sT1}, s{sWave}, 1
s_lshl_b32 s{sT1}, s{sT1}, 6
s_add_u32 s{sT0}, s{sT0}, s{sT1}
s_add_u32 s{sT0}, s{sT0}, {R1}
v_lshl_add_u32 v{aBr}, v{vL}, 3, s{sT0}
s_lshr_b32 s{sT0}, s{sJ}, 3
s_lshl_b32 s{sT0}, s{sT0}, 11
s_and_b32 s{sT1}, s{sXc}, 1
s_lshl_b32 s{sT1}, s{sT1}, 10
s_add_u32 s{sT0}, s{sT0}, s{sT1}
s_lshr_b32 s{sT1}, s{sXc}, 1
s_lshl_b32 s{sT1}, s{sT1}, 8
s_add_u32 s{sT0}, s{sT0}, s{sT1}
s_and_b32 s{sT1}, s{sJ}, 7
s_lshl_b32 s{sT1}, s{sT1}, 5
s_add_u32 s{sT0}, s{sT0}, s{sT1}
s_and_b32 s{sT1}, s{sWave}, 1
s_lshr_b32 s{sT2}, s{sWave}, 1
s_lshl_b32 s{sT2}, s{sT2}, 2
s_add_u32 s{sT1}, s{sT1}, s{sT2}
s_mul_i32 s{sT1}, s{sT1}, {32*X1S}
s_add_u32 s{sT0}, s{sT0}, s{sT1}''')
for i in range(2): k(f's_add_u32 s{sBo+i}, s{sT0}, {X1+64*i*X1S}')
assert all(swapbits(64*r)&4==0 for r in range(4))
if NB:
    k(f'''v_and_b32 v{t1}, {mA}, v{vL}
v_and_b32 v{t2}, {mB}, v{vL}
v_and_b32 v{t0}, {255&~(mA|mB)}, v{vL}
v_lshrrev_b32 v{t1}, {NB}, v{t1}
v_lshlrev_b32 v{t2}, {NB}, v{t2}
v_or3_b32 v{t0}, v{t0}, v{t1}, v{t2}''')
else: k(f'v_mov_b32 v{t0}, v{vL}')
k(f'''s_lshl_b32 s{sT0}, s{sWave}, 3
s_add_u32 s{sT0}, s{sT0}, {R0}
v_and_b32 v{t1}, 4, v{t0}
v_lshlrev_b32 v{t1}, 2, v{t1}
v_lshl_add_u32 v{t0}, v{t0}, 5, s{sT0}
v_xor_b32 v{aOw}, v{t0}, v{t1}
v_bfe_u32 v{t0}, v{vL}, 3, 1
v_xor_b32 v{t0}, v{t0}, v{vL}
s_lshl_b32 s{sT0}, s{sWave}, 11
s_add_u32 s{sT0}, s{sT0}, {R0}
v_lshl_add_u32 v{aOr}, v{t0}, 4, s{sT0}''')
ffn_roles(0); x3_off()
stamp('fS1')
if OPT.get('h4'): hint(4)
if not OPT.get('na'): k.wait_vm(hA)
if OPT.get('zb'):
    k.label('Zb'); k(f'ds_read_b32 v{t3}, v{aFr} offset:16'); bound('Zb'); k(f'v_cmp_gt_u32 vcc, {OPT["zb"]}, v{t3}\ns_cbranch_vccnz Zb'); k.label('Zbc')
if not OPT.get('h4'): hint(4)
if OPT.get('dB'): k(f"s_sleep {OPT['dB']}")

ld=D; ck=t0
loads=[f'buffer_load_dwordx4 {V(ld+4*i,4)}, v{aBin}, {S(sWs,4)}, s{sBo+i} offen sc1' for i in range(2)]
stamp('Bpoll')
for l in loads: k(l)
hint(5)
if OPT.get('fs'): k('s_setprio 3')
chk=[]
for nn in range(2):
    chk+=[f'v_xor_b32 v{op+2*e+nn}, s{sTag}, v{ld+4*nn+e}' for e in range(4)]
    if nn==0: chk+=[f'v_or3_b32 v{ck}, v{op}, v{op+2}, v{op+4}']
chk+=[f'v_or3_b32 v{ck+1}, v{op+6}, v{op+1}, v{op+3}', f'v_or3_b32 v{ck}, v{ck}, v{op+5}, v{op+7}',
      f'v_bitop3_b32 v{ck}, v{ck}, v{ck+1}, v{vTm} bitop3:0xa8', f'v_cmp_ne_u32 vcc, 0, v{ck}']
checked('B', loads, chk)
stamp('Bgot')
for e in range(4): k(f'ds_write_b64 v{aBw}, {V(op+2*e,2)} offset:{1024*e}')
fsync([f'ds_read_b64 {V(D2+4*e+2*ih,2)}, v{aBr} offset:{1024*e+512*ih}' for e in range(2) for ih in range(2)])
wrd=[f'ds_read_b32 v{t3}, v{aFr} offset:16']+[f'ds_read_b32 v{Wf[2+m]+r}, v{aF} offset:{4096*m+1024*r}' for m in range(2) for r in range(4)]
for e in range(2):
    mf32(D+8*e, D2+4*e, F16[0]); mf32(D+8*e+4, D2+4*e, F16[1])
stamp('fB0')
wq=list(wrd)
for x in wq[:5]: k(x)
cmul_pack(D, D+4, TW0, op)
for x in wq[5:7]: k(x)
mf32(D2, G16[0], op); mf32(D2+4, G16[1], op)
for x in wq[7:]: k(x)
cmul_pack(D+8, D+12, TW0, op+4)
k(f'v_cmp_gt_u32 vcc, 6, v{t3}')
k(f'v_and_b32 v{aFr}, 28, v{vL4}')
mf32(D2+8, G16[0], op+4); mf32(D2+12, G16[1], op+4)
k('s_cbranch_vccnz WSr'); k.label('WSc')
kk=Asm(); kk.label('WSr')
kk(f'v_and_b32 v{t2}, 12, v{vL4}\nv_add_u32 v{t2}, {RF}, v{t2}')
kk.label('WSl')
kk(wrd[0].replace(f'v{aFr} ',f'v{t2} '))
for x in wrd[1:]: kk(x)
kk(f'''s_add_u32 s{sSpin}, s{sSpin}, 1
s_cmp_lt_u32 s{sSpin}, {8*SPIN}
s_waitcnt lgkmcnt(0)
s_cbranch_scc0 WSc
v_cmp_gt_u32 vcc, 6, v{t3}
s_cbranch_vccnz WSl
s_branch WSc''')
tail.insert(0,kk.text())
for m in range(2):
    for r in range(4): k(f'v_lshlrev_b32 v{Wf[m]+r}, 16, v{Wf[2+m]+r}')
for e in range(2):
    cmul_pack(D2+8*e, D2+8*e+4, (Wf[2*e], Wf[2*e+1]), op+4*e, conj=False, swap=True)
    if e==0:
        for r in range(2): k(f'v_and_b32 v{Wf[2]+r}, 0xffff0000, v{Wf[2]+r}')
    else: k(f'v_add_u32 v{aFr}, {RF}, v{aFr}')
    mf32(D+8*e, op+4*e, F16[0]); mf32(D+8*e+4, op+4*e, F16[1])
    if e==0:
        for r in (Wf[2]+2,Wf[2]+3,Wf[3],Wf[3]+1,Wf[3]+2,Wf[3]+3): k(f'v_and_b32 v{r}, 0xffff0000, v{r}')
hint(7)
for e in range(2):
    cmul_pack(D+8*e, D+8*e+4, TW0, op+4*e)
    mf32(D2+8*e, G16[0], op+4*e); mf32(D2+8*e+4, G16[1], op+4*e)
for r in range(4): k(f'v_cvt_pk_bf16_f32 v{D+2*r}, v{D2+4+r}, v{D2+r}')
for r in range(4): settag(D+2*r)
for r in range(4):
    k(f'v_cvt_pk_bf16_f32 v{D+2*r+1}, v{D2+12+r}, v{D2+8+r}')
    settag(D+2*r+1)
    k(f'ds_write_b64 v{aOw}, {V(D+2*r,2)} offset:{swapbits(64*r)*32}')
stamp('fB1')
fsync([f'ds_read_b128 {V(D+8+4*i,4)}, v{aOr} offset:{1024*i}' for i in range(2)])
stamp('fB2')
for i in range(2): hB=k(f'buffer_store_dwordx4 {V(D+8+4*i,4)}, v{vL16}, {S(sWs,4)}, s{sX2o} offen offset:{1024*i} sc1')
stamp('Bdone')
hint(9)
if OPT.get('fs'): k('s_setprio 0')
for r_,n_ in [(w_,4) for w_ in Wf]+[(aBin,1),(aBw,1),(aBr,1),(aOw,1),(aOr,1),(aF,1)]: vp.put(r_,n_)
sp.put(sBo,2); sp.put(sX2o)
k(f'v_fma_f32 v{t3}, v{fLo}, 2.0, 1.0\nv_mul_f32 v{t1}, {fb(1/512)}, v{t3}\nv_mul_f32 v{t0}, 4.0, v{fG}\nv_mul_f32 v{t0}, v{t0}, v{t1}')
TWC=cs(t0,t1)
nyq=vp.get(2); aCin=vp.get(); aCp=vp.get(); aCn=vp.get(); aCr=vp.get(2,1); sCo=sp.get(2,1)
aLw=vp.get(2,1); aLr=vp.get(); aHw=vp.get(); aHr=vp.get(); sHb=sp.get()
CB=R1+16; CS=2064
k(f'''v_and_b32 v{t0}, 0xcf, v0
v_mov_b32 v{t1}, 0.5
v_cmp_eq_u32 vcc, 0xcf, v{t0}
v_lshrrev_b32 v{t0}, 1, v{vLo}
v_lshlrev_b32 v{t0}, 2, v{t0}
v_cndmask_b32 v{nyq}, 1.0, v{t1}, vcc
v_cndmask_b32 v{nyq+1}, 0, v{t1}, vcc
v_add_u32 v{t0}, v{t0}, v{vG}
v_mul_u32_u24 v{t0}, {2*X2S}, v{t0}
v_and_b32 v{t1}, 1, v{vLo}
v_lshl_add_u32 v{aCin}, v{t1}, 4, v{t0}
s_mul_i32 s{sT0}, s{sWave}, {64*X2S}
s_lshl_b32 s{sT1}, s{sPos}, 5
s_add_u32 s{sT0}, s{sT0}, s{sT1}
s_add_u32 s{sCo}, s{sT0}, {X2}
s_add_u32 s{sCo+1}, s{sT0}, {X2+X2S}
v_mul_u32_u24 v{t0}, {CS}, v{vG}
v_lshlrev_b32 v{t1}, 4, v{vLo}
s_lshl_b32 s{sT0}, s{sWave}, 8
s_add_u32 s{sT1}, s{sT0}, {CB}
s_sub_u32 s{sT0}, {CB+1024+4*252}, s{sT0}
v_add3_u32 v{aCp}, v{t0}, v{t1}, s{sT1}
v_sub_u32 v{t0}, v{t0}, v{t1}
v_add_u32 v{aCn}, s{sT0}, v{t0}
s_mul_i32 s{sT0}, s{sWave}, {CS}
s_add_u32 s{sT0}, s{sT0}, {CB-4}
v_add_u32 v{aCr}, s{sT0}, v{vL4}
v_add_u32 v{aCr+1}, {1028}, v{aCr}
v_mov_b32 v{t0}, s{sT0}
v_mov_b32 v{t1}, 0
ds_write_b32 v{t0}, v{t1}
v_and_b32 v{t0}, 7, v{vL}
s_lshl_b32 s{sT0}, s{sWave}, 1
v_xor_b32 v{t0}, s{sT0}, v{t0}
v_lshlrev_b32 v{t0}, 4, v{t0}
v_lshl_add_u32 v{t0}, v{vL}, 7, v{t0}
v_add_u32 v{aLw}, {R0}, v{t0}
v_xor_b32 v{aLw+1}, 16, v{aLw}
v_lshrrev_b32 v{t0}, 3, v{vL}
v_xor_b32 v{t0}, v{t0}, v{vL}
s_lshl_b32 s{sT0}, s{sWave}, 11
s_add_u32 s{sT1}, s{sT0}, {R0}
v_lshl_add_u32 v{aLr}, v{t0}, 4, s{sT1}
s_add_u32 s{sT1}, s{sT0}, {RH}
v_add_u32 v{aHw}, s{sT1}, v{vL4}
v_add_u32 v{aHr}, s{sT1}, v{vL16}
s_lshl_b32 s{sHb}, s{sS2}, 13
s_add_u32 s{sHb}, s{sHb}, s{sT0}
s_add_u32 s{sHb}, s{sHb}, {HB}''')
stamp('fS3')
if OPT.get('h10'): hint(10)
k.wait_vm(hB)
if 'Z' in OPT.get('seq',''):
    k(f'v_or_b32 v{t2}, 16, v{aFr}')
    k.label('Zw'); k(f'ds_read_b32 v{t3}, v{t2}'); bound('Zw'); k(f'v_cmp_gt_u32 vcc, 101, v{t3}\ns_cbranch_vccnz Zw' if not OPT.get('zany') else f'v_cmp_le_u32 vcc, 101, v{t3}\ns_cbranch_vccz Zw'); k.label('Zwc')
elif not OPT.get('h10'):
    if OPT.get('dC0'): k(f"s_sleep {OPT['dC0']}")
    hint(10)
if OPT.get('dC'): k(f"s_sleep {OPT['dC']}")

loads=[f'buffer_load_dwordx4 {V(ld+4*i,4)}, v{aCin}, {S(sWs,4)}, s{sCo+i} offen sc1' for i in range(2)]
stamp('Cpoll')
for l in loads: k(l)
hint(11)
if OPT.get('fs'): k('s_setprio 3')
checked('C', loads, chk)
stamp('Cgot')
for e in (3,0,1,2): mf16(D+4*e, M3i, op+2*e)
pk('v_pk_mul_f32', D+14, D+14, nyq, mods='op_sel:[0,0] op_sel_hi:[1,0]')
pk('v_pk_fma_f32', D+14, D+12, nyq, D+14, mods='op_sel:[0,1,0] op_sel_hi:[1,1,1]')
for e in (3,0,1,2): k(f'v_cvt_pk_bf16_f32 v{D2+e}, v{D+4*e+1}, v{D+4*e}')
k(f'ds_write_b128 v{aCp}, {V(D2,4)}')
for e in (3,0,1,2): k(f'v_cvt_pk_bf16_f32 v{D2+4+3-e}, v{D+4*e+3}, v{D+4*e+2}')
k(f'ds_write_b128 v{aCn}, {V(D2+4,4)}')
fsync([f'ds_read2st64_b32 {V(op+4*t+2*nn,2)}, v{aCr+t} offset0:{2*nn} offset1:{2*nn+1}' for t in range(2) for nn in range(2)])
for e in range(2):
    for c in range(2): mf32(D+8*e+4*c, op, (F16,H)[e][c])
    for c in range(2): mf32(D+8*e+4*c, op+4, (F16[c],H[2+c])[e], D+8*e+4*c)
for e in range(2):
    cmul_pack(D+8*e, D+8*e+4, (TW0,TWC)[e], D2+4*e)
    mf32(xf+4*e, G16[1], D2+4*e, xf+4*e)
    mf32(xf+8+4*e, G16[0], D2+4*e, xf+8+4*e)
hint(13)
stats(xf,CG,D)
normalize(xf,D2)
for rho in range(2):
    for i in range(4): k(f'v_cvt_pk_bf16_f32 v{op+4*rho+i}, v{D2+8*rho+i}, v{D2+8*rho+4+i}')
    k(f'ds_write_b128 v{aLw+rho}, {V(op+4*rho,4)}')
fsync([f'ds_read_b128 {V(D+4*i,4)}, v{aLr} offset:{1024*i}' for i in range(2)])
for i in range(2): hC=k(f'buffer_store_dwordx4 {V(D+4*i,4)}, v{vL16}, {S(sWs,4)}, s{sX3o} offen offset:{1024*i} {LS}')
stamp('Cdone')
hint(15)
if OPT.get('fs'): k('s_setprio 0')
k(f's_mov_b32 s{sSt}, {fb(2.0**-KH)}')
for j in range(0,16,2): pk('v_pk_mul_f32', xf+j, xf+j, S(sSt,2), mods='op_sel_hi:[1,0]')
for rho in range(2):
    for i in range(4): k(f'v_cvt_pk_bf16_f32 v{D2+4*rho+i}, v{xf+8*rho+i}, v{xf+8*rho+4+i}')
    for i in range(4): settag(D2+4*rho+i)
    for nn in range(2): k(f'ds_write2st64_b32 v{aHw}, v{D2+4*rho+2*nn}, v{D2+4*rho+2*nn+1} offset0:{4*rho+2*nn} offset1:{4*rho+2*nn+1}')
for i in range(2): k(f'ds_read_b128 {A(4*i,4)}, v{aHr} offset:{1024*i}')
k.wait_lg()
sp.put(sCo,2); sp.put(sSt,4)
k(f'''s_or_b32 s{sT0}, s2, s{sWave}
s_cmp_lg_u32 s{sT0}, 0
s_cbranch_scc1 Lnon
v_mov_b32 v{t1}, s{sTag}
s_mov_b32 s{sT0}, {NONCE}''')
k.raw(f'    buffer_store_dword v{t1}, off, {S(sWs,4)}, s{sT0} sc1')
k.label('Lnon')

oF=gemm_setup(0); y_setup(oF)
k.wait_vm(hC)
if OPT.get('dG'): k(f"s_sleep {OPT['dG']}")
k.barrier()
stamp('Gbar')
k('s_setprio 3')
hst=[f'buffer_store_dwordx4 {A(4*i,4)}, v{vL16}, {S(sWs,4)}, s{sHb} offen offset:{1024*i} {LS}' for i in range(2)]
gemm1(0,oF,5,RING,lambda tp: hst if tp==12 else [])
y_tail(oF)
nF=k.count

path['p']='L'; sp.free=list(sp_common.free)
k.hist=[]; k.vm=vm_common; k.lg=[]
mark=len(k.out)
k.label('LSTUB')
k(f'''s_mov_b32 s{sX+2}, 1052672
s_mov_b32 s{sX+3}, 0x20000
v_min_u32 v{t0}, 8, v{vLo}
v_lshlrev_b32 v{t0}, 6, v{t0}
v_mul_u32_u24 v{t1}, 4112, v{vG}
v_add_u32 v{t0}, v{t0}, v{t1}
s_lshl_b32 s{sT0}, s{sJ}, 1
s_and_b32 s{sT1}, s{sWave}, 1
s_add_u32 s{sT0}, s{sT0}, s{sT1}
s_lshl_b32 s{sT0}, s{sT0}, 5
s_add_u32 s{sT0}, s{sT0}, s{sXc}
s_mul_i32 s{sT0}, s{sT0}, 514
s_cmp_lt_u32 s{sWave}, 2
s_waitcnt lgkmcnt(0)
s_cselect_b64 {S(sX,2)}, s[6:7], s[8:9]''')
if not OPT.get('fe'): k('s_barrier')
hF=k(f'buffer_load_ushort v33, v{t0}, {S(sX,4)}, s{sT0} offen')
if OPT.get('fe'): k('s_barrier')
k('s_branch LPATH')
stub='\n'.join(k.out[mark:]); del k.out[mark:]
k.label('LPATH')
vdum=32; vS=40; vR=64; vB=48; aF=52; vSent=56
sFw=sp.get(2,1); sWr=sp.get(4,4); sWi=sp.get(4,4)
k(f'''s_load_dword s{sNon}, s[20:21], {NONCE}
s_mov_b64 {S(sWs,2)}, s[20:21]
s_mov_b64 {S(sWr,2)}, s[6:7]
s_mov_b64 {S(sWi,2)}, s[8:9]
s_mov_b64 {S(sWd,2)}, s[16:17]
s_mov_b64 {S(sOut,2)}, s[18:19]
s_bitcmp0_b32 s{sWave}, 0
s_cselect_b64 {S(sW1,2)}, s[12:13], s[14:15]''')
stamp('fkarg')
def l_pre():
    k(f'''s_cmp_lt_u32 s{sWave}, 2
s_cselect_b64 {S(sX,2)}, {S(sW1,2)}, {S(sWd,2)}
s_cmp_eq_u32 s{sWave}, 3
s_cselect_b32 s{sX+2}, 0, {512*3584}
s_mov_b32 s{sX+3}, 0x20000
v_min_u32 v{t0}, 55, v{vL}
v_lshlrev_b32 v{t0}, 7, v{t0}
s_mul_i32 s{sT0}, s2, {56*128}''')
    return k(f'buffer_load_dword v{vdum+2}, v{t0}, {S(sX,4)}, s{sT0} offen')
def l_p1():
    k(f'''s_mov_b32 s{sWd+2}, {1792*1024}
s_mov_b32 s{sWd+3}, 0x20000
s_lshl_b32 s{sT0}, s2, 2
s_add_u32 s{sT0}, s{sT0}, s{sWave}
s_mul_i32 s{sT0}, s{sT0}, {14*128}
v_min_u32 v{t0}, 13, v{vL}
v_lshlrev_b32 v{t0}, 7, v{t0}''')
    return k(f'buffer_load_dword v{vdum+2}, v{t0}, {S(sWd,4)}, s{sT0} offen')
def l_p2():
    k(f'''s_lshl_b32 s{sT0}, s2, 1
s_lshr_b32 s{sT1}, s{sWave}, 1
s_add_u32 s{sT0}, s{sT0}, s{sT1}
s_mul_i32 s{sT0}, s{sT0}, {28*128}
v_min_u32 v{t0}, 27, v{vL}
v_lshlrev_b32 v{t0}, 7, v{t0}''')
    return k(f'buffer_load_dword v{vdum+3}, v{t0}, {S(sW1,4)}, s{sT0} offen')
def l_bpre():
    assert NB==2
    k(f'''s_lshl_b32 s{sT0}, s{sJ}, 1
s_lshr_b32 s{sT1}, s{sWave}, 1
s_add_u32 s{sT0}, s{sT0}, s{sT1}
s_mul_i32 s{sT0}, s{sT0}, {8*3584}
s_and_b32 s{sT1}, s{sXc}, 3
s_mul_i32 s{sT1}, s{sT1}, 896
s_add_u32 s{sT0}, s{sT0}, s{sT1}
v_and_b32 v{t0}, 7, v{vL}
v_min_u32 v{t0}, 6, v{t0}
v_lshrrev_b32 v{t1}, 3, v{vL}
v_mul_u32_u24 v{t1}, 3584, v{t1}
v_lshl_add_u32 v{t0}, v{t0}, 7, v{t1}''')
    return k(f'buffer_load_dword v{vdum+4}, v{t0}, {S(sW1,4)}, s{sT0} offen')
def l_sent():
    for i in range(2): h=k(f'buffer_store_dwordx4 {V(vSent,4)}, v{vL16}, {S(sWs,4)}, s{sX3o} offen offset:{1024*i} {LS}')
    return h
def l_gath(ms=(0,1)):
    for m in ms:
        k(f's_add_u32 m0, s{sFw+1}, {R2+4096*m}')
        h=k(f'buffer_load_dwordx4 v{aF}, {S((sWr,sWi)[m],4)}, s{sFw} offen lds')
    return h
def l_setup():
    srd_consts(((sWs,WSZ),(sWd,1792*1024),(sOut,2097152),(sW1,512*3584),(sWr,1052672),(sWi,1052672)))
    ffn_roles(1); x3_off()
    k(f'''v_and_b32 v{t0}, 255, v0
v_mul_u32_u24 v{aF}, 4112, v{t0}
s_mul_i32 s{sT0}, s{sXc}, 514
s_lshl_b32 s{sT1}, s{sJ}, 4
s_add_u32 s{sT0}, s{sT0}, s{sT1}
s_add_u32 s{sFw}, s{sT0}, 2
s_lshl_b32 s{sFw+1}, s{sWave}, 10
s_lshl_b32 s{sLq}, s{sWave}, 15''')
    for i in range(4): k(f'v_mov_b32 v{vSent+i}, -1')
    wd_addr(vS); wd_raddr(vR,sLq)
    k(f'''v_bfe_u32 v{t1}, v{vL}, 3, 1
v_lshl_add_u32 v{t1}, v{vG}, 7, v{t1}
v_mul_u32_u24 v{t1}, 3584, v{t1}
v_and_b32 v{t0}, 1, v{vG}
v_lshlrev_b32 v{t0}, 1, v{t0}
v_and_b32 v{t2}, 7, v{vL}
v_xor_b32 v{t0}, v{t0}, v{t2}
s_and_b32 s{sT0}, s{sWave}, 1
s_lshl_b32 s{sT0}, s{sT0}, 2
v_xor_b32 v{t0}, s{sT0}, v{t0}
v_xor_b32 v{t2}, 4, v{t0}
s_lshr_b32 s{sT0}, s{sWave}, 1
s_mul_i32 s{sT1}, s{sT0}, {32*7168}
s_lshl_b32 s{sT0}, s{sF0}, 5
s_add_u32 s{sT0}, s{sT0}, s{sT1}
v_add_u32 v{t1}, s{sT0}, v{t1}
v_lshl_add_u32 v{vB}, v{t0}, 4, v{t1}
v_lshl_add_u32 v{t2}, v{t2}, 4, v{t1}
v_add_u32 v{vB+1}, {6144}, v{t2}
v_add_u32 v{vB+2}, {2*6144}, v{vB}
v_add_u32 v{vB+3}, {3*6144}, v{t2}''')
    tag_calc()
    k(f"s_setprio {OPT.get('pl',0)}")
aPk=60; ngate={'n':0}
def gate(mask):
    ngate['n']+=1; n=ngate['n']
    k.label(f'Gt{n}')
    k(f'ds_read_b32 v{aPk+1}, v{aPk}')
    bound(f'Gt{n}')
    k(f'v_readfirstlane_b32 s{sT0}, v{aPk+1}')
    k(f's_bitcmp0_b32 {mask}, s{sT0}')
    k(f's_cbranch_scc1 Gt{n}'); k.label(f'Gt{n}c')
k(f's_lshl_b32 s{sT0}, s{sWave}, 2\ns_add_u32 s{sT0}, s{sT0}, {RF}\nv_mov_b32 v{aPk}, s{sT0}')
RUN=sum(1<<int(x) for x in str(OPT.get('run','3.6.9.12.15')).split('.'))
hl={'f':hF}; done_setup=False
flagged={'d':True,'v':0}
def try_flag(force=0):
    for v,names in ((6,('g','g1')),(100,('s',))):
        hs=[hl[n] for n in names if n in hl]
        if flagged['v']>=v or not hs or (v==100 and flagged['v']<6): continue
        if force>=v: k.wait_vm(hs[0])
        if hs[0] not in {e[0] for e in k.vm}:
            k(f'v_mov_b32 v{vPh}, {v}\nds_write_b32 v{aFw}, v{vPh}'); flagged['v']=v; stamp('gflag' if v==6 else 'fsent')
def b1_dma(g):
    k(f's_add_u32 m0, s{sLq}, {g*4096}\ns_mov_b32 s{sB0}, {g*4*7168}')
    for i in range(4):
        k(f'buffer_load_dwordx4 v{vB+i}, {S(sW1,4)}, s{sB0} offen offset:{i*1024} lds'); throttle('b')
hd={}; nwd={'n':0}; nb=0
def wd_next(raw=False):
    b=nwd['n']; hd[b]=wd_load(b,vS,raw); nwd['n']+=1; try_flag()
for tok in OPT['lord'].split('_'):
    if tok not in ('p','p1') and not done_setup: l_setup(); done_setup=True
    if tok[0]=='w': k.wait_vm(hl[tok[1:]]); stamp('f'+tok)
    elif tok[0]=='G': gate(0xffff&~((1<<int(tok[1:]))-1))
    elif tok[0]=='F': try_flag(int(tok[1:]))
    elif tok[0]=='V': k(f'v_mov_b32 v{vPh}, {tok[1:]}\nds_write_b32 v{aFw}, v{vPh}')
    elif tok=='W': wd_next()
    elif tok in ('B7','B'): flagged['d']=tok=='B'; b1_dma(take(1)); nb+=1; flagged['d']=True; try_flag()
    elif tok in 'UR': flagged['d']=False; wd_next(tok=='R'); flagged['d']=True
    else:
        hl[tok]={'p':l_pre,'p1':l_p1,'p2':l_p2,'s':l_sent,'g':l_gath,'g0':lambda:l_gath([0]),'g1':lambda:l_gath([1]),'b':l_bpre}[tok]()
        stamp('f'+tok)
assert flagged['v']==100
if OPT.get('lgate'): gate(0xffff&~((1<<OPT['lgate'])-1))
nx=0; hx={}; oL=None
for r_,n_ in ((sFw,2),(sWr,4),(sWi,4)): sp.put(r_,n_)
xo=[int(c) for c in str(OPT.get('xo','0123456')).lstrip('o')]
border=[7]+xo
for tok in OPT.get('seq','WWWWWWWXBXBXBXBXBXBXBB'):
    flagged['d']=tok.isupper()
    if tok in 'WwR':
        if nwd['n']<7: wd_next(tok=='R')
    elif tok.isdigit(): gate(0x1ffff&~((1<<int(tok))-1))
    elif tok=='S': oL=gemm_setup(1); x_setup(oL)
    elif tok=='Z':
        k(f"s_waitcnt vmcnt({OPT.get('zt',2)})")
        k(f'v_mov_b32 v{vPh}, 101\nds_write_b32 v{aFw}, v{vPh}'); stamp('fZ')
        if OPT.get('zs'): oL=gemm_setup(1); x_setup(oL)
        if not OPT.get('zn'): gate(0x1ffff&~((1<<11)-1))
    elif tok=='X': hx[xo[nx]]=wd_xp(xo[nx],vR,hd[xo[nx]]); nx+=1
    else:
        if nb==7: stamp('wdone')
        b1_dma(take(1)); nb+=1
assert nb==8 and nwd['n']==nx
if oL is None: oL=gemm_setup(1); x_setup(oL)
NRL=7; BL=128-8*NRL
NDEF=7-nx
if NDEF:
    k(f's_mul_i32 s{sT0}, s{sWave}, {4096-32768}\ns_add_u32 s{sT0}, s{sT0}, {R0}\ns_add_u32 s{sLq}, s{sLq}, s{sT0}')
    for c in range(4): k(f'v_add_u32 v{vR+c}, s{sT0}, v{vR+c}')
k('s_waitcnt vmcnt(0)')
stamp('bdone')
k.barrier()
stamp('Gbar')
k(f"s_setprio {OPT.get('pw',2)}")
if OPT.get('lw'):
    k.label('Lw'); k(f'ds_read_b32 v{aPk+1}, v{aPf}'); bound('Lw'); k(f'v_cmp_gt_u32 vcc, 17, v{aPk+1}\ns_cbranch_vccnz Lw'); k.label('Lwc')
flagged['d']=False; OPT['thr']=OPT['thrw']=60
pre=0
def prefill(n):
    global pre
    for tp in range(pre,min(NRL,pre+n)):
        for l in g1_loads(oL,tp,NRL,BL):
            k(l)
            if len(k.vm)>OPT.get('yw',2): k(f"s_waitcnt vmcnt({OPT.get('yw',2)})")
    pre=min(NRL,pre+n)
freeg[:]=[0]; lastx.clear()
for b in range(nx,7):
    hd[b]=wd_load(b,vS,False)
    prefill(OPT.get('pn',1))
    wd_xp(b,vR,hd[b])
prefill(99)
k.wait_lg()
oL['pre']=NRL
k('s_setprio 2')
stamp('wdef')
x_tail(oL)

hdr=f'''; Fused persistent kernel: LN -> 2-D FFT filter (MFMA DFT stages) -> LN -> GEGLU FFN, 256 workgroups.
; @launch grid=(256,1,1) block=(512,1,1) lds={LDSZ}
.amdgcn_target "amdgcn-amd-amdhsa--gfx950"
.text
.globl {KN}
.p2align 8
.type {KN},@function
'''
ftr=f'''
CODE_END:
.section .rodata,"a"
.p2align 6
.amdhsa_kernel {KN}
  .amdhsa_next_free_vgpr 256
  .amdhsa_next_free_sgpr 102
  .amdhsa_accum_offset 128
  .amdhsa_group_segment_fixed_size 0
  .amdhsa_kernarg_size 80
  .amdhsa_user_sgpr_count 2
  .amdhsa_user_sgpr_kernarg_segment_ptr 1
  .amdhsa_system_sgpr_workgroup_id_x 1
.end_amdhsa_kernel
'''
open(sys.argv[1],'w').write(hdr+k.text().replace('@STUB@',stub)+'\n'+'\n'.join(tail)+ftr+(''.join('; STAMPS '+' '.join(n for n,_ in stamps[p])+' cnt\n' for p in 'FL') if OPT['stamps'] else ''))
open(sys.argv[1]+'.stamps','w').write('\n'.join(' '.join(n for n,_ in stamps[p])+' cnt' for p in 'FL'))
print('instrs F',nF,'total',k.count,'nops',k.nops,'vp hi',vp.hi,'sp hi',sp.hi, file=sys.stderr)
```

```python
import sys, struct
from asmlib import *

KN = "sequential_preLN__spectral_gfnet__glu_gated_geglu__prompt_kernel"
OPT = dict(stamps=0, ng=2, g2=1, early=0, thr=14, lord='p_G3_g_F6_G5_s_G6_B7_W_W_F100', yn=14, hint=1, gew=4, geb=1, run='3.6.7.8.9.11.12.15', seq='WWWWWWWXXBXBZXBXBXBXBB', zt=6, thrb=20, thrw=10, zany=1, p2=1, ro=0)
for a in sys.argv[2:]:
    kk,vv = a.split('='); OPT[kk]=int(vv) if vv.lstrip('-').isdigit() else vv
NB = OPT['ng']; SW=OPT.get('sw',0)
def fb(x): return '0x%08x' % struct.unpack('<I', struct.pack('<f', x))[0]

NONCE=0x80000
X1=0x100000; X1S=8320
X2=0x600000; X2S=8320
X3=0xB00000; X3S=8320
HB=0xE00000
HH=0x1000000
XP=0x1A00000
STAMP=0x1800000
WSZ=0x2000000
R0=131072; R1=R0+9216; R2=R1+9216; RH=R2; RF=R2+8192
KS=100; KH=82; TM=0x60006000
LDSZ=163840
SPIN=400000
CG = 0.1029432397**(1/3)
KQ = 2.302208198/CG

k=Asm(); tail=[]
LS='' if OPT.get('loc')==2 else 'sc1'
sp=Pool(44,96)
sX,sWs,sWd,sOut,sW1 = 24,28,32,36,40
stamps={'F':[], 'L':[]}; path={'p':'F'}
STQ={'F':[22,100,4,6,8,10,12,14,16,18,20,24,26,40,42],'L':[22,100,4,6,8,10,12,14,16,18,20,24,26,96,98]}
def stamp(name):
    st=OPT['stamps']; p=path['p']
    if OPT.get('probe')==p+name: k('s_sleep 10')
    big=('start','xload','Adone','Bpoll','Bgot','Bdone','Cpoll','Cgot','Cdone','gflag','wdone','bdone','Gbar','G1got','G1done','epi','B1','G2done','end')
    on = (st==1 and name in big and not (p=='F' and name in ('wdone','B1','Bpoll','Cpoll'))) or (st==2 and name in ('start','Gbar','wdone','G1got','G1done','epi','B1','G2done','B2','end','g4','g8','g11')) \
         or (st==4 and name in ('Gbar','G1got','k4','k8','k12','G1done','epi','B1','G2done','B2','end','g4','g8','g11')) \
         or (st==8 and name in ('start','xload','Adone','Bpoll','Bgot','Bdone','Cpoll','Cgot','Cdone','Gbar','end','gflag','fZ')) \
         or (st==7 and name in ('start','Gbar','end')) \
         or (st==6 and (name[0]=='h' or name in (('G1got','k4','k8','k12','G1done','epi','g4','g8','g11','G2done','end') if p=='F' else ('G1got','epi',)))) \
         or (st==5 and (name[0]=='l' or name in ('bdone','Gbar'))) \
         or (st==3 and (name[0]=='f' or name in big[:13]) and not (p=='F' and name in ('wdone','fkarg','fS1','fS3')))
    if on or (p+name) in OPT.get('amp','').split(','):
        r=STQ[p][len(stamps[p])]; stamps[p].append((name,r)); k(f'{"s_memtime" if OPT.get("cyc") else "s_memrealtime"} {S(r,2)}')

def retry_block(name, loads, check):
    kk=Asm()
    kk.label(f'R_{name}')
    kk('s_nop 3')
    for l in loads: kk(l)
    kk('s_waitcnt vmcnt(0)')
    for c in check: kk(c)
    kk(f's_add_u32 s{sCnt}, s{sCnt}, 1')
    if OPT['stamps']: kk(f's_add_u32 s{sDg}, s{sDg}, {1<<(8*dict(B=0,C=1,Y=2,X=3,H=3,G=0 if name[:2] in ("G1","Gp") else 1 if name in ("G2_0","G2_2") else 2 if name in ("G2_4","G2_6","G2_8","G2_11","G2_14") else 3)[name[0]])}')
    kk(f's_cmp_gt_u32 s{sCnt}, {SPIN}')
    kk(f's_cbranch_scc1 C_{name}')
    kk(f's_cbranch_vccnz R_{name}')
    kk(f's_branch C_{name}')
    tail.append(kk.text())
def checked(name, loads, check):
    for c in check: k(c)
    k(f's_cbranch_vccnz R_{name}')
    k.label(f'C_{name}')
    retry_block(name, loads, check)

def bound(lbl):
    k(f's_add_u32 s{sSpin}, s{sSpin}, 1\ns_cmp_lt_u32 s{sSpin}, {8*SPIN}\ns_cbranch_scc0 {lbl}c')
k.raw(f'{KN}:')
k('s_cmp_lt_u32 s2, 256')
k('s_cbranch_scc1 Lgo')
k('s_endpgm')
k.raw('@STUB@')
k.label('Lgo')
k('s_load_dwordx16 s[4:19], s[0:1], 0')
k('s_load_dwordx2 s[20:21], s[0:1], 72')
stamp('start'); stamps['L']=list(stamps['F'])
sWid=sp.get(); sWave=sp.get(); sS2=sp.get(); sT0=sp.get(); sT1=sp.get(); sT2=sp.get(); sCnt=sp.get(); sSpin=sp.get(); sDg=sp.get()
sXc=sp.get(); sJ=sp.get(); sPos=sp.get(); sNon=sp.get(); sTag=sp.get()
vL,vL16,vTm,vLo,vG,t0,t1,t2,t3,aFw,vPh = range(1,12)
vdum=127
if OPT.get('cpre',1):
    pc=sp.get(2)
    k(f'''s_getpc_b64 {S(pc,2)}
v_lshlrev_b32 v{t0}, 7, v0
v_min_u32 v{t2}, CODE_END-Lgo-64, v{t0}
v_mov_b32 v{t3}, s{pc+1}
v_add_co_u32 v{t2}, vcc, s{pc}, v{t2}
v_addc_co_u32 v{t3}, vcc, 0, v{t3}, vcc
global_load_dword v{vdum}, {V(t2,2)}, off''')
    sp.put(pc,2)
k(f'''v_lshrrev_b32 v{t0}, 6, v0
v_and_b32 v{vL}, 63, v0
v_readfirstlane_b32 s{sWid}, v{t0}
v_lshlrev_b32 v{vL16}, 4, v{vL}
v_and_b32 v{vLo}, 15, v0
v_lshrrev_b32 v{vG}, 4, v{vL}
s_and_b32 s{sXc}, s2, 7
s_lshr_b32 s{sJ}, s2, 3
s_lshl_b32 s{sPos}, s{sXc}, 5
s_add_u32 s{sPos}, s{sPos}, s{sJ}
s_and_b32 s{sWave}, s{sWid}, 3
s_mov_b32 s{sCnt}, 0
s_mov_b32 s{sSpin}, 0''')
mA=((1<<NB)-1)<<5; mB=((1<<NB)-1)<<(5-NB)
def swapbits(p): return (p&~(mA|mB))|((p&mA)>>NB)|((p&mB)<<NB)
if NB:
    k(f'''s_and_b32 s{sT0}, s{sPos}, {mA}
s_and_b32 s{sT1}, s{sPos}, {mB}
s_andn2_b32 s{sS2}, s{sPos}, {mA|mB}
s_lshr_b32 s{sT0}, s{sT0}, {NB}
s_lshl_b32 s{sT1}, s{sT1}, {NB}
s_or_b32 s{sS2}, s{sS2}, s{sT0}
s_or_b32 s{sS2}, s{sS2}, s{sT1}''')
else:
    k(f's_mov_b32 s{sS2}, s{sPos}')
def srd_consts(lst):
    for s_,sz in lst: k(f's_mov_b32 s{s_+2}, {sz}\ns_mov_b32 s{s_+3}, 0x20000')
def flag_init():
    k(f'''s_lshl_b32 s{sT0}, s{sWid}, 2
s_add_u32 s{sT0}, s{sT0}, {RF}
v_lshl_add_u32 v{aFw}, v{vL}, 2, {64}
v_add_u32 v{aFw}, {RF}, v{aFw}
v_mov_b32 v{vPh}, 0
v_writelane_b32 v{aFw}, s{sT0}, 0
ds_write_b32 v{aFw}, v{vPh}''')
flag_init()
if OPT['stamps']: k(f's_mov_b32 s{sDg}, 0')
k(f's_cmp_ge_u32 s{sWid}, 4\ns_cbranch_scc1 LSTUB')
def tag_calc():
    k(f'''s_bfe_u32 s{sT0}, s{sNon}, 0x2000d
s_bfe_u32 s{sT1}, s{sNon}, 0x2001d
s_lshl_b32 s{sT0}, 1, s{sT0}
s_lshl_b32 s{sT1}, 1, s{sT1}
s_or_b32 s{sT0}, s{sT0}, s{sT1}
s_ff0_i32_b32 s{sNon}, s{sT0}
s_mul_i32 s{sTag}, s{sNon}, 0x20002000
v_mov_b32 v{vTm}, {TM}''')
sPar=sp.get(); sF0=sp.get(); sRt=sp.get(); sRb=sp.get(); sCb=sp.get(); sX3o=sp.get(); sLq=sp.get(); sB0=sp.get(); sKh=sp.get()
def ffn_roles(isL):
    k(f'''s_and_b32 s{sPar}, s{sS2}, 1
s_bfe_u32 s{sT0}, s{sS2}, 0x40001
s_mul_i32 s{sF0}, s{sT0}, 7
s_mul_i32 s{sT0}, s{sPar}, 3
s_add_u32 s{sF0}, s{sF0}, s{sT0}
s_lshr_b32 s{sT0}, s{sS2}, 5
s_lshl_b32 s{sT0}, s{sT0}, 3
s_lshl_b32 s{sT1}, s{sWave}, 1
s_add_u32 s{sT0}, s{sT0}, s{sT1}
s_add_u32 s{sRt}, s{sT0}, s{sPar}''')
    if isL==SW: k(f's_xor_b32 s{sRt}, s{sRt}, 1')
    if OPT.get('loc'): k(f'''s_bfe_u32 s{sKh}, s{sJ}, 0x10003
s_lshl_b32 s{sT0}, s{sXc}, 1
s_lshr_b32 s{sT1}, s{sJ}, 4
s_add_u32 s{sRb}, s{sT0}, s{sT1}
s_and_b32 s{sCb}, s{sJ}, 7''')
    elif OPT.get('g2'): k(f'''s_and_b32 s{sKh}, s{sXc}, 1
s_lshr_b32 s{sT0}, s{sXc}, 2
s_lshl_b32 s{sT0}, s{sT0}, 3
s_lshr_b32 s{sT1}, s{sJ}, 2
s_add_u32 s{sRb}, s{sT0}, s{sT1}
s_and_b32 s{sT0}, s{sXc}, 2
s_lshl_b32 s{sT0}, s{sT0}, 1
s_and_b32 s{sCb}, s{sJ}, 3
s_add_u32 s{sCb}, s{sCb}, s{sT0}''')
    else: k(f'''s_and_b32 s{sKh}, s{sXc}, 1
s_lshr_b32 s{sT0}, s{sXc}, 1
s_lshl_b32 s{sT0}, s{sT0}, 2
s_lshr_b32 s{sT1}, s{sJ}, 3
s_add_u32 s{sRb}, s{sT0}, s{sT1}
s_and_b32 s{sCb}, s{sJ}, 7''')
def x3_off():
    k(f'''s_mul_i32 s{sX3o}, s{sS2}, {X3S}
s_lshl_b32 s{sT1}, s{sWave}, 11
s_add_u32 s{sX3o}, s{sX3o}, s{sT1}
s_add_u32 s{sX3o}, s{sX3o}, {X3}''')

def wd_addr(vS):
    k(f'''v_lshrrev_b32 v{t0}, 3, v{vL}
v_and_b32 v{t1}, 7, v{vL}
v_and_b32 v{t2}, 1, v{vG}
v_lshlrev_b32 v{t2}, {2 if OPT.get('g32',0) else 1}, v{t2}
v_xor_b32 v{t1}, v{t1}, v{t2}
v_lshlrev_b32 v{t1}, 4, v{t1}
v_lshl_add_u32 v{t0}, v{t0}, 10, v{t1}
s_lshl_b32 s{sT0}, s{sCb}, 7
s_mul_i32 s{sT1}, s{sWave}, {448*1024}
s_add_u32 s{sT0}, s{sT0}, s{sT1}
s_lshl_b32 s{sT1}, s{sKh}, 16
s_add_u32 s{sT0}, s{sT0}, s{sT1}
v_add_u32 v{vS}, s{sT0}, v{t0}
v_xor_b32 v{t0}, {0 if OPT.get('g32',0) else 64}, v{vS}
v_add_u32 v{vS+1}, {7*1024}, v{t0}
v_add_u32 v{vS+2}, {110*1024}, v{vS}
v_add_u32 v{vS+3}, {117*1024}, v{t0}''')
def wd_raddr(vR, sBase):
    if not OPT.get('g32',0): tr_addr(vR, None, sBase)
    else:
        k(f'''v_lshrrev_b32 v{t0}, 5, v{vL}
v_lshlrev_b32 v{t0}, 10, v{t0}
v_bfe_u32 v{t1}, v{vL}, 2, 2
v_lshl_add_u32 v{t0}, v{t1}, 7, v{t0}
v_lshrrev_b32 v{t1}, 1, v{t1}
v_lshl_add_u32 v{t0}, v{t1}, 6, v{t0}
v_and_b32 v{t1}, 1, v{vG}
v_lshl_add_u32 v{t0}, v{t1}, 5, v{t0}
v_and_b32 v{t1}, 3, v{vL}
v_lshl_add_u32 v{t0}, v{t1}, 3, v{t0}
v_add_u32 v{vR}, s{sBase}, v{t0}
v_xor_b32 v{vR+1}, 64, v{vR}
v_add_u32 v{vR+2}, 2048, v{vR}
v_add_u32 v{vR+3}, 2048, v{vR+1}''')
    k(f'v_add_u32 v{vR+4}, s{sBase}, v{vL16}')
def tr_addr(vR, sRot, sBase):
    k(f'''v_and_b32 v{t0}, 1, v{vG}
v_bfe_u32 v{t1}, v{vL}, 3, 1
v_lshl_add_u32 v{t1}, v{t0}, 1, v{t1}
v_bfe_u32 v{t2}, v{vL}, 2, 2
v_lshlrev_b32 v{t0}, 10, v{vG}
v_lshl_add_u32 v{t0}, v{t2}, 7, v{t0}
v_and_b32 v{t2}, 3, v{vL}
v_lshl_add_u32 v{t0}, v{t2}, 3, v{t0}''')
    if sBase is not None: k(f'v_add_u32 v{t0}, s{sBase}, v{t0}')
    for c in range(4):
        if sRot is None: k(f'v_xor_b32 v{t2}, {c}, v{t1}')
        else: k(f's_add_u32 s{sT0}, s{sRot}, {c}\ns_and_b32 s{sT0}, s{sT0}, 3\nv_xor_b32 v{t2}, s{sT0}, v{t1}')
        k(f'v_lshl_add_u32 v{vR+c}, v{t2}, 5, v{t0}')
thc={'n':0}
def throttle(ty='w'):
    th=OPT.get('thr'+ty,OPT['thr'])
    if len(k.vm)>th: k(f's_waitcnt vmcnt({th})')
    thc['n']+=1
    ge=OPT.get('ge'+ty,OPT.get('ge'))
    if ge and thc['n']%ge==0 and flagged['d']: gate(RUN|(0x1c0 if flagged['v']<100 else 0)|0x18000)
    if OPT.get('sl'+ty): k(f"s_sleep {OPT['sl'+ty]}")
rawb=set(); slot={}; freeg=list(range(8)); lastx={}
def take(hi):
    g=freeg.pop(-1 if hi and freeg[-1] not in lastx else 0)
    if g in lastx: k.wait_lg(lastx.pop(g))
    return g
def wd_load(b, vS, raw):
    if raw: rawb.add(b)
    else: slot[b]=take(0); k(f's_add_u32 m0, s{sLq}, {4096*slot[b]}')
    if b<6: k(f's_mov_b32 s{sB0}, {(14*(b&1)+(b>>1))*16*1024}')
    else: k(f's_mul_i32 s{sB0}, s{sKh}, {160*1024}\ns_add_u32 s{sB0}, s{sB0}, {48*1024}')
    for i in range(4):
        if not raw: h=k(f'buffer_load_dwordx4 v{vS+i}, {S(sWd,4)}, s{sB0} offen offset:{i*1024} lds')
        else: h=k(f'buffer_load_dwordx4 {A(b*16+4*i,4)}, v{vS+i}, {S(sWd,4)}, s{sB0} offen offset:{i*1024}')
        throttle()
    return h
def wd_xp(b, vR, hd):
    k.wait_vm(hd)
    if b in rawb: slot[b]=freeg.pop(0)
    off=4096*slot[b]
    if b in rawb:
        for i in range(4): k(f'ds_write_b128 v{vR+4}, {A(b*16+4*i,4)} offset:{off+i*1024}')
    for c in range(4):
        for x in range(2): h=k(f'ds_read_b64_tr_b16 {A((b*4+c)*4+2*x,2)}, v{vR+c} offset:{off+x*512}')
    freeg.append(slot[b]); lastx[slot[b]]=h
    return h

aA,aG,vck,vc2,aB,aT = 12,13,14,15,16,0
aRw=aRr=20; aHo=aPf=22
ACC=24; RING=88
def tagchk(r,ckr):
    return [f'v_xor_b32 v{ckr}, s{sTag}, v{r[0]}']+[f'v_bitop3_b32 v{ckr}, v{ckr}, v{x}, s{sTag} bitop3:0xf6' for x in r[1:]]+\
           [f'v_and_b32 v{ckr}, v{vTm}, v{ckr}', f'v_cmp_ne_u32 vcc, 0, v{ckr}']
def phi7(cls, rt):
    if cls<4: return cls if rt==0 else 3+((cls+1)&3)
    return 4+(cls-4) if rt==0 else cls-4
def gemm_setup(isL):
    NT=4 if isL!=SW else 3
    o={}
    o['sAo']=sAo=sp.get(4,1); o['sHo']=sHo=sp.get(4,1); o['sKq']=sKq=sp.get(); o['sC2']=sC2=sp.get()
    o['s32']=s32=OPT.get('x32' if isL else 'y32',0)
    if not s32:
        tr_addr(aB, sPar, None)
        k(f'''v_bfe_u32 v{t0}, v{vL}, 3, 1
v_mul_u32_u24 v{t0}, {X3S}, v{t0}
v_and_b32 v{t2}, 7, v{vL}
v_lshl_add_u32 v{aA}, v{vG}, 7, v{t0}
v_lshl_add_u32 v{aA}, v{t2}, 4, v{aA}''')
    else:
        k(f'''v_lshrrev_b32 v{t3}, 1, v{vG}
v_and_b32 v{t0}, 1, v{vG}
v_xor_b32 v{t2}, v{t0}, v{t3}
v_bfe_u32 v{t1}, v{vL}, 3, 1
v_lshl_add_u32 v{t1}, v{t2}, 1, v{t1}
v_lshlrev_b32 v{t0}, 15, v{t0}
v_lshl_add_u32 v{t0}, v{t3}, 10, v{t0}
v_bfe_u32 v{t2}, v{vL}, 2, 2
v_lshl_add_u32 v{t0}, v{t2}, 7, v{t0}
v_and_b32 v{t2}, 1, v{vL}
v_lshl_add_u32 v{t0}, v{t2}, 4, v{t0}
v_bfe_u32 v{t2}, v{vL}, 1, 1
v_lshl_add_u32 v{t0}, v{t2}, 3, v{t0}''')
        for c in range(4):
            k(f's_add_u32 s{sT0}, s{sPar}, {c}\ns_and_b32 s{sT0}, s{sT0}, 3\nv_xor_b32 v{t2}, s{sT0}, v{t1}\nv_lshl_add_u32 v{aB+c}, v{t2}, 5, v{t0}')
        k(f'''v_bfe_u32 v{t0}, v{vL}, 3, 2
v_mul_u32_u24 v{t0}, {X3S}, v{t0}
v_and_b32 v{t2}, 7, v{vL}
v_lshl_add_u32 v{aA}, v{t3}, 7, v{t0}
v_lshl_add_u32 v{aA}, v{t2}, 4, v{aA}''')
    k(f'''v_lshrrev_b32 v{t0}, 1, v{vG}
v_mul_u32_u24 v{t0}, {7168-1024}, v{t0}
v_lshl_add_u32 v{t0}, v{vG}, 9, v{t0}
v_lshl_add_u32 v{aG}, v{vLo}, 4, v{t0}
s_mul_i32 s{sT0}, s{sRt}, {4*X3S}''')
    for rh in range(2):
        for kh in range(2): k(f's_add_u32 s{sAo+2*rh+kh}, s{sT0}, {X3+(256*rh if s32 else 2*rh*X3S)+4096*kh}')
    k(f's_mul_i32 s{sT1}, s{sRt}, 112\ns_add_u32 s{sT1}, s{sT1}, s{sF0}')
    for jj in range(NT):
        k(f'''s_add_u32 s{sT0}, s{sPar}, {jj}
s_and_b32 s{sT0}, s{sT0}, 3
s_add_u32 s{sT0}, s{sT0}, s{sT1}
s_lshl_b32 s{sT0}, s{sT0}, 10
s_add_u32 s{sHo+jj}, s{sT0}, {HH}''')
    k(f'''s_mov_b32 s{sKq}, {fb(KQ)}
s_mov_b32 s{sC2}, {fb(CG*CG*2.0**KH)}
v_mov_b32 v{aT}, v{aFw}''')
    return o
def g1_loads(o, tp, nr, base):
    return [f'buffer_load_dwordx4 {V(base+8*(tp%nr)+4*rh,4)}, v{aA}, {S(sWs,4)}, s{o["sAo"]+2*rh+(tp>>3)} offen offset:{(tp&7)*512} sc1' for rh in range(2)]
def gemm1(isL, o, nr, base):
    P='L' if isL else 'F'; NT=4 if isL!=SW else 3; NF=4; PD=3; FR=112
    s32=o['s32']
    if not isL: NF=OPT.get('nfy',4); PD=NF-1; FR=128-4*NF
    fr=[(tp,jj,gu) for tp in range(16) for jj in range(NT) for gu in range(2)] if not s32 else \
       [(tp,jj,gu) for tp in range(16) for gu in range(2) for jj in range(NT)]
    flipped=set()
    def bread(i,x):
        tp,jj,gu=fr[i]
        ar=aB+(jj if s32 else jj^(2*gu))
        if tp>=8 and ar not in flipped: k(f'v_xor_b32 v{ar}, 0x10000, v{ar}'); flipped.add(ar)
        k(f'ds_read_b64_tr_b16 {A(FR+4*(i%NF)+2*x,2)}, v{ar} offset:{gu*(2048 if s32 else 32768)+(tp&7)*4096+x*512}')
    k.label('XSTART')
    iss={'n':OPT.get('xi',2)}
    assert not (OPT.get('ea') and OPT.get('lazy'))
    for tp in range(0 if OPT.get('ea') else iss['n']):
        for l in g1_loads(o,tp,nr,base): k(l)
    def chk_items(tp):
        r=base+8*(tp%nr); name=f'G1{P}{tp}'
        c=[f'v_max_u32 v{vck}, v{r+7}, v{r+3}', f'v_cmp_eq_u32 vcc, -1, v{vck}']
        def br():
            rl=[l for t in range(tp,iss['n']) for l in g1_loads(o,t,nr,base)]
            k(f's_cbranch_vccnz R_{name}'); k.label(f'C_{name}'); retry_block(name, rl, c)
        return c+[br]
    for i in range(PD): bread(i,0); bread(i,1)
    if OPT.get('xj'):
        k.wait_lg()
        for tp in range(iss['n'],OPT['xj']):
            for l in g1_loads(o,tp,nr,base): k(l)
        iss['n']=OPT['xj']
    lazy=OPT.get('lazy',99)
    for x in chk_items(0): x() if callable(x) else k(x)
    stamp('G1got')
    for i,(tp,jj,gu) in enumerate(fr):
        a=ACC+16*jj+8*gu; r=base+8*(tp%nr); j=i%(2*NT)
        if j==0:
            sl=[None]*(2*NT)
            up=min(16,tp+nr,iss['n']+(2 if NT==4 or tp+1>=lazy else 1))
            ll=[l for t in range(iss['n'],up) for l in g1_loads(o,t,nr,base)]; iss['n']=max(iss['n'],up)
            sl[:len(ll)]=ll
            if tp<15 and tp+1<lazy: sl[-3:]=chk_items(tp+1)
            elif tp<15:
                r1=base+8*((tp+1)%nr); sl[-1]=f'v_max3_u32 v{vck}, v{vck}, v{r1+7}, v{r1+3}'
        w=[A(FR+4*(i%NF),4)]
        if j==2*NT-(3 if tp+1<lazy else 1) and tp<15: w.append(V(base+8*((tp+1)%nr),8))
        k.wait_regs(w)
        for rh in range(2):
            if not s32: k(f'v_mfma_f32_16x16x32_bf16 {V(a+4*rh,4)}, {A(FR+4*(i%NF),4)}, {V(r+4*rh,4)}, {"0" if tp==0 else V(a+4*rh,4)}')
            elif rh==0: k(f'v_mfma_f32_32x32x16_bf16 {V(ACC+16*jj,16)}, {A(FR+4*(i%NF),4)}, {V(r+4*gu,4)}, {"0" if tp==0 and gu==0 else V(ACC+16*jj,16)}')
            if i+PD<len(fr): bread(i+PD,rh)
            if rh==0 and sl[j] is not None: sl[j]() if callable(sl[j]) else k(sl[j])
        if j==2*NT-1 and tp in (3,7,11): stamp(f'k{tp+1}')
    if lazy<16:
        k(f'v_cmp_eq_u32 vcc, -1, v{vck}\ns_cbranch_vccnz XR')
        kk=Asm(); kk.label('XR'); kk('s_nop 7')
        for ar in range(aB,aB+4): kk(f'v_and_b32 v{ar}, 0xffff, v{ar}')
        kk(f's_add_u32 s{sCnt}, s{sCnt}, 1000\ns_cmp_gt_u32 s{sCnt}, {SPIN}\ns_cbranch_scc0 XSTART\ns_endpgm')
        tail.append(kk.text())
    stamp('G1done')
YT=104 if SW else ACC+48
def yreg(tp,rh,n=4,off=0):
    f,b=('a',8*tp) if tp<14 else ('v',112+8*(tp-14))
    b+=4*rh+off
    return f'{f}{b}' if n==1 else f'{f}[{b}:{b+n-1}]'
def y_loads(o,tp): return [f'buffer_load_dwordx4 {yreg(tp,rh)}, v{aA}, {S(sWs,4)}, s{o["sAo"]+2*rh+(tp>>3)} offen offset:{(tp&7)*512} sc1' for rh in range(2)]
def y_chk(o,q):
    ll=[l for tp in range(4*q,4*q+4) for l in y_loads(o,tp)]
    c=[]; T=YT
    for i,(tp,rh) in enumerate((tp,rh) for tp in reversed(range(4*q,4*q+4)) for rh in (1,0)):
        r=yreg(tp,rh,1,3)
        c.append(f'v_accvgpr_read_b32 v{T+i}, {r}' if r[0]=='a' else f'v_mov_b32 v{T+i}, {r}')
    c+=[f'v_max3_u32 v{vck}, v{T}, v{T+1}, v{T+2}',f'v_max3_u32 v{vck}, v{vck}, v{T+3}, v{T+4}',f'v_max3_u32 v{vck}, v{vck}, v{T+5}, v{T+6}',
        f'v_max_u32 v{vck}, v{vck}, v{T+7}',f'v_cmp_eq_u32 vcc, -1, v{vck}']
    def br(): k(f's_cbranch_vccnz R_YF{q}'); k.label(f'C_YF{q}'); retry_block(f'YF{q}', ll, c)
    return c+[br]
def y_fill(o, after=None):
    YW=OPT.get('yw',3); YN=OPT.get('yn',10); YV=OPT.get('yv',(YN-1)//4)
    for tp in range(YN):
        for l in y_loads(o,tp):
            k(l)
            if len(k.vm)>YW: k(f's_waitcnt vmcnt({YW})')
        if tp%4==1 and 0<tp//4<=YV:
            for x in y_chk(o,tp//4-1): x() if callable(x) else k(x)
    assert YV*4+2<=YN
    if after: after()
    o['side']={OPT.get('yg',2)*n:[l] for n,l in enumerate(l for tp in range(YN,16) for l in y_loads(o,tp))}
    return list(range(YV,4))
hi_={}
def y_stream(o, fill):
    NF=4; PD=3; FR=112; s32=o['s32']
    def mk(tps,tiles): return [(tp,jj,gu) for tp in tps for jj in tiles for gu in range(2)] if not s32 else [(tp,jj,gu) for tp in tps for gu in range(2) for jj in tiles]
    fr=mk(range(16),(0,1))+mk(range(15,-1,-1),(2,))
    if SW: fr=mk(range(16),(3,0))+mk(range(15,7,-1),(1,2))+mk(range(8),(1,))+mk(range(8),(2,))
    seen=set()
    def bread(i,x):
        tp,jj,gu=fr[i]
        ar=aB+(jj if s32 else jj^(2*gu))
        if hi_.get(ar,0)!=tp>>3: k(f'v_xor_b32 v{ar}, 0x10000, v{ar}'); hi_[ar]=tp>>3
        k(f'ds_read_b64_tr_b16 {A(FR+4*(i%NF)+2*x,2)}, v{ar} offset:{gu*(2048 if s32 else 32768)+(tp&7)*4096+x*512}')
    side=o['side']
    k.label('YSTART')
    for i in range(PD): bread(i,0); bread(i,1)
    def run(a_,b_):
        for i in range(a_,b_):
            tp,jj,gu=fr[i]
            a=ACC+16*jj+8*gu; first=(jj,gu) not in seen; seen.add((jj,gu))
            for rh in range(2):
                if not s32: k(f'v_mfma_f32_16x16x32_bf16 {V(a+4*rh,4)}, {A(FR+4*(i%NF),4)}, {yreg(tp,rh)}, {"0" if first else V(a+4*rh,4)}')
                elif rh==0: k(f'v_mfma_f32_32x32x16_bf16 {V(ACC+16*jj,16)}, {A(FR+4*(i%NF),4)}, {yreg(tp,gu)}, {"0" if first and gu==0 else V(ACC+16*jj,16)}')
                if i+PD<len(fr): bread(i+PD,rh)
                if rh==0:
                    for x in side.get(i,[]): x() if callable(x) else k(x)
    return run
def gelu(o, jj, tmp, out, mid=None):
    a=ACC+16*jj
    old=k.emit; cnt={'n':0}
    def emit(t):
        h=old(t); cnt['n']+=1
        if mid: k.emit=old; mid(cnt['n']); k.emit=emit
        return h
    k.emit=emit
    for r in range(8): k(f'v_fma_f32 v{tmp+r}, v{a+r}, v{a+r}, s{o["sKq"]}')
    for r in range(8): k(f'v_mul_f32 v{tmp+r}, -v{a+r}, v{tmp+r}')
    for r in range(8): k(f'v_exp_f32 v{tmp+r}, v{tmp+r}')
    for r in range(8): k(f'v_mul_f32 v{a+r}, v{a+r}, v{a+8+r}')
    for r in range(8): k(f'v_fma_f32 v{tmp+r}, v{tmp+r}, s{o["sC2"]}, s{o["sC2"]}')
    for r in range(8): k(f'v_rcp_f32 v{tmp+r}, v{tmp+r}')
    for r in range(8): k(f'v_mul_f32 v{a+r}, v{a+r}, v{tmp+r}')
    for r in (0,2,1,3): k(f'v_cvt_pk_bf16_f32 v{out+r}, v{a+2*r}, v{a+2*r+1}')
    for r in (0,2,1,3): k(f'v_bfi_b32 v{out+r}, v{vTm}, s{sTag}, v{out+r}')
    k.emit=old
    if o['s32']: return
    k(f'v_permlane16_swap_b32 v{out}, v{out+2}')
    k(f'v_permlane16_swap_b32 v{out+1}, v{out+3}')
def hh_store(o,jj,out): return k(f'buffer_store_dwordx4 {V(out,4)}, v{vL16}, {S(sWs,4)}, s{o["sHo"]+jj} offen {LS}')
def flag(v,r): return [f'v_mov_b32 v{r}, {v}', f'ds_write_b32 v{aT}, v{r}']
def x_setup(o):
    o['sG2']=sG2=[sp.get() for _ in range(12)]
    if OPT.get('g32',0): k(f'v_lshrrev_b32 v{t1}, 5, v{vL}\nv_and_b32 v{t2}, 31, v{vL}\nv_add_u32 v{aG}, 7168, v{vL16}')
    else: k(f'v_mov_b32 v{t1}, v{vG}\nv_mov_b32 v{t2}, v{vLo}')
    k(f'''v_and_b32 v{t0}, 7, v{vL}
v_xor_b32 v{aRw}, v{t1}, v{t0}
v_lshlrev_b32 v{aRw}, 4, v{aRw}
v_lshl_add_u32 v{aRw}, v{t2}, 8, v{aRw}
s_lshl_b32 s{sT0}, s{sWave}, 13
s_add_u32 s{sT0}, s{sT0}, 0x10000
v_add_u32 v{aRw}, s{sT0}, v{aRw}
v_xor_b32 v{aRw+1}, 64, v{aRw}
v_and_b32 v{aPf}, 7, v{vL}
v_lshlrev_b32 v{aPf}, 2, v{aPf}
v_add_u32 v{aPf}, {RF}, v{aPf}
s_mul_i32 s{sT0}, s{sRb}, 448
s_mul_i32 s{sT1}, s{sWave}, 28
s_add_u32 s{sT0}, s{sT0}, s{sT1}
s_lshl_b32 s{sT1}, s{sKh}, 2
s_add_u32 s{sT0}, s{sT0}, s{sT1}
s_lshl_b32 s{sT0}, s{sT0}, 10
s_mul_i32 s{sT1}, s{sKh}, {112*1024}
s_mul_i32 s{sT2}, s{sKh}, {10*1024}''')
    for z in range(4):
        c=HH+(2*(z&1)+((z>>1)^SW))*112*1024
        k(f's_{"sub" if (z>>1)^SW else "add"}_u32 s{sG2[3*z]}, s{sT0}, s{sT1}')
        k(f's_add_u32 s{sG2[3*z]}, s{sG2[3*z]}, {c}')
        k(f's_add_u32 s{sG2[3*z+1]}, s{sG2[3*z]}, {14*1024}')
        k(f's_add_u32 s{sG2[3*z+2]}, s{sG2[3*z]}, s{sT2}')
def x_tail(o):
    g32=OPT.get('g32',0)
    groups=[(2*jj+hp,z) for jj in range(2) for z in range(2) for hp in range(2)]+[(b,z) for z in range(2) for b in (4,5,6)]+\
           [(6,2),(6,3),(0,2),(1,2),(0,3),(1,3),(2,2),(2,3)]+[(b,z) for z in (2,3) for b in (3,4,5)]
    blocks=[(0,2),(2,2),(4,2),(6,2),(8,3),(11,3),(14,2),(16,2),(18,2),(20,2),(22,3),(25,3)]
    closing={4,5,10,11}
    if OPT.get('p2')==1:
        groups=groups[:14]+[(6,2),(0,2),(1,2),(6,3),(2,2),(0,3),(3,2),(4,2),(5,2),(1,3),(2,3),(3,3),(4,3),(5,3)]
        blocks=blocks[:9]+[(20,3),(23,2),(25,3)]; closing={4,5,9,11}
    if OPT.get('p2')==2:
        groups=groups[:14]+[(6,2),(0,2),(1,2),(2,2),(3,2),(4,2),(5,2),(6,3),(0,3),(1,3),(2,3),(3,3),(4,3),(5,3)]
        blocks=blocks[:8]+[(18,3),(21,2),(23,2),(25,3)]; closing={4,5,8,11}
    if OPT.get('p1')==1:
        groups=[(0,0),(1,0),(0,1),(1,1),(2,0),(3,0),(4,0),(5,0),(6,0),(2,1),(3,1),(4,1),(5,1),(6,1)]+groups[14:]
        blocks=blocks[:3]+[(6,3),(9,2),(11,3)]+blocks[6:]; closing=(closing-{4})|{3}
    GATES={min(closing)-1:116, OPT.get('g2b',7):117}
    LIM=[int(x) for x in str(OPT.get('lim','16.16.16.16.16.28.28.28.28.28.28.28' if not OPT.get('p2') else '15.15.15.15.15.28.28.28.28.28.28.28')).split('.')]
    if SW:
        groups=[(2*jj+hp,z) for jj in range(2) for z in range(2) for hp in range(2)]+[(4,0),(4,1),(5,0),(6,0),(5,1),(6,1)]+\
               [(6,2),(6,3),(0,2),(1,2),(0,3),(1,3),(2,2),(3,2),(2,3),(3,3),(4,2),(5,2),(4,3),(5,3)]
        blocks=[(2*i,2) for i in range(14)]; closing={5,6,12,13}
        GATES={int(a.split('x')[0]):int(a.split('x')[1]) for a in OPT.get('gates','2x112.4x116.7x118.9x119').split('.')}
        lv=[(112,11),(116,16),(118,20),(119,24)]
        LIM=[]
        for bi in range(14):
            have=max([0]+[v for b_,v in GATES.items() if b_<bi])
            LIM.append(min([28]+[g for v,g in lv if v>have]))
    PAIR=[('v',88),('v',96),('v',104),('v',112),('a',112),('a',120),('v',4),('v',120)]; NR=8
    def reg(gi,rh): f,b=PAIR[gi%NR]; return f'{f}[{b+4*rh}:{b+4*rh+3}]'
    def gl(gi):
        b,z=groups[gi]
        so,im=(o['sG2'][3*z+(b&1)],(b>>1)*1024) if b<6 else (o['sG2'][3*z+2],3072)
        if g32: return [f'buffer_load_dwordx4 {reg(gi,m)}, v{(vL16,aG)[m]}, {S(sWs,4)}, s{so} offen offset:{im} sc1' for m in range(2)]
        return [f'buffer_load_dwordx4 {reg(gi,rh)}, v{aG}, {S(sWs,4)}, s{so} offen offset:{im+256*rh} sc1' for rh in range(2)]
    st={'n':0}
    def issue(upto):
        while st['n']<upto:
            for l in gl(st['n']): k(l)
            st['n']+=1
    def chk_items(gi,n=2):
        name=f'G2_{gi}'; c=[]; rr=[]
        for g in reversed(range(gi,gi+n)):
            f,r=PAIR[g%NR]
            for x in (r+7,r+3):
                if f=='a': c.append(f'v_accvgpr_read_b32 v{vc2}, a{x}'); x=vc2
                c.append(f'v_bitop3_b32 v{vck}, v{vck}, v{x}, s{sTag} bitop3:0xf6' if rr else f'v_xor_b32 v{vck}, s{sTag}, v{x}'); rr.append(x)
        c+=[f'v_and_b32 v{vck}, v{vTm}, v{vck}', f'v_cmp_ne_u32 vcc, 0, v{vck}']
        def br():
            rl=[l for g in range(gi,gi+n) for l in gl(g)]
            k(f's_cbranch_vccnz R_{name}'); k.label(f'C_{name}'); retry_block(name, rl, c)
        return c+[br]
    verified=set()
    def verify(gi):
        for x in chk_items(gi): x() if callable(x) else k(x)
        verified.add(gi)
    k(f's_setprio {OPT.get("pe",3)}')
    for x in flag(119,aB): k(x)
    xq=[]; prl=f'buffer_load_dword v{aB+3}, v{aB+2}, {S(sWs,4)}, s{o["sG2"][0]} offen offset:{896+1024*OPT.get("pj",0)} sc1'
    pre=[0,0,OPT.get('x2',0),OPT.get('x3',4)]
    for jj in range(4-SW):
        out=ACC+16*jj+8
        lq_=[]
        def mid(n):
            if 64*jj+n==OPT.get('pi'):
                k(f'''v_bfe_u32 v{aB+2}, v{vL}, 3, 2
v_mul_u32_u24 v{aB+2}, 7168, v{aB+2}
v_lshrrev_b32 v{aB+3}, 5, v{vL}
v_mul_u32_u24 v{aB+3}, {224*1024}, v{aB+3}
v_and_b32 v{vc2}, 0x70, v{vL16}
v_add3_u32 v{aB+2}, v{aB+2}, v{aB+3}, v{vc2}''')
                k(prl)
            if 64*jj+n==OPT.get('pc'): checked('Gp',[prl],tagchk([aB+3],vck))
            p=64*jj+n-OPT.get('x0',999)
            if p>=0 and p%OPT.get('xg',8)==0:
                if not xq and st['n']<OPT.get('xn',8): xq.extend(gl(st['n'])); st['n']+=1
                if xq: k(xq.pop(0))
        gelu(o,jj,120 if jj==0 else ACC+16*(jj-1),out,mid)
        if jj==3-SW:
            while xq: k(xq.pop(0))
        if jj==3 and OPT.get('xv') and st['n']:
            for g in range(0,st['n'],2): verify(g)
        issue(pre[jj])
        hh_store(o,jj,out)
    stamp('epi')
    k(f's_setprio {OPT.get("pg",1)}')
    seq=[int(c) for c in str(OPT.get('chain',48))]
    for n_ in seq[:-1]:
        issue(n_)
        for g in range(0,n_,2):
            if g not in verified: verify(g)
    issue(seq[-1]); stamp('hc')
    def red_write(z):
        q=[]
        W4=[aRw,aB+2,aRw+1,aB+3]
        if z==0 and g32: q+=[f'v_xor_b32 v{aB+2+m}, 32, v{aRw+m}' for m in range(2)]
        if z==2: q+=[f'v_xor_b32 v{r}, 0x10000, v{r}' for r in (W4 if g32 else W4[::2])]
        if g32: q+=[f'ds_write_b128 v{W4[i]}, {V(ACC+32*(z&1)+16*ct+4*i,4)} offset:{32768*(z&1)+ct*128}' for ct in range(2) for i in range(4)]
        elif OPT.get('w64') and z<OPT['w64']:
            for c in range(4):
                for rh in range(2):
                    q.append(f'ds_write_b64 v{aRw+(c&1)}, {V(ACC+32*(z&1)+16*rh+4*c,2)} offset:{32768*(z&1)+rh*4096+(c>>1)*128} ; b128')
                    q.append(f'ds_write_b64 v{aRw+(c&1)}, {V(ACC+32*(z&1)+16*rh+4*c+2,2)} offset:{32768*(z&1)+rh*4096+(c>>1)*128+8}')
        else: q+=[f'ds_write_b128 v{aRw+(c&1)}, {V(ACC+32*(z&1)+16*rh+4*c,4)} offset:{32768*(z&1)+rh*4096+(c>>1)*128}' for c in range(4) for rh in range(2)]
        return [(z,x) for x in q+flag(120+z,aB)]
    started=set(); pend=[]; WS=OPT.get('ws',2 if SW else 3)
    for bi,(g0,n) in enumerate(blocks):
        cl=bi in closing
        upto=min(LIM[bi],g0+NR)
        lq=[l for g in range(st['n'],upto) for l in gl(g)]; st['n']=max(st['n'],upto)
        if OPT.get('nog2'): lq=[]
        lq2=[]
        if not cl and min(LIM[bi],g0+1+NR)>st['n']: lq2=gl(st['n']) if not OPT.get('nog2') else []; st['n']+=1
        cq=chk_items(*blocks[bi+1]) if bi+1<len(blocks) and blocks[bi+1][0] not in verified else []
        assert bi+1==len(blocks) or sum(blocks[bi+1])<=upto
        gq=[]
        if bi in GATES:
            val=GATES[bi]
            def gbr(val=val):
                k(f's_cbranch_vccnz YG{val}r'); k.label(f'YG{val}c')
                kk=Asm(); kk.label(f'YG{val}r')
                kk(f'''ds_read_b32 v{aB+1}, v{aPf}
s_add_u32 s{sSpin}, s{sSpin}, 1
s_cmp_lt_u32 s{sSpin}, {8*SPIN}
s_waitcnt lgkmcnt(0)
s_cbranch_scc0 YG{val}c
v_cmp_gt_u32 vcc, {val}, v{aB+1}
s_cbranch_vccnz YG{val}r
s_branch YG{val}c''')
                tail.append(kk.text())
            gq=[f'ds_read_b32 v{aB+1}, v{aPf}',None,None,None,f'v_cmp_gt_u32 vcc, {val}, v{aB+1}', gbr]
        if bi==OPT.get('pb',99): k(f's_setprio {OPT.get("px",2)}')
        if not g32: seq=[(g0+i,m) for i in range(n) for m in range(8)] if not cl else [(g0+i,m) for m in range(8) for i in range(n)]
        else: seq=[(g0+i,m) for i in range(n) for m in range(8)] if not cl else [(g0+i,4*t+2*ct+e) for ct in range(2) for i in range(n) for t in range(2) for e in range(2)]
        CG_=OPT.get('cg',1); NM=len(seq); c0=NM-max(-(-(len(cq)-1)//CG_)+1,1)
        if OPT.get('nock'): cq=[]
        if cl: wq=red_write(groups[g0][1])
        if cl and OPT.get('nowr'): wq=[(z_,'s_nop 0 ; b128' if 'b128' in x_ else x_) for z_,x_ in wq]
        for p,(gi,m) in enumerate(seq):
            b,z=groups[gi]; c,rh=m>>1,m&1
            while pend and pend[0][0]<=z-2: k(pend.pop(0)[1])
            if not g32:
                a=ACC+32*(z&1)+16*rh+4*c
                k(f'v_mfma_f32_16x16x32_bf16 {V(a,4)}, {A((b*4+c)*4,4)}, {reg(gi,rh)}, {V(a,4) if z in started else "0"}')
            elif rh==0:
                a=ACC+32*(z&1)+16*(c&1)
                k(f'v_mfma_f32_32x32x16_bf16 {V(a,16)}, {A((b*4+c)*4,4)}, {reg(gi,c>>1)}, {V(a,16) if z in started or c>=2 else "0"}')
            if m==7: started.add(z)
            if gq:
                x=gq.pop(0)
                if x: x() if callable(x) else k(x)
            if lq and (p&1==0 or len(lq)>(c0-p)//2): k(lq.pop(0))
            if p>=8 and lq2 and not lq and p&1==0: k(lq2.pop(0))
            if p>=c0:
                for _ in range(CG_):
                    if cq and (len(cq)>1 or p==NM-1):
                        x=cq.pop(0); x() if callable(x) else k(x)
            if pend and 'b128' not in pend[0][1]: k(pend.pop(0)[1])
            elif pend and p%WS==WS-1 and (p>=5 or not g32): k(pend.pop(0)[1])
            if cl and p==0:
                while 'xor' in wq[0][1]: pend.append(wq.pop(0))
            if cl and not g32 and p%n==n-2 and p>=6:
                pend.append(wq.pop(0))
                if 'b64' in wq[0][1] and 'b128' not in wq[0][1]: pend.append(wq.pop(0))
            if cl and g32 and p==4*n+3:
                for _ in range(4): pend.append(wq.pop(0))
        assert not lq and not lq2 and not cq
        if cl:
            pend+=wq
        if not (SW and bi in (0,8)): stamp(f'h{bi}')
        if bi in (3,5,6,8,10): stamp({3:'g4',5:'g8',6:'B1',8:'g11',10:'B2'}[bi])
    stamp('G2done')
    for x in pend: k(x[1])
    stamp('end')
    finish('L')
def y_setup(o):
    o['sEo']=sEo=sp.get(4,1); o['sUp']=sUp=sp.get(2); o['sXp']=sXp=sp.get(2,1); o['sDn']=sDn=sp.get()
    k(f'''v_and_b32 v{t0}, 7, v{vL}
v_lshrrev_b32 v{t1}, 3, v{vL}
v_lshlrev_b32 v{aRr}, 1, v{t0}
v_xor_b32 v{aRr}, v{aRr}, v{t1}
v_lshlrev_b32 v{aRr}, 4, v{aRr}
v_lshl_add_u32 v{aRr}, v{t1}, 8, v{aRr}
s_lshl_b32 s{sT2}, s{sWave}, 11
s_add_u32 s{sT2}, s{sT2}, 0x10000
v_add_u32 v{aRr}, s{sT2}, v{aRr}
v_xor_b32 v{aRr+1}, 16, v{aRr}
v_lshlrev_b32 v{t0}, 4, v{t0}
v_lshl_add_u32 v{aHo}, v{t1}, 10, v{t0}
v_lshl_add_u32 v{aHo+1}, v{t1}, 18, v{t0}
v_and_b32 v{vc2}, 3, v{vL}
v_lshlrev_b32 v{vc2}, 2, v{vc2}
v_add_u32 v{vc2}, {RF+16}, v{vc2}
s_lshl_b32 s{sT0}, s{sCb}, 7
s_lshl_b32 s{sT1}, s{sRb}, 2
s_{"add" if SW else "sub"}_u32 s{sT1}, s{sT1}, s{sKh}
s_add_u32 s{sT1}, s{sT1}, {1-SW}
s_lshl_b32 s{sT1}, s{sT1}, 2
s_add_u32 s{sT1}, s{sT1}, s{sWave}
s_lshl_b32 s{sEo}, s{sT1}, 13
s_add_u32 s{sEo}, s{sEo}, s{sT0}
s_add_u32 s{sEo}, s{sEo}, {HB}
s_add_u32 s{sEo+1}, s{sEo}, 65536
s_lshl_b32 s{sEo+2}, s{sT1}, 10
s_add_u32 s{sEo+2}, s{sEo+2}, s{sT0}
s_add_u32 s{sEo+3}, s{sEo+2}, 8192
s_lshl_b32 s{sUp}, s{sNon}, 29
s_sub_u32 s{sUp}, {fb(2.0**KH)}, s{sUp}
s_mul_i32 s{sDn}, s{sNon}, -64
s_lshl_b32 s{sT0}, s2, 13
s_lshl_b32 s{sT1}, s{sWave}, 11
s_add_u32 s{sT0}, s{sT0}, s{sT1}
s_add_u32 s{sXp}, s{sT0}, {XP}
s_xor_b32 s{sXp+1}, s{sXp}, {8192*64 if OPT.get('loc') else 8192}''')
def y_tail(o):
    sEo,sUp,sXp,sDn=o['sEo'],o['sUp'],o['sXp'],o['sDn']
    HV=88; RV=96; hq=104
    hl=[f'buffer_load_dwordx4 {V(HV+4*i,4)}, v{aHo}, {S(sWs,4)}, s{sEo+i} offen sc1' for i in range(2)]
    run=y_stream(o,o['fill'])
    stamp('G1got')
    if SW: order=[3,0,1,2]; cut=[64+2*OPT.get('ys0',0), 64+2*OPT.get('ys1',8), 112+2*OPT.get('ys2',0), 128]; half=96
    else: order=[0,1,2]; cut=[64+2*OPT.get('ys0',8), 64+2*OPT.get('ys1',8), 96]; half=80
    cur=0; NFR=cut[-1]; assert cut[0]<NFR
    for ji,jj in enumerate(order):
        if cut[ji]>cur:
            k(f's_setprio {OPT.get("pm",2)}')
            if ji and cur<half<cut[ji]:
                run(cur,half); cur=half; o['f116']=1
                for x in flag(116,t0): k(x)
            run(cur,cut[ji]); cur=cut[ji]
            if cur==NFR:
                stamp('G1done')
                for x in flag(117,t0): k(x)
                for l in hl: k(l)
            else: stamp(f'k{4*(ji+1)}')
            k(f's_setprio {OPT.get("py",0)}')
        if ji==0:
            for q in o['fill']:
                c=y_chk(o,q)[:-1]
                for x in c: k(x)
                k(f's_cbranch_vccnz YR{q}')
                kk=Asm(); kk.label(f'YR{q}'); kk('s_waitcnt lgkmcnt(0)\ns_nop 7')
                for tp in range(4*q,4*q+4):
                    for l in y_loads(o,tp): kk(l)
                for ar in range(aB,aB+4): kk(f'v_and_b32 v{ar}, 0xffff, v{ar}')
                kk(f's_waitcnt vmcnt(0)\ns_add_u32 s{sCnt}, s{sCnt}, 1000\ns_cmp_gt_u32 s{sCnt}, {SPIN}\ns_cbranch_scc0 YSTART\ns_endpgm')
                tail.append(kk.text())
        if half<=cur<NFR and not o.get('f116'):
            o['f116']=1
            for x in flag(116,t0): k(x)
        out=ACC+16*jj+8
        gelu(o,jj,YT,out)
        hy=hh_store(o,jj,out)
        if SW and ji==OPT.get('f112',1) and not o.get('f116'):
            for x in flag(112,t0): k(x)
        if ji<len(order)-1: stamp(f'he{ji}')
    stamp('epi')
    if SW:
        for x in flag(118,t0): k(x)
        if not OPT.get('late119'):
            k.wait_vm(hy)
            for x in flag(119,t0): k(x)
    def stage(z):
        p=ACC+32*(z&1)
        k(f's_setprio {OPT.get("psp",0)}')
        k.label(f'Rd{z}')
        k(f'ds_read_b32 v{vck}, v{vc2}')
        spec = z==3 and OPT.get('spec',0)
        rd=[f'ds_read_b128 {V(p+8*pw+4*x,4)}, v{aRr+x} offset:{32768*(z&1)+8192*pw}' for pw in range(4) for x in range(2)]
        if spec:
            for x in rd: k(x)
        bound(f'Rd{z}')
        if OPT.get('ssl'): k(f"s_sleep {OPT['ssl']}")
        k(f'v_cmp_gt_u32 vcc, {120+z}, v{vck}')
        k(f's_cbranch_vccnz Rd{z}'); k.label(f'Rd{z}c')
        k(f's_setprio {OPT.get("pr",0)}')
        if not spec:
            for x in rd: k(x)
        return p
    def add8(d,a,b,packed=False):
        if packed:
            for j in (0,2,4,6): k(f'v_pk_add_f32 {V(d+j,2)}, {V(a+j,2)}, {V(b+j,2)}')
        else:
            for j in range(8): k(f'v_add_f32 v{d+j}, v{a+j}, v{b+j}')
    for z in range(2):
        q=stage(z)
        if z==0: stamp('g4')
        for pw in range(1,4): add8(q,q,q+8*pw)
        for j in range(8): k(f'v_ldexp_f32 v{q+j}, v{q+j}, s{sDn}')
        for j in range(4): k(f'v_cvt_pk_bf16_f32 v{q+j}, v{q+2*j}, v{q+2*j+1}')
        for j in range(4): k(f'v_bfi_b32 v{q+j}, v{vTm}, s{sTag}, v{q+j}')
        if SW and OPT.get('late119')==z+1:
            k.wait_vm(hy)
            for x in flag(119,t0): k(x)
        hs=k(f'buffer_store_dwordx4 {V(q,4)}, v{vL16}, {S(sWs,4)}, s{sXp} offen offset:{1024*z} {LS}')
    stamp('g8')
    k(f'v_xor_b32 v{aRr}, 0x10000, v{aRr}\nv_xor_b32 v{aRr+1}, 0x10000, v{aRr+1}')
    checked('H', hl, tagchk([HV,HV+3,HV+4,HV+7],vck))
    def unpack(d,src):
        for j in range(8):
            k(f'v_lshlrev_b32 v{d+2*j}, 16, v{src+j}')
            k(f'v_and_b32 v{d+2*j+1}, 0xffff0000, v{src+j}')
    unpack(hq,HV)
    if not OPT.get('nxw'): k.wait_vm(hs)
    rl=[f'buffer_load_dwordx4 {V(RV+4*i,4)}, v{vL16}, {S(sWs,4)}, s{sXp+1} offen offset:{1024*i} sc1' for i in range(2)]
    for l in rl: k(l)
    def remote():
        checked('XP', rl, tagchk([RV+7,RV+4,RV+3,RV],vck))
        stamp('g11')
        unpack(ACC,RV); add8(hq,hq,ACC,True); add8(hq+8,hq+8,ACC+8,True)
    def fin(i):
        q=hq+8*i
        for j in (0,2,4,6): k(f'v_pk_mul_f32 {V(q+j,2)}, {V(q+j,2)}, {S(sUp,2)} op_sel_hi:[1,0]')
        for j in range(4): k(f'v_cvt_pk_bf16_f32 v{q+j}, v{q+2*j}, v{q+2*j+1}')
        k(f'buffer_store_dwordx4 {V(q,4)}, v{aHo+1}, {S(sOut,4)}, s{sEo+2+i} offen {OPT.get("of","").replace("_"," ")}')
    ro=OPT.get('ro',1)
    if ro==0: remote()
    p=stage(2)
    for pw in range(4): add8(hq,hq,p+8*pw)
    if ro==1: remote()
    if ro<2: fin(0)
    stamp('G2done')
    p=stage(3)
    for pw in range(4): add8(hq+8,hq+8,p+8*pw,True)
    if ro==2: remote(); fin(0)
    fin(1)
    stamp('end')
    finish('F')
def finish(P):
    if OPT.get('amp','x')[0]==P:
        ra,rb=[r for n,r in stamps[P]]
        k(f'''s_memrealtime s[4:5]
s_waitcnt lgkmcnt(0)
s_sub_u32 s{sT0}, s{rb}, s{ra}
s_mul_i32 s{sT0}, s{sT0}, {OPT.get('ampk',2)}
s_min_u32 s{sT0}, s{sT0}, 100000''')
        k.label('Lamp')
        k(f'''s_memrealtime s[6:7]
s_waitcnt lgkmcnt(0)
s_sub_u32 s{sT1}, s6, s4
s_cmp_lt_u32 s{sT1}, s{sT0}
s_cbranch_scc1 Lamp''')
    if OPT['stamps']:
        k('s_waitcnt vmcnt(0) lgkmcnt(0)')
        k(f'''s_lshl_b32 s{sT0}, s2, 3
s_add_u32 s{sT0}, s{sT0}, s{sWid}
s_lshl_b32 s{sT0}, s{sT0}, 7
s_add_u32 s{sT0}, s{sT0}, {STAMP}''')
        for j,(nm,r) in enumerate(stamps[P]+[('cnt',sCnt),('dg',sDg)]):
            k(f'v_mov_b32 v{40+j}, s{r}')
            k(f'buffer_store_dword v{40+j}, off, {S(sWs,4)}, s{sT0} offset:{4*j}')
    k('s_endpgm')

import copy
sp_common=copy.deepcopy(sp); vm_common=list(k.vm)

vp=Pool(12,127); ap=Pool(112,128)
k(f"s_setprio {OPT.get('pf',3)}")
vL4=vp.get(); sXo=sp.get(2)
k(f'''v_lshlrev_b32 v{vL4}, 2, v{vL}
s_lshl_b32 s{sT0}, s{sWave}, 9
s_add_u32 s{sT0}, s{sT0}, s{sS2}
s_lshl_b32 s{sXo}, s{sT0}, 10
s_add_u32 s{sXo+1}, s{sXo}, 262144''')
srd_consts(((sX,2097152),(sWs,WSZ),(sWd,1792*1024),(sOut,2097152)))
fLo=vp.get(); fG=vp.get(); fP=vp.get()
k(f'''v_cvt_f32_u32 v{fLo}, v{vLo}
v_cvt_f32_u32 v{fG}, v{vG}
v_and_b32 v{t0}, 3, v{vLo}
v_lshrrev_b32 v{t1}, 2, v{vLo}
v_lshl_add_u32 v{t0}, v{t0}, 2, v{t1}
v_cvt_f32_u32 v{fP}, v{t0}''')
def cs(base, step):
    a=vp.get(4); c=vp.get(4)
    k(f'v_add_f32 v{a+1}, v{base}, v{step}\nv_fma_f32 v{a+2}, v{step}, 2.0, v{base}\nv_fma_f32 v{a+3}, v{step}, 2.0, v{a+1}')
    for r in range(4): k(f'v_cos_f32 v{c+r}, v{a+r if r else base}')
    for r in range(4): k(f'v_sin_f32 v{a+r}, v{a+r if r else base}')
    return (c,a)
def mk_matrix(base, step, neg=False):
    c,a=cs(base,step); re=vp.get(4); im=vp.get(4)
    for r in range(4):
        k(f'v_cvt_pk_bf16_f32 v{re+r}, v{c+r}, v{a+r}')
        k(f'v_cvt_pk_bf16_f32 v{im+r}, -v{a+r}, v{c+r}')
    res=[V(re,4),V(im,4),re,im]
    if neg:
        n=ap.get(16,4)
        for r in range(4):
            k(f'v_xor_b32 v{c+r}, 0x80008000, v{re+r}\nv_xor_b32 v{a+r}, 0x80008000, v{im+r}')
        for j,src in enumerate((re,im,c,a)):
            for r in range(4): k(f'v_accvgpr_write_b32 a{n+4*j+r}, v{src+r}')
        res=[A(n+4*j,4) for j in range(4)]
        vp.put(re,4); vp.put(im,4)
    vp.put(a,4); vp.put(c,4)
    return res
C={}
def c_F16():
    k(f'v_mul_f32 v{t0}, {fb(1/16)}, v{fLo}\nv_mul_f32 v{t1}, 4.0, v{t0}\nv_mul_f32 v{t0}, v{t0}, v{fG}')
    C['F16']=mk_matrix(t0,t1)
def c_G():
    k(f'v_mul_f32 v{t1}, {fb(1/16)}, v{fP}\nv_mul_f32 v{t0}, 4.0, v{fG}\nv_mul_f32 v{t0}, v{t0}, v{t1}')
    C['G16']=mk_matrix(t0,t1)
    k(f'v_fma_f32 v{t0}, v{t1}, 0.5, v{t0}')
    C['G32']=mk_matrix(t0,t1)
def c_TW():
    k(f'v_mul_f32 v{t1}, {fb(1/256)}, v{fLo}\nv_mul_f32 v{t0}, 4.0, v{fG}\nv_mul_f32 v{t0}, v{t0}, v{t1}')
    C['TW0']=cs(t0,t1)
    k(f'v_fma_f32 v{t0}, v{t1}, 0.5, v{t0}')
    C['TWA']=cs(t0,t1)
M3=vp.get(2); fS2=vp.get(); aFr=vp.get()
xf=vp.get(16,4); op=vp.get(8,4); D=vp.get(16,4); D2=vp.get(16,4); c4=D
def c_M3():
    k(f'''v_cvt_f32_u32 v{fS2}, s{sS2}
v_lshrrev_b32 v{t0}, 1, v{vLo}
v_and_b32 v{t1}, 1, v{vLo}
v_cvt_f32_u32 v{t0}, v{t0}
v_cvt_f32_u32 v{t1}, v{t1}
v_mul_f32 v{fS2}, {fb(1/2048)}, v{fS2}
v_mul_f32 v{t1}, {fb(0.25)}, v{t1}
v_mul_f32 v{t2}, {fb(0.25)}, v{fG}
v_add_f32 v{t2}, v{t2}, v{fS2}
v_fma_f32 v{t1}, v{t2}, v{t0}, v{t1}
v_mul_f32 v{t0}, {fb(0.125)}, v{t0}
v_add_f32 v{t0}, v{t0}, v{t1}
v_cos_f32 v{c4}, v{t1}
v_sin_f32 v{c4+1}, v{t1}
v_sin_f32 v{c4+3}, v{t0}
v_cos_f32 v{c4+2}, v{t0}
v_sub_f32 v{t0}, v{c4}, v{c4+3}
v_add_f32 v{t2}, v{c4}, v{c4+3}
v_add_f32 v{t1}, v{c4+1}, v{c4+2}
v_sub_f32 v{t3}, v{c4+2}, v{c4+1}
v_mul_f32 v{t0}, {fb(2.0**-KS)}, v{t0}
v_mul_f32 v{t1}, {fb(2.0**-KS)}, v{t1}
v_mul_f32 v{t2}, {fb(2.0**-KS)}, v{t2}
v_mul_f32 v{t3}, {fb(2.0**-KS)}, v{t3}
v_cvt_pk_bf16_f32 v{M3}, v{t0}, v{t1}
v_cvt_pk_bf16_f32 v{M3+1}, v{t2}, v{t3}''')
sX1o=sp.get(); AD={}
def c_addrA():
    vp.put(fP)
    AD['Zw']=aZw=vp.get(); AD['P']=aP=vp.get(); AD['N']=aN=vp.get()
    k(f'''s_mul_i32 s{sT0}, s{sWave}, {513*4}
s_add_u32 s{sT0}, s{sT0}, {R0}
v_add_u32 v{aZw}, s{sT0}, v{vL4}
v_mul_u32_u24 v{t0}, {513*4}, v{vG}
v_lshlrev_b32 v{t1}, 4, v{vLo}
s_lshl_b32 s{sT0}, s{sWave}, 8
s_add_u32 s{sT1}, s{sT0}, {R0+4}
s_sub_u32 s{sT0}, {R0+4*(511-3)}, s{sT0}
v_add3_u32 v{aP}, v{t0}, v{t1}, s{sT1}
v_sub_u32 v{t0}, v{t0}, v{t1}
v_add_u32 v{aN}, s{sT0}, v{t0}
s_mul_i32 s{sX1o}, s{sS2}, {X1S}
s_lshl_b32 s{sT1}, s{sWave}, 11
s_add_u32 s{sX1o}, s{sX1o}, s{sT1}
s_add_u32 s{sX1o}, s{sX1o}, {X1}
v_and_b32 v{aFr}, 12, v{vL4}
v_add_u32 v{aFr}, {RF}, v{aFr}''')
cA=[c_F16,c_TW,c_G,c_M3,c_addrA]
for f in cA[:OPT['early']]: f()
k(f's_mov_b64 {S(sX,2)}, s[4:5]')
stamp('fkarg')
xr=op
for rho in range(2):
    for i in range(4):
        k(f'buffer_load_dword v{xr+4*rho+i}, v{vL4}, {S(sX,4)}, s{sXo+rho} offen offset:{256*i}')
sp.put(sXo,2)
k.barrier()
k(f'''s_load_dword s{sNon}, s[20:21], {NONCE}
s_mov_b64 {S(sWs,2)}, s[20:21]
s_mov_b64 {S(sWd,2)}, s[16:17]
s_mov_b64 {S(sOut,2)}, s[18:19]''')
for f in cA[OPT['early']:]: f()
tag_calc()
stamp('fconst')
F16,G16,G32,TW0,TWA=C['F16'],C['G16'],C['G32'],C['TW0'],C['TWA']
nsync={'n':0}
def fsync(reads):
    nsync['n']+=1; n=[0,2,6,8,12,14][nsync['n']]
    k(f'v_mov_b32 v{vPh}, {n}')
    k(f'ds_write_b32 v{aFw}, v{vPh}')
    k.label(f'Sy{n}')
    k(f'ds_read_b32 v{t3}, v{aFr}')
    for r in reads: k(r)
    bound(f'Sy{n}')
    k(f'v_cmp_gt_u32 vcc, {n}, v{t3}')
    k(f's_cbranch_vccnz Sy{n}'); k.label(f'Sy{n}c')

def hint(n):
    if OPT.get('hint'): k(f'v_mov_b32 v{vPh}, {n}\nds_write_b32 v{aFw}, v{vPh}')
def pk(op_, d, *src, mods=''):
    k(f'{op_} {V(d,2)}, '+', '.join(V(x,2) if isinstance(x,int) else x for x in src)+(' '+mods if mods else ''))
sSt=sp.get(4,2)
def stats(xf, scale, a):
    for rho in range(2):
        pk('v_pk_add_f32', a+4*rho, xf+8*rho, xf+8*rho+2)
        pk('v_pk_mul_f32', a+4*rho+2, xf+8*rho, xf+8*rho)
    for j in (2,4,6):
        for rho in range(2):
            if j>2: pk('v_pk_add_f32', a+4*rho, a+4*rho, xf+8*rho+j)
            pk('v_pk_fma_f32', a+4*rho+2, xf+8*rho+j, xf+8*rho+j, a+4*rho+2)
    for j in (0,4,2,6): k(f'v_add_f32 v{a+j}, v{a+j}, v{a+j+1}')
    k(f'v_permlane32_swap_b32 v{a}, v{a+4}')
    k(f'v_permlane32_swap_b32 v{a+2}, v{a+6}')
    k(f'v_add_f32 v{a}, v{a}, v{a+4}')
    k(f'v_add_f32 v{a+2}, v{a+2}, v{a+6}')
    for m in ('row_ror:8 row_mask:0xf','row_ror:4 row_mask:0xf','row_ror:2 row_mask:0xf','row_ror:1 row_mask:0xf','row_bcast:15 row_mask:0xa'):
        for j in (0,2): k(f'v_add_f32_dpp v{a+j}, v{a+j}, v{a+j} {m} bank_mask:0xf')
    k(f'''v_mul_f32 v{a}, {fb(1/512)}, v{a}
v_mul_f32 v{a+2}, {fb(1/512)}, v{a+2}
v_fma_f32 v{a+2}, -v{a}, v{a}, v{a+2}
v_max_f32 v{a+2}, 0, v{a+2}
v_add_f32 v{a+2}, {fb(1e-5)}, v{a+2}
v_rsq_f32 v{a+2}, v{a+2}''')
    if scale!=1: k(f'v_mul_f32 v{a+2}, {fb(scale)}, v{a+2}')
    k(f'''v_mul_f32 v{a}, -v{a}, v{a+2}
v_readlane_b32 s{sSt}, v{a+2}, 31
v_readlane_b32 s{sSt+1}, v{a}, 31
v_readlane_b32 s{sSt+2}, v{a+2}, 63
v_readlane_b32 s{sSt+3}, v{a}, 63''')
def normalize(xf,n):
    for rho in range(2):
        for j in range(0,8,2):
            pk('v_pk_fma_f32', n+8*rho+j, xf+8*rho+j, S(sSt+2*rho,2), S(sSt+2*rho,2), mods='op_sel:[0,0,1] op_sel_hi:[1,0,1]')
def R4(x): return V(x,4) if isinstance(x,int) else x
def mf32(d,a,b,c='0'): k(f'v_mfma_f32_16x16x32_bf16 {V(d,4)}, {R4(a)}, {R4(b)}, {R4(c)}')
def mf16(d,a,b): k(f'v_mfma_f32_16x16x16_bf16 {V(d,4)}, {V(a,2)}, {V(b,2)}, 0')
tc=vp.get(4)
def cmul_pack(dre,dim,tw,out,conj=True,swap=False):
    c,s_=tw
    ng='neg_lo:[1,0] neg_hi:[1,0]'; ng3='neg_lo:[1,0,0] neg_hi:[1,0,0]'
    for j in (0,2): pk('v_pk_mul_f32', tc+j, dre+j, c+j)
    for j in (0,2): pk('v_pk_mul_f32', dre+j, dre+j, s_+j, mods=ng if conj else '')
    for j in (0,2):
        pk('v_pk_fma_f32', tc+j, dim+j, s_+j, tc+j, mods='' if conj else ng3)
        pk('v_pk_fma_f32', dre+j, dim+j, c+j, dre+j)
    for r in range(4):
        a,b=(dre+r,tc+r) if swap else (tc+r,dre+r)
        k(f'v_cvt_pk_bf16_f32 v{out+r}, v{a}, v{b}')
def settag(r): k(f'v_bfi_b32 v{r}, v{vTm}, s{sTag}, v{r}')

for rho in range(2):
    for i in range(4):
        k(f'v_lshlrev_b32 v{xf+8*rho+i}, 16, v{xr+4*rho+i}')
        k(f'v_and_b32 v{xf+8*rho+4+i}, 0xffff0000, v{xr+4*rho+i}')
stamp('xload')
if 'G1' in OPT['lord']: hint(1)
stats(xf,1,D)
normalize(xf,D2)
for e in range(2):
    for i in range(4): k(f'v_cvt_pk_bf16_f32 v{op+4*e+i}, v{D2+4*e+i}, v{D2+8+4*e+i}')
for e in range(2):
    mf32(D+8*e, op+4*e, F16[0]); mf32(D+8*e+4, op+4*e, F16[1])
for e in range(2):
    cmul_pack(D+8*e, D+8*e+4, (TW0,TWA)[e], op+4*e)
    Gm=(G16,G32)[e]
    mf32(D2+8*e, Gm[0], op+4*e); mf32(D2+8*e+4, Gm[1], op+4*e)
for t in range(2):
    for j in (0,2,4,6): pk('v_pk_add_f32', D+8*t+j, D2+j, D2+8+j, mods='neg_lo:[0,1] neg_hi:[0,1]' if t else '')
    for r in range(4): k(f'v_cvt_pk_bf16_f32 v{op+4*t+r}, v{D+8*t+r}, v{D+8*t+4+r}')
    for nn in (2*t,2*t+1):
        k(f'ds_write2st64_b32 v{AD["Zw"]}, v{op+2*nn}, v{op+2*nn+1} offset0:{2*nn} offset1:{2*nn+1}')
fsync([x for e in range(4) for x in (f'ds_read_b32 v{D2+8+2*e}, v{AD["P"]} offset:{4*e}', f'ds_read_b32 v{D2+8+2*e+1}, v{AD["N"]} offset:{4*(3-e)}')])
stamp('fAbar')
for e in range(4): mf16(D+4*e, M3, D2+8+2*e)
for b0 in range(2):
    o=D2+4*b0
    for e in range(4): k(f'v_cvt_pk_bf16_f32 v{o+e}, v{D+4*e+2*b0}, v{D+4*e+2*b0+1}')
    for e in range(4): settag(o+e)
    hA=k(f'buffer_store_dwordx4 {V(o,4)}, v{vL16}, {S(sWs,4)}, s{sX1o} offen offset:{b0*1024} sc1')
stamp('Adone')
hint(3)
if OPT.get('fs'): k('s_setprio 0')
for r_,n_ in ((G32[2],4),(G32[3],4),(TWA[0],4),(TWA[1],4),(M3,2),(AD['Zw'],1),(AD['P'],1),(AD['N'],1)): vp.put(r_,n_)
sp.put(sX1o)

k(f'''v_fma_f32 v{t3}, v{fLo}, 2.0, 1.0
v_mul_f32 v{t0}, {fb(1/32)}, v{t3}
v_mul_f32 v{t1}, 4.0, v{t0}
v_mul_f32 v{t0}, v{t0}, v{fG}''')
H=mk_matrix(t0,t1,neg=True)
M3i=vp.get(2); u0=D+4; SC=2.0**(KS-21)
k(f'''v_lshrrev_b32 v{t0}, 2, v{vLo}
v_cvt_f32_u32 v{t0}, v{t0}
v_mul_f32 v{u0}, {fb(0.25)}, v{t0}
v_add_f32 v{u0}, v{u0}, v{fS2}
v_bfe_u32 v{t0}, v{vLo}, 1, 1
v_and_b32 v{t1}, 1, v{vLo}
v_cvt_f32_u32 v{t0}, v{t0}
v_cvt_f32_u32 v{t1}, v{t1}
v_fma_f32 v{t0}, v{t0}, 2.0, -1.0
v_mul_f32 v{t0}, {fb(0.25)}, v{t0}
v_mul_f32 v{u0+1}, v{t0}, v{t1}''')
for nn in range(2):
    k(f'''v_fma_f32 v{t1}, v{fG}, 2.0, {"1.0" if nn else "0"}
v_fma_f32 v{t2}, v{u0}, v{t1}, v{u0+1}
v_mul_f32 v{t1}, {fb(0.125)}, v{t1}
v_sub_f32 v{t1}, v{t1}, v{t0}
v_add_f32 v{t1}, v{t1}, v{t2}
v_cos_f32 v{c4}, v{t2}
v_sin_f32 v{c4+1}, v{t2}
v_cos_f32 v{c4+2}, v{t1}
v_sin_f32 v{c4+3}, v{t1}
v_add_f32 v{t1}, v{c4}, v{c4+2}
v_add_f32 v{t2}, v{c4+1}, v{c4+3}
v_mul_f32 v{t1}, {fb(SC)}, v{t1}
v_mul_f32 v{t2}, {fb(-SC)}, v{t2}
v_cvt_pk_bf16_f32 v{M3i+nn}, v{t1}, v{t2}''')
vp.put(fS2)
Wf=[vp.get(4) for _ in range(4)]
aF=vp.get(); aBin=vp.get(); aBw=vp.get(); aBr=vp.get(); sBo=sp.get(2,1); aOw=vp.get(); aOr=vp.get(); sX2o=sp.get()
k(f'''s_lshl_b32 s{sT0}, s{sWave}, 2
s_add_u32 s{sT0}, s{sT0}, {R2}
v_add_u32 v{aF}, s{sT0}, v{vL16}
s_mul_i32 s{sX2o}, s2, {X2S}
s_lshl_b32 s{sT1}, s{sWave}, 11
s_add_u32 s{sX2o}, s{sX2o}, s{sT1}
s_add_u32 s{sX2o}, s{sX2o}, {X2}
v_lshrrev_b32 v{t1}, 1, v{vL}
v_and_b32 v{t2}, 1, v{vL}
v_mul_u32_u24 v{aBin}, {X1S}, v{t1}
v_lshl_add_u32 v{aBin}, v{t2}, 4, v{aBin}
v_mul_u32_u24 v{aBw}, 4160, v{t2}
v_lshl_add_u32 v{aBw}, v{t1}, 3, v{aBw}
s_lshl_b32 s{sT0}, s{sWave}, 8
s_add_u32 s{sT0}, s{sT0}, {R1}
v_add_u32 v{aBw}, s{sT0}, v{aBw}
s_lshl_b32 s{sT0}, s{sWave}, 11
s_lshr_b32 s{sT1}, s{sWave}, 1
s_lshl_b32 s{sT1}, s{sT1}, 6
s_add_u32 s{sT0}, s{sT0}, s{sT1}
s_add_u32 s{sT0}, s{sT0}, {R1}
v_lshl_add_u32 v{aBr}, v{vL}, 3, s{sT0}
s_lshr_b32 s{sT0}, s{sJ}, 3
s_lshl_b32 s{sT0}, s{sT0}, 11
s_and_b32 s{sT1}, s{sXc}, 1
s_lshl_b32 s{sT1}, s{sT1}, 10
s_add_u32 s{sT0}, s{sT0}, s{sT1}
s_lshr_b32 s{sT1}, s{sXc}, 1
s_lshl_b32 s{sT1}, s{sT1}, 8
s_add_u32 s{sT0}, s{sT0}, s{sT1}
s_and_b32 s{sT1}, s{sJ}, 7
s_lshl_b32 s{sT1}, s{sT1}, 5
s_add_u32 s{sT0}, s{sT0}, s{sT1}
s_and_b32 s{sT1}, s{sWave}, 1
s_lshr_b32 s{sT2}, s{sWave}, 1
s_lshl_b32 s{sT2}, s{sT2}, 2
s_add_u32 s{sT1}, s{sT1}, s{sT2}
s_mul_i32 s{sT1}, s{sT1}, {32*X1S}
s_add_u32 s{sT0}, s{sT0}, s{sT1}''')
for i in range(2): k(f's_add_u32 s{sBo+i}, s{sT0}, {X1+64*i*X1S}')
assert all(swapbits(64*r)&4==0 for r in range(4))
if NB:
    k(f'''v_and_b32 v{t1}, {mA}, v{vL}
v_and_b32 v{t2}, {mB}, v{vL}
v_and_b32 v{t0}, {255&~(mA|mB)}, v{vL}
v_lshrrev_b32 v{t1}, {NB}, v{t1}
v_lshlrev_b32 v{t2}, {NB}, v{t2}
v_or3_b32 v{t0}, v{t0}, v{t1}, v{t2}''')
else: k(f'v_mov_b32 v{t0}, v{vL}')
k(f'''s_lshl_b32 s{sT0}, s{sWave}, 3
s_add_u32 s{sT0}, s{sT0}, {R0}
v_and_b32 v{t1}, 4, v{t0}
v_lshlrev_b32 v{t1}, 2, v{t1}
v_lshl_add_u32 v{t0}, v{t0}, 5, s{sT0}
v_xor_b32 v{aOw}, v{t0}, v{t1}
v_bfe_u32 v{t0}, v{vL}, 3, 1
v_xor_b32 v{t0}, v{t0}, v{vL}
s_lshl_b32 s{sT0}, s{sWave}, 11
s_add_u32 s{sT0}, s{sT0}, {R0}
v_lshl_add_u32 v{aOr}, v{t0}, 4, s{sT0}''')
ffn_roles(0); x3_off()
stamp('fS1')
if OPT.get('h4'): hint(4)
if not OPT.get('na'): k.wait_vm(hA)
if OPT.get('zb'):
    k.label('Zb'); k(f'ds_read_b32 v{t3}, v{aFr} offset:16'); bound('Zb'); k(f'v_cmp_gt_u32 vcc, {OPT["zb"]}, v{t3}\ns_cbranch_vccnz Zb'); k.label('Zbc')
if not OPT.get('h4'): hint(4)
if OPT.get('dB'): k(f"s_sleep {OPT['dB']}")

ld=D; ck=t0
loads=[f'buffer_load_dwordx4 {V(ld+4*i,4)}, v{aBin}, {S(sWs,4)}, s{sBo+i} offen sc1' for i in range(2)]
stamp('Bpoll')
for l in loads: k(l)
hint(5)
if OPT.get('fs'): k('s_setprio 3')
chk=[]
for nn in range(2):
    chk+=[f'v_xor_b32 v{op+2*e+nn}, s{sTag}, v{ld+4*nn+e}' for e in range(4)]
    if nn==0: chk+=[f'v_or3_b32 v{ck}, v{op}, v{op+2}, v{op+4}']
chk+=[f'v_or3_b32 v{ck+1}, v{op+6}, v{op+1}, v{op+3}', f'v_or3_b32 v{ck}, v{ck}, v{op+5}, v{op+7}',
      f'v_bitop3_b32 v{ck}, v{ck}, v{ck+1}, v{vTm} bitop3:0xa8', f'v_cmp_ne_u32 vcc, 0, v{ck}']
checked('B', loads, chk)
stamp('Bgot')
for e in range(4): k(f'ds_write_b64 v{aBw}, {V(op+2*e,2)} offset:{1024*e}')
fsync([f'ds_read_b64 {V(D2+4*e+2*ih,2)}, v{aBr} offset:{1024*e+512*ih}' for e in range(2) for ih in range(2)])
wrd=[f'ds_read_b32 v{t3}, v{aFr} offset:16']+[f'ds_read_b32 v{Wf[2+m]+r}, v{aF} offset:{4096*m+1024*r}' for m in range(2) for r in range(4)]
for e in range(2):
    mf32(D+8*e, D2+4*e, F16[0]); mf32(D+8*e+4, D2+4*e, F16[1])
stamp('fB0')
wq=list(wrd)
for x in wq[:5]: k(x)
cmul_pack(D, D+4, TW0, op)
for x in wq[5:7]: k(x)
mf32(D2, G16[0], op); mf32(D2+4, G16[1], op)
for x in wq[7:]: k(x)
cmul_pack(D+8, D+12, TW0, op+4)
k(f'v_cmp_gt_u32 vcc, 6, v{t3}')
k(f'v_and_b32 v{aFr}, 28, v{vL4}')
mf32(D2+8, G16[0], op+4); mf32(D2+12, G16[1], op+4)
k('s_cbranch_vccnz WSr'); k.label('WSc')
kk=Asm(); kk.label('WSr')
kk(f'v_and_b32 v{t2}, 12, v{vL4}\nv_add_u32 v{t2}, {RF}, v{t2}')
kk.label('WSl')
kk(wrd[0].replace(f'v{aFr} ',f'v{t2} '))
for x in wrd[1:]: kk(x)
kk(f'''s_add_u32 s{sSpin}, s{sSpin}, 1
s_cmp_lt_u32 s{sSpin}, {8*SPIN}
s_waitcnt lgkmcnt(0)
s_cbranch_scc0 WSc
v_cmp_gt_u32 vcc, 6, v{t3}
s_cbranch_vccnz WSl
s_branch WSc''')
tail.insert(0,kk.text())
for m in range(2):
    for r in range(4): k(f'v_lshlrev_b32 v{Wf[m]+r}, 16, v{Wf[2+m]+r}')
for e in range(2):
    cmul_pack(D2+8*e, D2+8*e+4, (Wf[2*e], Wf[2*e+1]), op+4*e, conj=False, swap=True)
    if e==0:
        for r in range(2): k(f'v_and_b32 v{Wf[2]+r}, 0xffff0000, v{Wf[2]+r}')
    else: k(f'v_add_u32 v{aFr}, {RF}, v{aFr}')
    mf32(D+8*e, op+4*e, F16[0]); mf32(D+8*e+4, op+4*e, F16[1])
    if e==0:
        for r in (Wf[2]+2,Wf[2]+3,Wf[3],Wf[3]+1,Wf[3]+2,Wf[3]+3): k(f'v_and_b32 v{r}, 0xffff0000, v{r}')
hint(7)
for e in range(2):
    cmul_pack(D+8*e, D+8*e+4, TW0, op+4*e)
    mf32(D2+8*e, G16[0], op+4*e); mf32(D2+8*e+4, G16[1], op+4*e)
for r in range(4): k(f'v_cvt_pk_bf16_f32 v{D+2*r}, v{D2+4+r}, v{D2+r}')
for r in range(4): settag(D+2*r)
for r in range(4):
    k(f'v_cvt_pk_bf16_f32 v{D+2*r+1}, v{D2+12+r}, v{D2+8+r}')
    settag(D+2*r+1)
    k(f'ds_write_b64 v{aOw}, {V(D+2*r,2)} offset:{swapbits(64*r)*32}')
stamp('fB1')
fsync([f'ds_read_b128 {V(D+8+4*i,4)}, v{aOr} offset:{1024*i}' for i in range(2)])
stamp('fB2')
for i in range(2): hB=k(f'buffer_store_dwordx4 {V(D+8+4*i,4)}, v{vL16}, {S(sWs,4)}, s{sX2o} offen offset:{1024*i} sc1')
stamp('Bdone')
hint(9)
if OPT.get('fs'): k('s_setprio 0')
for r_,n_ in [(w_,4) for w_ in Wf]+[(aBin,1),(aBw,1),(aBr,1),(aOw,1),(aOr,1),(aF,1)]: vp.put(r_,n_)
sp.put(sBo,2); sp.put(sX2o)
k(f'v_fma_f32 v{t3}, v{fLo}, 2.0, 1.0\nv_mul_f32 v{t1}, {fb(1/512)}, v{t3}\nv_mul_f32 v{t0}, 4.0, v{fG}\nv_mul_f32 v{t0}, v{t0}, v{t1}')
TWC=cs(t0,t1)
nyq=vp.get(2); aCin=vp.get(); aCp=vp.get(); aCn=vp.get(); aCr=vp.get(2,1); sCo=sp.get(2,1)
aLw=vp.get(2,1); aLr=vp.get(); aHw=vp.get(); aHr=vp.get(); sHb=sp.get()
CB=R1+16; CS=2064
k(f'''v_and_b32 v{t0}, 0xcf, v0
v_mov_b32 v{t1}, 0.5
v_cmp_eq_u32 vcc, 0xcf, v{t0}
v_lshrrev_b32 v{t0}, 1, v{vLo}
v_lshlrev_b32 v{t0}, 2, v{t0}
v_cndmask_b32 v{nyq}, 1.0, v{t1}, vcc
v_cndmask_b32 v{nyq+1}, 0, v{t1}, vcc
v_add_u32 v{t0}, v{t0}, v{vG}
v_mul_u32_u24 v{t0}, {2*X2S}, v{t0}
v_and_b32 v{t1}, 1, v{vLo}
v_lshl_add_u32 v{aCin}, v{t1}, 4, v{t0}
s_mul_i32 s{sT0}, s{sWave}, {64*X2S}
s_lshl_b32 s{sT1}, s{sPos}, 5
s_add_u32 s{sT0}, s{sT0}, s{sT1}
s_add_u32 s{sCo}, s{sT0}, {X2}
s_add_u32 s{sCo+1}, s{sT0}, {X2+X2S}
v_mul_u32_u24 v{t0}, {CS}, v{vG}
v_lshlrev_b32 v{t1}, 4, v{vLo}
s_lshl_b32 s{sT0}, s{sWave}, 8
s_add_u32 s{sT1}, s{sT0}, {CB}
s_sub_u32 s{sT0}, {CB+1024+4*252}, s{sT0}
v_add3_u32 v{aCp}, v{t0}, v{t1}, s{sT1}
v_sub_u32 v{t0}, v{t0}, v{t1}
v_add_u32 v{aCn}, s{sT0}, v{t0}
s_mul_i32 s{sT0}, s{sWave}, {CS}
s_add_u32 s{sT0}, s{sT0}, {CB-4}
v_add_u32 v{aCr}, s{sT0}, v{vL4}
v_add_u32 v{aCr+1}, {1028}, v{aCr}
v_mov_b32 v{t0}, s{sT0}
v_mov_b32 v{t1}, 0
ds_write_b32 v{t0}, v{t1}
v_and_b32 v{t0}, 7, v{vL}
s_lshl_b32 s{sT0}, s{sWave}, 1
v_xor_b32 v{t0}, s{sT0}, v{t0}
v_lshlrev_b32 v{t0}, 4, v{t0}
v_lshl_add_u32 v{t0}, v{vL}, 7, v{t0}
v_add_u32 v{aLw}, {R0}, v{t0}
v_xor_b32 v{aLw+1}, 16, v{aLw}
v_lshrrev_b32 v{t0}, 3, v{vL}
v_xor_b32 v{t0}, v{t0}, v{vL}
s_lshl_b32 s{sT0}, s{sWave}, 11
s_add_u32 s{sT1}, s{sT0}, {R0}
v_lshl_add_u32 v{aLr}, v{t0}, 4, s{sT1}
s_add_u32 s{sT1}, s{sT0}, {RH}
v_add_u32 v{aHw}, s{sT1}, v{vL4}
v_add_u32 v{aHr}, s{sT1}, v{vL16}
s_lshl_b32 s{sHb}, s{sS2}, 13
s_add_u32 s{sHb}, s{sHb}, s{sT0}
s_add_u32 s{sHb}, s{sHb}, {HB}''')
stamp('fS3')
if OPT.get('h10'): hint(10)
k.wait_vm(hB)
if 'Z' in OPT.get('seq',''):
    k(f'v_or_b32 v{t2}, 16, v{aFr}')
    k.label('Zw'); k(f'ds_read_b32 v{t3}, v{t2}'); bound('Zw'); k(f'v_cmp_gt_u32 vcc, 101, v{t3}\ns_cbranch_vccnz Zw' if not OPT.get('zany') else f'v_cmp_le_u32 vcc, 101, v{t3}\ns_cbranch_vccz Zw'); k.label('Zwc')
elif not OPT.get('h10'):
    if OPT.get('dC0'): k(f"s_sleep {OPT['dC0']}")
    hint(10)
if OPT.get('dC'): k(f"s_sleep {OPT['dC']}")

loads=[f'buffer_load_dwordx4 {V(ld+4*i,4)}, v{aCin}, {S(sWs,4)}, s{sCo+i} offen sc1' for i in range(2)]
stamp('Cpoll')
for l in loads: k(l)
hint(11)
if OPT.get('fs'): k('s_setprio 3')
checked('C', loads, chk)
stamp('Cgot')
for e in (3,0,1,2): mf16(D+4*e, M3i, op+2*e)
pk('v_pk_mul_f32', D+14, D+14, nyq, mods='op_sel:[0,0] op_sel_hi:[1,0]')
pk('v_pk_fma_f32', D+14, D+12, nyq, D+14, mods='op_sel:[0,1,0] op_sel_hi:[1,1,1]')
for e in (3,0,1,2): k(f'v_cvt_pk_bf16_f32 v{D2+e}, v{D+4*e+1}, v{D+4*e}')
k(f'ds_write_b128 v{aCp}, {V(D2,4)}')
for e in (3,0,1,2): k(f'v_cvt_pk_bf16_f32 v{D2+4+3-e}, v{D+4*e+3}, v{D+4*e+2}')
k(f'ds_write_b128 v{aCn}, {V(D2+4,4)}')
fsync([f'ds_read2st64_b32 {V(op+4*t+2*nn,2)}, v{aCr+t} offset0:{2*nn} offset1:{2*nn+1}' for t in range(2) for nn in range(2)])
for e in range(2):
    for c in range(2): mf32(D+8*e+4*c, op, (F16,H)[e][c])
    for c in range(2): mf32(D+8*e+4*c, op+4, (F16[c],H[2+c])[e], D+8*e+4*c)
for e in range(2):
    cmul_pack(D+8*e, D+8*e+4, (TW0,TWC)[e], D2+4*e)
    mf32(xf+4*e, G16[1], D2+4*e, xf+4*e)
    mf32(xf+8+4*e, G16[0], D2+4*e, xf+8+4*e)
hint(13)
stats(xf,CG,D)
normalize(xf,D2)
for rho in range(2):
    for i in range(4): k(f'v_cvt_pk_bf16_f32 v{op+4*rho+i}, v{D2+8*rho+i}, v{D2+8*rho+4+i}')
    k(f'ds_write_b128 v{aLw+rho}, {V(op+4*rho,4)}')
fsync([f'ds_read_b128 {V(D+4*i,4)}, v{aLr} offset:{1024*i}' for i in range(2)])
for i in range(2): hC=k(f'buffer_store_dwordx4 {V(D+4*i,4)}, v{vL16}, {S(sWs,4)}, s{sX3o} offen offset:{1024*i} {LS}')
stamp('Cdone')
hint(15)
if OPT.get('fs'): k('s_setprio 0')
k(f's_mov_b32 s{sSt}, {fb(2.0**-KH)}')
for j in range(0,16,2): pk('v_pk_mul_f32', xf+j, xf+j, S(sSt,2), mods='op_sel_hi:[1,0]')
for rho in range(2):
    for i in range(4): k(f'v_cvt_pk_bf16_f32 v{D2+4*rho+i}, v{xf+8*rho+i}, v{xf+8*rho+4+i}')
    for i in range(4): settag(D2+4*rho+i)
    for nn in range(2): k(f'ds_write2st64_b32 v{aHw}, v{D2+4*rho+2*nn}, v{D2+4*rho+2*nn+1} offset0:{4*rho+2*nn} offset1:{4*rho+2*nn+1}')
k(f'v_mov_b32 v{t0}, v{aHr}')
for i in range(2): k(f'ds_read_b128 {V(RING+4*i,4)}, v{t0} offset:{1024*i}')
k.wait_lg()
sp.put(sCo,2); sp.put(sSt,4)
k(f'''s_or_b32 s{sT0}, s2, s{sWave}
s_cmp_lg_u32 s{sT0}, 0
s_cbranch_scc1 Lnon
v_mov_b32 v{t1}, s{sTag}
s_mov_b32 s{sT0}, {NONCE}''')
k.raw(f'    buffer_store_dword v{t1}, off, {S(sWs,4)}, s{sT0} sc1')
k.label('Lnon')

if OPT.get('ea')==2: k.wait_vm(hC); hint(16)
oF=gemm_setup(0); y_setup(oF)
k.wait_vm(hC)
if OPT.get('ea')==1: hint(16)
if OPT.get('dG'): k(f"s_sleep {OPT['dG']}")
k.barrier()
stamp('Gbar')
k('s_setprio 1')
def h_store():
    for i in range(2): k(f'buffer_store_dwordx4 {V(RING+4*i,4)}, v{vL16}, {S(sWs,4)}, s{sHb} offen offset:{1024*i} {LS}')
    if OPT.get('xpw'):
        for j in range(4): k(f'v_mov_b32 v{ACC+j}, -1')
        for i in range(2): k(f'buffer_store_dwordx4 {V(ACC,4)}, v{vL16}, {S(sWs,4)}, s{oF["sXp"]} offen offset:{1024*i} sc1')
if OPT.get('hp',0)==0: h_store(); k('s_waitcnt vmcnt(0)')
oF['fill']=y_fill(oF, h_store if OPT.get('hp',0) else None)
stamp('wdone')
y_tail(oF)
nF=k.count

path['p']='L'; sp.free=list(sp_common.free)
k.hist=[]; k.vm=vm_common; k.lg=[]
mark=len(k.out)
k.label('LSTUB')
k(f'''s_mov_b32 s{sX+2}, 1052672
s_mov_b32 s{sX+3}, 0x20000
v_min_u32 v{t0}, 8, v{vLo}
v_lshlrev_b32 v{t0}, 6, v{t0}
v_mul_u32_u24 v{t1}, 4112, v{vG}
v_add_u32 v{t0}, v{t0}, v{t1}
s_lshl_b32 s{sT0}, s{sJ}, 1
s_and_b32 s{sT1}, s{sWave}, 1
s_add_u32 s{sT0}, s{sT0}, s{sT1}
s_lshl_b32 s{sT0}, s{sT0}, 5
s_add_u32 s{sT0}, s{sT0}, s{sXc}
s_mul_i32 s{sT0}, s{sT0}, 514
s_cmp_lt_u32 s{sWave}, 2
s_waitcnt lgkmcnt(0)
s_cselect_b64 {S(sX,2)}, s[6:7], s[8:9]''')
if not OPT.get('fe'): k('s_barrier')
hF=k(f'buffer_load_ushort v33, v{t0}, {S(sX,4)}, s{sT0} offen')
if OPT.get('fe'): k('s_barrier')
k('s_branch LPATH')
stub='\n'.join(k.out[mark:]); del k.out[mark:]
k.label('LPATH')
vdum=32; vS=40; vR=64; vB=48; aF=52; vSent=56
sFw=sp.get(2,1); sWr=sp.get(4,4); sWi=sp.get(4,4)
k(f'''s_load_dword s{sNon}, s[20:21], {NONCE}
s_mov_b64 {S(sWs,2)}, s[20:21]
s_mov_b64 {S(sWr,2)}, s[6:7]
s_mov_b64 {S(sWi,2)}, s[8:9]
s_mov_b64 {S(sWd,2)}, s[16:17]
s_mov_b64 {S(sOut,2)}, s[18:19]
s_bitcmp0_b32 s{sWave}, 0
s_cselect_b64 {S(sW1,2)}, s[12:13], s[14:15]''')
stamp('fkarg')
def l_pre():
    k(f'''s_cmp_lt_u32 s{sWave}, 2
s_cselect_b64 {S(sX,2)}, {S(sW1,2)}, {S(sWd,2)}
s_cmp_eq_u32 s{sWave}, 3
s_cselect_b32 s{sX+2}, 0, {512*3584}
s_mov_b32 s{sX+3}, 0x20000
v_min_u32 v{t0}, 55, v{vL}
v_lshlrev_b32 v{t0}, 7, v{t0}
s_mul_i32 s{sT0}, s2, {56*128}''')
    return k(f'buffer_load_dword v{vdum+2}, v{t0}, {S(sX,4)}, s{sT0} offen')
def l_p1():
    k(f'''s_mov_b32 s{sWd+2}, {1792*1024}
s_mov_b32 s{sWd+3}, 0x20000
s_lshl_b32 s{sT0}, s2, 2
s_add_u32 s{sT0}, s{sT0}, s{sWave}
s_mul_i32 s{sT0}, s{sT0}, {14*128}
v_min_u32 v{t0}, 13, v{vL}
v_lshlrev_b32 v{t0}, 7, v{t0}''')
    return k(f'buffer_load_dword v{vdum+2}, v{t0}, {S(sWd,4)}, s{sT0} offen')
def l_p2():
    k(f'''s_lshl_b32 s{sT0}, s2, 1
s_lshr_b32 s{sT1}, s{sWave}, 1
s_add_u32 s{sT0}, s{sT0}, s{sT1}
s_mul_i32 s{sT0}, s{sT0}, {28*128}
v_min_u32 v{t0}, 27, v{vL}
v_lshlrev_b32 v{t0}, 7, v{t0}''')
    return k(f'buffer_load_dword v{vdum+3}, v{t0}, {S(sW1,4)}, s{sT0} offen')
def l_bpre():
    assert NB==2
    k(f'''s_lshl_b32 s{sT0}, s{sJ}, 1
s_lshr_b32 s{sT1}, s{sWave}, 1
s_add_u32 s{sT0}, s{sT0}, s{sT1}
s_mul_i32 s{sT0}, s{sT0}, {8*3584}
s_and_b32 s{sT1}, s{sXc}, 3
s_mul_i32 s{sT1}, s{sT1}, 896
s_add_u32 s{sT0}, s{sT0}, s{sT1}
v_and_b32 v{t0}, 7, v{vL}
v_min_u32 v{t0}, 6, v{t0}
v_lshrrev_b32 v{t1}, 3, v{vL}
v_mul_u32_u24 v{t1}, 3584, v{t1}
v_lshl_add_u32 v{t0}, v{t0}, 7, v{t1}''')
    return k(f'buffer_load_dword v{vdum+4}, v{t0}, {S(sW1,4)}, s{sT0} offen')
def l_sent():
    for i in range(2): h=k(f'buffer_store_dwordx4 {V(vSent,4)}, v{vL16}, {S(sWs,4)}, s{sX3o} offen offset:{1024*i} {LS}')
    return h
def l_gath(ms=(0,1)):
    for m in ms:
        k(f's_add_u32 m0, s{sFw+1}, {R2+4096*m}')
        h=k(f'buffer_load_dwordx4 v{aF}, {S((sWr,sWi)[m],4)}, s{sFw} offen lds')
    return h
def l_setup():
    srd_consts(((sWs,WSZ),(sWd,1792*1024),(sOut,2097152),(sW1,512*3584),(sWr,1052672),(sWi,1052672)))
    ffn_roles(1); x3_off()
    k(f'''v_and_b32 v{t0}, 255, v0
v_mul_u32_u24 v{aF}, 4112, v{t0}
s_mul_i32 s{sT0}, s{sXc}, 514
s_lshl_b32 s{sT1}, s{sJ}, 4
s_add_u32 s{sT0}, s{sT0}, s{sT1}
s_add_u32 s{sFw}, s{sT0}, 2
s_lshl_b32 s{sFw+1}, s{sWave}, 10
s_lshl_b32 s{sLq}, s{sWave}, 15''')
    for i in range(4): k(f'v_mov_b32 v{vSent+i}, -1')
    wd_addr(vS); wd_raddr(vR,sLq)
    k(f'''v_bfe_u32 v{t1}, v{vL}, 3, 1
v_lshl_add_u32 v{t1}, v{vG}, 7, v{t1}
v_mul_u32_u24 v{t1}, 3584, v{t1}
v_and_b32 v{t0}, 1, v{vG}
v_lshlrev_b32 v{t0}, 1, v{t0}
v_and_b32 v{t2}, 7, v{vL}
v_xor_b32 v{t0}, v{t0}, v{t2}
s_and_b32 s{sT0}, s{sWave}, 1
s_lshl_b32 s{sT0}, s{sT0}, 2
v_xor_b32 v{t0}, s{sT0}, v{t0}
v_xor_b32 v{t2}, 4, v{t0}
s_lshr_b32 s{sT0}, s{sWave}, 1
s_mul_i32 s{sT1}, s{sT0}, {32*7168}
s_lshl_b32 s{sT0}, s{sF0}, 5
s_add_u32 s{sT0}, s{sT0}, s{sT1}
v_add_u32 v{t1}, s{sT0}, v{t1}
v_lshl_add_u32 v{vB}, v{t0}, 4, v{t1}
v_lshl_add_u32 v{t2}, v{t2}, 4, v{t1}
v_add_u32 v{vB+1}, {6144}, v{t2}
v_add_u32 v{vB+2}, {2*6144}, v{vB}
v_add_u32 v{vB+3}, {3*6144}, v{t2}''')
    tag_calc()
    k(f"s_setprio {OPT.get('pl',0)}")
aPk=60; ngate={'n':0}
def gate(mask):
    ngate['n']+=1; n=ngate['n']
    k.label(f'Gt{n}')
    k(f'ds_read_b32 v{aPk+1}, v{aPk}')
    bound(f'Gt{n}')
    k(f'v_readfirstlane_b32 s{sT0}, v{aPk+1}')
    k(f's_bitcmp0_b32 {mask}, s{sT0}')
    k(f's_cbranch_scc1 Gt{n}'); k.label(f'Gt{n}c')
k(f's_lshl_b32 s{sT0}, s{sWave}, 2\ns_add_u32 s{sT0}, s{sT0}, {RF}\nv_mov_b32 v{aPk}, s{sT0}')
RUN=sum(1<<int(x) for x in str(OPT.get('run','3.6.9.12.15')).split('.'))
hl={'f':hF}; done_setup=False
flagged={'d':True,'v':0}
def try_flag(force=0):
    for v,names in ((6,('g','g1')),(100,('s',))):
        hs=[hl[n] for n in names if n in hl]
        if flagged['v']>=v or not hs or (v==100 and flagged['v']<6): continue
        if force>=v: k.wait_vm(hs[0])
        if hs[0] not in {e[0] for e in k.vm}:
            k(f'v_mov_b32 v{vPh}, {v}\nds_write_b32 v{aFw}, v{vPh}'); flagged['v']=v; stamp('gflag' if v==6 else 'fsent')
def b1_dma(g):
    k(f's_add_u32 m0, s{sLq}, {g*4096}\ns_mov_b32 s{sB0}, {g*4*7168}')
    for i in range(4):
        k(f'buffer_load_dwordx4 v{vB+i}, {S(sW1,4)}, s{sB0} offen offset:{i*1024} lds'); throttle('b')
hd={}; nwd={'n':0}; nb=0
def wd_next(raw=False):
    b=nwd['n']; hd[b]=wd_load(b,vS,raw); nwd['n']+=1; try_flag()
for tok in OPT['lord'].split('_'):
    if tok not in ('p','p1') and not done_setup: l_setup(); done_setup=True
    if tok[0]=='w': k.wait_vm(hl[tok[1:]]); stamp('f'+tok)
    elif tok[0]=='G': gate(0xffff&~((1<<int(tok[1:]))-1))
    elif tok[0]=='F': try_flag(int(tok[1:]))
    elif tok[0]=='V': k(f'v_mov_b32 v{vPh}, {tok[1:]}\nds_write_b32 v{aFw}, v{vPh}')
    elif tok=='W': wd_next()
    elif tok in ('B7','B'): flagged['d']=tok=='B'; b1_dma(take(1)); nb+=1; flagged['d']=True; try_flag()
    elif tok in 'UR': flagged['d']=False; wd_next(tok=='R'); flagged['d']=True
    else:
        hl[tok]={'p':l_pre,'p1':l_p1,'p2':l_p2,'s':l_sent,'g':l_gath,'g0':lambda:l_gath([0]),'g1':lambda:l_gath([1]),'b':l_bpre}[tok]()
        stamp('f'+tok)
assert flagged['v']==100
if OPT.get('lgate'): gate(0xffff&~((1<<OPT['lgate'])-1))
nx=0; hx={}; oL=None
for r_,n_ in ((sFw,2),(sWr,4),(sWi,4)): sp.put(r_,n_)
xo=[int(c) for c in str(OPT.get('xo','0123456')).lstrip('o')]
border=[7]+xo
for tok in OPT.get('seq','WWWWWWWXBXBXBXBXBXBXBB'):
    flagged['d']=tok.isupper()
    if tok in 'WwR':
        if nwd['n']<7: wd_next(tok=='R')
    elif tok.isdigit(): gate(0x1ffff&~((1<<int(tok))-1))
    elif tok=='S': oL=gemm_setup(1); x_setup(oL)
    elif tok=='Z':
        k(f"s_waitcnt vmcnt({OPT.get('zt',2)})")
        k(f'v_mov_b32 v{vPh}, 101\nds_write_b32 v{aFw}, v{vPh}'); stamp('fZ')
        if OPT.get('zs'): oL=gemm_setup(1); x_setup(oL)
        if not OPT.get('zn'): gate(0x1ffff&~((1<<11)-1))
    elif tok=='X': hx[xo[nx]]=wd_xp(xo[nx],vR,hd[xo[nx]]); nx+=1
    else:
        if nb==7: stamp('wdone')
        b1_dma(take(1)); nb+=1
assert nb==8 and nwd['n']==7 and nx==7
if oL is None: oL=gemm_setup(1); x_setup(oL)
NRL=5+2*SW
if OPT.get('ea'):
    hlast=k.vm[-1][0]
    gate(0x10000)
    for tp in range(OPT.get('xi',2)):
        for l in g1_loads(oL,tp,NRL,128-8*NRL): k(l)
    k.wait_vm(hlast)
else: k('s_waitcnt vmcnt(0)')
stamp('bdone')
k.barrier()
stamp('Gbar')
k('s_setprio 3')
gemm1(1,oL,NRL,128-8*NRL)
x_tail(oL)

hdr=f'''; Fused persistent kernel: LN -> 2-D FFT filter (MFMA DFT stages) -> LN -> GEGLU FFN, 256 workgroups.
; @launch grid=(256,1,1) block=(512,1,1) lds={LDSZ}
.amdgcn_target "amdgcn-amd-amdhsa--gfx950"
.text
.globl {KN}
.p2align 8
.type {KN},@function
'''
ftr=f'''
CODE_END:
.section .rodata,"a"
.p2align 6
.amdhsa_kernel {KN}
  .amdhsa_next_free_vgpr 256
  .amdhsa_next_free_sgpr 102
  .amdhsa_accum_offset 128
  .amdhsa_group_segment_fixed_size 0
  .amdhsa_kernarg_size 80
  .amdhsa_user_sgpr_count 2
  .amdhsa_user_sgpr_kernarg_segment_ptr 1
  .amdhsa_system_sgpr_workgroup_id_x 1
.end_amdhsa_kernel
'''
open(sys.argv[1],'w').write(hdr+k.text().replace('@STUB@',stub)+'\n'+'\n'.join(tail)+ftr+(''.join('; STAMPS '+' '.join(n for n,_ in stamps[p])+' cnt\n' for p in 'FL') if OPT['stamps'] else ''))
open(sys.argv[1]+'.stamps','w').write('\n'.join(' '.join(n for n,_ in stamps[p])+' cnt' for p in 'FL'))
print('instrs F',nF,'total',k.count,'nops',k.nops,'vp hi',vp.hi,'sp hi',sp.hi, file=sys.stderr)
```

```python
import re

REG = re.compile(r'^(-|abs\()?([vas])(?:(\d+)|\[(\d+):(\d+)\])\)?$')
def regs(tok):
    tok = tok.strip()
    if tok in ('vcc',): return {('s',106),('s',107)}
    if tok == 'vcc_lo': return {('s',106)}
    if tok == 'vcc_hi': return {('s',107)}
    if tok == 'exec': return {('s',126),('s',127)}
    if tok == 'm0': return {('s',124)}
    m = REG.match(tok)
    if not m: return set()
    f = m.group(2)
    if m.group(3) is not None: return {(f,int(m.group(3)))}
    return {(f,i) for i in range(int(m.group(4)), int(m.group(5))+1)}

TRANS = ('v_exp_f32','v_log_f32','v_rcp_f32','v_rsq_f32','v_sqrt_f32','v_sin_f32','v_cos_f32')
class Ins:
    def __init__(s, text):
        s.text = text
        t = text.split(';')[0].strip()
        p = t.split(None,1)
        s.op = p[0]
        rest = p[1] if len(p)>1 else ''
        ops = []; depth=0; cur=''
        for ch in rest:
            if ch=='[': depth+=1
            if ch==']': depth-=1
            if ch==',' and depth==0: ops.append(cur.strip()); cur=''
            else: cur+=ch
        if cur.strip(): ops.append(cur.strip())
        s.mods=''
        if ops:
            q = ops[-1].split(None,1)
            ops[-1]=q[0]; s.mods = q[1] if len(q)>1 else ''
        s.ops=ops
        op=s.op
        s.mfma = op.startswith('v_mfma')
        s.valu = op.startswith('v_') and not s.mfma
        s.salu = op.startswith('s_') and not op.startswith(('s_load','s_mem','s_waitcnt','s_nop','s_barrier','s_cbranch','s_branch','s_endpgm','s_sleep','s_setprio'))
        s.smem = op.startswith(('s_load','s_mem'))
        s.vmem = op.startswith(('buffer_','global_'))
        s.ds = op.startswith('ds_')
        s.dma = s.vmem and (' lds' in (' '+s.mods) or 'load_lds' in op)
        s.store = (s.vmem and ('store' in op or 'atomic' in op)) or (s.ds and ('write' in op))
        s.trans = op.replace('_e32','').replace('_e64','') in TRANS
        s.dpp = '_dpp' in op or 'row_' in s.mods or 'quad_perm' in s.mods
        s.dot = op.startswith('v_dot')
        s.perml = op.startswith('v_permlane')
        s.rdlane = op.startswith(('v_readlane','v_readfirstlane'))
        R=[regs(o) for o in ops]
        s.dst=set(); s.src=set()
        if op.startswith(('s_waitcnt','s_nop','s_barrier','s_branch','s_endpgm','s_sleep','s_setprio','buffer_wbl2','buffer_inv')): pass
        elif op.startswith('s_cbranch'):
            if 'vcc' in op: s.src=regs('vcc')
        elif op.startswith('s_cmp') or op.startswith('s_bitcmp'):
            for r in R: s.src|=r
        elif s.store or s.dma:
            for r in R: s.src|=r
            if s.dma: s.src|=regs('m0')
        elif s.perml and 'swap' in op:
            s.dst=R[0]|R[1]; s.src=R[0]|R[1]
        elif op.startswith(('v_add_co','v_addc_co','v_sub_co')):
            s.dst=R[0]|R[1]
            for r in R[2:]: s.src|=r
        else:
            if R: s.dst=R[0]
            for r in R[1:]: s.src|=r
            if op.startswith(('v_fmac','v_dot2c','v_writelane','s_addk','s_mulk')) or s.dpp or 'd16' in op: s.src|=R[0]
            if 'saveexec' in op: s.dst|=regs('exec')
            if op.startswith('v_cndmask') and len(ops)==3: s.src|=regs('vcc')
        if s.mfma:
            s.A,s.B,s.C=R[1],R[2],R[3]
            s.passes = 8 if '32x32' in op else 4
        s.wide = s.vmem and s.store and ('x4' in op or 'x3' in op)
        if s.wide: s.data = R[0]
        s.states = 1
        if op=='s_nop': s.states=int(ops[0])+1

def need(p, c):
    n=0
    vd = {r for r in p.dst if r[0] in 'va'}
    sd = {r for r in p.dst if r[0]=='s'}
    if p.valu:
        if c.mfma and vd & c.src: n=max(n,2)
        if p.trans and vd & c.src: n=max(n,1)
        if c.dpp and vd & c.src: n=max(n,2)
        if c.perml and vd & c.src: n=max(n,2)
        if c.rdlane and vd & c.src: n=max(n,1)
        if sd & c.src:
            if c.vmem: n=max(n,5)
            elif c.rdlane or c.op.startswith('v_writelane'): n=max(n,4)
            elif c.valu or c.mfma: n=max(n,2)
            else: n=max(n,1)
        if p.dot and vd & (c.src|c.dst):
            if not (c.op==p.op and c.op.startswith('v_dot2c') ): n=max(n,3)
        if ('op_sel' in p.mods and not p.op.startswith('v_pk')) and vd & (c.src|c.dst): n=max(n,1)
    if p.mfma:
        big = 12 if p.passes==8 else 8
        if c.mfma:
            if vd & (c.A|c.B): n=max(n,big)
            if vd & c.C:
                if not (c.C==vd and c.passes==p.passes and c.op==p.op): n=max(n,big-2)
            elif vd & c.dst and not (c.dst==vd and c.op==p.op): n=max(n,big-2)
        elif vd & (c.src|c.dst): n=max(n,big)
        if (c.valu) and p.C & c.dst: n=max(n, 7 if p.passes==8 else 3)
    if p.salu and ('s',124) in p.dst and c.dma: n=max(n,1)
    if p.wide and p.data & c.dst: n=max(n,2)
    if p.ds and p.store and ('b128' in p.op or 'b96' in p.op) and c.valu and p.src & c.dst: n=max(n,1)
    return n

class Asm:
    def __init__(s):
        s.out=[]; s.hist=[]; s.vm=[]; s.lg=[]; s.nid=0; s.nops=0; s.count=0; s.cyc=0
    def raw(s, text): s.out.append(text)
    def label(s, name): s.out.append(name+':')
    def _push(s, ins):
        s.out.append('    '+ins.text); s.hist.append(ins); s.count+=1
        s.cyc+= 16 if ins.mfma else 8 if ins.trans else 60 if ins.op=='s_barrier' else 40 if (ins.op=='s_waitcnt' and 'lgkmcnt(0)' in ins.text) else 4*ins.states
        if len(s.hist)>24: s.hist.pop(0)
    def _wait(s, vm=None, lg=None):
        t=[]
        if vm is not None:
            vm=min(vm,63); t.append(f'vmcnt({vm})')
            if len(s.vm)>vm: s.vm = s.vm[len(s.vm)-vm:] if vm else []
        if lg is not None:
            if any(e[2] for e in s.lg): lg=0
            lg=min(lg,15); t.append(f'lgkmcnt({lg})')
            if len(s.lg)>lg: s.lg = s.lg[len(s.lg)-lg:] if lg else []
        s._push(Ins('s_waitcnt '+' '.join(t)))
    def __call__(s, text):
        h=None
        for line in text.split('\n'):
            if line.split(';')[0].strip(): h=s.emit(line.strip())
        return h
    def emit(s, text):
        ins=Ins(text)
        if ins.op=='s_waitcnt':
            vm=re.search(r'vmcnt\((\d+)\)',text); lg=re.search(r'lgkmcnt\((\d+)\)',text)
            s._wait(int(vm.group(1)) if vm else None, int(lg.group(1)) if lg else None); return None
        touch = ins.src|ins.dst
        vm=lg=None
        for i,e in enumerate(s.vm):
            if e[1] & touch: vm=len(s.vm)-1-i
        for i,e in enumerate(s.lg):
            if e[1] & touch: lg=len(s.lg)-1-i
        if vm is not None or lg is not None: s._wait(vm,lg)
        dist=0; req=0
        for p in reversed(s.hist):
            n=need(p,ins)-dist
            req=max(req,n)
            dist+=p.states
        while req>0:
            k=min(req,16); s._push(Ins(f's_nop {k-1}')); s.nops+=k; req-=k
        s._push(ins)
        s.nid+=1
        if ins.vmem: s.vm.append((s.nid, ins.dst if not (ins.store or ins.dma) else set(), False))
        if ins.ds: s.lg.append((s.nid, ins.dst, False))
        if ins.smem:
            s.lg.append((s.nid, ins.dst, True))
        return s.nid
    def wait_vm(s, h):
        for i,e in enumerate(s.vm):
            if e[0]==h: s._wait(vm=len(s.vm)-1-i); return
    def wait_lg(s, h=None):
        if h is None:
            if s.lg: s._wait(lg=0)
            return
        for i,e in enumerate(s.lg):
            if e[0]==h: s._wait(lg=len(s.lg)-1-i); return
    def wait_regs(s, rs):
        touch=set()
        for r in rs: touch|=regs(r)
        vm=lg=None
        for i,e in enumerate(s.vm):
            if e[1] & touch: vm=len(s.vm)-1-i
        for i,e in enumerate(s.lg):
            if e[1] & touch: lg=len(s.lg)-1-i
        if vm is not None or lg is not None: s._wait(vm,lg)
    def barrier(s):
        s.wait_lg(); s.emit('s_barrier')
    def text(s): return '\n'.join(s.out)

def V(a,n=1): return f'v{a}' if n==1 else f'v[{a}:{a+n-1}]'
def A(a,n=1): return f'a{a}' if n==1 else f'a[{a}:{a+n-1}]'
def S(a,n=1): return f's{a}' if n==1 else f's[{a}:{a+n-1}]'

class Pool:
    def __init__(s, lo, hi): s.free=list(range(lo,hi)); s.hi=0
    def get(s, n=1, al=None):
        al = al or (2 if n>1 else 1)
        fs=set(s.free)
        for a in s.free:
            if a%al==0 and all(a+i in fs for i in range(n)):
                for i in range(n): s.free.remove(a+i)
                s.hi=max(s.hi,a+n)
                return a
        raise RuntimeError('out of regs')
    def put(s, a, n=1):
        for i in range(n):
            assert a+i not in s.free
            s.free.append(a+i)
        s.free.sort()

class Sched:
    def __init__(s,k,on=True): s.k=k; s.on=on
    def __enter__(s):
        if s.on:
            s.old=s.k.emit; s.buf=[]
            def emit(t): s.buf.append(t); return ('sched',len(s.buf)-1)
            s.k.emit=emit
        return s
    def __exit__(s,*a):
        if not s.on: return
        k=s.k; k.emit=s.old
        I=[Ins(t) for t in s.buf]; n=len(I)
        for x in I: assert not x.op.startswith(('s_cbranch','s_branch','s_barrier','s_waitcnt','s_cmp','s_cselect')), x.text
        pred=[[] for _ in range(n)]; succ=[[] for _ in range(n)]
        def lat(p,c):
            if p.dst & c.src:
                if p.ds: return 110
                if p.mfma: return 16 if (c.mfma and c.C==p.dst) else 44
                return 4*(need(p,c)+1)+(4 if p.trans else 0)
            return 4*(need(p,c)+1)
        for j in range(n):
            for i in range(j):
                p,c=I[i],I[j]
                dep=(p.dst&(c.src|c.dst)) or (p.src&c.dst) or (p.ds and c.ds and (p.store or c.store)) or (p.vmem and c.vmem) or (p.smem or c.smem)
                if dep: pred[j].append(i); succ[i].append(j)
        pri=[0]*n
        for i in reversed(range(n)):
            pri[i]=max([lat(I[i],I[j])+pri[j] for j in succ[i]]+[4])
        import random
        L={(i,j):lat(I[i],I[j]) for j in range(n) for i in pred[j]}
        N={(i,j):need(I[i],I[j]) for j in range(n) for i in pred[j]}
        pre=[(p,d) for d,p in zip(range(1,25),reversed(k.hist))]
        N0=[max([need(p,I[j])-(d-1) for p,d in pre]+[0]) for j in range(n)]
        def run(P):
            done={}; pos={}; t=0; st=0; mfree=16 if (k.hist and k.hist[-1].mfma) else 0; order=[]
            cnt=[len(x) for x in pred]; ready={j for j in range(n) if not cnt[j]}
            while ready:
                best=None
                for j in ready:
                    nop=max([N[i,j]-(st-pos[i]-1) for i in pred[j]]+[N0[j]-st,0])
                    r=max([done[i]+min(L[i,j],110 if I[i].ds else 32) for i in pred[j] if I[i].ds or I[i].mfma]+[t+4*nop])
                    if I[j].mfma or I[j].op.startswith('v_pk'): r=max(r,mfree)
                    key=(r-t, P[j])
                    if best is None or key<best[0]: best=(key,j,r,nop)
                _,j,r,nop=best
                done[j]=r; st+=nop; pos[j]=st; st+=1; ready.remove(j); order.append(j)
                for x in succ[j]:
                    cnt[x]-=1
                    if not cnt[x]: ready.add(x)
                t=r+(8 if (I[j].trans or I[j].mfma) else 4)
                if I[j].mfma: mfree=r+16
            return t,order
        rnd=random.Random(1); cands=[run(list(range(n))),run([-p for p in pri])]
        base=cands[0][0]
        P=list(range(n)); cur=cands[0][0]
        for it in range(600):
            Q=list(P); x=rnd.randrange(n); w=rnd.choice((1,2,4,8,12)); d=rnd.choice((-1,1))*rnd.choice((3,8,16,30))
            for y in range(x,min(n,x+w)): Q[y]+=d
            c=run(Q)
            if c[0]<=cur: P=Q; cur=c[0]; cands.append(c)
        t,order=min(cands,key=lambda c:c[0])
        import sys; print('sched',n,'instrs: in-order',base,'critical-path',cands[1][0],'best',t,file=sys.stderr)
        s.h={}
        for j in order: s.h[j]=k.emit(s.buf[j])
        s.est=t
    def handle(s,h): return s.h[h[1]] if s.on else h
```

```python
import sys, struct
from asmlib import *

KN = "sequential_preLN__spectral_gfnet__glu_gated_geglu__prompt_kernel"
OPT = dict(stamps=0, ng=2, g2=0, early=0, hint=1, thr=20, ge=1, run='3.6.7.8.9.11.12.15', seq='3gTF5As6UbSBBBBZbbBaWWWW', thrw=20, il=1, zt=6, zany=0,
           ro=1, xl=1, plan=7, lw=1, yw=3, post='WAWAWAA', weF=2, weL=2, nrl=6, lzL=1, xi=3, py=2)
for a in sys.argv[2:]:
    kk,vv = a.split('='); OPT[kk]=int(vv) if vv.lstrip('-').isdigit() else vv
NB = OPT['ng']; SW=0
def fb(x): return '0x%08x' % struct.unpack('<I', struct.pack('<f', x))[0]

NONCE=0x80000
X1=0x100000; X1S=8320
X2=0x600000; X2S=8320
X3=0xB00000; X3S=8320
HB=0xE00000
HH=0x1000000
XP=0x1A00000
STAMP=0x1800000
WD=0x1C00000
WSZ=0x2000000
R0=131072; R1=R0+9216; R2=R1+9216; RH=R2; RF=R2+8192
KS=100; KH=82; TM=0x60006000
LDSZ=163840
SPIN=400000
CG = 0.1029432397**(1/3)
KQ = 2.302208198/CG

k=Asm(); tail=[]
LS='' if OPT.get('loc')==2 else 'sc1'
sp=Pool(44,96)
sX,sWs,sWd,sOut,sW1 = 24,28,32,36,40
stamps={'F':[], 'L':[]}; path={'p':'F'}
STQ={'F':[22,100,4,6,8,10,12,14,16,18,20,24,26,40,42],'L':[22,100,4,6,8,10,12,14,16,18,20,24,26,96,98]}
def stamp(name):
    st=OPT['stamps']; p=path['p']
    if OPT.get('probe')==p+name: k('s_sleep 10')
    big=('start','xload','Adone','Bpoll','Bgot','Bdone','Cpoll','Cgot','Cdone','gflag','wdone','bdone','Gbar','G1got','G1done','epi','B1','G2done','end')
    on = (st==1 and name in big and not (p=='F' and name in ('wdone','B1','Bpoll','Cpoll'))) or (st==2 and name in ('start','Gbar','wdone','G1got','G1done','epi','B1','G2done','B2','end','g4','g8','g11')) \
         or (st==4 and name in ('Gbar','G1got','k4','k8','k12','G1done','epi','B1','G2done','B2','end','g4','g8','g11')) \
         or (st==8 and name in ('start','xload','Adone','Bpoll','Bgot','Bdone','Cpoll','Cgot','Cdone','Gbar','end','gflag','fZ')) \
         or (st==7 and name in ('start','Gbar','end')) \
         or (st==6 and (name[0]=='h' or name in (('G1got','k4','k8','k12','G1done','epi','g4','g8','g11','G2done','end') if p=='F' else ('G1got','G1done','epi',)))) \
         or (st==5 and (name[0]=='l' or name in ('bdone','Gbar'))) \
         or (st==3 and (name[0]=='f' or name in big[:13]) and not (p=='F' and name in ('wdone','fkarg','fS1','fS3')))
    if on or (p+name) in OPT.get('amp','').split(','):
        r=STQ[p][len(stamps[p])]; stamps[p].append((name,r)); k(f'{"s_memtime" if OPT.get("cyc") else "s_memrealtime"} {S(r,2)}')

def retry_block(name, loads, check):
    kk=Asm()
    kk.label(f'R_{name}')
    kk('s_nop 3')
    for l in loads: kk(l)
    kk('s_waitcnt vmcnt(0)')
    for c in check: kk(c)
    kk(f's_add_u32 s{sCnt}, s{sCnt}, 1')
    if OPT['stamps']: kk(f's_add_u32 s{sDg}, s{sDg}, {1<<(8*dict(B=0,C=1,Y=2,X=3,H=3,G=0 if name[:2] in ("G1","Gp") else 1 if name in ("G2_0","G2_2") else 2 if name in ("G2_4","G2_6","G2_8","G2_11","G2_14") else 3)[name[0]])}')
    kk(f's_cmp_gt_u32 s{sCnt}, {SPIN}')
    kk(f's_cbranch_scc1 C_{name}')
    kk(f's_cbranch_vccnz R_{name}')
    kk(f's_branch C_{name}')
    tail.append(kk.text())
def checked(name, loads, check):
    for c in check: k(c)
    k(f's_cbranch_vccnz R_{name}')
    k.label(f'C_{name}')
    retry_block(name, loads, check)

def bound(lbl):
    k(f's_add_u32 s{sSpin}, s{sSpin}, 1\ns_cmp_lt_u32 s{sSpin}, {8*SPIN}\ns_cbranch_scc0 {lbl}c')
k.raw(f'{KN}:')
k('s_cmp_lt_u32 s2, 256')
k('s_cbranch_scc1 Lgo')
k('s_endpgm')
k.raw('@STUB@')
k.label('Lgo')
k('s_load_dwordx16 s[4:19], s[0:1], 0')
k('s_load_dwordx2 s[20:21], s[0:1], 72')
stamp('start'); stamps['L']=list(stamps['F'])
sWid=sp.get(); sWave=sp.get(); sS2=sp.get(); sT0=sp.get(); sT1=sp.get(); sT2=sp.get(); sCnt=sp.get(); sSpin=sp.get(); sDg=sp.get()
sXc=sp.get(); sJ=sp.get(); sPos=sp.get(); sNon=sp.get(); sTag=sp.get()
vL,vL16,vTm,vLo,vG,t0,t1,t2,t3,aFw,vPh = range(1,12)
vdum=127
if OPT.get('cpre',1):
    pc=sp.get(2)
    k(f'''s_getpc_b64 {S(pc,2)}
v_lshlrev_b32 v{t0}, 7, v0
v_min_u32 v{t2}, CODE_END-Lgo-64, v{t0}
v_mov_b32 v{t3}, s{pc+1}
v_add_co_u32 v{t2}, vcc, s{pc}, v{t2}
v_addc_co_u32 v{t3}, vcc, 0, v{t3}, vcc
global_load_dword v{vdum}, {V(t2,2)}, off''')
    sp.put(pc,2)
k(f'''v_lshrrev_b32 v{t0}, 6, v0
v_and_b32 v{vL}, 63, v0
v_readfirstlane_b32 s{sWid}, v{t0}
v_lshlrev_b32 v{vL16}, 4, v{vL}
v_and_b32 v{vLo}, 15, v0
v_lshrrev_b32 v{vG}, 4, v{vL}
s_and_b32 s{sXc}, s2, 7
s_lshr_b32 s{sJ}, s2, 3
s_lshl_b32 s{sPos}, s{sXc}, 5
s_add_u32 s{sPos}, s{sPos}, s{sJ}
s_and_b32 s{sWave}, s{sWid}, 3
s_mov_b32 s{sCnt}, 0
s_mov_b32 s{sSpin}, 0''')
mA=((1<<NB)-1)<<5; mB=((1<<NB)-1)<<(5-NB)
def swapbits(p): return (p&~(mA|mB))|((p&mA)>>NB)|((p&mB)<<NB)
if NB:
    k(f'''s_and_b32 s{sT0}, s{sPos}, {mA}
s_and_b32 s{sT1}, s{sPos}, {mB}
s_andn2_b32 s{sS2}, s{sPos}, {mA|mB}
s_lshr_b32 s{sT0}, s{sT0}, {NB}
s_lshl_b32 s{sT1}, s{sT1}, {NB}
s_or_b32 s{sS2}, s{sS2}, s{sT0}
s_or_b32 s{sS2}, s{sS2}, s{sT1}''')
else:
    k(f's_mov_b32 s{sS2}, s{sPos}')
def srd_consts(lst):
    for s_,sz in lst: k(f's_mov_b32 s{s_+2}, {sz}\ns_mov_b32 s{s_+3}, 0x20000')
def flag_init():
    k(f'''s_lshl_b32 s{sT0}, s{sWid}, 2
s_add_u32 s{sT0}, s{sT0}, {RF}
v_lshl_add_u32 v{aFw}, v{vL}, 2, {64}
v_add_u32 v{aFw}, {RF}, v{aFw}
v_mov_b32 v{vPh}, 0
v_writelane_b32 v{aFw}, s{sT0}, 0
ds_write_b32 v{aFw}, v{vPh}''')
flag_init()
if OPT['stamps']: k(f's_mov_b32 s{sDg}, 0')
k(f's_cmp_ge_u32 s{sWid}, 4\ns_cbranch_scc1 LSTUB')
def tag_calc():
    k(f'''s_bfe_u32 s{sT0}, s{sNon}, 0x2000d
s_bfe_u32 s{sT1}, s{sNon}, 0x2001d
s_lshl_b32 s{sT0}, 1, s{sT0}
s_lshl_b32 s{sT1}, 1, s{sT1}
s_or_b32 s{sT0}, s{sT0}, s{sT1}
s_ff0_i32_b32 s{sNon}, s{sT0}
s_mul_i32 s{sTag}, s{sNon}, 0x20002000
v_mov_b32 v{vTm}, {TM}''')
sPar=sp.get(); sF0=sp.get(); sRt=sp.get(); sRb=sp.get(); sCb=sp.get(); sX3o=sp.get(); sLq=sp.get(); sB0=sp.get(); sKh=sp.get()
def ffn_roles(isL):
    k(f'''s_and_b32 s{sPar}, s{sS2}, 1
s_bfe_u32 s{sT0}, s{sS2}, 0x40001
s_mul_i32 s{sF0}, s{sT0}, 7
s_mul_i32 s{sT0}, s{sPar}, 3
s_add_u32 s{sF0}, s{sF0}, s{sT0}
s_lshr_b32 s{sT0}, s{sS2}, 5
s_lshl_b32 s{sT0}, s{sT0}, 3
s_lshl_b32 s{sT1}, s{sWave}, 1
s_add_u32 s{sT0}, s{sT0}, s{sT1}
s_add_u32 s{sRt}, s{sT0}, s{sPar}''')
    if isL: k(f's_xor_b32 s{sRt}, s{sRt}, 1')
    if OPT.get('loc'): k(f'''s_bfe_u32 s{sKh}, s{sJ}, 0x10003
s_lshl_b32 s{sT0}, s{sXc}, 1
s_lshr_b32 s{sT1}, s{sJ}, 4
s_add_u32 s{sRb}, s{sT0}, s{sT1}
s_and_b32 s{sCb}, s{sJ}, 7''')
    elif OPT.get('g2'): k(f'''s_and_b32 s{sKh}, s{sXc}, 1
s_lshr_b32 s{sT0}, s{sXc}, 2
s_lshl_b32 s{sT0}, s{sT0}, 3
s_lshr_b32 s{sT1}, s{sJ}, 2
s_add_u32 s{sRb}, s{sT0}, s{sT1}
s_and_b32 s{sT0}, s{sXc}, 2
s_lshl_b32 s{sT0}, s{sT0}, 1
s_and_b32 s{sCb}, s{sJ}, 3
s_add_u32 s{sCb}, s{sCb}, s{sT0}''')
    else: k(f'''s_and_b32 s{sKh}, s{sXc}, 1
s_lshr_b32 s{sT0}, s{sXc}, 1
s_lshl_b32 s{sT0}, s{sT0}, 2
s_lshr_b32 s{sT1}, s{sJ}, 3
s_add_u32 s{sRb}, s{sT0}, s{sT1}
s_and_b32 s{sCb}, s{sJ}, 7''')
def x3_off():
    k(f'''s_mul_i32 s{sX3o}, s{sS2}, {X3S}
s_lshl_b32 s{sT1}, s{sWave}, 11
s_add_u32 s{sX3o}, s{sX3o}, s{sT1}
s_add_u32 s{sX3o}, s{sX3o}, {X3}''')

def tr_addr(vR, sRot, sBase):
    k(f'''v_and_b32 v{t0}, 1, v{vG}
v_bfe_u32 v{t1}, v{vL}, 3, 1
v_lshl_add_u32 v{t1}, v{t0}, 1, v{t1}
v_bfe_u32 v{t2}, v{vL}, 2, 2
v_lshlrev_b32 v{t0}, 10, v{vG}
v_lshl_add_u32 v{t0}, v{t2}, 7, v{t0}
v_and_b32 v{t2}, 3, v{vL}
v_lshl_add_u32 v{t0}, v{t2}, 3, v{t0}''')
    if sBase is not None: k(f'v_add_u32 v{t0}, s{sBase}, v{t0}')
    for c in range(4):
        if sRot is None: k(f'v_xor_b32 v{t2}, {c}, v{t1}')
        else: k(f's_add_u32 s{sT0}, s{sRot}, {c}\ns_and_b32 s{sT0}, s{sT0}, 3\nv_xor_b32 v{t2}, s{sT0}, v{t1}')
        k(f'v_lshl_add_u32 v{vR+c}, v{t2}, 5, v{t0}')
aA,aG,vck,vc2,aB,aT = 12,13,14,15,16,0
aRw=aRr=20; aHo=aPf=22
ACC=24; RING=88
def tagchk(r,ckr):
    return [f'v_xor_b32 v{ckr}, s{sTag}, v{r[0]}']+[f'v_bitop3_b32 v{ckr}, v{ckr}, v{x}, s{sTag} bitop3:0xf6' for x in r[1:]]+\
           [f'v_and_b32 v{ckr}, v{vTm}, v{ckr}', f'v_cmp_ne_u32 vcc, 0, v{ckr}']
def phi7(cls, rt):
    if cls<4: return cls if rt==0 else 3+((cls+1)&3)
    return 4+(cls-4) if rt==0 else cls-4
def gemm_setup(isL):
    NT=3 if isL else 4
    o={}
    o['sAo']=sAo=sp.get(4,1); o['sHo']=sHo=sp.get(4,1); o['sKq']=sKq=sp.get(); o['sC2']=sC2=sp.get()
    o['s32']=s32=OPT.get('x32' if isL else 'y32',0)
    if not s32:
        tr_addr(aB, sPar, None)
        k(f'''v_bfe_u32 v{t0}, v{vL}, 3, 1
v_mul_u32_u24 v{t0}, {X3S}, v{t0}
v_and_b32 v{t2}, 7, v{vL}
v_lshl_add_u32 v{aA}, v{vG}, 7, v{t0}
v_lshl_add_u32 v{aA}, v{t2}, 4, v{aA}''')
    else:
        k(f'''v_lshrrev_b32 v{t3}, 1, v{vG}
v_and_b32 v{t0}, 1, v{vG}
v_xor_b32 v{t2}, v{t0}, v{t3}
v_bfe_u32 v{t1}, v{vL}, 3, 1
v_lshl_add_u32 v{t1}, v{t2}, 1, v{t1}
v_lshlrev_b32 v{t0}, 15, v{t0}
v_lshl_add_u32 v{t0}, v{t3}, 10, v{t0}
v_bfe_u32 v{t2}, v{vL}, 2, 2
v_lshl_add_u32 v{t0}, v{t2}, 7, v{t0}
v_and_b32 v{t2}, 1, v{vL}
v_lshl_add_u32 v{t0}, v{t2}, 4, v{t0}
v_bfe_u32 v{t2}, v{vL}, 1, 1
v_lshl_add_u32 v{t0}, v{t2}, 3, v{t0}''')
        for c in range(4):
            k(f's_add_u32 s{sT0}, s{sPar}, {c}\ns_and_b32 s{sT0}, s{sT0}, 3\nv_xor_b32 v{t2}, s{sT0}, v{t1}\nv_lshl_add_u32 v{aB+c}, v{t2}, 5, v{t0}')
        k(f'''v_bfe_u32 v{t0}, v{vL}, 3, 2
v_mul_u32_u24 v{t0}, {X3S}, v{t0}
v_and_b32 v{t2}, 7, v{vL}
v_lshl_add_u32 v{aA}, v{t3}, 7, v{t0}
v_lshl_add_u32 v{aA}, v{t2}, 4, v{aA}''')
    k(f'''v_lshrrev_b32 v{t0}, 1, v{vG}
v_mul_u32_u24 v{t0}, {7168-1024}, v{t0}
v_lshl_add_u32 v{t0}, v{vG}, 9, v{t0}
v_lshl_add_u32 v{aG}, v{vLo}, 4, v{t0}
s_mul_i32 s{sT0}, s{sRt}, {4*X3S}''')
    for rh in range(2):
        for kh in range(2): k(f's_add_u32 s{sAo+2*rh+kh}, s{sT0}, {X3+(256*rh if s32 else 2*rh*X3S)+4096*kh}')
    k(f's_mul_i32 s{sT1}, s{sRt}, 112\ns_add_u32 s{sT1}, s{sT1}, s{sF0}')
    for jj in range(NT):
        k(f'''s_add_u32 s{sT0}, s{sPar}, {jj}
s_and_b32 s{sT0}, s{sT0}, 3
s_add_u32 s{sT0}, s{sT0}, s{sT1}
s_lshl_b32 s{sT0}, s{sT0}, 10
s_add_u32 s{sHo+jj}, s{sT0}, {HH}''')
    k(f'''s_mov_b32 s{sKq}, {fb(KQ)}
s_mov_b32 s{sC2}, {fb(CG*CG*2.0**KH)}
v_mov_b32 v{aT}, v{aFw}''')
    return o
def g1_loads(o, tp, nr, base):
    return [f'buffer_load_dwordx4 {V(base+8*(tp%nr)+4*rh,4)}, v{aA}, {S(sWs,4)}, s{o["sAo"]+2*rh+(tp>>3)} offen offset:{(tp&7)*512} sc1' for rh in range(2)]
def gemm1(isL, o, nr, base, early=None):
    P='L' if isL else 'F'; NT=3 if isL else 4; NF=4; PD=3; FR=112
    s32=o['s32']
    WE=OPT.get('we'+P,1)
    if not isL: NF=OPT.get('nfy',4 if WE==1 else 8); RB=[('a',128-4*NF+4*i) for i in range(NF)]
    else: RB=[('a',112+4*i) for i in range(4)]+[('v',72+4*i) for i in range(2*(7-nr))]; NF=len(RB)
    PD=OPT.get('pd'+P,NF-1)
    def rb(i,n=4,off=0): f,b=RB[i%NF]; return f'{f}[{b+off}:{b+off+n-1}]'
    fr=[(tp,jj,gu) for tp in range(16) for jj in range(NT) for gu in range(2)] if not s32 else \
       [(tp,jj,gu) for tp in range(16) for gu in range(2) for jj in range(NT)]
    flipped=set()
    def bread(i,x):
        tp,jj,gu=fr[i]
        ar=aB+(jj if s32 else jj^(2*gu))
        if tp>=8 and ar not in flipped: k(f'v_xor_b32 v{ar}, 0x10000, v{ar}'); flipped.add(ar)
        k(f'ds_read_b64_tr_b16 {rb(i,2,2*x)}, v{ar} offset:{gu*(2048 if s32 else 32768)+(tp&7)*4096+x*512}')
    iss={'n':o.get('pre',OPT.get('xi',2))}
    for tp in range(0 if 'pre' in o else iss['n']):
        for l in g1_loads(o,tp,nr,base): k(l)
    def chk_items(tp):
        r=base+8*(tp%nr); name=f'G1{P}{tp}'
        c=[f'v_max_u32 v{vck}, v{r+7}, v{r+3}', f'v_cmp_eq_u32 vcc, -1, v{vck}']
        def br():
            rl=[l for t in range(tp,iss['n']) for l in g1_loads(o,t,nr,base)]
            k(f's_cbranch_vccnz R_{name}'); k.label(f'C_{name}'); retry_block(name, rl, c)
        return c+[br]
    k.label(f'{P}START'); n0=iss['n']
    for i in range(PD): bread(i,0); bread(i,1)
    lazy=OPT.get('lz'+P,99)
    for x in chk_items(0): x() if callable(x) else k(x)
    stamp('G1got')
    if not isL and OPT.get('lw'):
        for x in flag(17,t0): k(x)
    for i,(tp,jj,gu) in enumerate(fr):
        a=ACC+16*jj+8*gu; r=base+8*(tp%nr); j=i%(2*NT)
        if j==0:
            sl=[None]*(2*NT)
            up=min(16,tp+nr,iss['n']+(2 if NT==4 or tp+1>=lazy else 1))
            ll=[l for t in range(iss['n'],up) for l in g1_loads(o,t,nr,base)]; iss['n']=max(iss['n'],up)
            if early and not ll: ll=early(tp)
            eager=tp<15 and tp+1<lazy; r1=base+8*((tp+1)%nr)
            if WE==1:
                sl[:len(ll)]=ll
                if o.get('wq') and len(ll)<3: sl[2]='\n'.join(o['wq'].pop(0))
                if eager: sl[-3:]=chk_items(tp+1)
                elif tp<15: sl[-1]=f'v_max3_u32 v{vck}, v{vck}, v{r1+7}, v{r1+3}'
                jw=2*NT-(3 if eager else 1)
            else:
                pos=[0,2,1,3]
                for n_,l in enumerate(ll): sl[pos[n_]]=l
                if o.get('wq') and len(ll)<3: sl[1]='\n'.join(o['wq'].pop(0))
                if eager:
                    c=chk_items(tp+1)
                    if NT==4: sl[4],sl[5],sl[6]=c; jw=4
                    else: sl[3]=c[0]+'\n'+c[1]; sl[4]=c[2]; jw=2
                elif tp<15: sl[-1]=f'v_max3_u32 v{vck}, v{vck}, v{r1+7}, v{r1+3}'; jw=2*NT-2
        w=[rb(i+q) for q in range(WE)] if i%WE==0 else []
        if j==jw and tp<15: w.append(V(r1,8))
        k.wait_regs(w)
        for rh in range(2):
            if not s32: k(f'v_mfma_f32_16x16x32_bf16 {V(a+4*rh,4)}, {rb(i)}, {V(r+4*rh,4)}, {"0" if tp==0 else V(a+4*rh,4)}')
            elif rh==0: k(f'v_mfma_f32_32x32x16_bf16 {V(ACC+16*jj,16)}, {rb(i)}, {V(r+4*gu,4)}, {"0" if tp==0 and gu==0 else V(ACC+16*jj,16)}')
            if i+PD<len(fr):
                if WE==1: bread(i+PD,rh)
                elif rh==0: bread(i+PD,0); bread(i+PD,1)
            if rh==(0 if WE==1 else 1) and sl[j] is not None: sl[j]() if callable(sl[j]) else k(sl[j])
        if j==2*NT-1 and tp in (3,7,11): stamp(f'k{tp+1}')
    if lazy<16:
        k(f'v_cmp_eq_u32 vcc, -1, v{vck}\ns_cbranch_vccnz {P}R')
        kk=Asm(); kk.label(f'{P}R'); kk('s_waitcnt vmcnt(0)\ns_nop 7')
        for tp in range(n0):
            for l in g1_loads(o,tp,nr,base): kk(l)
        for ar in range(aB,aB+4): kk(f'v_and_b32 v{ar}, 0xffff, v{ar}')
        kk(f's_waitcnt vmcnt(0)\ns_add_u32 s{sCnt}, s{sCnt}, 1000\ns_cmp_gt_u32 s{sCnt}, {SPIN}\ns_cbranch_scc0 {P}START\ns_endpgm')
        tail.append(kk.text())
    stamp('G1done')
def gelu(o, jj, tmp):
    a=ACC+16*jj; q=[]; n=len(tmp)
    for r0 in range(0,8,n):
        R=range(r0,r0+n)
        q+=[f'v_fma_f32 v{tmp[r%n]}, v{a+r}, v{a+r}, s{o["sKq"]}' for r in R]
        q+=[f'v_mul_f32 v{a+8+r}, v{a+r}, v{a+8+r}' for r in R]
        q+=[f'v_mul_f32 v{a+r}, -v{a+r}, v{tmp[r%n]}' for r in R]
    q+=[f'v_exp_f32 v{a+r}, v{a+r}' for r in range(8)]
    q+=[f'v_fma_f32 v{a+r}, v{a+r}, s{o["sC2"]}, s{o["sC2"]}' for r in range(8)]
    q+=[f'v_rcp_f32 v{a+r}, v{a+r}' for r in range(8)]
    q+=[f'v_mul_f32 v{a+8+r}, v{a+8+r}, v{a+r}' for r in range(8)]
    q+=[f'v_cvt_pk_bf16_f32 v{a+r}, v{a+8+2*r}, v{a+9+2*r}' for r in (0,2,1,3)]
    q+=[f'v_bfi_b32 v{a+r}, v{vTm}, s{sTag}, v{a+r}' for r in (0,2,1,3)]
    if not o['s32']: q+=[f'v_permlane16_swap_b32 v{a}, v{a+2}', f'v_permlane16_swap_b32 v{a+1}, v{a+3}']
    return q+[f'buffer_store_dwordx4 {V(a,4)}, v{vL16}, {S(sWs,4)}, s{o["sHo"]+jj} offen {LS}']
def flag(v,r): return [f'v_mov_b32 v{r}, {v}', f'ds_write_b32 v{aT}, v{r}']
def x_setup(o):
    o['sG2']=sG2=[sp.get() for _ in range(12)]; o['sWo']=sWo=sp.get()
    k(f'''s_lshl_b32 s{sT0}, s{sKh}, 3
s_add_u32 s{sT0}, s{sT0}, s{sCb}
s_lshl_b32 s{sT0}, s{sT0}, 2
s_add_u32 s{sT0}, s{sT0}, s{sWave}
s_mul_i32 s{sT0}, s{sT0}, {28*1024}
s_add_u32 s{sWo}, s{sT0}, {WD}''')
    if OPT.get('g32',0): k(f'v_lshrrev_b32 v{t1}, 5, v{vL}\nv_and_b32 v{t2}, 31, v{vL}\nv_add_u32 v{aG}, 7168, v{vL16}')
    else: k(f'v_mov_b32 v{t1}, v{vG}\nv_mov_b32 v{t2}, v{vLo}')
    k(f'''v_and_b32 v{t0}, 7, v{vL}
v_xor_b32 v{aRw}, v{t1}, v{t0}
v_lshlrev_b32 v{aRw}, 4, v{aRw}
v_lshl_add_u32 v{aRw}, v{t2}, 8, v{aRw}
s_lshl_b32 s{sT0}, s{sWave}, 13
s_add_u32 s{sT0}, s{sT0}, 0x10000
v_add_u32 v{aRw}, s{sT0}, v{aRw}
v_xor_b32 v{aRw+1}, 64, v{aRw}
v_and_b32 v{aPf}, 7, v{vL}
v_lshlrev_b32 v{aPf}, 2, v{aPf}
v_add_u32 v{aPf}, {RF}, v{aPf}
s_mul_i32 s{sT0}, s{sRb}, 448
s_mul_i32 s{sT1}, s{sWave}, 28
s_add_u32 s{sT0}, s{sT0}, s{sT1}
s_lshl_b32 s{sT1}, s{sKh}, 2
s_add_u32 s{sT0}, s{sT0}, s{sT1}
s_lshl_b32 s{sT0}, s{sT0}, 10
s_mul_i32 s{sT1}, s{sKh}, {112*1024}
s_mul_i32 s{sT2}, s{sKh}, {10*1024}''')
    for z in range(4):
        c=HH+(2*(z&1)+((z>>1)^SW))*112*1024
        k(f's_{"sub" if (z>>1)^SW else "add"}_u32 s{sG2[3*z]}, s{sT0}, s{sT1}')
        k(f's_add_u32 s{sG2[3*z]}, s{sG2[3*z]}, {c}')
        k(f's_add_u32 s{sG2[3*z+1]}, s{sG2[3*z]}, {14*1024}')
        k(f's_add_u32 s{sG2[3*z+2]}, s{sG2[3*z]}, s{sT2}')
def x_tail(o):
    g32=OPT.get('g32',0)
    plan={0:'00.10_01.11_20.30_40.50.60*_21.31_41.51.61*_62.02_12.63_22.03_32.42.52*_13.23_33.43.53*',
          1:'00.10_20.30_40.50_01.11_60*_21.31_41.51.61*_62.02_12.63_22.03_32.42.52*_13.23_33.43.53*',
          2:'00.10_20.30_40.50.60*_01.11_21.31_41.51.61*_62.02_12.63_22.03_32.42.52*_13.23_33.43.53*',
          3:'00.10_20.30_01.11_40.50.60*_21.31_41.51.61*_62.02_12.63_22.03_32.42.52*_13.23_33.43.53*',
          5:'00.10_01.11_20.30_40.50.60*_21.31_41.51.61*_62.02_12.22_32.42.52*_63.03_13.23_33.43.53*',
          6:'00.10_01.11_20.30_40.50.60*_21.31_41.51.61*_62.02_12.63_22.32_42.52*_03.13_23.33_43.53*',
          7:'00.10_20.30_01.11_40.50.60*_21.31_41.51.61*_62.02_12.22_32.42.52*_63.03_13.23_33.43.53*',
          8:'00.10.01.11_20.30_40.50.60*_21.31_41.51.61*_62.02.12.22_32.42.52*_63.03.13.23_33.43.53*',
          4:'00.10_20.30_40.50_01.11_60*_21.31_41.51.61*_62.63_02.12_03.13_22.23_32.42.52*_33.43.53*'}[OPT.get('plan',0)]
    groups=[]; blocks=[]; closing=set()
    for bi,bl in enumerate(plan.split('_')):
        if bl[-1]=='*': closing.add(bi)
        it=[(int(x[0]),int(x[1])) for x in bl.rstrip('*').split('.')]
        blocks.append((len(groups),len(it))); groups+=it
    GATES={min(closing)-1:117}
    LIM=[int(x) for x in str(OPT.get('lim','28.28')).split('.')]; LIM+=[28]*20
    AC=[[ACC,ACC+48],[ACC+16,ACC+32]]
    NRL=OPT.get('nrl',7); BL=128-8*NRL
    fre=sorted((max(t for t in range(16) if BL+8*(t%NRL)==b)+1,b) for b in range(88,128,8))
    PAIR=[('v',4)]+[('v',b) for _,b in fre]+[('a',112),('a',120)]; NR=8; FRE=[0]+[t for t,_ in fre]
    def reg(gi,rh): f,b=PAIR[gi%NR]; return f'{f}[{b+4*rh}:{b+4*rh+3}]'
    def gl(gi):
        b,z=groups[gi]
        so,im=(o['sG2'][3*z+(b&1)],(b>>1)*1024) if b<6 else (o['sG2'][3*z+2],3072)
        if g32: return [f'buffer_load_dwordx4 {reg(gi,m)}, v{(vL16,aG)[m]}, {S(sWs,4)}, s{so} offen offset:{im} sc1' for m in range(2)]
        return [f'buffer_load_dwordx4 {reg(gi,rh)}, v{aG}, {S(sWs,4)}, s{so} offen offset:{im+256*rh} sc1' for rh in range(2)]
    st={'n':0}
    def issue(upto):
        while st['n']<upto:
            for l in gl(st['n']): k(l)
            st['n']+=1
    def chk_items(gi,n=2):
        name=f'G2_{gi}'; c=[]; rr=[]
        for g in reversed(range(gi,gi+n)):
            f,r=PAIR[g%NR]
            for x in (r+7,r+3):
                if f=='a': c.append(f'v_accvgpr_read_b32 v{vc2}, a{x}'); x=vc2
                c.append(f'v_bitop3_b32 v{vck}, v{vck}, v{x}, s{sTag} bitop3:0xf6' if rr else f'v_xor_b32 v{vck}, s{sTag}, v{x}'); rr.append(x)
        c+=[f'v_and_b32 v{vck}, v{vTm}, v{vck}', f'v_cmp_ne_u32 vcc, 0, v{vck}']
        def br():
            rl=[l for g in range(gi,gi+n) for l in gl(g)]
            k(f's_cbranch_vccnz R_{name}'); k.label(f'C_{name}'); retry_block(name, rl, c)
        return c+[br]
    verified=set()
    def verify(gi):
        for x in chk_items(*blocks[0]): x() if callable(x) else k(x)
        verified.add(gi)
    E0=OPT.get('e0',11)
    def early(tp):
        q=[]
        while tp>=E0 and st['n']<OPT.get('en',6) and FRE[st['n']]<=tp and len(q)<2: q+=gl(st['n']); st['n']+=1
        return q
    gemm1(1,o,NRL,BL,early)
    assert not o['wq']
    k(f's_setprio {OPT.get("pg",2)}')
    for x in flag(117,aB): k(x)
    IL=OPT.get('il',0); xq=[]; cnt=0
    for jj in range(3-IL):
        q=gelu(o,jj,[aA,23])
        for x in q:
            if 'store' in x and jj==2-IL:
                while xq: k(xq.pop(0))
                issue(min(LIM[0],OPT.get('xn',8)))
            k(x); cnt+=1
            if cnt>=OPT.get('x0',1) and (cnt-OPT.get('x0',1))%OPT.get('xg',8)==0:
                if not xq and st['n']<min(LIM[0],OPT.get('xn',8)): xq.extend(gl(st['n'])); st['n']+=1
                if xq: k(xq.pop(0))
    eq=[x for jj in range(3-IL,3) for x in gelu(o,jj,[aA,23])]
    ecost=lambda x: 8 if ('exp' in x or 'rcp' in x) else 4
    nfirst=8*next(i for i,g in enumerate(groups) if g[1]==1)
    erate=sum(map(ecost,eq))/nfirst*OPT.get('er',100)/100; eacc=0
    stamp('epi')
    verify(0); stamp('hc')
    def red_write(z):
        q=[]
        W4=[aRw,aB+2,aRw+1,aB+3]
        if z==0 and g32: q+=[f'v_xor_b32 v{aB+2+m}, 32, v{aRw+m}' for m in range(2)]
        if z==2: q+=[f'v_xor_b32 v{r}, 0x10000, v{r}' for r in (W4 if g32 else W4[::2])]
        if g32: q+=[f'ds_write_b128 v{W4[i]}, {V(AC[z&1][ct]+4*i,4)} offset:{32768*(z&1)+ct*128}' for ct in range(2) for i in range(4)]
        else: q+=[f'ds_write_b128 v{aRw+(c&1)}, {V(AC[z&1][rh]+4*c,4)} offset:{32768*(z&1)+rh*4096+(c>>1)*128}' for c in range(4) for rh in range(2)]
        return [(z,x) for x in q+flag(120+z,aB)]
    started=set(); pend=[]; WS=OPT.get('ws',2 if SW else 3)
    for bi,(g0,n) in enumerate(blocks):
        cl=bi in closing
        upto=min(LIM[bi],g0+NR)
        lq=[l for g in range(st['n'],upto) for l in gl(g)]; st['n']=max(st['n'],upto)
        if OPT.get('nog2'): lq=[]
        lq2=[]
        for i_ in range(1,n):
            if not cl and min(LIM[bi],g0+i_+NR)>st['n']: lq2+=[(8*i_,l) for l in gl(st['n'])]; st['n']+=1
        cq=chk_items(*blocks[bi+1]) if bi+1<len(blocks) and blocks[bi+1][0] not in verified else []
        assert bi+1==len(blocks) or sum(blocks[bi+1])<=upto
        gq=[]
        if bi in GATES:
            val=GATES[bi]
            def gbr(val=val):
                k(f's_cbranch_vccnz YG{val}r'); k.label(f'YG{val}c')
                kk=Asm(); kk.label(f'YG{val}r')
                kk(f'''ds_read_b32 v{aB+1}, v{aPf}
s_add_u32 s{sSpin}, s{sSpin}, 1
s_cmp_lt_u32 s{sSpin}, {8*SPIN}
s_waitcnt lgkmcnt(0)
s_cbranch_scc0 YG{val}c
v_cmp_gt_u32 vcc, {val}, v{aB+1}
s_cbranch_vccnz YG{val}r
s_branch YG{val}c''')
                tail.append(kk.text())
            gq=[f'ds_read_b32 v{aB+1}, v{aPf}',None,None,None,f'v_cmp_gt_u32 vcc, {val}, v{aB+1}', gbr]
        if bi==OPT.get('pb',99): k(f's_setprio {OPT.get("px",2)}')
        if not g32: seq=[(g0+i,m) for i in range(n) for m in range(8)] if not cl else [(g0+i,m) for m in range(8) for i in range(n)]
        else: seq=[(g0+i,m) for i in range(n) for m in range(8)] if not cl else [(g0+i,4*t+2*ct+e) for ct in range(2) for i in range(n) for t in range(2) for e in range(2)]
        NM=len(seq); CG_=OPT.get('cg',1) if len(cq)<NM-2 else 2; c0=NM-max(-(-(len(cq)-1)//CG_)+1,1)
        if OPT.get('nock'): cq=[]
        if cl: wq=red_write(groups[g0][1])
        if cl and OPT.get('nowr'): wq=[(z_,'s_nop 0 ; b128' if 'b128' in x_ else x_) for z_,x_ in wq]
        for p,(gi,m) in enumerate(seq):
            b,z=groups[gi]; c,rh=m>>1,m&1
            while pend and pend[0][0]<=z-2: k(pend.pop(0)[1])
            while eq and z>0: k(eq.pop(0))
            if not g32:
                a=AC[z&1][rh]+4*c
                k(f'v_mfma_f32_16x16x32_bf16 {V(a,4)}, {A((b*4+c)*4,4)}, {reg(gi,rh)}, {V(a,4) if z in started else "0"}')
            elif rh==0:
                a=AC[z&1][c&1]
                k(f'v_mfma_f32_32x32x16_bf16 {V(a,16)}, {A((b*4+c)*4,4)}, {reg(gi,c>>1)}, {V(a,16) if z in started or c>=2 else "0"}')
            if m==7: started.add(z)
            eacc+=erate
            while eq and eacc>0: eacc-=ecost(eq[0]); k(eq.pop(0))
            if gq:
                x=gq.pop(0)
                if x: x() if callable(x) else k(x)
            if lq and (p&1==0 or len(lq)>(c0-p)//2): k(lq.pop(0))
            while lq and p==NM-1: k(lq.pop(0))
            if lq2 and p>=lq2[0][0] and not lq and (p&1==0 or len(lq2)>(NM-p)//2): k(lq2.pop(0)[1])
            if p>=c0:
                for _ in range(CG_):
                    if cq and (len(cq)>1 or p==NM-1):
                        x=cq.pop(0); x() if callable(x) else k(x)
            if pend and 'b128' not in pend[0][1]: k(pend.pop(0)[1])
            elif pend and p%WS==WS-1 and (p>=5 or not g32): k(pend.pop(0)[1])
            if cl and p==0:
                while 'xor' in wq[0][1]: pend.append(wq.pop(0))
            if cl and not g32 and n>1 and p%n==n-2 and p>=6:
                pend.append(wq.pop(0))
            if cl and g32 and p==4*n+3:
                for _ in range(4): pend.append(wq.pop(0))
        assert not lq and not lq2 and not cq
        if cl:
            pend+=wq
        if bi not in (0,8): stamp(f'h{bi}')
        if bi in (3,5,6,8,10): stamp({3:'g4',5:'g8',6:'B1',8:'g11',10:'B2'}[bi])
    stamp('G2done')
    for x in pend: k(x[1])
    stamp('end')
    finish('L')
def y_setup(o):
    o['sEo']=sEo=sp.get(4,1); o['sUp']=sUp=sp.get(2); o['sXp']=sXp=sp.get(2,1); o['sDn']=sDn=sp.get()
    k(f'''v_and_b32 v{t0}, 7, v{vL}
v_lshrrev_b32 v{t1}, 3, v{vL}
v_lshlrev_b32 v{aRr}, 1, v{t0}
v_xor_b32 v{aRr}, v{aRr}, v{t1}
v_lshlrev_b32 v{aRr}, 4, v{aRr}
v_lshl_add_u32 v{aRr}, v{t1}, 8, v{aRr}
s_lshl_b32 s{sT2}, s{sWave}, 11
s_add_u32 s{sT2}, s{sT2}, 0x10000
v_add_u32 v{aRr}, s{sT2}, v{aRr}
v_xor_b32 v{aRr+1}, 16, v{aRr}
v_lshlrev_b32 v{t0}, 4, v{t0}
v_lshl_add_u32 v{aHo}, v{t1}, 10, v{t0}
v_lshl_add_u32 v{aHo+1}, v{t1}, 18, v{t0}
v_and_b32 v{vc2}, 3, v{vL}
v_lshlrev_b32 v{vc2}, 2, v{vc2}
v_add_u32 v{vc2}, {RF+16}, v{vc2}
s_lshl_b32 s{sT0}, s{sCb}, 7
s_lshl_b32 s{sT1}, s{sRb}, 2
s_{"add" if SW else "sub"}_u32 s{sT1}, s{sT1}, s{sKh}
s_add_u32 s{sT1}, s{sT1}, {1-SW}
s_lshl_b32 s{sT1}, s{sT1}, 2
s_add_u32 s{sT1}, s{sT1}, s{sWave}
s_lshl_b32 s{sEo}, s{sT1}, 13
s_add_u32 s{sEo}, s{sEo}, s{sT0}
s_add_u32 s{sEo}, s{sEo}, {HB}
s_add_u32 s{sEo+1}, s{sEo}, 65536
s_lshl_b32 s{sEo+2}, s{sT1}, 10
s_add_u32 s{sEo+2}, s{sEo+2}, s{sT0}
s_add_u32 s{sEo+3}, s{sEo+2}, 8192
s_lshl_b32 s{sUp}, s{sNon}, 29
s_sub_u32 s{sUp}, {fb(2.0**KH)}, s{sUp}
s_mul_i32 s{sDn}, s{sNon}, -64
s_lshl_b32 s{sT0}, s2, 13
s_lshl_b32 s{sT1}, s{sWave}, 11
s_add_u32 s{sT0}, s{sT0}, s{sT1}
s_add_u32 s{sXp}, s{sT0}, {XP}
s_xor_b32 s{sXp+1}, s{sXp}, {8192*64 if OPT.get('loc') else 8192}''')
def y_tail(o):
    sEo,sUp,sXp,sDn=o['sEo'],o['sUp'],o['sXp'],o['sDn']
    HV=88; RV=96; hq=104
    hl=[f'buffer_load_dwordx4 {V(HV+4*i,4)}, v{aHo}, {S(sWs,4)}, s{sEo+i} offen sc1' for i in range(2)]
    for x in flag(117,t0): k(x)
    k(f's_setprio {OPT.get("py",3)}')
    for jj in range(4):
        for x in gelu(o,jj,[120,121,122,123]): k(x)
        if jj<3: stamp(f'he{jj}')
    for l in hl: k(l)
    stamp('epi')
    def stage(z):
        p=ACC+32*(z&1)
        k(f's_setprio {OPT.get("psp",0)}')
        k.label(f'Rd{z}')
        k(f'ds_read_b32 v{vck}, v{vc2}')
        spec = z==3 and OPT.get('spec',0)
        rd=[f'ds_read_b128 {V(p+8*pw+4*x,4)}, v{aRr+x} offset:{32768*(z&1)+8192*pw}' for pw in range(4) for x in range(2)]
        if spec:
            for x in rd: k(x)
        bound(f'Rd{z}')
        if OPT.get('ssl'): k(f"s_sleep {OPT['ssl']}")
        k(f'v_cmp_gt_u32 vcc, {120+z}, v{vck}')
        k(f's_cbranch_vccnz Rd{z}'); k.label(f'Rd{z}c')
        k(f's_setprio {OPT.get("pr",0)}')
        if not spec:
            for x in rd: k(x)
        return p
    def add8(d,a,b,packed=False):
        if packed:
            for j in (0,2,4,6): k(f'v_pk_add_f32 {V(d+j,2)}, {V(a+j,2)}, {V(b+j,2)}')
        else:
            for j in range(8): k(f'v_add_f32 v{d+j}, v{a+j}, v{b+j}')
    for z in range(2):
        q=stage(z)
        if z==0: stamp('g4')
        for pw in range(1,4): add8(q,q,q+8*pw)
        for j in range(8): k(f'v_ldexp_f32 v{q+j}, v{q+j}, s{sDn}')
        for j in range(4): k(f'v_cvt_pk_bf16_f32 v{q+j}, v{q+2*j}, v{q+2*j+1}')
        for j in range(4): k(f'v_bfi_b32 v{q+j}, v{vTm}, s{sTag}, v{q+j}')
        if SW and OPT.get('late119')==z+1:
            k.wait_vm(hy)
            for x in flag(119,t0): k(x)
        hs=k(f'buffer_store_dwordx4 {V(q,4)}, v{vL16}, {S(sWs,4)}, s{sXp} offen offset:{1024*z} {LS}')
    stamp('g8')
    k(f'v_xor_b32 v{aRr}, 0x10000, v{aRr}\nv_xor_b32 v{aRr+1}, 0x10000, v{aRr+1}')
    checked('H', hl, tagchk([HV,HV+3,HV+4,HV+7],vck))
    def unpack(d,src):
        for j in range(8):
            k(f'v_lshlrev_b32 v{d+2*j}, 16, v{src+j}')
            k(f'v_and_b32 v{d+2*j+1}, 0xffff0000, v{src+j}')
    unpack(hq,HV)
    if not OPT.get('nxw') and not OPT.get('xl'): k.wait_vm(hs)
    rl=[f'buffer_load_dwordx4 {V(RV+4*i,4)}, v{vL16}, {S(sWs,4)}, s{sXp+1} offen offset:{1024*i} sc1' for i in range(2)]
    if not OPT.get('xl'):
        for l in rl: k(l)
    def remote():
        checked('XP', rl, tagchk([RV+7,RV+4,RV+3,RV],vck))
        stamp('g11')
        unpack(ACC,RV); add8(hq,hq,ACC,True); add8(hq+8,hq+8,ACC+8,True)
    def fin(i):
        q=hq+8*i
        for j in (0,2,4,6): k(f'v_pk_mul_f32 {V(q+j,2)}, {V(q+j,2)}, {S(sUp,2)} op_sel_hi:[1,0]')
        for j in range(4): k(f'v_cvt_pk_bf16_f32 v{q+j}, v{q+2*j}, v{q+2*j+1}')
        k(f'buffer_store_dwordx4 {V(q,4)}, v{aHo+1}, {S(sOut,4)}, s{sEo+2+i} offen {OPT.get("of","").replace("_"," ")}')
    ro=OPT.get('ro',1)
    if ro==0: remote()
    p=stage(2)
    if OPT.get('xl')==1:
        for l in rl: k(l)
    for pw in range(4): add8(hq,hq,p+8*pw)
    if OPT.get('xl')==2:
        for l in rl: k(l)
    if ro==1: remote()
    if ro<2: fin(0)
    stamp('G2done')
    p=stage(3)
    for pw in range(4): add8(hq+8,hq+8,p+8*pw,True)
    if ro==2: remote(); fin(0)
    fin(1)
    stamp('end')
    finish('F')
def finish(P):
    if OPT.get('amp','x')[0]==P:
        ra,rb=[r for n,r in stamps[P]]
        k(f'''s_memrealtime s[4:5]
s_waitcnt lgkmcnt(0)
s_sub_u32 s{sT0}, s{rb}, s{ra}
s_mul_i32 s{sT0}, s{sT0}, {OPT.get('ampk',2)}
s_min_u32 s{sT0}, s{sT0}, 100000''')
        k.label('Lamp')
        k(f'''s_memrealtime s[6:7]
s_waitcnt lgkmcnt(0)
s_sub_u32 s{sT1}, s6, s4
s_cmp_lt_u32 s{sT1}, s{sT0}
s_cbranch_scc1 Lamp''')
    if OPT['stamps']:
        k('s_waitcnt vmcnt(0) lgkmcnt(0)')
        k(f'''s_lshl_b32 s{sT0}, s2, 3
s_add_u32 s{sT0}, s{sT0}, s{sWid}
s_lshl_b32 s{sT0}, s{sT0}, 7
s_add_u32 s{sT0}, s{sT0}, {STAMP}''')
        for j,(nm,r) in enumerate(stamps[P]+[('cnt',sCnt),('dg',sDg)]):
            k(f'v_mov_b32 v{40+j}, s{r}')
            k(f'buffer_store_dword v{40+j}, off, {S(sWs,4)}, s{sT0} offset:{4*j}')
    k('s_endpgm')

import copy
sp_common=copy.deepcopy(sp); vm_common=list(k.vm)

vp=Pool(12,127); ap=Pool(112,128)
k(f"s_setprio {OPT.get('pf',3)}")
vL4=vp.get(); sXo=sp.get(2)
k(f'''v_lshlrev_b32 v{vL4}, 2, v{vL}
s_lshl_b32 s{sT0}, s{sWave}, 9
s_add_u32 s{sT0}, s{sT0}, s{sS2}
s_lshl_b32 s{sXo}, s{sT0}, 10
s_add_u32 s{sXo+1}, s{sXo}, 262144''')
srd_consts(((sX,2097152),(sWs,WSZ),(sOut,2097152)))
fLo=vp.get(); fG=vp.get(); fP=vp.get()
k(f'''v_cvt_f32_u32 v{fLo}, v{vLo}
v_cvt_f32_u32 v{fG}, v{vG}
v_and_b32 v{t0}, 3, v{vLo}
v_lshrrev_b32 v{t1}, 2, v{vLo}
v_lshl_add_u32 v{t0}, v{t0}, 2, v{t1}
v_cvt_f32_u32 v{fP}, v{t0}''')
def cs(base, step):
    a=vp.get(4); c=vp.get(4)
    k(f'v_add_f32 v{a+1}, v{base}, v{step}\nv_fma_f32 v{a+2}, v{step}, 2.0, v{base}\nv_fma_f32 v{a+3}, v{step}, 2.0, v{a+1}')
    for r in range(4): k(f'v_cos_f32 v{c+r}, v{a+r if r else base}')
    for r in range(4): k(f'v_sin_f32 v{a+r}, v{a+r if r else base}')
    return (c,a)
def mk_matrix(base, step, neg=False):
    c,a=cs(base,step); re=vp.get(4); im=vp.get(4)
    for r in range(4):
        k(f'v_cvt_pk_bf16_f32 v{re+r}, v{c+r}, v{a+r}')
        k(f'v_cvt_pk_bf16_f32 v{im+r}, -v{a+r}, v{c+r}')
    res=[V(re,4),V(im,4),re,im]
    if neg:
        n=ap.get(16,4)
        for r in range(4):
            k(f'v_xor_b32 v{c+r}, 0x80008000, v{re+r}\nv_xor_b32 v{a+r}, 0x80008000, v{im+r}')
        for j,src in enumerate((re,im,c,a)):
            for r in range(4): k(f'v_accvgpr_write_b32 a{n+4*j+r}, v{src+r}')
        res=[A(n+4*j,4) for j in range(4)]
        vp.put(re,4); vp.put(im,4)
    vp.put(a,4); vp.put(c,4)
    return res
C={}
def c_F16():
    k(f'v_mul_f32 v{t0}, {fb(1/16)}, v{fLo}\nv_mul_f32 v{t1}, 4.0, v{t0}\nv_mul_f32 v{t0}, v{t0}, v{fG}')
    C['F16']=mk_matrix(t0,t1)
def c_G():
    k(f'v_mul_f32 v{t1}, {fb(1/16)}, v{fP}\nv_mul_f32 v{t0}, 4.0, v{fG}\nv_mul_f32 v{t0}, v{t0}, v{t1}')
    C['G16']=mk_matrix(t0,t1)
    k(f'v_fma_f32 v{t0}, v{t1}, 0.5, v{t0}')
    C['G32']=mk_matrix(t0,t1)
def c_TW():
    k(f'v_mul_f32 v{t1}, {fb(1/256)}, v{fLo}\nv_mul_f32 v{t0}, 4.0, v{fG}\nv_mul_f32 v{t0}, v{t0}, v{t1}')
    C['TW0']=cs(t0,t1)
    k(f'v_fma_f32 v{t0}, v{t1}, 0.5, v{t0}')
    C['TWA']=cs(t0,t1)
M3=vp.get(2); fS2=vp.get(); aFr=vp.get()
xf=vp.get(16,4); op=vp.get(8,4); D=vp.get(16,4); D2=vp.get(16,4); c4=D
def c_M3():
    k(f'''v_cvt_f32_u32 v{fS2}, s{sS2}
v_lshrrev_b32 v{t0}, 1, v{vLo}
v_and_b32 v{t1}, 1, v{vLo}
v_cvt_f32_u32 v{t0}, v{t0}
v_cvt_f32_u32 v{t1}, v{t1}
v_mul_f32 v{fS2}, {fb(1/2048)}, v{fS2}
v_mul_f32 v{t1}, {fb(0.25)}, v{t1}
v_mul_f32 v{t2}, {fb(0.25)}, v{fG}
v_add_f32 v{t2}, v{t2}, v{fS2}
v_fma_f32 v{t1}, v{t2}, v{t0}, v{t1}
v_mul_f32 v{t0}, {fb(0.125)}, v{t0}
v_add_f32 v{t0}, v{t0}, v{t1}
v_cos_f32 v{c4}, v{t1}
v_sin_f32 v{c4+1}, v{t1}
v_sin_f32 v{c4+3}, v{t0}
v_cos_f32 v{c4+2}, v{t0}
v_sub_f32 v{t0}, v{c4}, v{c4+3}
v_add_f32 v{t2}, v{c4}, v{c4+3}
v_add_f32 v{t1}, v{c4+1}, v{c4+2}
v_sub_f32 v{t3}, v{c4+2}, v{c4+1}
v_mul_f32 v{t0}, {fb(2.0**-KS)}, v{t0}
v_mul_f32 v{t1}, {fb(2.0**-KS)}, v{t1}
v_mul_f32 v{t2}, {fb(2.0**-KS)}, v{t2}
v_mul_f32 v{t3}, {fb(2.0**-KS)}, v{t3}
v_cvt_pk_bf16_f32 v{M3}, v{t0}, v{t1}
v_cvt_pk_bf16_f32 v{M3+1}, v{t2}, v{t3}''')
sX1o=sp.get(); AD={}
def c_addrA():
    vp.put(fP)
    AD['Zw']=aZw=vp.get(); AD['P']=aP=vp.get(); AD['N']=aN=vp.get()
    k(f'''s_mul_i32 s{sT0}, s{sWave}, {513*4}
s_add_u32 s{sT0}, s{sT0}, {R0}
v_add_u32 v{aZw}, s{sT0}, v{vL4}
v_mul_u32_u24 v{t0}, {513*4}, v{vG}
v_lshlrev_b32 v{t1}, 4, v{vLo}
s_lshl_b32 s{sT0}, s{sWave}, 8
s_add_u32 s{sT1}, s{sT0}, {R0+4}
s_sub_u32 s{sT0}, {R0+4*(511-3)}, s{sT0}
v_add3_u32 v{aP}, v{t0}, v{t1}, s{sT1}
v_sub_u32 v{t0}, v{t0}, v{t1}
v_add_u32 v{aN}, s{sT0}, v{t0}
s_mul_i32 s{sX1o}, s{sS2}, {X1S}
s_lshl_b32 s{sT1}, s{sWave}, 11
s_add_u32 s{sX1o}, s{sX1o}, s{sT1}
s_add_u32 s{sX1o}, s{sX1o}, {X1}
v_and_b32 v{aFr}, 12, v{vL4}
v_add_u32 v{aFr}, {RF}, v{aFr}''')
cA=[c_F16,c_TW,c_G,c_M3,c_addrA]
for f in cA[:OPT['early']]: f()
k(f's_mov_b64 {S(sX,2)}, s[4:5]')
stamp('fkarg')
xr=op
for rho in range(2):
    for i in range(4):
        k(f'buffer_load_dword v{xr+4*rho+i}, v{vL4}, {S(sX,4)}, s{sXo+rho} offen offset:{256*i}')
sp.put(sXo,2)
k.barrier()
k(f'''s_load_dword s{sNon}, s[20:21], {NONCE}
s_mov_b64 {S(sWs,2)}, s[20:21]
s_mov_b64 {S(sOut,2)}, s[18:19]''')
for f in cA[OPT['early']:]: f()
tag_calc()
stamp('fconst')
F16,G16,G32,TW0,TWA=C['F16'],C['G16'],C['G32'],C['TW0'],C['TWA']
nsync={'n':0}
def sync_val():
    k(f"v_mov_b32 v{vPh}, {[0,2,6,8,12,14][nsync['n']+1]}"); nsync['pre']=1
def fsync(reads):
    nsync['n']+=1; n=[0,2,6,8,12,14][nsync['n']]
    if nsync.pop('pre',None) is None: k(f'v_mov_b32 v{vPh}, {n}')
    k(f'ds_write_b32 v{aFw}, v{vPh}')
    k.label(f'Sy{n}')
    k(f'ds_read_b32 v{t3}, v{aFr}')
    for r in reads: k(r)
    bound(f'Sy{n}')
    k(f'v_cmp_gt_u32 vcc, {n}, v{t3}')
    k(f's_cbranch_vccnz Sy{n}'); k.label(f'Sy{n}c')

def hint(n):
    if OPT.get('hint'): k(f'v_mov_b32 v{vPh}, {n}\nds_write_b32 v{aFw}, v{vPh}')
def pk(op_, d, *src, mods=''):
    k(f'{op_} {V(d,2)}, '+', '.join(V(x,2) if isinstance(x,int) else x for x in src)+(' '+mods if mods else ''))
sSt=sp.get(4,2)
def stats(xf, scale, a, part):
    if part<2:
        rho=part
        pk('v_pk_add_f32', a+4*rho, xf+8*rho, xf+8*rho+2)
        pk('v_pk_mul_f32', a+4*rho+2, xf+8*rho, xf+8*rho)
        for j in (2,4,6):
            if j>2: pk('v_pk_add_f32', a+4*rho, a+4*rho, xf+8*rho+j)
            pk('v_pk_fma_f32', a+4*rho+2, xf+8*rho+j, xf+8*rho+j, a+4*rho+2)
        for j in (0,2): k(f'v_add_f32 v{a+4*rho+j}, v{a+4*rho+j}, v{a+4*rho+j+1}')
        return
    k(f'v_permlane32_swap_b32 v{a}, v{a+4}')
    k(f'v_permlane32_swap_b32 v{a+2}, v{a+6}')
    k(f'v_add_f32 v{a}, v{a}, v{a+4}')
    k(f'v_add_f32 v{a+2}, v{a+2}, v{a+6}')
    for m in ('row_ror:8 row_mask:0xf','row_ror:4 row_mask:0xf','row_ror:2 row_mask:0xf','row_ror:1 row_mask:0xf','row_bcast:15 row_mask:0xa'):
        for j in (0,2): k(f'v_add_f32_dpp v{a+j}, v{a+j}, v{a+j} {m} bank_mask:0xf')
    q=1/(scale*scale)
    k(f'''v_mul_f32 v{a}, {fb(1/512)}, v{a}
v_mov_b32 v{a+9}, {fb(1e-5*q)}
v_fmamk_f32 v{a+2}, v{a+2}, {fb(q/512)}, v{a+9}''')
    if scale!=1: k(f'v_mul_f32 v{a+8}, {fb(q)}, v{a}')
    k(f'''v_fma_f32 v{a+2}, -v{a}, v{a+(8 if scale!=1 else 0)}, v{a+2}
v_max_f32 v{a+2}, v{a+9}, v{a+2}
v_rsq_f32 v{a+2}, v{a+2}''')
    k(f'''v_mul_f32 v{a}, -v{a}, v{a+2}
v_readlane_b32 s{sSt}, v{a+2}, 31
v_readlane_b32 s{sSt+1}, v{a}, 31
v_readlane_b32 s{sSt+2}, v{a+2}, 63
v_readlane_b32 s{sSt+3}, v{a}, 63''')
def normalize(xf,n):
    for rho in range(2):
        for j in range(0,8,2):
            pk('v_pk_fma_f32', n+8*rho+j, xf+8*rho+j, S(sSt+2*rho,2), S(sSt+2*rho,2), mods='op_sel:[0,0,1] op_sel_hi:[1,0,1]')
def R4(x): return V(x,4) if isinstance(x,int) else x
def mf32(d,a,b,c='0'): k(f'v_mfma_f32_16x16x32_bf16 {V(d,4)}, {R4(a)}, {R4(b)}, {R4(c)}')
def mf16(d,a,b): k(f'v_mfma_f32_16x16x16_bf16 {V(d,4)}, {V(a,2)}, {V(b,2)}, 0')
TC=vp.get(4); TC2=t0
def cmul_pack(dre,dim,tw,out,conj=True,swap=False,tc=None):
    c,s_=tw
    if tc is None: tc=TC
    ng='neg_lo:[1,0] neg_hi:[1,0]'; ng3='neg_lo:[1,0,0] neg_hi:[1,0,0]'
    for j in (0,2): pk('v_pk_mul_f32', tc+j, dre+j, c+j)
    for j in (0,2): pk('v_pk_mul_f32', dre+j, dre+j, s_+j, mods=ng if conj else '')
    for j in (0,2):
        pk('v_pk_fma_f32', tc+j, dim+j, s_+j, tc+j, mods='' if conj else ng3)
        pk('v_pk_fma_f32', dre+j, dim+j, c+j, dre+j)
    for r in range(4):
        a,b=(dre+r,tc+r) if swap else (tc+r,dre+r)
        k(f'v_cvt_pk_bf16_f32 v{out+r}, v{a}, v{b}')
def settag(r): k(f'v_bfi_b32 v{r}, v{vTm}, s{sTag}, v{r}')

def unpack_row(rho):
    for i in range(4):
        k(f'v_lshlrev_b32 v{xf+8*rho+i}, 16, v{xr+4*rho+i}')
        k(f'v_and_b32 v{xf+8*rho+4+i}, 0xffff0000, v{xr+4*rho+i}')
k.wait_regs([V(xr,4)]); unpack_row(0); stats(xf,1,D,0)
k.wait_regs([V(xr+4,4)])
stamp('xload')
with Sched(k,OPT.get('sch',1) and OPT['stamps'] in (0,2,7,8)):
    unpack_row(1); stats(xf,1,D,1); stats(xf,1,D,2)
    normalize(xf,D2)
    for e in range(2):
        for i in range(4): k(f'v_cvt_pk_bf16_f32 v{op+4*e+i}, v{D2+4*e+i}, v{D2+8+4*e+i}')
    for e in range(2):
        mf32(D+8*e, op+4*e, F16[0]); mf32(D+8*e+4, op+4*e, F16[1])
    for e in range(2):
        cmul_pack(D+8*e, D+8*e+4, (TW0,TWA)[e], op+4*e, tc=(TC,TC2)[e])
        Gm=(G16,G32)[e]
        mf32(D2+8*e, Gm[0], op+4*e); mf32(D2+8*e+4, Gm[1], op+4*e)
    for t in range(2):
        for j in (0,2,4,6): pk('v_pk_add_f32', D+8*t+j, D2+j, D2+8+j, mods='neg_lo:[0,1] neg_hi:[0,1]' if t else '')
        for r in range(4): k(f'v_cvt_pk_bf16_f32 v{op+4*t+r}, v{D+8*t+r}, v{D+8*t+4+r}')
        for nn in (2*t,2*t+1):
            k(f'ds_write2st64_b32 v{AD["Zw"]}, v{op+2*nn}, v{op+2*nn+1} offset0:{2*nn} offset1:{2*nn+1}')
    sync_val()
fsync([x for e in range(4) for x in (f'ds_read_b32 v{D2+8+2*e}, v{AD["P"]} offset:{4*e}', f'ds_read_b32 v{D2+8+2*e+1}, v{AD["N"]} offset:{4*(3-e)}')])
stamp('fAbar')
for e in range(4): mf16(D+4*e, M3, D2+8+2*e)
for e in range(4):
    for b0 in range(2): k(f'v_cvt_pk_bf16_f32 v{D2+4*b0+e}, v{D+4*e+2*b0}, v{D+4*e+2*b0+1}')
    if e: settag(D2+e-1)
settag(D2+3)
k(f'buffer_store_dwordx4 {V(D2,4)}, v{vL16}, {S(sWs,4)}, s{sX1o} offen sc1')
for e in range(4): settag(D2+4+e)
hA=k(f'buffer_store_dwordx4 {V(D2+4,4)}, v{vL16}, {S(sWs,4)}, s{sX1o} offen offset:1024 sc1')
stamp('Adone')
hint(3)
if OPT.get('fs'): k('s_setprio 0')
for r_,n_ in ((G32[2],4),(G32[3],4),(TWA[0],4),(TWA[1],4),(M3,2),(AD['Zw'],1),(AD['P'],1),(AD['N'],1)): vp.put(r_,n_)
sp.put(sX1o)

k(f'''v_fma_f32 v{t3}, v{fLo}, 2.0, 1.0
v_mul_f32 v{t0}, {fb(1/32)}, v{t3}
v_mul_f32 v{t1}, 4.0, v{t0}
v_mul_f32 v{t0}, v{t0}, v{fG}''')
H=mk_matrix(t0,t1,neg=True)
M3i=vp.get(2); u0=D+4; SC=2.0**(KS-21)
k(f'''v_lshrrev_b32 v{t0}, 2, v{vLo}
v_cvt_f32_u32 v{t0}, v{t0}
v_mul_f32 v{u0}, {fb(0.25)}, v{t0}
v_add_f32 v{u0}, v{u0}, v{fS2}
v_bfe_u32 v{t0}, v{vLo}, 1, 1
v_and_b32 v{t1}, 1, v{vLo}
v_cvt_f32_u32 v{t0}, v{t0}
v_cvt_f32_u32 v{t1}, v{t1}
v_fma_f32 v{t0}, v{t0}, 2.0, -1.0
v_mul_f32 v{t0}, {fb(0.25)}, v{t0}
v_mul_f32 v{u0+1}, v{t0}, v{t1}''')
for nn in range(2):
    k(f'''v_fma_f32 v{t1}, v{fG}, 2.0, {"1.0" if nn else "0"}
v_fma_f32 v{t2}, v{u0}, v{t1}, v{u0+1}
v_mul_f32 v{t1}, {fb(0.125)}, v{t1}
v_sub_f32 v{t1}, v{t1}, v{t0}
v_add_f32 v{t1}, v{t1}, v{t2}
v_cos_f32 v{c4}, v{t2}
v_sin_f32 v{c4+1}, v{t2}
v_cos_f32 v{c4+2}, v{t1}
v_sin_f32 v{c4+3}, v{t1}
v_add_f32 v{t1}, v{c4}, v{c4+2}
v_add_f32 v{t2}, v{c4+1}, v{c4+3}
v_mul_f32 v{t1}, {fb(SC)}, v{t1}
v_mul_f32 v{t2}, {fb(-SC)}, v{t2}
v_cvt_pk_bf16_f32 v{M3i+nn}, v{t1}, v{t2}''')
vp.put(fS2)
Wf=[vp.get(4) for _ in range(4)]
aF=vp.get(); aBin=vp.get(); aBw=vp.get(); aBr=vp.get(); sBo=sp.get(2,1); aOw=vp.get(); aOr=vp.get(); sX2o=sp.get()
k(f'''s_lshl_b32 s{sT0}, s{sWave}, 2
s_add_u32 s{sT0}, s{sT0}, {R2}
v_add_u32 v{aF}, s{sT0}, v{vL16}
s_mul_i32 s{sX2o}, s2, {X2S}
s_lshl_b32 s{sT1}, s{sWave}, 11
s_add_u32 s{sX2o}, s{sX2o}, s{sT1}
s_add_u32 s{sX2o}, s{sX2o}, {X2}
v_lshrrev_b32 v{t1}, 1, v{vL}
v_and_b32 v{t2}, 1, v{vL}
v_mul_u32_u24 v{aBin}, {X1S}, v{t1}
v_lshl_add_u32 v{aBin}, v{t2}, 4, v{aBin}
v_mul_u32_u24 v{aBw}, 4160, v{t2}
v_lshl_add_u32 v{aBw}, v{t1}, 3, v{aBw}
s_lshl_b32 s{sT0}, s{sWave}, 8
s_add_u32 s{sT0}, s{sT0}, {R1}
v_add_u32 v{aBw}, s{sT0}, v{aBw}
s_lshl_b32 s{sT0}, s{sWave}, 11
s_lshr_b32 s{sT1}, s{sWave}, 1
s_lshl_b32 s{sT1}, s{sT1}, 6
s_add_u32 s{sT0}, s{sT0}, s{sT1}
s_add_u32 s{sT0}, s{sT0}, {R1}
v_lshl_add_u32 v{aBr}, v{vL}, 3, s{sT0}
s_lshr_b32 s{sT0}, s{sJ}, 3
s_lshl_b32 s{sT0}, s{sT0}, 11
s_and_b32 s{sT1}, s{sXc}, 1
s_lshl_b32 s{sT1}, s{sT1}, 10
s_add_u32 s{sT0}, s{sT0}, s{sT1}
s_lshr_b32 s{sT1}, s{sXc}, 1
s_lshl_b32 s{sT1}, s{sT1}, 8
s_add_u32 s{sT0}, s{sT0}, s{sT1}
s_and_b32 s{sT1}, s{sJ}, 7
s_lshl_b32 s{sT1}, s{sT1}, 5
s_add_u32 s{sT0}, s{sT0}, s{sT1}
s_and_b32 s{sT1}, s{sWave}, 1
s_lshr_b32 s{sT2}, s{sWave}, 1
s_lshl_b32 s{sT2}, s{sT2}, 2
s_add_u32 s{sT1}, s{sT1}, s{sT2}
s_mul_i32 s{sT1}, s{sT1}, {32*X1S}
s_add_u32 s{sT0}, s{sT0}, s{sT1}''')
for i in range(2): k(f's_add_u32 s{sBo+i}, s{sT0}, {X1+64*i*X1S}')
assert all(swapbits(64*r)&4==0 for r in range(4))
if NB:
    k(f'''v_and_b32 v{t1}, {mA}, v{vL}
v_and_b32 v{t2}, {mB}, v{vL}
v_and_b32 v{t0}, {255&~(mA|mB)}, v{vL}
v_lshrrev_b32 v{t1}, {NB}, v{t1}
v_lshlrev_b32 v{t2}, {NB}, v{t2}
v_or3_b32 v{t0}, v{t0}, v{t1}, v{t2}''')
else: k(f'v_mov_b32 v{t0}, v{vL}')
k(f'''s_lshl_b32 s{sT0}, s{sWave}, 3
s_add_u32 s{sT0}, s{sT0}, {R0}
v_and_b32 v{t1}, 4, v{t0}
v_lshlrev_b32 v{t1}, 2, v{t1}
v_lshl_add_u32 v{t0}, v{t0}, 5, s{sT0}
v_xor_b32 v{aOw}, v{t0}, v{t1}
v_bfe_u32 v{t0}, v{vL}, 3, 1
v_xor_b32 v{t0}, v{t0}, v{vL}
s_lshl_b32 s{sT0}, s{sWave}, 11
s_add_u32 s{sT0}, s{sT0}, {R0}
v_lshl_add_u32 v{aOr}, v{t0}, 4, s{sT0}''')
ffn_roles(0); x3_off()
stamp('fS1')
if OPT.get('h4'): hint(4)
if not OPT.get('na'): k.wait_vm(hA)
if OPT.get('zb'):
    k.label('Zb'); k(f'ds_read_b32 v{t3}, v{aFr} offset:16'); bound('Zb'); k(f'v_cmp_gt_u32 vcc, {OPT["zb"]}, v{t3}\ns_cbranch_vccnz Zb'); k.label('Zbc')
if not OPT.get('h4'): hint(4)
if OPT.get('dB'): k(f"s_sleep {OPT['dB']}")

ld=D; ck=t0
loads=[f'buffer_load_dwordx4 {V(ld+4*i,4)}, v{aBin}, {S(sWs,4)}, s{sBo+i} offen sc1' for i in range(2)]
stamp('Bpoll')
for l in loads: k(l)
hint(5)
if OPT.get('fs'): k('s_setprio 3')
chk=[]
for nn in range(2):
    chk+=[f'v_xor_b32 v{op+2*e+nn}, s{sTag}, v{ld+4*nn+e}' for e in range(4)]
    if nn==0: chk+=[f'v_or3_b32 v{ck}, v{op}, v{op+2}, v{op+4}']
chk+=[f'v_or3_b32 v{ck+1}, v{op+6}, v{op+1}, v{op+3}', f'v_or3_b32 v{ck}, v{ck}, v{op+5}, v{op+7}',
      f'v_bitop3_b32 v{ck}, v{ck}, v{ck+1}, v{vTm} bitop3:0xa8', f'v_cmp_ne_u32 vcc, 0, v{ck}']
checked('B', loads, chk)
stamp('Bgot')
for e in range(4): k(f'ds_write_b64 v{aBw}, {V(op+2*e,2)} offset:{1024*e}')
fsync([f'ds_read_b64 {V(D2+4*e+2*ih,2)}, v{aBr} offset:{1024*e+512*ih}' for e in range(2) for ih in range(2)])
wrd=[f'ds_read_b32 v{t3}, v{aFr} offset:16']+[f'ds_read_b32 v{Wf[2+m]+r}, v{aF} offset:{4096*m+1024*r}' for m in range(2) for r in range(4)]
for e in range(2):
    mf32(D+8*e, D2+4*e, F16[0]); mf32(D+8*e+4, D2+4*e, F16[1])
stamp('fB0')
wq=list(wrd)
for x in wq[:5]: k(x)
cmul_pack(D, D+4, TW0, op)
for x in wq[5:7]: k(x)
mf32(D2, G16[0], op); mf32(D2+4, G16[1], op)
for x in wq[7:]: k(x)
cmul_pack(D+8, D+12, TW0, op+4)
k(f'v_cmp_gt_u32 vcc, 6, v{t3}')
k(f'v_and_b32 v{aFr}, 28, v{vL4}')
mf32(D2+8, G16[0], op+4); mf32(D2+12, G16[1], op+4)
k('s_cbranch_vccnz WSr'); k.label('WSc')
kk=Asm(); kk.label('WSr')
kk(f'v_and_b32 v{t2}, 12, v{vL4}\nv_add_u32 v{t2}, {RF}, v{t2}')
kk.label('WSl')
kk(wrd[0].replace(f'v{aFr} ',f'v{t2} '))
for x in wrd[1:]: kk(x)
kk(f'''s_add_u32 s{sSpin}, s{sSpin}, 1
s_cmp_lt_u32 s{sSpin}, {8*SPIN}
s_waitcnt lgkmcnt(0)
s_cbranch_scc0 WSc
v_cmp_gt_u32 vcc, 6, v{t3}
s_cbranch_vccnz WSl
s_branch WSc''')
tail.insert(0,kk.text())
k.wait_lg()
with Sched(k,OPT.get('sch',1) and OPT['stamps'] in (0,2,7,8)):
    for m in range(2):
        for r in range(4): k(f'v_lshlrev_b32 v{Wf[m]+r}, 16, v{Wf[2+m]+r}')
    for m in (2,3):
        for r in range(4): k(f'v_and_b32 v{Wf[m]+r}, 0xffff0000, v{Wf[m]+r}')
    k(f'v_add_u32 v{aFr}, {RF}, v{aFr}')
    for e in range(2):
        cmul_pack(D2+8*e, D2+8*e+4, (Wf[2*e], Wf[2*e+1]), op+4*e, conj=False, swap=True, tc=(TC,TC2)[e])
        mf32(D+8*e, op+4*e, F16[0]); mf32(D+8*e+4, op+4*e, F16[1])
    for e in range(2):
        cmul_pack(D+8*e, D+8*e+4, TW0, op+4*e, tc=(TC,TC2)[e])
        mf32(D2+8*e, G16[0], op+4*e); mf32(D2+8*e+4, G16[1], op+4*e)
    o2=Wf[0],Wf[1]
    for r in range(4):
        q=o2[r>>1]+2*(r&1)
        for e in range(2):
            k(f'v_cvt_pk_bf16_f32 v{q+e}, v{D2+8*e+4+r}, v{D2+8*e+r}'); settag(q+e)
        k(f'ds_write_b64 v{aOw}, {V(q,2)} offset:{swapbits(64*r)*32}')
    sync_val()
stamp('fB1')
fsync([f'ds_read_b128 {V(D+8+4*i,4)}, v{aOr} offset:{1024*i}' for i in range(2)])
stamp('fB2')
for i in range(2): hB=k(f'buffer_store_dwordx4 {V(D+8+4*i,4)}, v{vL16}, {S(sWs,4)}, s{sX2o} offen offset:{1024*i} sc1')
stamp('Bdone')
hint(9)
if OPT.get('fs'): k('s_setprio 0')
for r_,n_ in [(w_,4) for w_ in Wf]+[(aBin,1),(aBw,1),(aBr,1),(aOw,1),(aOr,1),(aF,1)]: vp.put(r_,n_)
sp.put(sBo,2); sp.put(sX2o)
k(f'v_fma_f32 v{t3}, v{fLo}, 2.0, 1.0\nv_mul_f32 v{t1}, {fb(1/512)}, v{t3}\nv_mul_f32 v{t0}, 4.0, v{fG}\nv_mul_f32 v{t0}, v{t0}, v{t1}')
TWC=cs(t0,t1)
nyq=vp.get(2); aCin=vp.get(); aCp=vp.get(); aCn=vp.get(); aCr=vp.get(2,1); sCo=sp.get(2,1)
aLw=vp.get(2,1); aLr=vp.get(); aHw=vp.get(); aHr=vp.get(); sHb=sp.get()
CB=R1+16; CS=2064
k(f'''v_and_b32 v{t0}, 0xcf, v0
v_mov_b32 v{t1}, 0.5
v_cmp_eq_u32 vcc, 0xcf, v{t0}
v_lshrrev_b32 v{t0}, 1, v{vLo}
v_lshlrev_b32 v{t0}, 2, v{t0}
v_cndmask_b32 v{nyq}, 1.0, v{t1}, vcc
v_cndmask_b32 v{nyq+1}, 0, v{t1}, vcc
v_add_u32 v{t0}, v{t0}, v{vG}
v_mul_u32_u24 v{t0}, {2*X2S}, v{t0}
v_and_b32 v{t1}, 1, v{vLo}
v_lshl_add_u32 v{aCin}, v{t1}, 4, v{t0}
s_mul_i32 s{sT0}, s{sWave}, {64*X2S}
s_lshl_b32 s{sT1}, s{sPos}, 5
s_add_u32 s{sT0}, s{sT0}, s{sT1}
s_add_u32 s{sCo}, s{sT0}, {X2}
s_add_u32 s{sCo+1}, s{sT0}, {X2+X2S}
v_mul_u32_u24 v{t0}, {CS}, v{vG}
v_lshlrev_b32 v{t1}, 4, v{vLo}
s_lshl_b32 s{sT0}, s{sWave}, 8
s_add_u32 s{sT1}, s{sT0}, {CB}
s_sub_u32 s{sT0}, {CB+1024+4*252}, s{sT0}
v_add3_u32 v{aCp}, v{t0}, v{t1}, s{sT1}
v_sub_u32 v{t0}, v{t0}, v{t1}
v_add_u32 v{aCn}, s{sT0}, v{t0}
s_mul_i32 s{sT0}, s{sWave}, {CS}
s_add_u32 s{sT0}, s{sT0}, {CB-4}
v_add_u32 v{aCr}, s{sT0}, v{vL4}
v_add_u32 v{aCr+1}, {1028}, v{aCr}
v_mov_b32 v{t0}, s{sT0}
v_mov_b32 v{t1}, 0
ds_write_b32 v{t0}, v{t1}
v_and_b32 v{t0}, 7, v{vL}
s_lshl_b32 s{sT0}, s{sWave}, 1
v_xor_b32 v{t0}, s{sT0}, v{t0}
v_lshlrev_b32 v{t0}, 4, v{t0}
v_lshl_add_u32 v{t0}, v{vL}, 7, v{t0}
v_add_u32 v{aLw}, {R0}, v{t0}
v_xor_b32 v{aLw+1}, 16, v{aLw}
v_lshrrev_b32 v{t0}, 3, v{vL}
v_xor_b32 v{t0}, v{t0}, v{vL}
s_lshl_b32 s{sT0}, s{sWave}, 11
s_add_u32 s{sT1}, s{sT0}, {R0}
v_lshl_add_u32 v{aLr}, v{t0}, 4, s{sT1}
s_add_u32 s{sT1}, s{sT0}, {RH}
v_add_u32 v{aHw}, s{sT1}, v{vL4}
v_add_u32 v{aHr}, s{sT1}, v{vL16}
s_lshl_b32 s{sHb}, s{sS2}, 13
s_add_u32 s{sHb}, s{sHb}, s{sT0}
s_add_u32 s{sHb}, s{sHb}, {HB}''')
stamp('fS3')
if OPT.get('h10'): hint(10)
k.wait_vm(hB)
if 'Z' in OPT.get('seq',''):
    k(f'v_or_b32 v{t2}, 16, v{aFr}')
    k.label('Zw'); k(f'ds_read_b32 v{t3}, v{t2}'); bound('Zw'); k(f'v_cmp_gt_u32 vcc, 101, v{t3}\ns_cbranch_vccnz Zw' if not OPT.get('zany') else f'v_cmp_le_u32 vcc, 101, v{t3}\ns_cbranch_vccz Zw'); k.label('Zwc')
elif not OPT.get('h10'):
    if OPT.get('dC0'): k(f"s_sleep {OPT['dC0']}")
    hint(10)
if OPT.get('dC'): k(f"s_sleep {OPT['dC']}")

loads=[f'buffer_load_dwordx4 {V(ld+4*i,4)}, v{aCin}, {S(sWs,4)}, s{sCo+i} offen sc1' for i in range(2)]
stamp('Cpoll')
for l in loads: k(l)
hint(11)
if OPT.get('fs'): k('s_setprio 3')
checked('C', loads, chk)
stamp('Cgot')
with Sched(k,OPT.get('sch',1) and OPT['stamps'] in (0,2,7,8)):
    for e in (3,0,1,2): mf16(D+4*e, M3i, op+2*e)
    pk('v_pk_mul_f32', D+14, D+14, nyq, mods='op_sel:[0,0] op_sel_hi:[1,0]')
    pk('v_pk_fma_f32', D+14, D+12, nyq, D+14, mods='op_sel:[0,1,0] op_sel_hi:[1,1,1]')
    for e in (3,0,1,2): k(f'v_cvt_pk_bf16_f32 v{D2+e}, v{D+4*e+1}, v{D+4*e}')
    k(f'ds_write_b128 v{aCp}, {V(D2,4)}')
    for e in (3,0,1,2): k(f'v_cvt_pk_bf16_f32 v{D2+4+3-e}, v{D+4*e+3}, v{D+4*e+2}')
    k(f'ds_write_b128 v{aCn}, {V(D2+4,4)}')
    sync_val()
fsync([f'ds_read2st64_b32 {V(op+4*t+2*nn,2)}, v{aCr+t} offset0:{2*nn} offset1:{2*nn+1}' for t in range(2) for nn in range(2)])
for e in range(2):
    for c in range(2): mf32(D+8*e+4*c, op, (F16,H)[e][c])
    for c in range(2): mf32(D+8*e+4*c, op+4, (F16[c],H[2+c])[e], D+8*e+4*c)
with Sched(k,OPT.get('sch',1) and OPT['stamps'] in (0,2,7,8)):
    for e in range(2):
        cmul_pack(D+8*e, D+8*e+4, (TW0,TWC)[e], D2+4*e, tc=(TC,TC2)[e])
        mf32(xf+4*e, G16[1], D2+4*e, xf+4*e)
        mf32(xf+8+4*e, G16[0], D2+4*e, xf+8+4*e)
hint(13)
with Sched(k,OPT.get('sch',1) and OPT['stamps'] in (0,2,7,8)):
    for part in range(3): stats(xf,CG,D,part)
    normalize(xf,D2)
    for rho in range(2):
        for i in range(4): k(f'v_cvt_pk_bf16_f32 v{op+4*rho+i}, v{D2+8*rho+i}, v{D2+8*rho+4+i}')
        k(f'ds_write_b128 v{aLw+rho}, {V(op+4*rho,4)}')
    sync_val()
fsync([f'ds_read_b128 {V(D+4*i,4)}, v{aLr} offset:{1024*i}' for i in range(2)])
for i in range(2): hC=k(f'buffer_store_dwordx4 {V(D+4*i,4)}, v{vL16}, {S(sWs,4)}, s{sX3o} offen offset:{1024*i} {LS}')
stamp('Cdone')
hint(15)
if OPT.get('fs'): k('s_setprio 0')
k(f's_mov_b32 s{sSt}, {fb(2.0**-KH)}')
for j in range(0,16,2): pk('v_pk_mul_f32', xf+j, xf+j, S(sSt,2), mods='op_sel_hi:[1,0]')
for rho in range(2):
    for i in range(4): k(f'v_cvt_pk_bf16_f32 v{D2+4*rho+i}, v{xf+8*rho+i}, v{xf+8*rho+4+i}')
    for i in range(4): settag(D2+4*rho+i)
    for nn in range(2): k(f'ds_write2st64_b32 v{aHw}, v{D2+4*rho+2*nn}, v{D2+4*rho+2*nn+1} offset0:{4*rho+2*nn} offset1:{4*rho+2*nn+1}')
for i in range(2): k(f'ds_read_b128 {A(4*i,4)}, v{aHr} offset:{1024*i}')
k.wait_lg()
sp.put(sCo,2); sp.put(sSt,4)
k(f'''s_or_b32 s{sT0}, s2, s{sWave}
s_cmp_lg_u32 s{sT0}, 0
s_cbranch_scc1 Lnon
v_mov_b32 v{t1}, s{sTag}
s_mov_b32 s{sT0}, {NONCE}''')
k.raw(f'    buffer_store_dword v{t1}, off, {S(sWs,4)}, s{sT0} sc1')
k.label('Lnon')

oF=gemm_setup(0); y_setup(oF)
k.wait_vm(hC)
if OPT.get('dG'): k(f"s_sleep {OPT['dG']}")
k.barrier()
stamp('Gbar')
k('s_setprio 3')
hst=[f'buffer_store_dwordx4 {A(4*i,4)}, v{vL16}, {S(sWs,4)}, s{sHb} offen offset:{1024*i} {LS}' for i in range(2)]
gemm1(0,oF,5,RING,lambda tp: hst if tp==12 else [])
y_tail(oF)
nF=k.count

path['p']='L'; sp.free=list(sp_common.free)
k.hist=[]; k.vm=vm_common; k.lg=[]
mark=len(k.out)
k.label('LSTUB')
k(f'''s_mov_b32 s{sX+2}, 1052672
s_mov_b32 s{sX+3}, 0x20000
v_min_u32 v{t0}, 8, v{vLo}
v_lshlrev_b32 v{t0}, 6, v{t0}
v_mul_u32_u24 v{t1}, 4112, v{vG}
v_add_u32 v{t0}, v{t0}, v{t1}
s_lshl_b32 s{sT0}, s{sJ}, 1
s_and_b32 s{sT1}, s{sWave}, 1
s_add_u32 s{sT0}, s{sT0}, s{sT1}
s_lshl_b32 s{sT0}, s{sT0}, 5
s_add_u32 s{sT0}, s{sT0}, s{sXc}
s_mul_i32 s{sT0}, s{sT0}, 514
s_cmp_lt_u32 s{sWave}, 2
s_waitcnt lgkmcnt(0)
s_cselect_b64 {S(sX,2)}, s[6:7], s[8:9]''')
if not OPT.get('fe'): k('s_barrier')
hF=k(f'buffer_load_ushort v33, v{t0}, {S(sX,4)}, s{sT0} offen')
if OPT.get('fe'): k('s_barrier')
k('s_branch LPATH')
stub='\n'.join(k.out[mark:]); del k.out[mark:]
k.label('LPATH')
vS=40; vR=64; vB=48; aF=52; vSent=56; vU=72
sFw=sp.get(2,1); sWr=sp.get(4,4); sWi=sp.get(4,4); sD=sp.get(); sPp=sp.get()
k(f'''s_bitcmp0_b32 s{sWave}, 0
s_cselect_b64 {S(sW1,2)}, s[12:13], s[14:15]
s_mov_b32 s{sW1+2}, {512*3584}
s_mov_b32 s{sW1+3}, 0x20000
s_lshl_b32 s{sT0}, s2, 1
s_lshr_b32 s{sT1}, s{sWave}, 1
s_add_u32 s{sT0}, s{sT0}, s{sT1}
s_mul_i32 s{sPp}, s{sT0}, {28*128}
v_min_u32 v35, 27, v{vL}
v_lshlrev_b32 v35, 7, v35''')
def l_p(): k(f'buffer_load_dword v34, v35, {S(sW1,4)}, s{sPp} offen')
if 'p' not in OPT['seq']: l_p()
stamp('fkarg')
k(f'''s_load_dword s{sNon}, s[20:21], {NONCE}
s_mov_b64 {S(sWd,2)}, s[16:17]
s_mov_b32 s{sWd+3}, 0x20000
s_mov_b64 {S(sX,2)}, s[20:21]
s_and_b32 s{sT0}, s2, 3
s_lshl_b32 s{sT0}, s{sT0}, 1
s_lshr_b32 s{sT1}, s{sWave}, 1
s_add_u32 s{sT0}, s{sT0}, s{sT1}
s_and_b32 s{sT1}, s{sWave}, 1
s_mul_i32 s{sT1}, s{sT1}, s{sT0}
s_cmp_lg_u32 s{sT1}, 0
s_cselect_b32 s{sWd+2}, {1792*1024}, 0
s_cselect_b32 s{sX+2}, {WSZ}, 0
s_max_u32 s{sT0}, s{sT0}, 1
s_sub_u32 s{sT0}, s{sT0}, 1
s_lshr_b32 s{sT1}, s2, 2
s_mul_i32 s{sT1}, s{sT1}, 7
s_add_u32 s{sT1}, s{sT1}, s{sT0}
s_lshl_b32 s{sT1}, s{sT1}, 12
s_add_u32 s{sD}, s{sT1}, {WD}
s_and_b32 s{sT1}, s{sT0}, 1
s_mul_i32 s{sT1}, s{sT1}, 14
s_lshr_b32 s{sT2}, s{sT0}, 1
s_add_u32 s{sT1}, s{sT1}, s{sT2}
s_lshr_b32 s{sT2}, s2, 7
s_cmp_eq_u32 s{sT0}, 6
s_cselect_b32 s{sT0}, 14, 4
s_mul_i32 s{sT0}, s{sT0}, s{sT2}
s_add_u32 s{sT1}, s{sT1}, s{sT0}
s_bfe_u32 s{sT2}, s2, 0x20002
s_mul_i32 s{sT2}, s{sT2}, 28
s_add_u32 s{sT1}, s{sT1}, s{sT2}
s_lshl_b32 s{sT1}, s{sT1}, 14
s_bfe_u32 s{sT2}, s2, 0x30004
s_lshl_b32 s{sT2}, s{sT2}, 7
s_add_u32 s{sB0}, s{sT1}, s{sT2}
v_and_b32 v{t0}, 1, v{vG}
v_lshlrev_b32 v{t0}, 1, v{t0}
v_and_b32 v{t2}, 7, v{vL}
v_xor_b32 v{t0}, v{t0}, v{t2}
v_lshrrev_b32 v{t1}, 3, v{vL}
v_lshlrev_b32 v{t0}, 4, v{t0}
v_lshl_add_u32 v{vS}, v{t1}, 10, v{t0}
v_xor_b32 v{t0}, 64, v{vS}
v_add_u32 v{vS+1}, {7*1024}, v{t0}
v_add_u32 v{vS+2}, {110*1024}, v{vS}
v_add_u32 v{vS+3}, {117*1024}, v{t0}
s_lshl_b32 s{sLq}, s{sWave}, 15
''')
def l_u():
    global hU
    k(f's_add_u32 m0, s{sLq}, {7*4096}')
    for i in range(4): hU=k(f'buffer_load_dwordx4 v{vS+i}, {S(sWd,4)}, s{sB0} offen offset:{i*1024} lds')
if 'u' not in OPT['seq']: l_u()
stamp('fp')
k(f'''s_mov_b64 {S(sWs,2)}, s[20:21]
s_mov_b64 {S(sWr,2)}, s[6:7]
s_mov_b64 {S(sWi,2)}, s[8:9]''')
srd_consts(((sWs,WSZ),(sWr,1052672),(sWi,1052672)))
ffn_roles(1); x3_off()
k(f'''v_and_b32 v{t0}, 255, v0
v_mul_u32_u24 v{aF}, 4112, v{t0}
s_mul_i32 s{sT0}, s{sXc}, 514
s_lshl_b32 s{sT1}, s{sJ}, 4
s_add_u32 s{sT0}, s{sT0}, s{sT1}
s_add_u32 s{sFw}, s{sT0}, 2
s_lshl_b32 s{sFw+1}, s{sWave}, 10''')
for i in range(4): k(f'v_mov_b32 v{vSent+i}, -1')
tr_addr(vR,None,sLq)
k(f'''v_bfe_u32 v{t1}, v{vL}, 3, 1
v_lshl_add_u32 v{t1}, v{vG}, 7, v{t1}
v_mul_u32_u24 v{t1}, 3584, v{t1}
v_and_b32 v{t0}, 1, v{vG}
v_lshlrev_b32 v{t0}, 1, v{t0}
v_and_b32 v{t2}, 7, v{vL}
v_xor_b32 v{t0}, v{t0}, v{t2}
s_and_b32 s{sT0}, s{sWave}, 1
s_lshl_b32 s{sT0}, s{sT0}, 2
v_xor_b32 v{t0}, s{sT0}, v{t0}
v_xor_b32 v{t2}, 4, v{t0}
s_lshr_b32 s{sT0}, s{sWave}, 1
s_mul_i32 s{sT1}, s{sT0}, {32*7168}
s_lshl_b32 s{sT0}, s{sF0}, 5
s_add_u32 s{sT0}, s{sT0}, s{sT1}
v_add_u32 v{t1}, s{sT0}, v{t1}
v_lshl_add_u32 v{vB}, v{t0}, 4, v{t1}
v_lshl_add_u32 v{t2}, v{t2}, 4, v{t1}
v_add_u32 v{vB+1}, {6144}, v{t2}
v_add_u32 v{vB+2}, {2*6144}, v{vB}
v_add_u32 v{vB+3}, {3*6144}, v{t2}''')
tag_calc()
k(f"s_setprio {OPT.get('pl',0)}")
aPk=60; ngate={'n':0}
def gate(mask):
    ngate['n']+=1; n=ngate['n']
    k.label(f'Gt{n}')
    k(f'ds_read_b32 v{aPk+1}, v{aPk}')
    bound(f'Gt{n}')
    k(f'v_readfirstlane_b32 s{sT0}, v{aPk+1}')
    k(f's_bitcmp0_b32 {mask}, s{sT0}')
    k(f's_cbranch_scc1 Gt{n}'); k.label(f'Gt{n}c')
k(f's_lshl_b32 s{sT0}, s{sWave}, 2\ns_add_u32 s{sT0}, s{sT0}, {RF}\nv_mov_b32 v{aPk}, s{sT0}')
RUN=sum(1<<int(x) for x in str(OPT['run']).split('.'))|0x18000
hl={}; oL=None; nb=0; sent=False; did=set()
def l_flag(v): k(f'v_mov_b32 v{vPh}, {v}\nds_write_b32 v{aFw}, v{vPh}')
for tok in str(OPT['seq']):
    did.add(tok)
    if tok.isdigit(): gate(0x1ffff&~((1<<int(tok))-1))
    elif tok in 'ghi':
        for m in {'g':(0,1),'h':(0,),'i':(1,)}[tok]:
            k(f's_add_u32 m0, s{sFw+1}, {R2+4096*m}')
            hl['g']=k(f'buffer_load_dwordx4 v{aF}, {S((sWr,sWi)[m],4)}, s{sFw} offen lds')
        stamp('f'+tok)
    elif tok=='F': k.wait_vm(hl['g']); l_flag(6); stamp('gflag')
    elif tok=='p': l_p()
    elif tok=='u': l_u()
    elif tok=='f': k.wait_vm(hF)
    elif tok=='V': k.wait_vm(hl['g']); l_flag(3)
    elif tok=='T':
        k.wait_vm(hU)
        for c in range(4):
            for x in range(2): k(f'ds_read_b64_tr_b16 {V(vU+4*c+2*x,2)}, v{vR+c} offset:{7*4096+x*512}')
    elif tok=='s':
        for i in range(2): hl['s']=k(f'buffer_store_dwordx4 {V(vSent,4)}, v{vL16}, {S(sWs,4)}, s{sX3o} offen offset:{1024*i} sc1')
    elif tok=='U':
        for c in range(4): hl['s']=k(f'buffer_store_dwordx4 {V(vU+4*c,4)}, v{vL16}, {S(sX,4)}, s{sD} offen offset:{1024*c} sc1')
        stamp('fU')
    elif tok=='S':
        assert did>=set('sUF'); k.wait_vm(hl['s']); l_flag(100); stamp('fsent'); sent=True
    elif tok=='A':
        oL=gemm_setup(1); x_setup(oL)
        wq=[([f's_add_u32 s{sB0}, s{oL["sWo"]}, {4096*b}'] if c==0 else [])+[f'buffer_load_dwordx4 {A(16*b+4*c,4)}, v{vL16}, {S(sWs,4)}, s{sB0} offen offset:{1024*c} sc1'] for b in range(7) for c in range(4)]
    elif tok=='a':
        k.label('Aw'); k(f'ds_read_b32 v{aPk+1}, v{aPf}'); bound('Aw'); k(f'v_cmp_gt_u32 vcc, 12, v{aPk+1}\ns_cbranch_vccnz Aw'); k.label('Awc')
    elif tok in 'wW':
        assert 'a' in did
        for i in range(4):
            if tok=='W' and i%OPT.get('gew',2)==0: gate(RUN)
            for x in wq.pop(0): k(x)
            if len(k.vm)>OPT.get('thrw',10): k(f"s_waitcnt vmcnt({OPT.get('thrw',10)})")
    elif tok=='Z':
        k(f"s_waitcnt vmcnt({OPT['zt']})"); l_flag(101); stamp('fZ')
        gate(0x1ffff&~((1<<OPT.get('zr',11))-1))
    else:
        assert tok in 'bB' and (nb<7 or 'U' in did)
        if nb==7: stamp('wdone')
        k(f's_add_u32 m0, s{sLq}, {nb*4096}\ns_mov_b32 s{sB0}, {nb*4*7168}'); nb+=1
        for i in range(4):
            hl['b']=k(f'buffer_load_dwordx4 v{vB+i}, {S(sW1,4)}, s{sB0} offen offset:{i*1024} lds')
            if len(k.vm)>OPT['thr']: k(f"s_waitcnt vmcnt({OPT['thr']})")
            if tok=='B' and i%OPT['ge']==OPT['ge']-1: gate(RUN|(0 if sent else 0x1c0))
    if tok=='F':
        for r_,n_ in ((sFw,2),(sWr,4),(sWi,4)): sp.put(r_,n_)
assert nb==8 and sent
NRL=OPT.get('nrl',7); BL=128-8*NRL
k.wait_vm(hl['b'])
stamp('bdone')
k.barrier()
stamp('Gbar')
k(f"s_setprio {OPT.get('pw',2)}")
if OPT.get('lw'):
    k.label('Lw'); k(f'ds_read_b32 v{aPk+1}, v{aPf}'); bound('Lw'); k(f'v_cmp_gt_u32 vcc, 17, v{aPk+1}\ns_cbranch_vccnz Lw'); k.label('Lwc')
pre=0
for tok in OPT['post']:
    if tok=='A' and pre==NRL: continue
    if tok=='A': it=[[l] for l in g1_loads(oL,pre,NRL,BL)]; pre+=1
    else: it=[wq.pop(0) for _ in range(4) if wq]
    for q in it:
        for x in q: k(x)
        if len(k.vm)>OPT['yw']: k(f"s_waitcnt vmcnt({OPT['yw']})")
oL['pre']=pre; oL['wq']=wq
k('s_setprio 2')
stamp('wdef')
x_tail(oL)

hdr=f'''; Fused persistent kernel: LN -> 2-D FFT filter (MFMA DFT stages) -> LN -> GEGLU FFN, 256 workgroups.
; @launch grid=(256,1,1) block=(512,1,1) lds={LDSZ}
.amdgcn_target "amdgcn-amd-amdhsa--gfx950"
.text
.globl {KN}
.p2align 8
.type {KN},@function
'''
ftr=f'''
CODE_END:
.section .rodata,"a"
.p2align 6
.amdhsa_kernel {KN}
  .amdhsa_next_free_vgpr 256
  .amdhsa_next_free_sgpr 102
  .amdhsa_accum_offset 128
  .amdhsa_group_segment_fixed_size 0
  .amdhsa_kernarg_size 80
  .amdhsa_user_sgpr_count 2
  .amdhsa_user_sgpr_kernarg_segment_ptr 1
  .amdhsa_system_sgpr_workgroup_id_x 1
.end_amdhsa_kernel
'''
open(sys.argv[1],'w').write(hdr+k.text().replace('@STUB@',stub)+'\n'+'\n'.join(tail)+ftr+(''.join('; STAMPS '+' '.join(n for n,_ in stamps[p])+' cnt\n' for p in 'FL') if OPT['stamps'] else ''))
open(sys.argv[1]+'.stamps','w').write('\n'.join(' '.join(n for n,_ in stamps[p])+' cnt' for p in 'FL'))
print('instrs F',nF,'total',k.count,'nops',k.nops,'vp hi',vp.hi,'sp hi',sp.hi, file=sys.stderr)
```
